```python
import torch

def _softmax(x, axis=-1):
    return torch.softmax(x, dim=axis)
def _gelu(x):
    return torch.nn.functional.gelu(x, approximate="tanh")
def _silu(x):
    return torch.nn.functional.silu(x)
def _sigmoid(x):
    return torch.sigmoid(x)
def _layernorm(x, axis=-1, eps=1e-5):
    m = x.mean(dim=axis, keepdim=True)
    v = x.var(dim=axis, keepdim=True, unbiased=False)
    return (x - m) / torch.sqrt(v + eps)
def _scatter_add(tgt, idx, src, axis=0):
    return tgt.clone().index_add_(axis, idx, src)
def _segment_sum(src, seg, n):
    out = torch.zeros((n,) + src.shape[1:], dtype=src.dtype)
    return out.index_add_(0, seg, src)
def _pad(x, pw):
    flat = tuple(v for pair in reversed(pw) for v in pair)
    return torch.nn.functional.pad(x, flat)

kernel_name = 'recurrent_scan__ssm_conv_h3__geglu_ffn__prompt'

def setup_inputs():

    _w = (lambda a: (lambda t: t.to(torch.bfloat16) if t.is_floating_point() else t)(torch.as_tensor(a)))
    def _A_setup():
        B, S, D = 1, 2048, 448
        ks = 4
        return {
            "q": _w((lambda *s: torch.randn(*s, dtype=torch.bfloat16) * 0.05)(B, S, D)),
            "k": _w((lambda *s: torch.randn(*s, dtype=torch.bfloat16) * 0.2)(B, S, D)),
            "v": _w((lambda *s: torch.randn(*s, dtype=torch.bfloat16) * 0.2)(B, S, D)),
            "shift_k": _w((lambda *s: torch.randn(*s, dtype=torch.bfloat16) * 0.2)(D, ks) * 0.5),
            "ssm_k": _w((lambda *s: torch.randn(*s, dtype=torch.bfloat16) * 0.2)(D, S) * (1.0 / S ** 0.5)),
            "ssm_D": _w((lambda *s: torch.randn(*s, dtype=torch.bfloat16) * 0.2)(D)),
        }
    _A_in = _A_setup()

    def _B_setup():
        B, S, D, F = 1, 2048, 448, 1792
        return {
            "x": _w((lambda *s: torch.randn(*s, dtype=torch.bfloat16) * 0.05)(B, S, D)),
            "w_gate": _w((lambda *s: torch.randn(*s, dtype=torch.bfloat16) * 0.1)(D, F)),
            "w_up": _w((lambda *s: torch.randn(*s, dtype=torch.bfloat16) * 0.1)(D, F)),
            "w_down": _w((lambda *s: torch.randn(*s, dtype=torch.bfloat16) * 0.1)(F, D)),
        }
    _B_in = _B_setup()

    return {
        "A_q": _A_in["q"],
        "A_k": _A_in["k"],
        "A_v": _A_in["v"],
        "A_shift_k": _A_in["shift_k"],
        "A_ssm_k": _A_in["ssm_k"],
        "A_ssm_D": _A_in["ssm_D"],
        "B_x": _B_in["x"],
        "B_w_gate": _B_in["w_gate"],
        "B_w_up": _B_in["w_up"],
        "B_w_down": _B_in["w_down"],
    }

def reference(A_q, A_k, A_v, A_shift_k, A_ssm_k, A_ssm_D, B_x, B_w_gate, B_w_up, B_w_down):
    def _A_ref(q, k, v, shift_k, ssm_k, ssm_D):
        B, S, D = q.shape
        ks = shift_k.shape[-1]
        k_pad = _pad(k, ((0, 0), (ks - 1, 0), (0, 0)))
        k_shift = torch.zeros_like(k)
        for t in range(ks):
            k_shift = k_shift + k_pad[:, t:t + S, :] * shift_k[:, ks - 1 - t][None, None, :]
        kv = k_shift * v
        L = 2 * S
        kv_pad = _pad(kv, ((0, 0), (0, S), (0, 0)))
        kf_pad = _pad(ssm_k, ((0, 0), (0, S)))
        kv_f = (lambda x, axes=(-2,-1): torch.fft.rfft2(x.float(), dim=axes))(kv_pad[:, None, :, :], axes=(1, 2))
        kf_f = (lambda x, axes=(-2,-1): torch.fft.rfft2(x.float(), dim=axes))(kf_pad[:, None, :], axes=(1, 2))
        kf_f = (lambda x, *d: x.permute(*d))(kf_f, 1, 2, 0)
        y_f = kv_f * kf_f[None, :, :, :]
        y = (lambda x, s, axes=(-2,-1): torch.fft.irfft2(x, s=s, dim=axes).to(torch.bfloat16))(y_f, (1, L), axes=(1, 2))[:, 0, :S, :]
        y = y + kv * ssm_D[None, None, :]
        return q * y

    def _B_ref(x, w_gate, w_up, w_down):
        return (_gelu(x @ w_gate) * (x @ w_up)) @ w_down

    x = A_q
    xn = _layernorm(x, axis=-1)
    s = _A_ref(xn, A_k, A_v, A_shift_k, A_ssm_k, A_ssm_D)
    g = _silu(_B_ref(xn, B_w_gate, B_w_up, B_w_down))
    return x + s * g
```

```python
class Asm:
    def __init__(self):
        self.lines = []
        self.uid = 0
    def __call__(self, s=""):
        for l in s.strip("\n").split("\n"):
            self.lines.append(l)
    def label(self, name):
        self.lines.append(name + ":")
    def newlabel(self, p="L"):
        self.uid += 1
        return f"{p}_{self.uid}"
    def text(self):
        return "\n".join(self.lines) + "\n"

def header(launch_lines, extra=""):
    s = ""
    for l in launch_lines:
        s += "; @launch " + l + "\n"
    s += extra
    s += '.amdgcn_target "amdgcn-amd-amdhsa--gfx950"\n.text\n'
    return s

def kstart(name):
    return f".globl {name}\n.p2align 8\n.type {name},@function\n{name}:\n"

def kdesc(name, vgpr=256, sgpr=102, accum=None, kernarg=104, wgy=False):
    if accum is None:
        accum = min(256, (vgpr + 3) // 4 * 4)
    s = f'.section .rodata,"a"\n.p2align 6\n.amdhsa_kernel {name}\n'
    s += f"  .amdhsa_next_free_vgpr {vgpr}\n  .amdhsa_next_free_sgpr {sgpr}\n  .amdhsa_accum_offset {accum}\n"
    s += f"  .amdhsa_group_segment_fixed_size 0\n  .amdhsa_kernarg_size {kernarg}\n"
    s += "  .amdhsa_user_sgpr_count 2\n  .amdhsa_user_sgpr_kernarg_segment_ptr 1\n  .amdhsa_system_sgpr_workgroup_id_x 1\n"
    if wgy:
        s += "  .amdhsa_system_sgpr_workgroup_id_y 1\n"
    s += ".end_amdhsa_kernel\n.text\n"
    return s
```

```python
import math, struct, sys
from dsl import *

S, D, F = 2048, 448, 1792
KN = "recurrent_scan__ssm_conv_h3__geglu_ffn__prompt_kernel"
def f2u(x): return struct.unpack('<I', struct.pack('<f', x))[0]
def fh(x): return hex(f2u(x))

WS_EPOCH = 0
WS_FA = 0x1000
WS_FK = 0x2000
WS_FH = 0x4000
WS_FZ = 0x8000
WS_STATS = 65536
WS_CS    = WS_STATS + 2048*8
WS_KVT   = 131072
WS_ZP    = WS_KVT + D*S*2
WS_H     = WS_ZP + D*S*2
WS_END   = WS_H + 64*112*1024
WS_STAMPS = 40<<20

KA = dict(q=0,k=8,v=16,shk=24,ssmk=32,ssmD=40,bx=48,wg=56,wu=64,wd=72,out=80,dbg=88,ws=96)
C1 = -2*math.sqrt(2/math.pi)*math.log2(math.e)
C2 = C1*0.044715
LDS_TOTAL = 163840

class G:
    def __init__(self):
        self.a = Asm()
        self.vmops = []
        self.ldops = []
    def __call__(self, s): self.a(s)
    def vm(self, s, tag=None):
        self.a(s); self.vmops.append(tag)
    def vwait(self, tag):
        idx = max(i for i, t in enumerate(self.vmops) if t == tag)
        n = len(self.vmops) - 1 - idx
        assert n <= 63, n
        self.a(f"s_waitcnt vmcnt({n})")
    def vreset(self): self.vmops = []
    def ld(self, s, tag=None):
        self.a(s); self.ldops.append(tag)
    def lwait(self, tag):
        idx = max(i for i, t in enumerate(self.ldops) if t == tag)
        n = min(15, len(self.ldops) - 1 - idx)
        self.a(f"s_waitcnt lgkmcnt({n})")
    def emit(self, s, tag=None):
        if s == "VWAIT": self.vwait(tag)
        elif s == "LWAIT": self.lwait(tag)
        elif s.startswith("buffer_"): self.vm(s, tag)
        elif s.startswith("ds_"): self.ld(s, tag)
        else: self.a(s)
    def lab(self, n): self.a.label(n)

def srd_load(g, r, name):
    g(f"s_load_dwordx2 s[{r}:{r+1}], s[0:1], {KA[name]}")
def srd_fix(g, r, size):
    g(f"s_and_b32 s{r+1}, s{r+1}, 0xffff\ns_mov_b32 s{r+2}, {size}\ns_mov_b32 s{r+3}, 0x20000")

sX, sWG, sWU, sWS, sWD, sSK, sOUT, sDD = 4, 8, 12, 16, 20, 24, 28, 32
s_w, s_mi, s_fi, s_mf, s_ns = 36, 37, 38, 39, 40
s_xoff, s_woff, s_m0x, s_m0w = 41, 42, 43, 44
s_t0, s_t1, s_t2, s_t3 = 45, 46, 47, 48
s_hoff = 49
s_tag = 50
s_spin = 51
STAMP0 = 56
NSTAMP = 19
def stamp(g, i, on=True):
    if on: g(f"s_memtime s[{STAMP0+2*i}:{STAMP0+2*i+1}]")
def dump_stamps(g, n=NSTAMP):
    g(f"""s_waitcnt lgkmcnt(0) vmcnt(0)
    s_memrealtime s[{STAMP0+2*n}:{STAMP0+2*n+1}]
    s_waitcnt lgkmcnt(0)
    s_mov_b32 s{sWS+2}, 0x7fffffff
    s_lshl_b32 s{s_t0}, s2, 9
    s_lshl_b32 s{s_t1}, s{s_w}, 7
    s_add_u32 s{s_t0}, s{s_t0}, s{s_t1}
    s_add_u32 s{s_t0}, s{s_t0}, {WS_STAMPS}
    v_mov_b32 v2, 0""")
    for i in range(n+1):
        g(f"v_mov_b32 v3, s{STAMP0+2*i}\nbuffer_store_dword v3, v2, s[{sWS}:{sWS+3}], s{s_t0} offen offset:{4*i}")
    g("s_waitcnt vmcnt(0)")

def load_tag(g):
    g(f"s_load_dword s{s_tag}, s[{sWS}:{sWS+1}], {WS_EPOCH}")
def make_tag(g):
    g(f"s_mul_i32 s{s_tag}, s{s_tag}, 0x9E3779B1\ns_add_u32 s{s_tag}, s{s_tag}, 0x7F4A7C15")

def rnd_bf16(g, r, tmp=None):
    g(f"v_cvt_pk_bf16_f32 v{r}, v{r}, v{r}\nv_lshlrev_b32 v{r}, 16, v{r}")

def publish_flag(g, off_expr_sgpr, lab):
    g("s_waitcnt vmcnt(0)\ns_barrier")
    g(f"""s_cmp_lg_u32 s{s_w}, 0
    s_cbranch_scc1 {lab}
    v_mov_b32 v2, 0
    v_mov_b32 v3, s{s_tag}
    s_mov_b64 exec, 1
    buffer_store_dword v3, v2, s[{sWS}:{sWS+3}], s{off_expr_sgpr} offen sc1
    s_mov_b64 exec, -1
    {lab}:""")

def flag_store(g, off_sgpr, lab, vt=14):
    g(f"""s_cmp_lg_u32 s{s_w}, 0
    s_cbranch_scc1 {lab}
    v_mov_b32 v{vt}, 0
    v_mov_b32 v{vt+1}, s{s_tag}
    s_mov_b64 exec, 1
    buffer_store_dword v{vt+1}, v{vt}, s[{sWS}:{sWS+3}], s{off_sgpr} offen sc1
    s_mov_b64 exec, -1
    {lab}:""")

def spare(g, flags=True, stamps=False):
    sWC = 32
    s_j = 37
    vl = 1
    LC = 0
    srd_load(g, sX, 'q'); srd_load(g, sWG, 'wg'); srd_load(g, sWU, 'wu'); srd_load(g, sWS, 'ws')
    g(f"""
    v_and_b32 v{vl}, 63, v0
    v_lshrrev_b32 v2, 6, v0
    s_sub_u32 s{s_j}, s2, 224
    v_readfirstlane_b32 s{s_w}, v2
    v_and_b32 v3, 15, v{vl}              ; n / p
    v_lshrrev_b32 v4, 4, v{vl}           ; q / rgl
    s_lshl_b32 s{s_t0}, s{s_w}, 4
    v_add_u32 v5, s{s_t0}, v3            ; 16w + n
    v_mul_u32_u24 v5, 896, v5
    v_lshl_add_u32 v5, v4, 4, v5         ; R voffset
    s_mul_i32 s{s_xoff}, s{s_j}, {64*896}
    s_lshl_b32 s{s_t0}, s{s_w}, 2
    v_add_u32 v6, s{s_t0}, v4
    v_mul_u32_u24 v6, 3584, v6
    v_lshl_add_u32 v6, v3, 4, v6         ; C voffset
    s_cmp_ge_u32 s{s_j}, 14
    s_cselect_b32 s{s_t1}, 14, 0
    s_sub_u32 s{s_fi}, s{s_j}, s{s_t1}   ; fb
    s_lshl_b32 s{s_woff}, s{s_fi}, 8
    s_waitcnt lgkmcnt(0)
    """)
    load_tag(g)
    g(f"""s_cmp_ge_u32 s{s_j}, 14
    s_cselect_b32 s{sWC}, s{sWU}, s{sWG}
    s_cselect_b32 s{sWC+1}, s{sWU+1}, s{sWG+1}""")
    srd_fix(g, sX, S*D*2); srd_fix(g, sWC, D*F*2); srd_fix(g, sWS, WS_END)
    stamp(g, 0, stamps)
    RB = 16
    for ks in range(14):
        g(f"buffer_load_dwordx4 v[{RB+4*ks}:{RB+4*ks+3}], v5, s[{sX}:{sX+3}], s{s_xoff} offen offset:{64*ks}")
    CB = 72
    g(f"s_cmp_ge_u32 s{s_j}, 28\ns_cbranch_scc1 SP_noC1")
    g(f"s_mov_b32 s{s_t3}, s{s_woff}")
    for i in range(28):
        g(f"buffer_load_dwordx4 v[{CB+4*i}:{CB+4*i+3}], v6, s[{sWC}:{sWC+3}], s{s_t3} offen")
        if i < 27: g(f"s_add_u32 s{s_t3}, s{s_t3}, {16*3584}")
    g("s_waitcnt vmcnt(28)\ns_branch SP_w1\nSP_noC1:\ns_waitcnt vmcnt(0)\nSP_w1:")
    stamp(g, 1, stamps)
    g("v_mov_b32 v8, 0x3f803f80\nv_mov_b32 v9, 0x3f803f80\nv_mov_b32 v10, 0x3f803f80\nv_mov_b32 v11, 0x3f803f80\ns_nop 1")
    D1, D2 = 184, 188
    for ks in range(14):
        A = f"v[{RB+4*ks}:{RB+4*ks+3}]"
        c1 = "0" if ks == 0 else f"v[{D1}:{D1+3}]"
        c2 = "0" if ks == 0 else f"v[{D2}:{D2+3}]"
        g(f"v_mfma_f32_16x16x32_bf16 v[{D1}:{D1+3}], {A}, v[8:11], {c1}")
        g(f"v_mfma_f32_16x16x32_bf16 v[{D2}:{D2+3}], {A}, {A}, {c2}")
    g(f"""
    v_and_b32 v12, 3, v{vl}
    v_cmp_eq_u32 s[90:91], 1, v12
    v_cmp_eq_u32 s[92:93], 2, v12
    v_cmp_eq_u32 s[94:95], 3, v12
    v_lshrrev_b32 v13, 2, v3              ; n>>2
    v_cmp_eq_u32 s[96:97], v13, v4        ; q == n>>2
    s_nop 7
    v_cndmask_b32 v{D1}, v{D1}, v{D1+1}, s[90:91]
    v_cndmask_b32 v{D2}, v{D2}, v{D2+1}, s[90:91]
    v_cndmask_b32 v{D1}, v{D1}, v{D1+2}, s[92:93]
    v_cndmask_b32 v{D2}, v{D2}, v{D2+2}, s[92:93]
    v_cndmask_b32 v{D1}, v{D1}, v{D1+3}, s[94:95]
    v_cndmask_b32 v{D2}, v{D2}, v{D2+3}, s[94:95]
    v_mul_f32 v{D1}, {fh(1.0/448)}, v{D1}            ; mean
    v_mul_f32 v{D2}, {fh(1.0/448)}, v{D2}            ; E[x^2]
    v_fma_f32 v{D2}, -v{D1}, v{D1}, v{D2}            ; var
    v_max_f32 v{D2}, 0, v{D2}
    """)
    rnd_bf16(g, D1); rnd_bf16(g, D2)
    g(f"v_add_f32 v{D2}, {fh(1e-5)}, v{D2}"); rnd_bf16(g, D2)
    g(f"v_sqrt_f32 v{D2}, v{D2}\ns_nop 0"); rnd_bf16(g, D2)
    g(f"""
    v_mov_b32 v{D1+1}, v{D2}
    s_lshl_b32 s{s_t0}, s{s_j}, 9
    s_lshl_b32 s{s_t1}, s{s_w}, 7
    s_add_u32 s{s_t0}, s{s_t0}, s{s_t1}
    s_add_u32 s{s_t0}, s{s_t0}, {WS_STATS}
    v_lshlrev_b32 v13, 3, v3
    s_mov_b64 exec, s[96:97]
    buffer_store_dwordx2 v[{D1}:{D1+1}], v13, s[{sWS}:{sWS+3}], s{s_t0} offen sc1
    s_mov_b64 exec, -1
    """)
    stamp(g, 2, stamps)
    g(f"s_cmp_ge_u32 s{s_j}, 28\ns_cbranch_scc1 SP_noC2")
    CA = 200
    g(f"s_mov_b32 s90, 0x00003f80\ns_mov_b32 s91, 0x3f800000")
    for c in range(8): g(f"v_mov_b32 v{CA+c}, 0")
    g("s_waitcnt vmcnt(1)")
    g(f"s_mov_b32 s{s_t0}, 0")
    g.lab("SP_Cloop")
    g(f"s_set_gpr_idx_on s{s_t0}, gpr_idx(SRC0)")
    for i in range(7):
        for q in range(4):
            g(f"v_dot2_f32_bf16 v{CA+2*q}, v{CB+4*i+q}, s90, v{CA+2*q}")
            g(f"v_dot2_f32_bf16 v{CA+2*q+1}, v{CB+4*i+q}, s91, v{CA+2*q+1}")
    g(f"""s_set_gpr_idx_off
    s_add_u32 s{s_t0}, s{s_t0}, 28
    s_cmp_lt_u32 s{s_t0}, 112
    s_cbranch_scc1 SP_Cloop""")
    g(f"""
    s_lshl_b32 s{s_t0}, s{s_w}, 2
    v_add_u32 v13, s{s_t0}, v4            ; rg
    v_lshlrev_b32 v13, 9, v13
    v_lshl_add_u32 v13, v3, 5, v13
    v_add_u32 v13, {LC}, v13
    s_nop 2
    ds_write_b128 v13, v[{CA}:{CA+3}]
    ds_write_b128 v13, v[{CA+4}:{CA+7}] offset:16
    s_waitcnt lgkmcnt(0)
    s_barrier
    s_cmp_ge_u32 s{s_w}, 2
    s_cbranch_scc1 SP_noC2
    v_lshlrev_b32 v13, 2, v0
    v_add_u32 v14, {LC}, v13
    """)
    for r in range(16): g(f"ds_read_b32 v{CB+r}, v14 offset:{512*r}")
    g("s_waitcnt lgkmcnt(0)")
    for r in range(8): g(f"v_add_f32 v{CB+r}, v{CB+r}, v{CB+r+8}")
    for r in range(4): g(f"v_add_f32 v{CB+r}, v{CB+r}, v{CB+r+4}")
    g(f"v_add_f32 v{CB}, v{CB}, v{CB+2}\nv_add_f32 v{CB+1}, v{CB+1}, v{CB+3}\nv_add_f32 v{CB}, v{CB}, v{CB+1}")
    g(f"""
    s_cmp_ge_u32 s{s_j}, 14
    s_cselect_b32 s{s_t0}, 7168, 0
    s_lshl_b32 s{s_t1}, s{s_fi}, 9
    s_add_u32 s{s_t0}, s{s_t0}, s{s_t1}
    s_add_u32 s{s_t0}, s{s_t0}, {WS_CS}
    buffer_store_dword v{CB}, v13, s[{sWS}:{sWS+3}], s{s_t0} offen sc1
    SP_noC2:
    """)
    stamp(g, 3, stamps)
    g("s_waitcnt vmcnt(0) lgkmcnt(0)")
    make_tag(g)
    g("s_barrier")
    if flags:
        g(f"s_lshl_b32 s{s_t0}, s{s_j}, 6\ns_add_u32 s{s_t0}, s{s_t0}, {WS_FA}")
        flag_store(g, s_t0, "SP_nf1")
    stamp(g, 4, stamps)


LX = 0; LW = 49152; LST = 147456
LKT = 114688; LVT = LKT + 9216; LKO = LVT + 8192
RING = 20480
LCV = 81920; CVCH = 21248; CVCOPY = 4160; CVU = 16640

sKK, sVV, sSH = 20, 24, 28
s_hi, s_ct = 52, 53
s_zoff = 54
s_t4 = 3

v_lane = 1
v_xd = 2
v_wd = 6
v_xa = 10
v_wa = 14
v_l16 = 18
v_poll = 68
v_hv = 70
v_tch = 71
v_fr = 20
v_acc = 128
def accg(ft, nt): return v_acc + (ft*2+nt)*16
def accu(ft, nt): return v_acc + 64 + (ft*2+nt)*16

def poll_flags(g, name, base_sgpr_or_imm, nflags, vt=v_poll, stride=64, on=True):
    if not on: return
    g(f"""
    v_min_u32 v{vt}, {nflags-1}, v{v_lane}
    v_mul_u32_u24 v{vt}, {stride}, v{vt}
    s_mov_b32 s{s_spin}, 0x8000
    {name}_loop:
    buffer_load_dword v{vt+1}, v{vt}, s[{sWS}:{sWS+3}], s{base_sgpr_or_imm} offen sc1
    s_waitcnt vmcnt(0)
    v_cmp_ne_u32 vcc, s{s_tag}, v{vt+1}
    s_cbranch_vccz {name}_done
    s_sleep 2
    s_sub_u32 s{s_spin}, s{s_spin}, 1
    s_cmp_lg_u32 s{s_spin}, 0
    s_cbranch_scc1 {name}_loop
    {name}_done:
    """)

def poll_body(g, name, base_sgpr, issued_tag=None):
    vt = v_poll
    if issued_tag is not None:
        g.vwait(issued_tag)
        g(f"v_cmp_ne_u32 vcc, s{s_tag}, v{vt+1}\ns_cbranch_vccz {name}_done")
    g(f"""
    s_mov_b32 s{s_spin}, 0x8000
    {name}_loop:
    buffer_load_dword v{vt+1}, v{vt}, s[{sWS}:{sWS+3}], s{base_sgpr} offen sc1
    s_waitcnt vmcnt(0)
    v_cmp_ne_u32 vcc, s{s_tag}, v{vt+1}
    s_cbranch_vccz {name}_done
    s_sleep 1
    s_sub_u32 s{s_spin}, s{s_spin}, 1
    s_cmp_lg_u32 s{s_spin}, 0
    s_cbranch_scc1 {name}_loop
    {name}_done:
    """)

def g1_prologue(g):
    srd_load(g, sKK, 'k'); srd_load(g, sVV, 'v'); srd_load(g, sX, 'q'); srd_load(g, sWG, 'wg'); srd_load(g, sWU, 'wu')
    srd_load(g, sSH, 'shk'); srd_load(g, sWS, 'ws')
    g(f"""
    v_and_b32 v{v_lane}, 63, v0
    v_lshrrev_b32 v20, 6, v0
    s_lshr_b32 s{s_t0}, s2, 3
    s_and_b32 s{s_t1}, s2, 7
    v_readfirstlane_b32 s{s_w}, v20
    s_mul_i32 s{s_t2}, s{s_t0}, 37
    s_lshr_b32 s{s_t2}, s{s_t2}, 8          ; t/7
    s_mul_i32 s{s_t3}, s{s_t2}, 7
    s_sub_u32 s{s_ct}, s{s_t0}, s{s_t3}     ; t%7 = ct
    s_lshr_b32 s{s_mi}, s{s_t1}, 1
    s_lshl_b32 s{s_mi}, s{s_mi}, 2
    s_add_u32 s{s_mi}, s{s_mi}, s{s_t2}
    s_and_b32 s{s_hi}, s{s_t1}, 1
    s_mul_i32 s{s_t1}, s{s_hi}, 7
    s_add_u32 s{s_fi}, s{s_ct}, s{s_t1}
    s_and_b32 s{s_mf}, s{s_w}, 1
    s_lshr_b32 s{s_ns}, s{s_w}, 1
    v_lshlrev_b32 v{v_l16}, 4, v{v_lane}
    """)
    g(f"""
    v_lshrrev_b32 v20, 2, v{v_lane}
    v_and_b32 v21, 3, v{v_lane}
    v_mul_u32_u24 v20, 896, v20
    v_lshl_add_u32 v24, v21, 4, v20
    v_add_u32 v25, {16*896-1024}, v24
    s_lshl_b32 s{s_t0}, s{s_mi}, 7
    s_lshl_b32 s{s_t1}, s{s_w}, 5
    s_add_u32 s{s_t0}, s{s_t0}, s{s_t1}      ; 128mi + 32w
    s_mul_i32 s{s_xoff}, s{s_t0}, 896
    s_lshl_b32 s{s_t2}, s{s_fi}, 6
    s_add_u32 s{s_zoff}, s{s_xoff}, s{s_t2}
    s_cmp_eq_u32 s{s_t0}, 0
    s_cselect_b32 s{s_t1}, 0, 2688
    s_cselect_b32 s{s_t2}, 2688, 0
    s_sub_u32 s{s_hoff}, s{s_zoff}, s{s_t1}  ; k soffset
    v_subrev_u32 v26, s{s_t2}, v24
    v_subrev_u32 v27, s{s_t2}, v25
    """)
    g(f"""
    v_lshrrev_b32 v20, 3, v{v_lane}          ; lane>>3
    v_lshrrev_b32 v21, 4, v{v_lane}          ; lane>>4
    v_and_b32 v22, 7, v{v_lane}              ; lane&7
    v_mul_u32_u24 v20, 896, v20              ; row*896
    v_xor_b32 v23, v22, v21
    v_xor_b32 v28, 4, v23
    v_lshl_add_u32 v{v_xd}, v23, 4, v20
    v_lshl_add_u32 v28, v28, 4, v20
    v_add_u32 v{v_xd+1}, {8*896-1024}, v28
    v_add_u32 v{v_xd+2}, {2*(8*896-1024)}, v{v_xd}
    v_add_u32 v{v_xd+3}, {3*(8*896-1024)}, v28
    v_and_b32 v22, 15, v{v_lane}
    v_lshlrev_b32 v23, 2, v21
    v_sub_u32 v22, v22, v23
    v_and_b32 v22, 15, v22
    v_mul_u32_u24 v23, 3584, v21
    v_lshl_add_u32 v{v_wd}, v22, 4, v23
    v_add_u32 v{v_wd+1}, {4*3584-1024}, v{v_wd}
    v_add_u32 v{v_wd+2}, {2*(4*3584-1024)}, v{v_wd}
    v_add_u32 v{v_wd+3}, {3*(4*3584-1024)}, v{v_wd}
    s_mul_i32 s{s_woff}, s{s_w}, {16*3584}
    s_lshl_b32 s{s_t0}, s{s_fi}, 8
    s_add_u32 s{s_woff}, s{s_woff}, s{s_t0}
    s_lshl_b32 s{s_m0x}, s{s_w}, 12
    s_add_u32 s{s_m0w}, s{s_m0x}, {LW}
    s_lshl_b32 s{s_t4}, s{s_w}, 11           ; w*2048
    s_waitcnt lgkmcnt(0)
    """)
    load_tag(g)
    srd_fix(g, sKK, S*D*2); srd_fix(g, sVV, S*D*2)
    g(f"s_add_u32 m0, s{s_t4}, {LKT}\ns_nop 0")
    g.vm(f"buffer_load_dwordx4 v26, s[{sKK}:{sKK+3}], s{s_hoff} offen lds", "kp")
    g.vm(f"buffer_load_dwordx4 v27, s[{sKK}:{sKK+3}], s{s_hoff} offen offset:1024 lds", "kp")
    g(f"s_add_u32 m0, s{s_t4}, {LVT}\ns_nop 0")
    g.vm(f"buffer_load_dwordx4 v24, s[{sVV}:{sVV+3}], s{s_zoff} offen lds", "kp")
    g.vm(f"buffer_load_dwordx4 v25, s[{sVV}:{sVV+3}], s{s_zoff} offen offset:1024 lds", "kp")
    g(f"""s_lshl_b32 s{s_t0}, s{s_mi}, 7
    s_add_u32 s{s_t0}, s{s_t0}, 125
    s_mul_i32 s{s_t0}, s{s_t0}, 896
    s_lshl_b32 s{s_t1}, s{s_fi}, 6
    s_add_u32 s{s_t0}, s{s_t0}, s{s_t1}
    s_mov_b32 m0, {LKT + 8192}
    s_mov_b64 exec, 0xfff""")
    g.vm(f"buffer_load_dwordx4 v24, s[{sKK}:{sKK+3}], s{s_t0} offen lds", "kp")
    g("s_mov_b64 exec, -1")
    srd_fix(g, sSH, D*8)
    g(f"""
    v_and_b32 v29, 15, v{v_lane}
    s_lshl_b32 s{s_t0}, s{s_fi}, 5
    s_lshl_b32 s{s_t1}, s{s_mf}, 4
    s_add_u32 s{s_t0}, s{s_t0}, s{s_t1}
    s_lshl_b32 s{s_t1}, s{s_t0}, 3
    v_lshlrev_b32 v30, 3, v29
    """)
    g.vm(f"buffer_load_dwordx2 v[32:33], v30, s[{sSH}:{sSH+3}], s{s_t1} offen", "kp")
    srd_fix(g, sX, S*D*2); srd_fix(g, sWG, D*F*2); srd_fix(g, sWU, D*F*2); srd_fix(g, sWS, WS_END)

def g1_dma_x(c):
    sl = c % 3
    L = [f"s_add_u32 m0, s{s_m0x}, {LX + sl*16384}", f"s_add_u32 s{s_t3}, s{s_xoff}, {128*c}"]
    for ii in range(4):
        L.append(f"buffer_load_dwordx4 v{v_xd+ii}, s[{sX}:{sX+3}], s{s_t3} offen offset:{1024*ii} lds")
    return L
def g1_dma_w(c, mat):
    sl = c % 3
    sr = sWG if mat == 0 else sWU
    L = [f"s_add_u32 m0, s{s_m0w}, {sl*32768 + mat*16384}", f"s_add_u32 s{s_t3}, s{s_woff}, {64*c*3584}"]
    for ii in range(4):
        L.append(f"buffer_load_dwordx4 v{v_wd+ii}, s[{sr}:{sr+3}], s{s_t3} offen offset:{1024*ii} lds")
    return L
def g1_groups(c): return [g1_dma_x(c), g1_dma_w(c,0), g1_dma_w(c,1)]

def emit_mixed(g, L, tag):
    for s in L:
        if s.startswith("buffer_") or s.startswith("global_"): g.vm(s, tag)
        else: g(s)

def kprep(g):
    g(f"""
    v_lshrrev_b32 v34, 4, v{v_lane}          ; kq
    v_lshrrev_b32 v35, 1, v34                ; kq>>1
    v_lshlrev_b32 v35, 4, v35                ; 16*(kq>>1)
    v_lshrrev_b32 v36, v35, v32
    v_lshrrev_b32 v37, v35, v33
    v_and_b32 v36, 0xffff, v36
    v_and_b32 v37, 0xffff, v37
    v_and_b32 v38, 1, v29                    ; n&1
    v_lshlrev_b32 v38, 4, v38
    v_lshlrev_b32 v36, v38, v36
    v_lshlrev_b32 v37, v38, v37
    v_lshrrev_b32 v38, 3, v29                ; n>>3
    v_and_b32 v39, 1, v34                    ; kq&1
    v_cmp_eq_u32 vcc, v38, v39
    v_bfe_u32 v38, v29, 1, 2                 ; (n&7)>>1
    s_nop 0
    v_cndmask_b32 v36, 0, v36, vcc
    v_cndmask_b32 v37, 0, v37, vcc
    """)
    for i in range(4):
        g(f"v_cmp_eq_u32 vcc, {i}, v38\ns_nop 1\nv_cndmask_b32 v{40+i}, 0, v36, vcc\nv_cndmask_b32 v{44+i}, 0, v37, vcc")
    g(f"""
    v_lshrrev_b32 v48, 2, v29                ; m>>2
    v_and_b32 v49, 3, v29                    ; m&3
    v_lshl_add_u32 v48, v48, 4, v49          ; 16(m>>2) + (m&3)
    v_lshrrev_b32 v49, 1, v34                ; kq>>1
    v_sub_u32 v48, v48, v49
    v_add_u32 v48, 1, v48                    ; +3-2-(kq>>1)
    s_lshl_b32 s{s_t0}, s{s_ns}, 6
    v_add_u32 v48, s{s_t0}, v48
    v_lshlrev_b32 v48, 6, v48                ; *64
    v_lshl_add_u32 v48, v39, 4, v48          ; + (kq&1)*16
    s_lshl_b32 s{s_t1}, s{s_mf}, 5
    s_add_u32 s{s_t1}, s{s_t1}, {LKT}
    v_add_u32 v48, s{s_t1}, v48
    v_lshrrev_b32 v49, 2, v29
    v_lshl_add_u32 v49, v34, 4, v49
    v_add_u32 v49, s{s_t0}, v49
    v_lshlrev_b32 v49, 6, v49
    v_and_b32 v50, 3, v29
    v_lshl_add_u32 v49, v50, 3, v49
    s_lshl_b32 s{s_t1}, s{s_mf}, 5
    s_add_u32 s{s_t1}, s{s_t1}, {LVT}
    v_add_u32 v49, s{s_t1}, v49
    """)
    A = 52
    for t in range(4):
        g(f"ds_read_b128 v[{A+8*t}:{A+8*t+3}], v48 offset:{256*t+128}")
        g(f"ds_read_b128 v[{A+8*t+4}:{A+8*t+7}], v48 offset:{256*t}")
    V = 84
    for t in range(4):
        g(f"ds_read_b64_tr_b16 v[{V+2*t}:{V+2*t+1}], v49 offset:{256*t}")
    Dd = 92
    g("s_waitcnt lgkmcnt(0)")
    for t in range(4):
        g(f"v_mfma_f32_16x16x32_bf16 v[{Dd+4*t}:{Dd+4*t+3}], v[{A+8*t}:{A+8*t+3}], v[40:43], 0")
    for t in range(4):
        g(f"v_mfma_f32_16x16x32_bf16 v[{Dd+4*t}:{Dd+4*t+3}], v[{A+8*t+4}:{A+8*t+7}], v[44:47], v[{Dd+4*t}:{Dd+4*t+3}]")
    U = 108
    for t in range(4):
        for h in range(2):
            g(f"v_lshlrev_b32 v{U+4*t+2*h}, 16, v{V+2*t+h}\nv_and_b32 v{U+4*t+2*h+1}, 0xffff0000, v{V+2*t+h}")
    g(f"""
    v_lshlrev_b32 v50, 1, v34
    v_sub_u32 v50, 6, v50                    ; 6-2q
    v_and_b32 v51, 7, v29
    v_xor_b32 v50, v50, v51
    v_xor_b32 v51, 1, v50
    v_lshlrev_b32 v30, 7, v29
    s_add_u32 s{s_t1}, s{s_t4}, {LKO}
    v_add_u32 v30, s{s_t1}, v30
    v_lshl_add_u32 v50, v50, 4, v30
    v_lshl_add_u32 v51, v51, 4, v30
    """)
    for t in range(4):
        for h in range(2):
            g(f"v_pk_mul_f32 v[{Dd+4*t+2*h}:{Dd+4*t+2*h+1}], v[{Dd+4*t+2*h}:{Dd+4*t+2*h+1}], v[{U+4*t+2*h}:{U+4*t+2*h+1}]")
    O = 52
    for e in range(8):
        t = 3 - (e >> 1); r = 3 - 2*(e & 1)
        g(f"v_cvt_pk_bf16_f32 v{O+e}, v{Dd+4*t+r}, v{Dd+4*t+r-1}")
    g(f"""
    ds_write_b128 v50, v[{O}:{O+3}]
    ds_write_b128 v51, v[{O+4}:{O+7}]
    v_lshrrev_b32 v30, 3, v{v_lane}
    v_and_b32 v31, 7, v{v_lane}              ; u
    v_xor_b32 v32, v31, v30
    v_lshlrev_b32 v33, 7, v30
    v_lshl_add_u32 v32, v32, 4, v33
    v_add_u32 v32, s{s_t1}, v32
    v_lshlrev_b32 v33, 12, v30
    v_lshl_add_u32 v33, v31, 4, v33
    s_lshl_b32 s{s_t0}, s{s_fi}, 5
    s_lshl_b32 s{s_t1}, s{s_mf}, 4
    s_add_u32 s{s_t0}, s{s_t0}, s{s_t1}
    s_lshl_b32 s{s_t0}, s{s_t0}, 12
    s_lshl_b32 s{s_t1}, s{s_mi}, 8
    s_lshl_b32 s{s_t2}, s{s_ns}, 7
    s_add_u32 s{s_t1}, s{s_t1}, s{s_t2}
    s_sub_u32 s{s_t0}, s{s_t0}, s{s_t1}
    s_add_u32 s{s_t0}, s{s_t0}, {WS_KVT + 1984*2}
    s_add_u32 s{s_t1}, s{s_t0}, {8*4096}
    s_waitcnt lgkmcnt(0)
    ds_read_b128 v[{O}:{O+3}], v32
    ds_read_b128 v[{O+4}:{O+7}], v32 offset:1024
    s_waitcnt lgkmcnt(0)
    """)
    g.vm(f"buffer_store_dwordx4 v[{O}:{O+3}], v33, s[{sWS}:{sWS+3}], s{s_t0} offen sc1", "kvst")
    g.vm(f"buffer_store_dwordx4 v[{O+4}:{O+7}], v33, s[{sWS}:{sWS+3}], s{s_t1} offen sc1", "kvst")

def g1_addr(g):
    g(f"""
    v_and_b32 v20, 31, v{v_lane}             ; s
    v_lshrrev_b32 v21, 5, v{v_lane}          ; half
    v_bfe_u32 v22, v{v_lane}, 1, 3           ; (s>>1)&7
    v_xor_b32 v22, v22, v21                  ; half ^ g
    s_lshl_b32 s{s_t0}, s{s_ns}, 13          ; 64*ns*128
    v_lshl_add_u32 v20, v20, 7, s{s_t0}
    """)
    for ks in range(4):
        g(f"v_xor_b32 v23, {2*ks}, v22\nv_lshl_add_u32 v{v_xa+ks}, v23, 4, v20")
    g(f"""
    v_bfe_u32 v20, v{v_lane}, 2, 2           ; r
    v_bfe_u32 v22, v{v_lane}, 4, 1           ; grp
    v_bfe_u32 v23, v{v_lane}, 1, 1           ; c'>>1
    v_and_b32 v24, 1, v{v_lane}              ; c'&1
    v_lshl_add_u32 v22, v22, 1, v23          ; low2
    v_lshlrev_b32 v25, 11, v21               ; half*2048
    v_lshl_add_u32 v25, v20, 8, v25          ; + r*256
    v_lshl_add_u32 v25, v24, 3, v25          ; + (c'&1)*8
    v_lshl_add_u32 v25, v22, 4, v25          ; + low2*16
    v_add_u32 v25, {LW}, v25
    s_lshl_b32 s{s_t0}, s{s_mf}, 1
    """)
    for ft in range(2):
        g(f"""
        v_add_u32 v26, s{s_t0}, v20
        v_add_u32 v26, {ft}, v26
        v_and_b32 v26, 3, v26
        v_lshl_add_u32 v{v_wa+ft}, v26, 6, v25
        v_add_u32 v{v_wa+2+ft}, 65536, v{v_wa+ft}
        """)

def g1_frag_reads(kstep):
    c, ks = divmod(kstep, 4)
    sl = c % 3
    b = v_fr + (kstep & 1)*24
    L = []
    for nt in range(2):
        L.append(f"ds_read_b128 v[{b+4*nt}:{b+4*nt+3}], v{v_xa+ks} offset:{sl*16384 + nt*4096}")
    for mat in range(2):
        for ft in range(2):
            r = b + 8 + mat*8 + ft*4
            base = v_wa + ft + (2 if sl == 2 else 0)
            off = (sl*32768 if sl < 2 else 0) + mat*16384 + ks*4096
            L.append(f"ds_read_b64_tr_b16 v[{r}:{r+1}], v{base} offset:{off}")
            L.append(f"ds_read_b64_tr_b16 v[{r+2}:{r+3}], v{base} offset:{off+1024}")
    return L

def g1_mfmas(kstep):
    b = v_fr + (kstep & 1)*24
    L = []
    for ft in range(2):
        for nt in range(2):
            for mat in range(2):
                acc = accg(ft, nt) if mat == 0 else accu(ft, nt)
                A = b + 8 + mat*8 + ft*4
                B = b + 4*nt
                cin = "0" if kstep == 0 else f"v[{acc}:{acc+15}]"
                L.append(f"v_mfma_f32_32x32x16_bf16 v[{acc}:{acc+15}], v[{A}:{A+3}], v[{B}:{B+3}], {cin}")
    return L

def g1_main(g, pre_hooks, post_hooks, stamps=False):
    for s in g1_frag_reads(0): g(s)
    sched = {}
    for gi, grp in enumerate(g1_groups(2)): sched.setdefault(gi, []).append((grp, "c2"))
    for c in range(0, 4):
        for gi, grp in enumerate(g1_groups(c+3)): sched.setdefault(4*c+3+gi, []).append((grp, f"c{c+3}"))
    for k in range(28):
        c, ks = divmod(k, 4)
        g("s_waitcnt lgkmcnt(0)")
        if ks == 3 and c < 6:
            if stamps and c in (0, 5): stamp(g, 4 + (c == 5))
            g.vwait(f"c{c+1}")
            if c == 0: g.vwait("kvst")
            g("s_barrier")
        pre_hooks(k)
        fill = []
        if k+1 < 28: fill += g1_frag_reads(k+1)
        per = [[] for _ in range(8)]
        for i, s_ in enumerate(fill): per[min(7,(i*5)//max(len(fill),1))].append((s_, None))
        for grp, tag in sched.get(k, []):
            per[0] += [(x, tag) for x in grp[:2]]
            for i in range(4): per[1+2*i].append((grp[2+i], tag))
        ex = post_hooks(k)
        for i, (s_, tag) in enumerate(ex): per[min(7, (i*8)//len(ex))].append((s_, tag))
        m = g1_mfmas(k)
        for i in range(8):
            g(m[i])
            for s_, tag in per[i]:
                if s_.startswith("buffer_"): g.vm(s_, tag)
                else: g(s_)

v_cs = 68
v_rc = 100
v_t = 108
def g1_epilogue(g, wd=True):
    g(f"""
    s_add_u32 s{s_t0}, s{s_t4}, {LST}
    v_and_b32 v{v_t}, 31, v{v_lane}
    s_lshl_b32 s{s_t1}, s{s_ns}, 9
    s_add_u32 s{s_t1}, s{s_t1}, s{s_t0}
    v_lshl_add_u32 v{v_t}, v{v_t}, 3, s{s_t1}
    ds_read_b64 v[{v_t+2}:{v_t+3}], v{v_t}
    ds_read_b64 v[{v_t+4}:{v_t+5}], v{v_t} offset:256
    v_lshrrev_b32 v{v_t+1}, 5, v{v_lane}
    s_lshl_b32 s{s_t1}, s{s_mf}, 8
    s_add_u32 s{s_t1}, s{s_t1}, s{s_t0}
    s_add_u32 s{s_t1}, s{s_t1}, 1024
    v_lshl_add_u32 v{v_t+1}, v{v_t+1}, 4, s{s_t1}
    s_waitcnt lgkmcnt(0)
    """)
    for nt in range(2):
        m, sd = v_t+2+2*nt, v_t+3+2*nt
        rc = v_rc + 4*nt
        g(f"""
        v_rcp_f32 v{v_t+6}, v{sd}
        v_sub_f32 v{rc}, 0, v{m}
        v_mul_f32 v{rc+1}, v{sd}, v{sd}
        v_mul_f32 v{rc+2}, {fh(C1)}, v{v_t+6}
        v_mul_f32 v{v_t+7}, v{v_t+6}, v{v_t+6}
        v_mul_f32 v{v_t+7}, v{v_t+7}, v{v_t+6}
        v_mul_f32 v{rc+3}, {fh(C2)}, v{v_t+7}
        """)
    v_csa = v_t+1
    g(f"""
    s_lshl_b32 s{s_t0}, s{s_mi}, 2
    s_lshl_b32 s{s_t1}, s{s_ns}, 1
    s_add_u32 s{s_t0}, s{s_t0}, s{s_t1}
    s_mul_i32 s{s_t0}, s{s_t0}, 112
    s_lshl_b32 s{s_t1}, s{s_fi}, 3
    s_add_u32 s{s_t0}, s{s_t0}, s{s_t1}
    s_lshl_b32 s{s_t1}, s{s_mf}, 2
    s_add_u32 s{s_t0}, s{s_t0}, s{s_t1}
    s_lshl_b32 s{s_hoff}, s{s_t0}, 10
    s_add_u32 s{s_hoff}, s{s_hoff}, {WS_H}
    """)
    TG = 20
    P = v_t + 8
    g(f"s_mov_b32 s{s_t0}, 0\ns_mov_b32 s{s_t1}, s{s_hoff}")
    if wd:
        g(f"s_mov_b32 s96, s{s_m0x}\ns_mov_b32 s97, s{s_woff}")
        def wd_dyn():
            g(f"s_mov_b32 m0, s96\ns_add_u32 s96, s96, 2048")
            g(f"buffer_load_dwordx4 v{v_xd}, s[{sWD2}:{sWD2+3}], s97 offen lds")
            g(f"buffer_load_dwordx4 v{v_xd+1}, s[{sWD2}:{sWD2+3}], s97 offen offset:1024 lds")
            g(f"s_add_u32 s97, s97, {16*896}")
        wd_dyn(); wd_dyn()
    g.lab("E1_loop")
    g(f"ds_read_b128 v[{v_cs}:{v_cs+3}], v{v_csa}\nds_read_b128 v[{v_cs+4}:{v_cs+7}], v{v_csa} offset:32")
    g(f"ds_read_b128 v[{v_cs+8}:{v_cs+11}], v{v_csa} offset:512\nds_read_b128 v[{v_cs+12}:{v_cs+15}], v{v_csa} offset:544")
    g(f"v_add_u32 v{v_csa}, 64, v{v_csa}\ns_waitcnt lgkmcnt(0)")
    g(f"s_set_gpr_idx_on s{s_t0}, gpr_idx(SRC2)")
    for nt in range(2):
        rc = v_rc + 4*nt; nm = f"v[{rc}:{rc+1}]"
        b = TG + 24*nt
        for pp in range(4):
            r = 2*pp
            g(f"v_pk_fma_f32 v[{b+r}:{b+r+1}], v[{v_cs+r}:{v_cs+r+1}], {nm}, v[{accg(0,nt)+r}:{accg(0,nt)+r+1}] op_sel_hi:[1,0,1]")
            g(f"v_pk_fma_f32 v[{b+8+r}:{b+8+r+1}], v[{v_cs+8+r}:{v_cs+8+r+1}], {nm}, v[{accu(0,nt)+r}:{accu(0,nt)+r+1}] op_sel_hi:[1,0,1]")
    g("s_set_gpr_idx_off")
    for nt in range(2):
        if wd: wd_dyn()
        rc = v_rc + 4*nt; nm = f"v[{rc}:{rc+1}]"; cc = f"v[{rc+2}:{rc+3}]"
        b = TG + 24*nt
        def pr(x): return f"v[{x}:{x+1}]"
        steps = [
          lambda tg,tu,z: [f"v_pk_mul_f32 {pr(z)}, {pr(tg)}, {pr(tg)}"],
          lambda tg,tu,z: [f"v_pk_fma_f32 {pr(z)}, {pr(z)}, {cc}, {cc} op_sel:[0,1,0] op_sel_hi:[1,1,0]"],
          lambda tg,tu,z: [f"v_pk_mul_f32 {pr(z)}, {pr(z)}, {pr(tg)}"],
          lambda tg,tu,z: [f"v_exp_f32 v{z}, v{z}", f"v_exp_f32 v{z+1}, v{z+1}"],
          lambda tg,tu,z: [f"v_pk_mul_f32 {pr(tu)}, {pr(tu)}, {pr(tg)}"],
          lambda tg,tu,z: [f"v_pk_fma_f32 {pr(z)}, {pr(z)}, {nm}, {nm} op_sel:[0,1,1] op_sel_hi:[1,1,1]"],
          lambda tg,tu,z: [f"v_rcp_f32 v{z}, v{z}", f"v_rcp_f32 v{z+1}, v{z+1}"],
          lambda tg,tu,z: [f"v_pk_mul_f32 {pr(tu)}, {pr(tu)}, {pr(z)}"],
        ]
        for st in steps:
            for pp in range(4):
                for x in st(b+2*pp, b+8+2*pp, b+16+2*pp): g(x)
        for pp in range(4):
            g(f"v_cvt_pk_bf16_f32 v{P+4*nt+pp}, v{b+8+2*pp}, v{b+8+2*pp+1}")
        if nt == 0: g(f"buffer_store_dwordx4 v[{P}:{P+3}], v{v_l16}, s[{sWS}:{sWS+3}], s{s_t1} offen sc1")
        else: g(f"s_add_u32 s{s_t2}, s{s_t1}, {112*1024}\nbuffer_store_dwordx4 v[{P+4}:{P+7}], v{v_l16}, s[{sWS}:{sWS+3}], s{s_t2} offen sc1")
    g(f"""
    s_add_u32 s{s_t1}, s{s_t1}, 1024
    s_add_u32 s{s_t0}, s{s_t0}, 8
    s_bitcmp1_b32 s{s_t0}, 4
    s_cselect_b32 s{s_t2}, 16, 0
    s_add_u32 s{s_t0}, s{s_t0}, s{s_t2}
    s_cmp_lt_u32 s{s_t0}, 64
    s_cbranch_scc1 E1_loop
    """)


sWD2, sSK2, sOUT2 = 20, 24, 28
a_h = 224
def conv_h_loads():
    L = [f"v_lshlrev_b32 v{v_hv}, 4, v0", f"s_lshl_b32 s{s_zoff}, s2, 13"]
    for ch in range(2):
        for i in range(3):
            r = a_h + ch*12 + i*4
            L.append(f"buffer_load_dwordx4 a[{r}:{r+3}], v{v_hv}, s[{sSK2}:{sSK2+3}], s{s_zoff} offen offset:{4*i}")
        if ch == 0: L.append(f"s_add_u32 s{s_zoff}, s{s_zoff}, 4096")
    return L

def conv_build(g):
    R = 20
    for i in range(24): g(f"v_accvgpr_read_b32 v{R+i}, a{a_h+i}")
    g(f"v_lshlrev_b32 v60, 4, v0\nv_add_u32 v60, {LCV+32}, v60")
    for ch in range(2):
        R0, R1, R2 = R+12*ch, R+12*ch+4, R+12*ch+8
        O1, O3 = 44+8*ch, 48+8*ch
        for i in range(4):
            g(f"v_alignbit_b32 v{O1+i}, v{R1+i}, v{R0+i}, 16")
            g(f"v_alignbit_b32 v{O3+i}, v{R2+i}, v{R1+i}, 16")
        base = ch*CVCH
        g(f"ds_write_b128 v60, v[{R0}:{R0+3}] offset:{base}")
        g(f"ds_write_b128 v60, v[{O1}:{O1+3}] offset:{base+CVCOPY}")
        g(f"ds_write_b128 v60, v[{R1}:{R1+3}] offset:{base+2*CVCOPY}")
        g(f"ds_write_b128 v60, v[{O3}:{O3+3}] offset:{base+3*CVCOPY}")
    g(f"""
    s_cmp_eq_u32 s{s_w}, 0
    s_cbranch_scc0 CB_w1
    v_mov_b32 v64, 0
    v_mov_b32 v65, 0
    v_mov_b32 v66, 0
    v_mov_b32 v67, 0
    """)
    for ch in range(2):
        g(f"""
        v_readlane_b32 s96, v{R+12*ch}, 0
        v_readlane_b32 s97, v{R+12*ch+1}, 0
        s_nop 3
        s_lshl_b32 s98, s96, 16
        s_lshr_b32 s99, s96, 16
        s_lshl_b32 s97, s97, 16
        s_or_b32 s99, s99, s97
        v_writelane_b32 v67, s98, {8*ch+3}
        v_writelane_b32 v67, s96, {8*ch+5}
        v_writelane_b32 v67, s99, {8*ch+7}
        v_writelane_b32 v66, s98, {8*ch+7}
        """)
    g(f"""
    v_lshrrev_b32 v61, 3, v{v_lane}
    v_mul_u32_u24 v61, {CVCH}, v61
    v_bfe_u32 v62, v{v_lane}, 1, 2
    v_mul_u32_u24 v62, {CVCOPY}, v62
    v_add_u32 v61, v61, v62
    v_and_b32 v62, 1, v{v_lane}
    v_lshl_add_u32 v61, v62, 4, v61
    v_add_u32 v61, {LCV}, v61
    s_mov_b64 exec, 0xffff
    ds_write_b128 v61, v[64:67]
    s_mov_b64 exec, -1
    s_branch CB_done
    CB_w1:
    s_cmp_eq_u32 s{s_w}, 1
    s_cbranch_scc0 CB_done
    v_mov_b32 v64, 0
    v_mov_b32 v65, 0
    v_mov_b32 v66, 0
    v_mov_b32 v67, 0
    v_lshrrev_b32 v61, 5, v{v_lane}
    v_mul_u32_u24 v61, {CVCH}, v61
    v_and_b32 v62, 31, v{v_lane}
    v_lshl_add_u32 v61, v62, 4, v61
    v_add_u32 v61, {LCV+CVU+4096}, v61
    ds_write_b128 v61, v[64:67]
    CB_done:
    """)

def conv_u_dma():
    L = [f"s_lshl_b32 s{s_t3}, s2, 13",
         f"s_lshl_b32 s{s_t2}, s{s_w}, 11",
         f"s_add_u32 s{s_t3}, s{s_t3}, s{s_t2}",
         f"s_add_u32 s{s_t3}, s{s_t3}, {WS_KVT}",
         f"s_mul_i32 s{s_t2}, s{s_ns}, {CVCH}",
         f"s_lshl_b32 s{s_t1}, s{s_mf}, 11",
         f"s_add_u32 s{s_t2}, s{s_t2}, s{s_t1}",
         f"s_add_u32 m0, s{s_t2}, {LCV+CVU}",
         f"buffer_load_dwordx4 v{v_l16}, s[{sWS}:{sWS+3}], s{s_t3} offen sc1 lds",
         f"buffer_load_dwordx4 v{v_l16}, s[{sWS}:{sWS+3}], s{s_t3} offen offset:1024 sc1 lds"]
    return L

cv_D = 128
cv_A = [160, 224]
cv_A = [160, 64]; cv_B = [192, 96]
v_la, v_lb = 20, 21
def conv_addr(g):
    g(f"""
    v_and_b32 v22, 15, v{v_lane}             ; m / n
    v_lshrrev_b32 v23, 4, v{v_lane}          ; kq
    v_add_u32 v24, 1, v22                    ; m+1
    v_and_b32 v25, 3, v24
    v_mul_u32_u24 v25, {CVCOPY}, v25
    v_lshrrev_b32 v24, 2, v24
    v_lshl_add_u32 v25, v24, 3, v25
    v_lshl_add_u32 v25, v23, 4, v25
    s_mul_i32 s{s_t0}, s{s_ns}, {CVCH}
    s_lshl_b32 s{s_t1}, s{s_mf}, 8
    s_add_u32 s{s_t0}, s{s_t0}, s{s_t1}
    s_add_u32 s{s_t0}, s{s_t0}, {LCV}
    v_add_u32 v{v_la}, s{s_t0}, v25
    v_lshlrev_b32 v24, 5, v22
    v_lshlrev_b32 v25, 4, v23
    v_sub_u32 v25, v25, v24                  ; 16kq - 32n
    s_add_u32 s{s_t0}, s{s_t0}, {CVU + 4064 - 3584}
    v_add_u32 v{v_lb}, s{s_t0}, v25
    """)
def conv_reads(cl):
    A, B = cv_A[cl & 1], cv_B[cl & 1]
    L = []
    for i in range(8):
        L.append(f"ds_read_b64 v[{A+4*i}:{A+4*i+1}], v{v_la} offset:{64*cl+512*i}")
        L.append(f"ds_read_b64 v[{A+4*i+2}:{A+4*i+3}], v{v_la} offset:{64*cl+512*i+8}")
        L.append(f"ds_read_b128 v[{B+4*i}:{B+4*i+3}], v{v_lb} offset:{64*cl+512*(7-i)}")
    return L
def conv_mfmas(cl):
    A, B = cv_A[cl & 1], cv_B[cl & 1]
    L = []
    pairs = sorted([(a, b) for a in range(8) for b in range(8) if a+b <= 7], key=lambda p: (max(p), p))
    first = set()
    for a, b in pairs:
        t = a + b
        d = cv_D + 4*t
        cin = "0" if (cl == 0 and t not in first) else f"v[{d}:{d+3}]"
        first.add(t)
        L.append(f"v_mfma_f32_16x16x32_bf16 v[{d}:{d+3}], v[{A+4*a}:{A+4*a+3}], v[{B+4*b}:{B+4*b+3}], {cin}")
    return L

def wd_setup(g):
    g(f"""
    v_lshrrev_b32 v22, 3, v{v_lane}          ; r
    v_and_b32 v23, 7, v{v_lane}              ; p
    v_bfe_u32 v24, v22, 1, 1
    v_lshlrev_b32 v24, 2, v24
    v_xor_b32 v23, v23, v24
    v_mul_u32_u24 v22, 896, v22
    v_lshl_add_u32 v{v_xd}, v23, 4, v22                 ; Wd dma voffset (instr 0)
    v_add_u32 v{v_xd+1}, {8*896-1024}, v{v_xd}          ; instr 1
    s_mul_i32 s{s_woff}, s{s_w}, {448*896}
    s_lshl_b32 s{s_t0}, s{s_ct}, 7
    s_add_u32 s{s_woff}, s{s_woff}, s{s_t0}
    s_mul_i32 s{s_m0x}, s{s_w}, {RING}
    v_lshrrev_b32 v22, 5, v{v_lane}          ; half
    v_bfe_u32 v23, v{v_lane}, 2, 2           ; r4
    v_lshl_add_u32 v22, v22, 2, v23          ; r
    v_lshlrev_b32 v22, 7, v22
    v_bfe_u32 v24, v{v_lane}, 4, 1           ; grp
    v_bfe_u32 v25, v{v_lane}, 1, 1           ; c'>>1
    v_lshl_add_u32 v24, v24, 1, v25
    v_lshl_add_u32 v22, v24, 4, v22
    v_and_b32 v24, 1, v{v_lane}
    v_lshl_add_u32 v22, v24, 3, v22
    v_add_u32 v22, s{s_m0x}, v22
    v_bfe_u32 v23, v{v_lane}, 3, 1           ; b
    v_xor_b32 v23, s{s_ns}, v23
    v_lshl_add_u32 v{v_xd+2}, v23, 6, v22
    v_xor_b32 v23, 1, v23
    v_lshl_add_u32 v{v_xd+3}, v23, 6, v22
    """)
NSLOT = 10
def wd_dma(j):
    sl = j % NSLOT
    return [f"s_add_u32 m0, s{s_m0x}, {sl*2048}", f"s_add_u32 s{s_t3}, s{s_woff}, {16*j*896}",
            f"buffer_load_dwordx4 v{v_xd}, s[{sWD2}:{sWD2+3}], s{s_t3} offen lds",
            f"buffer_load_dwordx4 v{v_xd+1}, s[{sWD2}:{sWD2+3}], s{s_t3} offen offset:1024 lds"]
def wd_tr(j):
    sl = j % NSLOT
    L = []
    for sm in range(2):
        r = 8*j + 4*sm
        L.append(f"ds_read_b64_tr_b16 a[{r}:{r+1}], v{v_xd+2+sm} offset:{sl*2048}")
        L.append(f"ds_read_b64_tr_b16 a[{r+2}:{r+3}], v{v_xd+2+sm} offset:{sl*2048+1024}")
    return L

def wd_steps(g, st, per, first_gap, gap_stride, nsteps, ngaps):
    for i in range(nsteps):
        j = st['tr']
        if j >= 28: break
        gp = min(ngaps-1, first_gap + i*gap_stride)
        per[gp].append(("VWAIT", f"wd{j}"))
        per[gp] += [(x, f"tr{j}") for x in wd_tr(j)]
        st['tr'] += 1
        if st['dma'] < 28:
            gp2 = min(ngaps-1, gp + 3)
            per[gp2].append(("LWAIT", f"tr{j}"))
            per[gp2] += [(x, f"wd{st['dma']}") for x in wd_dma(st['dma'])]
            st['dma'] += 1

def conv_main(g, st):
    g.ldops = []
    for x in conv_reads(0): g.ld(x)
    NG = 144
    per = [[] for _ in range(NG)]
    m = []
    for cl in range(4):
        m += conv_mfmas(cl)
        if cl < 3:
            for i, x in enumerate(conv_reads(cl+1)): per[36*cl + i].append((x, f"cv{cl+1}"))
    n = 28 - st['tr']
    if n > 0:
        wd_steps(g, st, per, 30, max(1, (NG-38)//n), n, NG)
    for i in range(NG):
        if i % 36 == 0:
            if i == 0: g("s_waitcnt lgkmcnt(0)")
            else: g.lwait(f"cv{i//36}")
        g(m[i])
        for x, tag in per[i]: g.emit(x, tag)
    g("s_waitcnt lgkmcnt(0)")

def conv_epilogue(g):
    g("s_barrier")
    g(f"""
    s_mul_i32 s{s_t0}, s{s_ns}, {CVCH}
    s_lshl_b32 s{s_t1}, s{s_mf}, 13
    s_add_u32 s{s_t0}, s{s_t0}, s{s_t1}
    s_add_u32 s{s_t0}, s{s_t0}, {LCV}
    v_add_u32 v22, s{s_t0}, v{v_l16}
    s_nop 4
    """)
    for t in range(8): g(f"ds_write_b128 v22, v[{cv_D+4*t}:{cv_D+4*t+3}] offset:{t*1024}")
    g(f"""
    s_waitcnt lgkmcnt(0)
    s_barrier
    s_lshl_b32 s{s_t0}, s{s_w}, 11           ; tile 2w -> *1024
    v_add_u32 v22, s{s_t0}, v{v_l16}
    v_add_u32 v22, {LCV}, v22
    """)
    Y = 20+4
    Y = 32
    for ch in range(2):
        for hf in range(2):
            for tt in range(2):
                r = Y + ((ch*2+hf)*2+tt)*4
                g(f"ds_read_b128 v[{r}:{r+3}], v22 offset:{ch*CVCH + hf*8192 + tt*1024}")
    g(f"""
    v_and_b32 v23, 15, v{v_lane}
    v_lshrrev_b32 v24, 4, v{v_lane}
    v_lshlrev_b32 v23, 5, v23
    v_lshl_add_u32 v23, v24, 3, v23          ; 32n + 8q
    s_lshl_b32 s{s_t0}, s{s_w}, 10           ; 512*2w
    s_sub_u32 s{s_t0}, {LCV + CVU + 4088 - 512}, s{s_t0}
    v_sub_u32 v23, s{s_t0}, v23
    """)
    KV = 64
    for ch in range(2):
        for tt in range(2):
            r = KV + (ch*2+tt)*2
            g(f"ds_read_b64 v[{r}:{r+1}], v23 offset:{ch*CVCH + (512 if tt == 0 else 0)}")
    g("s_waitcnt lgkmcnt(0)")
    Z = 72
    for ch in range(2):
        for tt in range(2):
            a = Y + ((ch*2+0)*2+tt)*4; b = Y + ((ch*2+1)*2+tt)*4
            g(f"v_pk_add_f32 v[{a}:{a+1}], v[{a}:{a+1}], v[{b}:{b+1}]\nv_pk_add_f32 v[{a+2}:{a+3}], v[{a+2}:{a+3}], v[{b+2}:{b+3}]")
            k = KV + (ch*2+tt)*2
            u = Z + (ch*2+tt)*4
            g(f"v_and_b32 v{u}, 0xffff0000, v{k+1}\nv_lshlrev_b32 v{u+1}, 16, v{k+1}\nv_and_b32 v{u+2}, 0xffff0000, v{k}\nv_lshlrev_b32 v{u+3}, 16, v{k}")
            for r in range(4):
                g(f"v_fmac_f32 v{a+r}, s{100+ch}, v{u+r}")
    O = 96
    for tt in range(2):
        a0 = Y + ((0*2+0)*2+tt)*4; a1 = Y + ((1*2+0)*2+tt)*4
        for r in range(4):
            g(f"v_cvt_pk_bf16_f32 v{O+4*tt+r}, v{a0+r}, v{a1+r}")
    g(f"""
    v_and_b32 v23, 15, v{v_lane}
    v_lshrrev_b32 v24, 4, v{v_lane}
    v_lshlrev_b32 v23, 6, v23
    v_lshl_add_u32 v23, v24, 4, v23
    s_lshl_b32 s{s_t0}, s2, 13
    s_lshl_b32 s{s_t1}, s{s_w}, 11
    s_add_u32 s{s_t0}, s{s_t0}, s{s_t1}
    s_add_u32 s{s_t0}, s{s_t0}, {WS_ZP}
    """)
    g.vm(f"buffer_store_dwordx4 v[{O}:{O+3}], v23, s[{sWS}:{sWS+3}], s{s_t0} offen sc1", "zst")
    g.vm(f"buffer_store_dwordx4 v[{O+4}:{O+7}], v23, s[{sWS}:{sWS+3}], s{s_t0} offen offset:1024 sc1", "zst")

g2_acc = 128
g2_fr = 192
def g2_setup(g):
    g(f"""
    s_lshl_b32 s{s_t0}, s{s_mi}, 2
    s_lshl_b32 s{s_t1}, s{s_hi}, 1
    s_add_u32 s{s_t0}, s{s_t0}, s{s_t1}
    s_mul_i32 s{s_t0}, s{s_t0}, 112
    s_mul_i32 s{s_t1}, s{s_w}, 28
    s_add_u32 s{s_t0}, s{s_t0}, s{s_t1}
    s_lshl_b32 s{s_hoff}, s{s_t0}, 10
    s_add_u32 s{s_hoff}, s{s_hoff}, {WS_H}
    s_mul_i32 s{s_t0}, s{s_mf}, {112*1024}
    v_add_u32 v{v_xd}, s{s_t0}, v{v_l16}
    s_sub_u32 s{s_t0}, {112*1024 - 1024}, s{s_t0}
    v_add_u32 v{v_xd+1}, s{s_t0}, v{v_l16}
    v_add_u32 v{v_xd+2}, s{s_m0x}, v{v_l16}
    """)
def h_dma(j):
    sl = j % NSLOT
    return [f"s_add_u32 m0, s{s_m0x}, {sl*2048}", f"s_add_u32 s{s_t3}, s{s_hoff}, {j*1024}",
            f"buffer_load_dwordx4 v{v_xd}, s[{sWS}:{sWS+3}], s{s_t3} offen sc1 lds",
            f"buffer_load_dwordx4 v{v_xd+1}, s[{sWS}:{sWS+3}], s{s_t3} offen offset:1024 sc1 lds"]
def h_reads(j):
    sl = j % NSLOT
    b = g2_fr + (j & 1)*8
    return [f"ds_read_b128 v[{b}:{b+3}], v{v_xd+2} offset:{sl*2048}", f"ds_read_b128 v[{b+4}:{b+7}], v{v_xd+2} offset:{sl*2048+1024}"]
def g2_main(g, extra=None):
    nd = 0
    for j in range(NSLOT):
        emit_mixed(g, h_dma(j), f"h{j}"); nd += 1
    g.vwait("h0")
    for x in h_reads(0): g(x)
    for j in range(28):
        b = g2_fr + (j & 1)*8
        g("s_waitcnt lgkmcnt(0)")
        fill = []
        if j >= 1 and nd < 28:
            fill += [(x, f"h{nd}") for x in h_dma(nd)]; nd += 1
        m = []
        for sm in range(2):
            for sn in range(2):
                acc = g2_acc + (sm*2+sn)*16
                cin = "0" if j == 0 else f"v[{acc}:{acc+15}]"
                m.append(f"v_mfma_f32_32x32x16_bf16 v[{acc}:{acc+15}], a[{8*j+4*sm}:{8*j+4*sm+3}], v[{b+4*sn}:{b+4*sn+3}], {cin}")
        if j+1 < 28:
            g.vwait(f"h{j+1}")
            for x in h_reads(j+1): g(x)
        per = [[] for _ in range(4)]
        for i, x in enumerate(fill): per[min(3, i)].append(x)
        if extra:
            for i, x in enumerate(extra(j)): per[3].append(x)
        for i in range(4):
            g(m[i])
            for x, tag in per[i]:
                if x.startswith("buffer_"): g.vm(x, tag)
                else: g(x)

def g2_reduce(g):
    g(f"v_add_u32 v22, s{s_m0x}, v{v_l16}\ns_nop 7\ns_nop 3")
    for sl in range(1, 4):
        for q in range(4):
            r = g2_acc + sl*16 + 4*q
            g(f"ds_write_b128 v22, v[{r}:{r+3}] offset:{sl*4096 + q*1024}")
    g("s_waitcnt lgkmcnt(0)\ns_barrier")
    for x in range(1, 4):
        g(f"s_xor_b32 s{s_t0}, s{s_w}, {x}\ns_mul_i32 s{s_t0}, s{s_t0}, {RING}\nv_add_u32 v{22+x}, s{s_t0}, v{v_l16}")
    for x in range(1, 4):
        for q in range(4):
            r = g2_acc + x*16 + 4*q
            g(f"ds_read_b128 v[{r}:{r+3}], v{22+x} offset:{x*4096 + q*1024}")
    g("s_waitcnt lgkmcnt(0)")
    for x in range(1, 4):
        for q in range(8):
            a = g2_acc + 2*q; b = g2_acc + x*16 + 2*q
            g(f"v_pk_add_f32 v[{a}:{a+1}], v[{a}:{a+1}], v[{b}:{b+1}]")

fx = 32
fz = 40
def final_loads_x():
    L = [f"v_and_b32 v26, 31, v{v_lane}", f"v_mul_u32_u24 v26, 896, v26", f"v_lshrrev_b32 v27, 5, v{v_lane}", f"v_lshl_add_u32 v26, v27, 3, v26",
         f"s_lshl_b32 s{s_t0}, s{s_mi}, 7", f"s_lshl_b32 s{s_t1}, s{s_hi}, 6", f"s_add_u32 s{s_t0}, s{s_t0}, s{s_t1}",
         f"s_lshl_b32 s{s_t1}, s{s_mf}, 5", f"s_add_u32 s{s_t0}, s{s_t0}, s{s_t1}",
         f"s_mul_i32 s{s_zoff}, s{s_t0}, 896",
         f"s_lshl_b32 s{s_t1}, s{s_ct}, 7", f"s_add_u32 s{s_zoff}, s{s_zoff}, s{s_t1}",
         f"s_lshl_b32 s{s_t1}, s{s_ns}, 6", f"s_add_u32 s{s_zoff}, s{s_zoff}, s{s_t1}"]
    for q in range(4):
        L.append(f"buffer_load_dwordx2 v[{fx+2*q}:{fx+2*q+1}], v26, s[{sX}:{sX+3}], s{s_zoff} offen offset:{16*q}")
    return L
def final_loads_z(g):
    g(f"""
    v_and_b32 v28, 31, v{v_lane}
    v_lshlrev_b32 v28, 2, v28
    v_lshrrev_b32 v27, 5, v{v_lane}
    v_lshl_add_u32 v28, v27, 14, v28          ; + 2half*8192
    s_lshl_b32 s{s_t0}, s{s_ct}, 5
    s_lshl_b32 s{s_t1}, s{s_ns}, 4
    s_add_u32 s{s_t0}, s{s_t0}, s{s_t1}
    s_lshl_b32 s{s_t0}, s{s_t0}, 13
    s_lshl_b32 s{s_t1}, s{s_mi}, 7
    s_lshl_b32 s{s_t2}, s{s_hi}, 6
    s_add_u32 s{s_t1}, s{s_t1}, s{s_t2}
    s_lshl_b32 s{s_t2}, s{s_mf}, 5
    s_add_u32 s{s_t1}, s{s_t1}, s{s_t2}
    s_lshl_b32 s{s_t1}, s{s_t1}, 2
    s_add_u32 s{s_t0}, s{s_t0}, s{s_t1}
    s_add_u32 s{s_t0}, s{s_t0}, {WS_ZP}
    """)
    for q in range(4):
        for e in range(2):
            g(f"s_add_u32 s{s_t3}, s{s_t0}, {(4*q+e)*8192}")
            g.vm(f"buffer_load_dword v{fz+2*q+e}, v28, s[{sWS}:{sWS+3}], s{s_t3} offen sc1", "z")
def final(g):
    g(f"""
    v_and_b32 v22, 31, v{v_lane}
    s_lshl_b32 s{s_t0}, s{s_hi}, 9
    s_lshl_b32 s{s_t1}, s{s_mf}, 8
    s_add_u32 s{s_t0}, s{s_t0}, s{s_t1}
    s_add_u32 s{s_t0}, s{s_t0}, s{s_t4}
    s_add_u32 s{s_t0}, s{s_t0}, {LST}
    v_lshl_add_u32 v22, v22, 3, s{s_t0}
    ds_read_b64 v[24:25], v22
    s_waitcnt lgkmcnt(0)
    v_rcp_f32 v25, v25                        ; rs
    s_nop 0
    v_mul_f32 v24, v24, v25
    v_sub_f32 v24, 0, v24
    v_mov_b32 v30, {fh(-math.log2(math.e))}
    v_mov_b32 v31, 1.0
    s_waitcnt vmcnt(0)
    """)
    O = g2_acc
    X = 48; Zz = 64; T = 80
    def pr(x): return f"v[{x}:{x+1}]"
    for q in range(4):
        for e in range(2):
            i = 2*q+e
            g(f"v_lshlrev_b32 v{X+2*i}, 16, v{fx+i}\nv_and_b32 v{X+2*i+1}, 0xffff0000, v{fx+i}")
            g(f"v_lshlrev_b32 v{Zz+2*i}, 16, v{fz+i}\nv_and_b32 v{Zz+2*i+1}, 0xffff0000, v{fz+i}")
    steps = [
      lambda i: [f"v_pk_mul_f32 {pr(T+2*i)}, {pr(O+2*i)}, v[30:31] op_sel_hi:[1,0]"],
      lambda i: [f"v_exp_f32 v{T+2*i}, v{T+2*i}", f"v_exp_f32 v{T+2*i+1}, v{T+2*i+1}"],
      lambda i: [f"v_pk_fma_f32 {pr(Zz+2*i)}, {pr(X+2*i)}, v[24:25], v[24:25] op_sel:[0,1,0] op_sel_hi:[1,1,0]".replace(pr(Zz+2*i), pr(96+2*i), 1)],
      lambda i: [f"v_pk_add_f32 {pr(T+2*i)}, {pr(T+2*i)}, v[30:31] op_sel:[0,1] op_sel_hi:[1,1]"],
      lambda i: [f"v_rcp_f32 v{T+2*i}, v{T+2*i}", f"v_rcp_f32 v{T+2*i+1}, v{T+2*i+1}"],
      lambda i: [f"v_pk_mul_f32 {pr(Zz+2*i)}, {pr(Zz+2*i)}, {pr(96+2*i)}"],
      lambda i: [f"v_pk_mul_f32 {pr(T+2*i)}, {pr(T+2*i)}, {pr(O+2*i)}"],
      lambda i: [f"v_pk_fma_f32 {pr(T+2*i)}, {pr(T+2*i)}, {pr(Zz+2*i)}, {pr(X+2*i)}"],
    ]
    for st in steps:
        for i in range(8):
            for x in st(i): g(x)
    P = 112
    for i in range(8): g(f"v_cvt_pk_bf16_f32 v{P+i}, v{T+2*i}, v{T+2*i+1}")
    g("s_nop 1")
    for qq in (0, 2):
        g(f"v_permlane32_swap_b32 v{P+2*qq}, v{P+2*qq+2}\nv_permlane32_swap_b32 v{P+2*qq+1}, v{P+2*qq+3}")
    g(f"""
    v_and_b32 v26, 31, v{v_lane}
    v_mul_u32_u24 v26, 896, v26
    v_lshrrev_b32 v27, 5, v{v_lane}
    v_lshl_add_u32 v26, v27, 4, v26
    """)
    for qq in (0, 2):
        g(f"buffer_store_dwordx4 v[{P+2*qq}:{P+2*qq+3}], v26, s[{sOUT2}:{sOUT2+3}], s{s_zoff} offen offset:{16*qq}")


def gemm_path(g, stamps=False, upto=99, flags=True):
    S_ = lambda i: stamp(g, i, stamps)
    g.vreset()
    S_(0)
    g1_prologue(g)
    for c in range(2):
        for grp in g1_groups(c): emit_mixed(g, grp, f"c{c}")
    g(f"""s_lshl_b32 s{s_t0}, s2, 8
    v_add_u32 v{v_tch}, s{s_t0}, v0
    v_mul_u32_u24 v{v_hv}, 28, v{v_tch}
    v_lshlrev_b32 v{v_tch}, 5, v{v_tch}""")
    g.vm(f"buffer_load_dword v124, v{v_hv}, s[{sWG}:{sWG+3}], 0 offen", "t")
    g.vm(f"buffer_load_dword v125, v{v_hv}, s[{sWU}:{sWU+3}], 0 offen", "t")
    g.vm(f"buffer_load_dword v126, v{v_tch}, s[{sX}:{sX+3}], 0 offen", "t")
    S_(1)
    g1_addr(g)
    g.vwait("kp")
    g("s_barrier")
    kprep(g)
    S_(2)
    g.vwait("c0")
    g("s_barrier")
    S_(3)
    g("s_waitcnt lgkmcnt(0)")
    make_tag(g)
    def pre(k):
        if k == 3 and flags:
            g(f"s_lshl_b32 s{s_t0}, s{s_mi}, 4\ns_add_u32 s{s_t0}, s{s_t0}, s{s_fi}\ns_lshl_b32 s{s_t0}, s{s_t0}, 6\ns_add_u32 s{s_t0}, s{s_t0}, {WS_FK}")
            flag_store(g, s_t0, "G_kf", vt=v_poll)
        if k == 23:
            poll_body(g, "G_p1", s_t2z, issued_tag="p1") if flags else None
            g(f"s_add_u32 m0, s{s_t4}, {LST}\ns_lshl_b32 s{s_t1}, s{s_mi}, 10\ns_add_u32 s{s_t1}, s{s_t1}, {WS_STATS}")
            g.vm(f"buffer_load_dwordx4 v{v_l16}, s[{sWS}:{sWS+3}], s{s_t1} offen sc1 lds", "st")
            g(f"v_lshrrev_b32 v72, 5, v{v_lane}\nv_mul_u32_u24 v72, {7168-512}, v72\nv_add_u32 v72, v72, v{v_l16}")
            g(f"s_add_u32 m0, m0, 1024\ns_lshl_b32 s{s_t1}, s{s_fi}, 9\ns_add_u32 s{s_t1}, s{s_t1}, {WS_CS}")
            g.vm(f"buffer_load_dwordx4 v72, s[{sWS}:{sWS+3}], s{s_t1} offen sc1 lds", "st")
            for x in conv_u_dma(): g.emit(x, "u")
    def post(k):
        L = []
        if k == 6:
            L += [(f"s_load_dwordx2 s[{sWD2}:{sWD2+1}], s[0:1], {KA['wd']}", None), (f"s_load_dwordx2 s[{sSK2}:{sSK2+1}], s[0:1], {KA['ssmk']}", None),
                  (f"s_load_dwordx2 s[{sOUT2}:{sOUT2+1}], s[0:1], {KA['out']}", None), (f"s_load_dwordx2 s[96:97], s[0:1], {KA['ssmD']}", None)]
        if k == 7:
            for r, sz in ((sWD2, D*F*2), (sSK2, D*S*2), (sOUT2, S*D*2)):
                L += [(f"s_and_b32 s{r+1}, s{r+1}, 0xffff", None), (f"s_mov_b32 s{r+2}, {sz}", None), (f"s_mov_b32 s{r+3}, 0x20000", None)]
            L += [(f"s_lshl_b32 s98, s2, 2", None), (f"s_load_dword s99, s[96:97], s98", None)]
        if k == 10:
            L += [(f"s_lshl_b32 s100, s99, 16", None), (f"s_and_b32 s101, s99, 0xffff0000", None)]
            L += [(x, "h") for x in conv_h_loads()]
        if k == 14:
            L += [(f"s_lshl_b32 s{s_t0}, s2, 8", None), (f"v_add_u32 v{v_tch}, s{s_t0}, v0", None), (f"v_mul_u32_u24 v{v_tch}, 28, v{v_tch}", None),
                  (f"buffer_load_dword v127, v{v_tch}, s[{sWD2}:{sWD2+3}], 0 offen", "t2")]
        if k == 18 and flags:
            L += [(f"v_min_u32 v{v_poll}, 47, v{v_lane}", None), (f"v_subrev_u32 v{v_poll+1}, 32, v{v_poll}", None),
                  (f"v_lshlrev_b32 v{v_poll+1}, 10, v{v_poll+1}", None), (f"s_lshr_b32 s{s_t0}, s2, 4", None), (f"s_lshl_b32 s{s_t0}, s{s_t0}, 6", None),
                  (f"s_add_u32 s{s_t0}, s{s_t0}, {WS_FK}", None), (f"v_add_u32 v{v_poll+1}, s{s_t0}, v{v_poll+1}", None),
                  (f"v_lshlrev_b32 v{v_poll}, 6, v{v_lane}", None), (f"v_add_u32 v{v_poll}, {WS_FA}, v{v_poll}", None),
                  (f"v_cmp_gt_u32 vcc, 32, v{v_lane}", None), (f"s_mov_b32 s{s_t2z}, 0", None), ("s_nop 0", None),
                  (f"v_cndmask_b32 v{v_poll}, v{v_poll+1}, v{v_poll}, vcc", None),
                  (f"buffer_load_dword v{v_poll+1}, v{v_poll}, s[{sWS}:{sWS+3}], s{s_t2z} offen sc1", "p1")]
        return L if L else [("s_nop 0", None)][:0]
    g1_main(g, pre, lambda k: post(k), stamps=False)
    S_(4)
    if upto <= 1:
        g("s_waitcnt vmcnt(0)"); return
    g("s_nop 7\ns_barrier")
    wd_setup(g)
    g.vwait("st")
    g1_epilogue(g, wd=True)
    S_(5)
    g("s_waitcnt vmcnt(0)\ns_barrier")
    g.vreset()
    if flags:
        g(f"s_lshl_b32 s{s_t0}, s{s_mi}, 4\ns_add_u32 s{s_t0}, s{s_t0}, s{s_fi}\ns_lshl_b32 s{s_t0}, s{s_t0}, 6\ns_add_u32 s{s_t0}, s{s_t0}, {WS_FH}")
        flag_store(g, s_t0, "G_hf", vt=v_poll)
    S_(6)
    g.ldops = []
    for j in range(10):
        for x in wd_tr(j): g.ld(x, f"tr{j}")
    conv_build(g)
    g("s_waitcnt lgkmcnt(0)")
    st = dict(dma=10, tr=10)
    for j in range(10, 20):
        for x in wd_dma(j): g.emit(x, f"wd{j}")
    st['dma'] = 20
    conv_addr(g)
    g("s_barrier")
    S_(7)
    conv_main(g, st)
    S_(8)
    conv_epilogue(g)
    g("s_waitcnt vmcnt(0)\ns_barrier")
    g.vreset()
    if flags:
        g(f"s_lshl_b32 s{s_t0}, s2, 6\ns_add_u32 s{s_t0}, s{s_t0}, {WS_FZ}")
        flag_store(g, s_t0, "G_zf", vt=v_poll)
    S_(9)
    if upto <= 2:
        g("s_waitcnt vmcnt(0)"); return
    g2_setup(g)
    for x in final_loads_x(): g.emit(x, "x")
    if flags:
        g(f"""v_min_u32 v{v_poll}, 13, v{v_lane}
        v_lshlrev_b32 v{v_poll}, 6, v{v_poll}
        s_lshl_b32 s{s_t2z}, s{s_mi}, 10
        s_add_u32 s{s_t2z}, s{s_t2z}, {WS_FH}""")
        poll_body(g, "G_p2", s_t2z)
        g.vreset()
    S_(10)
    def extra(j):
        if j == 18 and flags:
            return [(f"v_min_u32 v{v_poll}, 15, v{v_lane}", None), (f"v_lshlrev_b32 v{v_poll}, 6, v{v_poll}", None),
                    (f"s_lshl_b32 s{s_t2z}, s{s_ct}, 5", None), (f"s_lshl_b32 s{s_t0}, s{s_ns}, 4", None), (f"s_add_u32 s{s_t2z}, s{s_t2z}, s{s_t0}", None),
                    (f"s_lshl_b32 s{s_t2z}, s{s_t2z}, 6", None), (f"s_add_u32 s{s_t2z}, s{s_t2z}, {WS_FZ}", None),
                    (f"buffer_load_dword v{v_poll+1}, v{v_poll}, s[{sWS}:{sWS+3}], s{s_t2z} offen sc1", "p3")]
        return []
    g2_main(g, extra)
    S_(11)
    if flags: poll_body(g, "G_p3", s_t2z, issued_tag="p3")
    final_loads_z(g)
    g2_reduce(g)
    S_(12)
    final(g)
    S_(13)
    g("s_waitcnt vmcnt(0)")
    S_(14)
    if flags:
        g(f"""s_cmp_lg_u32 s2, 0
        s_cbranch_scc1 G_noep
        s_cmp_lg_u32 s{s_w}, 0
        s_cbranch_scc1 G_noep""")
        for part in range(4):
            g(f"""v_add_u32 v{v_poll}, {part*64}, v{v_lane}
            v_min_u32 v{v_poll}, 223, v{v_poll}
            v_lshlrev_b32 v{v_poll}, 6, v{v_poll}
            s_mov_b32 s{s_t2z}, {WS_FZ}""")
            poll_body(g, f"G_pe{part}", s_t2z)
        g(f"""v_min_u32 v{v_poll}, 31, v{v_lane}
        v_lshlrev_b32 v{v_poll}, 6, v{v_poll}
        s_mov_b32 s{s_t2z}, {WS_FA}""")
        poll_body(g, "G_pe4", s_t2z)
        g(f"""v_mov_b32 v2, 0
        v_mov_b32 v3, s{s_tag}
        s_mov_b64 exec, 1
        buffer_store_dword v3, v2, s[{sWS}:{sWS+3}], 0 offen sc1
        s_mov_b64 exec, -1
        s_waitcnt vmcnt(0)
        G_noep:""")

s_t2z = 55
def gen_full(stamps=False, upto=99, flags=True, spare_on=True):
    g = G()
    g(header([f"grid=(256,1,1) block=(256,1,1) lds={LDS_TOTAL}"]))
    g(kstart(KN))
    g("s_cmp_ge_u32 s2, 256\ns_cbranch_scc1 L_end\ns_cmp_ge_u32 s2, 224\ns_cbranch_scc1 L_spare")
    gemm_path(g, stamps=stamps, upto=upto, flags=flags)
    if stamps: dump_stamps(g)
    g("s_endpgm")
    g("L_spare:")
    spare(g, flags=flags, stamps=stamps)
    if stamps: dump_stamps(g)
    g("L_end:\ns_endpgm")
    g(kdesc(KN, vgpr=512, sgpr=102, accum=256))
    return g.a.text()
def gen_full_stamps(): return gen_full(stamps=True)

def gen_spare_test():
    g = G()
    g(header([f"grid=(256,1,1) block=(256,1,1) lds={LDS_TOTAL}"]))
    g(kstart(KN))
    g("s_cmp_ge_u32 s2, 256\ns_cbranch_scc1 L_end\ns_cmp_lt_u32 s2, 224\ns_cbranch_scc1 L_end")
    spare(g, flags=True, stamps=True)
    dump_stamps(g)
    g("L_end:\ns_endpgm")
    g(kdesc(KN, vgpr=512, sgpr=100, accum=256))
    return g.a.text()

if __name__ == "__main__":
    import runner
    which = sys.argv[1]
    txt = globals()["gen_"+which]()
    open(f"dev/{which}.s", "w").write(txt)
    runner.build(f"dev/{which}.s", KN, 13)
    print("ok", len(txt))
```

```python
import sys, mk2 as mk
ref = open("recurrent_scan__ssm_conv_h3__geglu_ffn__prompt.s.ref").read().split("\n")
hdr = []
for l in ref:
    if l.startswith("; @launch") or not l.startswith(";"): break
    hdr.append(l)
txt = mk.gen_full()
out = "\n".join(hdr) + "\n" + txt
dst = sys.argv[1] if len(sys.argv) > 1 else "recurrent_scan__ssm_conv_h3__geglu_ffn__prompt.s"
open(dst, "w").write(out)
print("written", dst, len(out))
```

```python
import math, struct, sys
from dsl import *

S, D, F = 2048, 448, 1792
KN = "recurrent_scan__ssm_conv_h3__geglu_ffn__prompt_kernel"
def f2u(x): return struct.unpack('<I', struct.pack('<f', x))[0]
def fh(x): return hex(f2u(x))

WS_EPOCH = 0
WS_FA = 0x1000
WS_FK = 0x10000
WS_FH = 0x20000
WS_FZ = 0x30000
WS_STATS = 0x40000
WS_CS    = WS_STATS + 2048*8
WS_KVT   = 0x50000
WS_ZP    = WS_KVT + D*S*2
WS_H     = WS_ZP + D*S*2
WS_END   = WS_H + 64*112*1024
WS_STAMPS = 40<<20

KA = dict(q=0,k=8,v=16,shk=24,ssmk=32,ssmD=40,bx=48,wg=56,wu=64,wd=72,out=80,dbg=88,ws=96)
C1 = -2*math.sqrt(2/math.pi)*math.log2(math.e)
C2 = C1*0.044715
LDS_TOTAL = 163840

class G:
    def __init__(self):
        self.a = Asm()
        self.vmops = []
        self.ldops = []
    def __call__(self, s): self.a(s)
    def vm(self, s, tag=None):
        self.a(s); self.vmops.append(tag)
    def vwait(self, tag):
        idx = max(i for i, t in enumerate(self.vmops) if t == tag)
        n = len(self.vmops) - 1 - idx
        assert n <= 63, n
        self.a(f"s_waitcnt vmcnt({n})")
    def vreset(self): self.vmops = []
    def ld(self, s, tag=None):
        self.a(s); self.ldops.append(tag)
    def lwait(self, tag):
        idx = max(i for i, t in enumerate(self.ldops) if t == tag)
        n = min(15, len(self.ldops) - 1 - idx)
        self.a(f"s_waitcnt lgkmcnt({n})")
    def emit(self, s, tag=None):
        if "\n" in s:
            for x in s.split("\n"): self.emit(x, tag)
        elif s == "VWAIT": self.vwait(tag)
        elif s == "LWAIT": self.lwait(tag)
        elif s.startswith("buffer_"): self.vm(s, tag)
        elif s.startswith("ds_"): self.ld(s, tag)
        else: self.a(s)
    def lab(self, n): self.a.label(n)

def srd_load(g, r, name):
    g(f"s_load_dwordx2 s[{r}:{r+1}], s[0:1], {KA[name]}")
def srd_fix(g, r, size):
    g(f"s_and_b32 s{r+1}, s{r+1}, 0xffff\ns_mov_b32 s{r+2}, {size}\ns_mov_b32 s{r+3}, 0x20000")

sX, sWG, sWU, sWS, sWD, sSK, sOUT, sDD = 4, 8, 12, 16, 20, 24, 28, 32
s_w, s_mi, s_fi, s_mf, s_ns = 36, 37, 38, 39, 40
s_xoff, s_woff, s_m0x, s_m0w = 41, 42, 43, 44
s_t0, s_t1, s_t2, s_t3 = 45, 46, 47, 48
s_hoff = 49
s_tag = 50
s_spin = 51
STAMP0 = 66
NSTAMP = 15
def stamp(g, i, on=True):
    if on: g(f"s_memtime s[{STAMP0+2*i}:{STAMP0+2*i+1}]")
def dump_stamps(g, n=NSTAMP):
    g(f"""s_waitcnt lgkmcnt(0) vmcnt(0)
    s_memrealtime s[{STAMP0+2*n}:{STAMP0+2*n+1}]
    s_waitcnt lgkmcnt(0)
    s_mov_b32 s{sWS+2}, 0x7fffffff
    s_lshl_b32 s{s_t0}, s2, 9
    s_lshl_b32 s{s_t1}, s{s_w}, 7
    s_add_u32 s{s_t0}, s{s_t0}, s{s_t1}
    s_add_u32 s{s_t0}, s{s_t0}, {WS_STAMPS}
    v_mov_b32 v2, 0""")
    for i in range(n+1):
        g(f"v_mov_b32 v3, s{STAMP0+2*i}\nbuffer_store_dword v3, v2, s[{sWS}:{sWS+3}], s{s_t0} offen offset:{4*i}")
    g("s_waitcnt vmcnt(0)")

def load_tag(g):
    g(f"s_load_dword s{s_tag}, s[{sWS}:{sWS+1}], {WS_EPOCH}")
def make_tag(g):
    g(f"s_mul_i32 s{s_tag}, s{s_tag}, 0x9E3779B1\ns_add_u32 s{s_tag}, s{s_tag}, 0x7F4A7C15")

def rnd_bf16(g, r, tmp=None):
    g(f"v_cvt_pk_bf16_f32 v{r}, v{r}, v{r}\nv_lshlrev_b32 v{r}, 16, v{r}")

def publish_flag(g, off_expr_sgpr, lab):
    g("s_waitcnt vmcnt(0)\ns_barrier")
    g(f"""s_cmp_lg_u32 s{s_w}, 0
    s_cbranch_scc1 {lab}
    v_mov_b32 v2, 0
    v_mov_b32 v3, s{s_tag}
    s_mov_b64 exec, 1
    buffer_store_dword v3, v2, s[{sWS}:{sWS+3}], s{off_expr_sgpr} offen sc1
    s_mov_b64 exec, -1
    {lab}:""")

def flag_store(g, off_sgpr, lab, vt=14):
    g(f"""s_cmp_lg_u32 s{s_w}, 0
    s_cbranch_scc1 {lab}
    v_mov_b32 v{vt}, 0
    v_mov_b32 v{vt+1}, s{s_tag}
    s_mov_b64 exec, 1
    buffer_store_dword v{vt+1}, v{vt}, s[{sWS}:{sWS+3}], s{off_sgpr} offen sc1
    s_mov_b64 exec, -1
    {lab}:""")

def spare(g, flags=True, stamps=False):
    sWC = 32
    s_j = 37
    vl = 1
    LC = 0
    srd_load(g, sX, 'q'); srd_load(g, sWG, 'wg'); srd_load(g, sWU, 'wu'); srd_load(g, sWS, 'ws')
    g(f"""
    v_and_b32 v{vl}, 63, v0
    v_lshrrev_b32 v2, 6, v0
    s_sub_u32 s{s_j}, s2, 224
    v_readfirstlane_b32 s{s_w}, v2
    v_and_b32 v3, 15, v{vl}              ; n / p
    v_lshrrev_b32 v4, 4, v{vl}           ; q / rgl
    s_lshl_b32 s{s_t0}, s{s_w}, 4
    v_add_u32 v5, s{s_t0}, v3            ; 16w + n
    v_mul_u32_u24 v5, 896, v5
    v_lshl_add_u32 v5, v4, 4, v5         ; R voffset
    s_mul_i32 s{s_xoff}, s{s_j}, {64*896}
    s_lshl_b32 s{s_t0}, s{s_w}, 2
    v_add_u32 v6, s{s_t0}, v4
    v_mul_u32_u24 v6, 3584, v6
    v_lshl_add_u32 v6, v3, 4, v6         ; C voffset
    s_cmp_ge_u32 s{s_j}, 14
    s_cselect_b32 s{s_t1}, 14, 0
    s_sub_u32 s{s_fi}, s{s_j}, s{s_t1}   ; fb
    s_lshl_b32 s{s_woff}, s{s_fi}, 8
    s_waitcnt lgkmcnt(0)
    """)
    load_tag(g)
    g(f"""s_cmp_ge_u32 s{s_j}, 14
    s_cselect_b32 s{sWC}, s{sWU}, s{sWG}
    s_cselect_b32 s{sWC+1}, s{sWU+1}, s{sWG+1}""")
    srd_fix(g, sX, S*D*2); srd_fix(g, sWC, D*F*2); srd_fix(g, sWS, WS_END)
    stamp(g, 0, stamps)
    RB = 16
    for ks in range(14):
        g(f"buffer_load_dwordx4 v[{RB+4*ks}:{RB+4*ks+3}], v5, s[{sX}:{sX+3}], s{s_xoff} offen offset:{64*ks}")
    CB = 72
    g(f"s_cmp_ge_u32 s{s_j}, 28\ns_cbranch_scc1 SP_noC1")
    g(f"s_mov_b32 s{s_t3}, s{s_woff}")
    for i in range(28):
        g(f"buffer_load_dwordx4 v[{CB+4*i}:{CB+4*i+3}], v6, s[{sWC}:{sWC+3}], s{s_t3} offen")
        if i < 27: g(f"s_add_u32 s{s_t3}, s{s_t3}, {16*3584}")
    g("s_waitcnt vmcnt(28)\ns_branch SP_w1\nSP_noC1:\ns_waitcnt vmcnt(0)\nSP_w1:")
    stamp(g, 1, stamps)
    g("v_mov_b32 v8, 0x3f803f80\nv_mov_b32 v9, 0x3f803f80\nv_mov_b32 v10, 0x3f803f80\nv_mov_b32 v11, 0x3f803f80\ns_nop 1")
    D1, D2 = 184, 188
    for ks in range(14):
        A = f"v[{RB+4*ks}:{RB+4*ks+3}]"
        c1 = "0" if ks == 0 else f"v[{D1}:{D1+3}]"
        c2 = "0" if ks == 0 else f"v[{D2}:{D2+3}]"
        g(f"v_mfma_f32_16x16x32_bf16 v[{D1}:{D1+3}], {A}, v[8:11], {c1}")
        g(f"v_mfma_f32_16x16x32_bf16 v[{D2}:{D2+3}], {A}, {A}, {c2}")
    g(f"""
    v_and_b32 v12, 3, v{vl}
    v_cmp_eq_u32 s[90:91], 1, v12
    v_cmp_eq_u32 s[92:93], 2, v12
    v_cmp_eq_u32 s[94:95], 3, v12
    v_lshrrev_b32 v13, 2, v3              ; n>>2
    v_cmp_eq_u32 s[96:97], v13, v4        ; q == n>>2
    s_nop 7
    v_cndmask_b32 v{D1}, v{D1}, v{D1+1}, s[90:91]
    v_cndmask_b32 v{D2}, v{D2}, v{D2+1}, s[90:91]
    v_cndmask_b32 v{D1}, v{D1}, v{D1+2}, s[92:93]
    v_cndmask_b32 v{D2}, v{D2}, v{D2+2}, s[92:93]
    v_cndmask_b32 v{D1}, v{D1}, v{D1+3}, s[94:95]
    v_cndmask_b32 v{D2}, v{D2}, v{D2+3}, s[94:95]
    v_mul_f32 v{D1}, {fh(1.0/448)}, v{D1}            ; mean
    v_mul_f32 v{D2}, {fh(1.0/448)}, v{D2}            ; E[x^2]
    v_fma_f32 v{D2}, -v{D1}, v{D1}, v{D2}            ; var
    v_max_f32 v{D2}, 0, v{D2}
    """)
    rnd_bf16(g, D1); rnd_bf16(g, D2)
    g(f"v_add_f32 v{D2}, {fh(1e-5)}, v{D2}"); rnd_bf16(g, D2)
    g(f"v_sqrt_f32 v{D2}, v{D2}\ns_nop 0"); rnd_bf16(g, D2)
    g(f"""
    v_mov_b32 v{D1+1}, v{D2}
    s_lshl_b32 s{s_t0}, s{s_j}, 9
    s_lshl_b32 s{s_t1}, s{s_w}, 7
    s_add_u32 s{s_t0}, s{s_t0}, s{s_t1}
    s_add_u32 s{s_t0}, s{s_t0}, {WS_STATS}
    v_lshlrev_b32 v13, 3, v3
    s_mov_b64 exec, s[96:97]
    buffer_store_dwordx2 v[{D1}:{D1+1}], v13, s[{sWS}:{sWS+3}], s{s_t0} offen sc1
    s_mov_b64 exec, -1
    """)
    stamp(g, 2, stamps)
    g(f"s_cmp_ge_u32 s{s_j}, 28\ns_cbranch_scc1 SP_noC2")
    CA = 200
    g(f"s_mov_b32 s90, 0x00003f80\ns_mov_b32 s91, 0x3f800000")
    for c in range(8): g(f"v_mov_b32 v{CA+c}, 0")
    g("s_waitcnt vmcnt(1)")
    g(f"s_mov_b32 s{s_t0}, 0")
    g.lab("SP_Cloop")
    g(f"s_set_gpr_idx_on s{s_t0}, gpr_idx(SRC0)")
    for i in range(7):
        for q in range(4):
            g(f"v_dot2_f32_bf16 v{CA+2*q}, v{CB+4*i+q}, s90, v{CA+2*q}")
            g(f"v_dot2_f32_bf16 v{CA+2*q+1}, v{CB+4*i+q}, s91, v{CA+2*q+1}")
    g(f"""s_set_gpr_idx_off
    s_add_u32 s{s_t0}, s{s_t0}, 28
    s_cmp_lt_u32 s{s_t0}, 112
    s_cbranch_scc1 SP_Cloop""")
    g(f"""
    s_lshl_b32 s{s_t0}, s{s_w}, 2
    v_add_u32 v13, s{s_t0}, v4            ; rg
    v_lshlrev_b32 v13, 9, v13
    v_lshl_add_u32 v13, v3, 5, v13
    v_add_u32 v13, {LC}, v13
    s_nop 2
    ds_write_b128 v13, v[{CA}:{CA+3}]
    ds_write_b128 v13, v[{CA+4}:{CA+7}] offset:16
    s_waitcnt lgkmcnt(0)
    s_barrier
    s_cmp_ge_u32 s{s_w}, 2
    s_cbranch_scc1 SP_noC2
    v_lshlrev_b32 v13, 2, v0
    v_add_u32 v14, {LC}, v13
    """)
    for r in range(16): g(f"ds_read_b32 v{CB+r}, v14 offset:{512*r}")
    g("s_waitcnt lgkmcnt(0)")
    for r in range(8): g(f"v_add_f32 v{CB+r}, v{CB+r}, v{CB+r+8}")
    for r in range(4): g(f"v_add_f32 v{CB+r}, v{CB+r}, v{CB+r+4}")
    g(f"v_add_f32 v{CB}, v{CB}, v{CB+2}\nv_add_f32 v{CB+1}, v{CB+1}, v{CB+3}\nv_add_f32 v{CB}, v{CB}, v{CB+1}")
    g(f"""
    s_cmp_ge_u32 s{s_j}, 14
    s_cselect_b32 s{s_t0}, 7168, 0
    s_lshl_b32 s{s_t1}, s{s_fi}, 9
    s_add_u32 s{s_t0}, s{s_t0}, s{s_t1}
    s_add_u32 s{s_t0}, s{s_t0}, {WS_CS}
    buffer_store_dword v{CB}, v13, s[{sWS}:{sWS+3}], s{s_t0} offen sc1
    SP_noC2:
    """)
    stamp(g, 3, stamps)
    g("s_waitcnt vmcnt(0) lgkmcnt(0)")
    make_tag(g)
    g("s_barrier")
    if flags:
        g(f"s_lshl_b32 s{s_t0}, s{s_j}, 6\ns_add_u32 s{s_t0}, s{s_t0}, {WS_FA}")
        flag_store(g, s_t0, "SP_nf1")
    stamp(g, 4, stamps)


def lines(txt):
    out = []
    for l in txt.strip().split("\n"):
        l = l.split(";")[0].strip()
        if l: out.append(l)
    return out
def emit_mixed(g, L, tag):
    for x in L: g.emit(x, tag)
def T(L, tag=None):
    L = lines(L) if isinstance(L, str) else list(L)
    out = []; cur = None
    for x in L:
        if x.startswith("s_mov_b64 exec,") and not x.endswith("-1"):
            cur = [x]
        elif cur is not None:
            cur.append(x)
            if x == "s_mov_b64 exec, -1":
                out.append(("\n".join(cur), tag)); cur = None
        else:
            out.append((x, tag))
    assert cur is None
    return out

LX = 0; LW = 49152; LST = 147456
LKT = LST; LVT = LST + 4352; LKO = LST + 8448
RING = 20480
LCV = 81920; CVCH = 21248; CVCOPY = 4160; CVU = 16640

sKK, sVV, sSH = 20, 24, 28
sWD2, sSK2, sOUT2 = 56, 60, 8
s_kv, s_kk, s_kt, s_ko = 32, 33, 34, 35
s_hi, s_ct = 52, 53
s_zoff = 54
s_pb = 55
s_t4 = 3

v_lane = 1
v_xd = 2
v_wd = 6
v_xa = 10
v_wa = 14
v_l16 = 18
v_fr = 20
v_poll = 126
v_hv = 70
v_tch = 71
v_acc = 128
def accg(ft, nt): return v_acc + (ft*2+nt)*16
def accu(ft, nt): return v_acc + 64 + (ft*2+nt)*16
kB1, kB2, kvA, kvV, kvOW, kvOR, kvG, kvD0, kvD1 = 72, 76, 80, 81, 82, 83, 84, 85, 86
kA, kV, kD, kU, kO = 88, 104, 108, 116, 124

def poll_check(g, name, issued_tag):
    vt = v_poll
    if issued_tag is not None:
        g.vwait(issued_tag)
        g(f"v_cmp_ne_u32 vcc, s{s_tag}, v{vt+1}\ns_cbranch_vccz {name}_done")
    g(f"""
    s_mov_b32 s{s_spin}, 0x8000
    {name}_loop:
    buffer_load_dword v{vt+1}, v{vt}, s[{sWS}:{sWS+3}], s{s_pb} offen sc1
    s_waitcnt vmcnt(0)
    v_cmp_ne_u32 vcc, s{s_tag}, v{vt+1}
    s_cbranch_vccz {name}_done
    s_sleep 1
    s_sub_u32 s{s_spin}, s{s_spin}, 1
    s_cmp_lg_u32 s{s_spin}, 0
    s_cbranch_scc1 {name}_loop
    {name}_done:
    """)
def poll_issue(tag): return [(f"buffer_load_dword v{v_poll+1}, v{v_poll}, s[{sWS}:{sWS+3}], s{s_pb} offen sc1", tag)]
def wave_flag(g, off_sgpr):
    g(f"""v_mov_b32 v{v_hv}, 0
    v_mov_b32 v{v_tch}, s{s_tag}
    s_mov_b64 exec, 1""")
    g.vm(f"buffer_store_dword v{v_tch}, v{v_hv}, s[{sWS}:{sWS+3}], s{off_sgpr} offen sc1", "flag")
    g("s_mov_b64 exec, -1")

def g1_prologue(g):
    srd_load(g, sX, 'q'); srd_load(g, sWG, 'wg'); srd_load(g, sWU, 'wu')
    srd_load(g, sKK, 'k'); srd_load(g, sVV, 'v'); srd_load(g, sSH, 'shk'); srd_load(g, sWS, 'ws')
    srd_load(g, sWD2, 'wd'); srd_load(g, sSK2, 'ssmk'); srd_load(g, 64, 'out'); srd_load(g, 96, 'ssmD')
    g(f"""
    v_and_b32 v{v_lane}, 63, v0
    v_lshrrev_b32 v20, 6, v0
    s_lshr_b32 s{s_t0}, s2, 3
    s_and_b32 s{s_t1}, s2, 7
    v_readfirstlane_b32 s{s_w}, v20
    s_mul_i32 s{s_t2}, s{s_t0}, 37
    s_lshr_b32 s{s_t2}, s{s_t2}, 8
    s_mul_i32 s{s_t3}, s{s_t2}, 7
    s_sub_u32 s{s_ct}, s{s_t0}, s{s_t3}
    s_lshr_b32 s{s_mi}, s{s_t1}, 1
    s_lshl_b32 s{s_mi}, s{s_mi}, 2
    s_add_u32 s{s_mi}, s{s_mi}, s{s_t2}
    s_and_b32 s{s_hi}, s{s_t1}, 1
    s_mul_i32 s{s_t1}, s{s_hi}, 7
    s_add_u32 s{s_fi}, s{s_ct}, s{s_t1}
    v_lshrrev_b32 v20, 3, v{v_lane}
    v_lshrrev_b32 v21, 4, v{v_lane}
    v_and_b32 v22, 7, v{v_lane}
    v_mul_u32_u24 v20, 896, v20
    v_xor_b32 v23, v22, v21
    v_xor_b32 v28, 4, v23
    v_lshl_add_u32 v{v_xd}, v23, 4, v20
    v_lshl_add_u32 v28, v28, 4, v20
    v_add_u32 v{v_xd+1}, {8*896-1024}, v28
    v_add_u32 v{v_xd+2}, {2*(8*896-1024)}, v{v_xd}
    v_add_u32 v{v_xd+3}, {3*(8*896-1024)}, v28
    v_and_b32 v22, 15, v{v_lane}
    v_lshlrev_b32 v23, 2, v21
    v_sub_u32 v22, v22, v23
    v_and_b32 v22, 15, v22
    v_mul_u32_u24 v23, 3584, v21
    v_lshl_add_u32 v{v_wd}, v22, 4, v23
    v_add_u32 v{v_wd+1}, {4*3584-1024}, v{v_wd}
    v_add_u32 v{v_wd+2}, {2*(4*3584-1024)}, v{v_wd}
    v_add_u32 v{v_wd+3}, {3*(4*3584-1024)}, v{v_wd}
    s_lshl_b32 s{s_t0}, s{s_mi}, 7
    s_lshl_b32 s{s_t1}, s{s_w}, 5
    s_add_u32 s{s_t0}, s{s_t0}, s{s_t1}
    s_mul_i32 s{s_xoff}, s{s_t0}, 896
    s_mul_i32 s{s_woff}, s{s_w}, {16*3584}
    s_lshl_b32 s{s_t0}, s{s_fi}, 8
    s_add_u32 s{s_woff}, s{s_woff}, s{s_t0}
    s_lshl_b32 s{s_m0x}, s{s_w}, 12
    s_add_u32 s{s_m0w}, s{s_m0x}, {LW}
    s_and_b32 s{s_mf}, s{s_w}, 1
    s_lshr_b32 s{s_ns}, s{s_w}, 1
    s_lshl_b32 s{s_t4}, s{s_w}, 11
    v_lshlrev_b32 v{v_l16}, 4, v{v_lane}
    s_waitcnt lgkmcnt(0)
    """)
    srd_fix(g, sX, S*D*2); srd_fix(g, sWG, D*F*2); srd_fix(g, sWU, D*F*2)

def g1_dma_x(c):
    sl = c % 3
    L = [f"s_add_u32 m0, s{s_m0x}, {LX + sl*16384}", f"s_add_u32 s{s_t3}, s{s_xoff}, {128*c}"]
    for ii in range(4):
        L.append(f"buffer_load_dwordx4 v{v_xd+ii}, s[{sX}:{sX+3}], s{s_t3} offen offset:{1024*ii} lds")
    return L
def g1_dma_w(c, mat):
    sl = c % 3
    sr = sWG if mat == 0 else sWU
    L = [f"s_add_u32 m0, s{s_m0w}, {sl*32768 + mat*16384}", f"s_add_u32 s{s_t3}, s{s_woff}, {64*c*3584}"]
    for ii in range(4):
        L.append(f"buffer_load_dwordx4 v{v_wd+ii}, s[{sr}:{sr+3}], s{s_t3} offen offset:{1024*ii} lds")
    return L
def g1_groups(c): return [g1_dma_x(c), g1_dma_w(c,0), g1_dma_w(c,1)]

def kp_setup_dma():
    return lines(f"""
    v_lshrrev_b32 v104, 2, v{v_lane}
    v_and_b32 v105, 3, v{v_lane}
    v_mul_u32_u24 v104, 896, v104
    v_lshl_add_u32 v{kvD1}, v105, 4, v104
    s_lshl_b32 s{s_t0}, s{s_mi}, 7
    s_lshl_b32 s{s_t2}, s{s_fi}, 6
    s_add_u32 s{s_t1}, s{s_t0}, 61
    s_mul_i32 s{s_kt}, s{s_t1}, 896
    s_add_u32 s{s_kt}, s{s_kt}, s{s_t2}
    s_lshl_b32 s{s_t1}, s{s_w}, 4
    s_add_u32 s{s_t0}, s{s_t0}, s{s_t1}
    s_mul_i32 s{s_kv}, s{s_t0}, 896
    s_add_u32 s{s_kv}, s{s_kv}, s{s_t2}
    s_cmp_eq_u32 s{s_t0}, 0
    s_cselect_b32 s{s_t1}, 0, 2688
    s_cselect_b32 s{s_t2}, 2688, 0
    s_sub_u32 s{s_kk}, s{s_kv}, s{s_t1}
    v_subrev_u32 v{kvD0}, s{s_t2}, v{kvD1}
    """)
def kp_dma(h):
    L = []
    if h == 0:
        L += [f"s_lshr_b32 s{s_t0}, s{s_t4}, 1", f"s_add_u32 m0, s{s_t0}, {LKT}", "s_nop 0",
              f"buffer_load_dwordx4 v{kvD0}, s[{sKK}:{sKK+3}], s{s_kk} offen lds",
              f"s_add_u32 m0, s{s_t0}, {LVT}", "s_nop 0",
              f"buffer_load_dwordx4 v{kvD1}, s[{sVV}:{sVV+3}], s{s_kv} offen lds",
              f"s_mov_b32 m0, {LKT+4096}", "s_mov_b64 exec, 0xfff",
              f"buffer_load_dwordx4 v{kvD1}, s[{sKK}:{sKK+3}], s{s_kt} offen lds", "s_mov_b64 exec, -1"]
    else:
        L += [f"s_lshr_b32 s{s_t0}, s{s_t4}, 1", f"s_add_u32 m0, s{s_t0}, {LKT}", f"s_add_u32 s{s_t1}, s{s_kv}, {57344-2688}",
              f"buffer_load_dwordx4 v{kvD1}, s[{sKK}:{sKK+3}], s{s_t1} offen lds",
              f"s_add_u32 m0, s{s_t0}, {LVT}", f"s_add_u32 s{s_t1}, s{s_kv}, 57344",
              f"buffer_load_dwordx4 v{kvD1}, s[{sVV}:{sVV+3}], s{s_t1} offen lds",
              f"s_mov_b32 m0, {LKT+4096}", f"s_add_u32 s{s_t1}, s{s_kt}, 57344", "s_mov_b64 exec, 0xfff",
              f"buffer_load_dwordx4 v{kvD1}, s[{sKK}:{sKK+3}], s{s_t1} offen lds", "s_mov_b64 exec, -1"]
    return L
def kp_shk_load():
    return lines(f"""
    v_and_b32 v{kA+2}, 15, v{v_lane}
    s_lshl_b32 s{s_t0}, s{s_fi}, 5
    s_lshl_b32 s{s_t1}, s{s_mf}, 4
    s_add_u32 s{s_t0}, s{s_t0}, s{s_t1}
    s_lshl_b32 s{s_t1}, s{s_t0}, 3
    v_lshlrev_b32 v{kA+3}, 3, v{kA+2}
    buffer_load_dwordx2 v[{kA}:{kA+1}], v{kA+3}, s[{sSH}:{sSH+3}], s{s_t1} offen
    """)
def kp_setup_addr():
    n, kq, t0, t1 = 104, 105, 106, 107
    return lines(f"""
    v_and_b32 v{n}, 15, v{v_lane}
    v_lshrrev_b32 v{kq}, 4, v{v_lane}
    v_lshrrev_b32 v{t0}, 2, v{n}
    v_and_b32 v{t1}, 3, v{n}
    v_lshl_add_u32 v{t0}, v{t0}, 3, v{t1}
    v_lshrrev_b32 v{t1}, 1, v{kq}
    v_sub_u32 v{t0}, v{t0}, v{t1}
    v_add_u32 v{t0}, 1, v{t0}
    s_lshl_b32 s{s_t0}, s{s_ns}, 5
    v_add_u32 v{t0}, s{s_t0}, v{t0}
    v_lshlrev_b32 v{t0}, 6, v{t0}
    v_and_b32 v{t1}, 1, v{kq}
    v_lshl_add_u32 v{t0}, v{t1}, 4, v{t0}
    s_lshl_b32 s{s_t1}, s{s_mf}, 5
    s_add_u32 s{s_t2}, s{s_t1}, {LKT}
    v_add_u32 v{kvA}, s{s_t2}, v{t0}
    v_lshrrev_b32 v{t0}, 2, v{n}
    v_lshl_add_u32 v{t0}, v{kq}, 3, v{t0}
    v_add_u32 v{t0}, s{s_t0}, v{t0}
    v_lshlrev_b32 v{t0}, 6, v{t0}
    v_and_b32 v{t1}, 3, v{n}
    v_lshl_add_u32 v{t0}, v{t1}, 3, v{t0}
    s_add_u32 s{s_t2}, s{s_t1}, {LVT}
    v_add_u32 v{kvV}, s{s_t2}, v{t0}
    s_lshr_b32 s{s_t0}, s{s_t4}, 1
    s_add_u32 s{s_t0}, s{s_t0}, {LKO}
    v_sub_u32 v{t0}, 3, v{kq}
    v_lshlrev_b32 v{t0}, 4, v{t0}
    v_lshl_add_u32 v{t0}, v{n}, 6, v{t0}
    v_add_u32 v{kvOW}, s{s_t0}, v{t0}
    v_add_u32 v{kvOR}, s{s_t0}, v{v_l16}
    v_lshrrev_b32 v{t0}, 2, v{v_lane}
    v_lshlrev_b32 v{t0}, 12, v{t0}
    v_and_b32 v{t1}, 3, v{v_lane}
    v_lshl_add_u32 v{kvG}, v{t1}, 4, v{t0}
    s_lshl_b32 s{s_t0}, s{s_fi}, 5
    s_lshl_b32 s{s_t1}, s{s_mf}, 4
    s_add_u32 s{s_t0}, s{s_t0}, s{s_t1}
    s_lshl_b32 s{s_t0}, s{s_t0}, 12
    s_lshl_b32 s{s_t1}, s{s_mi}, 8
    s_sub_u32 s{s_t0}, s{s_t0}, s{s_t1}
    s_lshl_b32 s{s_t1}, s{s_ns}, 6
    s_sub_u32 s{s_t0}, s{s_t0}, s{s_t1}
    s_add_u32 s{s_ko}, s{s_t0}, {WS_KVT + 4032}
    """)
def kp_build_B():
    n, kq, a, b, c, d = 108, 109, 110, 111, 112, 113
    L = lines(f"""
    v_and_b32 v{n}, 15, v{v_lane}
    v_lshrrev_b32 v{kq}, 4, v{v_lane}
    v_lshrrev_b32 v{a}, 1, v{kq}
    v_lshlrev_b32 v{a}, 4, v{a}
    v_lshrrev_b32 v{b}, v{a}, v{kA}
    v_lshrrev_b32 v{c}, v{a}, v{kA+1}
    v_and_b32 v{b}, 0xffff, v{b}
    v_and_b32 v{c}, 0xffff, v{c}
    v_and_b32 v{a}, 1, v{n}
    v_lshlrev_b32 v{a}, 4, v{a}
    v_lshlrev_b32 v{b}, v{a}, v{b}
    v_lshlrev_b32 v{c}, v{a}, v{c}
    v_lshrrev_b32 v{a}, 3, v{n}
    v_and_b32 v{d}, 1, v{kq}
    v_cmp_eq_u32 vcc, v{a}, v{d}
    v_bfe_u32 v{a}, v{n}, 1, 2
    s_nop 0
    v_cndmask_b32 v{b}, 0, v{b}, vcc
    v_cndmask_b32 v{c}, 0, v{c}, vcc
    """)
    for i in range(4):
        L += [f"v_cmp_eq_u32 vcc, {i}, v{a}", "s_nop 1", f"v_cndmask_b32 v{kB1+i}, 0, v{b}, vcc", f"v_cndmask_b32 v{kB2+i}, 0, v{c}, vcc"]
    return L
def kp_reads():
    L = []
    for t in range(2):
        L.append(f"ds_read_b128 v[{kA+8*t}:{kA+8*t+3}], v{kvA} offset:{256*t+128}")
        L.append(f"ds_read_b128 v[{kA+8*t+4}:{kA+8*t+7}], v{kvA} offset:{256*t}")
        L.append(f"ds_read_b64_tr_b16 v[{kV+2*t}:{kV+2*t+1}], v{kvV} offset:{256*t}")
    return L
def kp_mfma():
    L = []
    for t in range(2): L.append(f"v_mfma_f32_16x16x32_bf16 v[{kD+4*t}:{kD+4*t+3}], v[{kA+8*t}:{kA+8*t+3}], v[{kB1}:{kB1+3}], 0")
    for t in range(2): L.append(f"v_mfma_f32_16x16x32_bf16 v[{kD+4*t}:{kD+4*t+3}], v[{kA+8*t+4}:{kA+8*t+7}], v[{kB2}:{kB2+3}], v[{kD+4*t}:{kD+4*t+3}]")
    for t in range(2):
        for h in range(2):
            L += [f"v_lshlrev_b32 v{kU+4*t+2*h}, 16, v{kV+2*t+h}", f"v_and_b32 v{kU+4*t+2*h+1}, 0xffff0000, v{kV+2*t+h}"]
    return L
def kp_finish():
    L = []
    for t in range(2):
        for h in range(2):
            L.append(f"v_pk_mul_f32 v[{kD+4*t+2*h}:{kD+4*t+2*h+1}], v[{kD+4*t+2*h}:{kD+4*t+2*h+1}], v[{kU+4*t+2*h}:{kU+4*t+2*h+1}]")
    for e in range(4):
        t = 1 - (e >> 1); r = 3 - 2*(e & 1)
        L.append(f"v_cvt_pk_bf16_f32 v{kO+e}, v{kD+4*t+r}, v{kD+4*t+r-1}")
    L.append(f"ds_write_b128 v{kvOW}, v[{kO}:{kO+3}]")
    return L
def kp_readback(): return [f"ds_read_b128 v[{kO}:{kO+3}], v{kvOR}"]
def kp_store(h):
    if h == 0: return [f"buffer_store_dwordx4 v[{kO}:{kO+3}], v{kvG}, s[{sWS}:{sWS+3}], s{s_ko} offen sc1"]
    return [f"s_sub_u32 s{s_t0}, s{s_ko}, 128", f"buffer_store_dwordx4 v[{kO}:{kO+3}], v{kvG}, s[{sWS}:{sWS+3}], s{s_t0} offen sc1"]

def g1_addr():
    L = lines(f"""
    v_and_b32 v20, 31, v{v_lane}
    v_lshrrev_b32 v21, 5, v{v_lane}
    v_bfe_u32 v22, v{v_lane}, 1, 3
    v_xor_b32 v22, v22, v21
    s_lshl_b32 s{s_t0}, s{s_ns}, 13
    v_lshl_add_u32 v20, v20, 7, s{s_t0}
    """)
    for ks in range(4):
        L += [f"v_xor_b32 v23, {2*ks}, v22", f"v_lshl_add_u32 v{v_xa+ks}, v23, 4, v20"]
    L += lines(f"""
    v_bfe_u32 v20, v{v_lane}, 2, 2
    v_bfe_u32 v22, v{v_lane}, 4, 1
    v_bfe_u32 v23, v{v_lane}, 1, 1
    v_and_b32 v24, 1, v{v_lane}
    v_lshl_add_u32 v22, v22, 1, v23
    v_lshlrev_b32 v25, 11, v21
    v_lshl_add_u32 v25, v20, 8, v25
    v_lshl_add_u32 v25, v24, 3, v25
    v_lshl_add_u32 v25, v22, 4, v25
    v_add_u32 v25, {LW}, v25
    s_lshl_b32 s{s_t0}, s{s_mf}, 1
    """)
    for ft in range(2):
        L += lines(f"""
        v_add_u32 v26, s{s_t0}, v20
        v_add_u32 v26, {ft}, v26
        v_and_b32 v26, 3, v26
        v_lshl_add_u32 v{v_wa+ft}, v26, 6, v25
        v_add_u32 v{v_wa+2+ft}, 65536, v{v_wa+ft}
        """)
    return L

def g1_frag_reads(kstep):
    c, ks = divmod(kstep, 4)
    sl = c % 3
    b = v_fr + (kstep & 1)*24
    L = []
    for nt in range(2):
        L.append(f"ds_read_b128 v[{b+4*nt}:{b+4*nt+3}], v{v_xa+ks} offset:{sl*16384 + nt*4096}")
    for mat in range(2):
        for ft in range(2):
            r = b + 8 + mat*8 + ft*4
            base = v_wa + ft + (2 if sl == 2 else 0)
            off = (sl*32768 if sl < 2 else 0) + mat*16384 + ks*4096
            L.append(f"ds_read_b64_tr_b16 v[{r}:{r+1}], v{base} offset:{off}")
            L.append(f"ds_read_b64_tr_b16 v[{r+2}:{r+3}], v{base} offset:{off+1024}")
    return L

def g1_mfmas(kstep):
    b = v_fr + (kstep & 1)*24
    L = []
    for ft in range(2):
        for nt in range(2):
            for mat in range(2):
                acc = accg(ft, nt) if mat == 0 else accu(ft, nt)
                A = b + 8 + mat*8 + ft*4
                B = b + 4*nt
                cin = "0" if kstep == 0 else f"v[{acc}:{acc+15}]"
                L.append(f"v_mfma_f32_32x32x16_bf16 v[{acc}:{acc+15}], v[{A}:{A+3}], v[{B}:{B+3}], {cin}")
    return L

def spread(per, items, lo, hi):
    n = len(items)
    for i, x in enumerate(items):
        per[min(hi, lo + (i*(hi-lo+1))//n)].append(x)

KSTAMP = None
def g1_main(g, pre, post, stamps=None, smem_steps=()):
    g.ldops = []
    for s_ in g1_frag_reads(0): g.ld(s_, "fr0")
    sched = {}
    for gi, grp in enumerate(g1_groups(2)): sched[gi] = (grp, "c2")
    for c in range(0, 4):
        for gi, grp in enumerate(g1_groups(c+3)): sched[4*c+3+gi] = (grp, f"c{c+3}")
    for k in range(28):
        c, ks = divmod(k, 4)
        if (k-1) in smem_steps:
            g("s_waitcnt lgkmcnt(0)")
        else:
            g.lwait(f"fr{k}")
        if KSTAMP is not None and KSTAMP <= k < KSTAMP + 14: stamp(g, k - KSTAMP + 1)
        if ks == 3 and c < 6:
            g.vwait(f"c{c+1}")
            for tg in pre(k): g.vwait(tg)
            g("s_barrier")
            if stamps and c in stamps: stamp(g, stamps[c])
        per = [[] for _ in range(8)]
        if k+1 < 28: spread(per, T(g1_frag_reads(k+1), f"fr{k+1}"), 0, 4)
        if k in sched:
            grp, tag = sched[k]
            per[0] += T(grp[:3], tag)
            for i in range(1, 4): per[i].append((grp[2+i], tag))
        early, late = post(k)
        if early: spread(per, early, 0, 7)
        if late: spread(per, late, 4, 7)
        m = g1_mfmas(k)
        for i in range(8):
            g(m[i])
            for s_, tag in per[i]:
                if s_ == "CALL": tag()
                else: g.emit(s_, tag)

v_cs = 72
v_rc = 100
v_t = 108
v_csa = v_t + 1
def epi_pre_reads():
    return lines(f"""
    s_add_u32 s{s_t0}, s{s_t4}, {LST}
    v_and_b32 v{v_t}, 31, v{v_lane}
    s_lshl_b32 s{s_t1}, s{s_ns}, 9
    s_add_u32 s{s_t1}, s{s_t1}, s{s_t0}
    v_lshl_add_u32 v{v_t}, v{v_t}, 3, s{s_t1}
    v_lshrrev_b32 v{v_csa}, 5, v{v_lane}
    s_lshl_b32 s{s_t1}, s{s_mf}, 8
    s_add_u32 s{s_t1}, s{s_t1}, s{s_t0}
    s_add_u32 s{s_t1}, s{s_t1}, 1024
    v_lshl_add_u32 v{v_csa}, v{v_csa}, 4, s{s_t1}
    ds_read_b64 v[{v_t+2}:{v_t+3}], v{v_t}
    ds_read_b64 v[{v_t+4}:{v_t+5}], v{v_t} offset:256
    """) + epi_cs_reads()
def epi_cs_reads():
    return [f"ds_read_b128 v[{v_cs}:{v_cs+3}], v{v_csa}", f"ds_read_b128 v[{v_cs+4}:{v_cs+7}], v{v_csa} offset:32",
            f"ds_read_b128 v[{v_cs+8}:{v_cs+11}], v{v_csa} offset:512", f"ds_read_b128 v[{v_cs+12}:{v_cs+15}], v{v_csa} offset:544",
            f"v_add_u32 v{v_csa}, 64, v{v_csa}"]
def epi_hoff():
    return lines(f"""
    s_lshl_b32 s{s_t0}, s{s_mi}, 2
    s_lshl_b32 s{s_t1}, s{s_ns}, 1
    s_add_u32 s{s_t0}, s{s_t0}, s{s_t1}
    s_mul_i32 s{s_t0}, s{s_t0}, 112
    s_lshl_b32 s{s_t1}, s{s_fi}, 3
    s_add_u32 s{s_t0}, s{s_t0}, s{s_t1}
    s_lshl_b32 s{s_t1}, s{s_mf}, 2
    s_add_u32 s{s_t0}, s{s_t0}, s{s_t1}
    s_lshl_b32 s{s_hoff}, s{s_t0}, 10
    s_add_u32 s{s_hoff}, s{s_hoff}, {WS_H}
    """)
vW0, vW1, vW2, vW3 = 120, 121, 122, 123
def g1_epilogue(g):
    for nt in range(2):
        m, sd = v_t+2+2*nt, v_t+3+2*nt
        rc = v_rc + 4*nt
        g(f"""
        v_rcp_f32 v{v_t+6}, v{sd}
        v_sub_f32 v{rc}, 0, v{m}
        v_mul_f32 v{rc+1}, v{sd}, v{sd}
        v_mul_f32 v{rc+2}, {fh(C1)}, v{v_t+6}
        v_mul_f32 v{v_t+7}, v{v_t+6}, v{v_t+6}
        v_mul_f32 v{v_t+7}, v{v_t+7}, v{v_t+6}
        v_mul_f32 v{rc+3}, {fh(C2)}, v{v_t+7}
        """)
    TG = 20
    P = 88
    g(f"s_mov_b32 s{s_t0}, 0\ns_mov_b32 s{s_t1}, s{s_hoff}\ns_mov_b32 s96, s{s_m0x}\ns_add_u32 s97, s{s_woff}, {12*16*896}")
    def wd_dyn():
        g(f"s_mov_b32 m0, s96\ns_add_u32 s96, s96, 2048")
        g(f"buffer_load_dwordx4 v{vW0}, s[{sWD2}:{sWD2+3}], s97 offen lds")
        g(f"buffer_load_dwordx4 v{vW1}, s[{sWD2}:{sWD2+3}], s97 offen offset:1024 lds")
        g(f"s_add_u32 s97, s97, {16*896}")
    wd_dyn(); wd_dyn()
    g.lab("E1_loop")
    g(f"s_set_gpr_idx_on s{s_t0}, gpr_idx(SRC2)")
    for nt in range(2):
        rc = v_rc + 4*nt; nm = f"v[{rc}:{rc+1}]"
        b = TG + 24*nt
        for pp in range(4):
            r = 2*pp
            g(f"v_pk_fma_f32 v[{b+r}:{b+r+1}], v[{v_cs+r}:{v_cs+r+1}], {nm}, v[{accg(0,nt)+r}:{accg(0,nt)+r+1}] op_sel_hi:[1,0,1]")
            g(f"v_pk_fma_f32 v[{b+8+r}:{b+8+r+1}], v[{v_cs+8+r}:{v_cs+8+r+1}], {nm}, v[{accu(0,nt)+r}:{accu(0,nt)+r+1}] op_sel_hi:[1,0,1]")
    g("s_set_gpr_idx_off")
    for x in epi_cs_reads(): g(x)
    for nt in range(2):
        wd_dyn()
        rc = v_rc + 4*nt; nm = f"v[{rc}:{rc+1}]"; cc = f"v[{rc+2}:{rc+3}]"
        b = TG + 24*nt
        def pr(x): return f"v[{x}:{x+1}]"
        steps = [
          lambda tg,tu,z: [f"v_pk_mul_f32 {pr(z)}, {pr(tg)}, {pr(tg)}"],
          lambda tg,tu,z: [f"v_pk_fma_f32 {pr(z)}, {pr(z)}, {cc}, {cc} op_sel:[0,1,0] op_sel_hi:[1,1,0]"],
          lambda tg,tu,z: [f"v_pk_mul_f32 {pr(z)}, {pr(z)}, {pr(tg)}"],
          lambda tg,tu,z: [f"v_exp_f32 v{z}, v{z}", f"v_exp_f32 v{z+1}, v{z+1}"],
          lambda tg,tu,z: [f"v_pk_mul_f32 {pr(tu)}, {pr(tu)}, {pr(tg)}"],
          lambda tg,tu,z: [f"v_pk_fma_f32 {pr(z)}, {pr(z)}, {nm}, {nm} op_sel:[0,1,1] op_sel_hi:[1,1,1]"],
          lambda tg,tu,z: [f"v_rcp_f32 v{z}, v{z}", f"v_rcp_f32 v{z+1}, v{z+1}"],
          lambda tg,tu,z: [f"v_pk_mul_f32 {pr(tu)}, {pr(tu)}, {pr(z)}"],
        ]
        for st in steps:
            for pp in range(4):
                for x in st(b+2*pp, b+8+2*pp, b+16+2*pp): g(x)
        for pp in range(4):
            g(f"v_cvt_pk_bf16_f32 v{P+4*nt+pp}, v{b+8+2*pp}, v{b+8+2*pp+1}")
        if nt == 0: g(f"buffer_store_dwordx4 v[{P}:{P+3}], v{v_l16}, s[{sWS}:{sWS+3}], s{s_t1} offen sc1")
        else: g(f"s_add_u32 s{s_t2}, s{s_t1}, {112*1024}\nbuffer_store_dwordx4 v[{P+4}:{P+7}], v{v_l16}, s[{sWS}:{sWS+3}], s{s_t2} offen sc1")
    g(f"""
    s_add_u32 s{s_t1}, s{s_t1}, 1024
    s_add_u32 s{s_t0}, s{s_t0}, 8
    s_bitcmp1_b32 s{s_t0}, 4
    s_cselect_b32 s{s_t2}, 16, 0
    s_add_u32 s{s_t0}, s{s_t0}, s{s_t2}
    s_cmp_lt_u32 s{s_t0}, 64
    s_waitcnt lgkmcnt(0)
    s_cbranch_scc1 E1_loop
    """)
    g.vmops = g.vmops + ["wd"]*16 + ["wd", "wd", "hst", "wd21", "wd21", "hst"]

a_h = 224
def conv_h_loads():
    L = [f"v_lshlrev_b32 v{v_hv}, 4, v0", f"s_lshl_b32 s{s_zoff}, s2, 13"]
    for ch in range(2):
        for i in range(3):
            r = a_h + ch*12 + i*4
            L.append(f"buffer_load_dwordx4 a[{r}:{r+3}], v{v_hv}, s[{sSK2}:{sSK2+3}], s{s_zoff} offen offset:{4*i}")
        if ch == 0: L.append(f"s_add_u32 s{s_zoff}, s{s_zoff}, 4096")
    return L

def conv_build(g, fill):
    R = 20
    body = []
    for i in range(24): body.append(f"v_accvgpr_read_b32 v{R+i}, a{a_h+i}")
    body += [f"v_lshlrev_b32 v60, 4, v0", f"v_add_u32 v60, {LCV+32}, v60"]
    for ch in range(2):
        R0, R1, R2 = R+12*ch, R+12*ch+4, R+12*ch+8
        O1, O3 = 44+8*ch, 48+8*ch
        for i in range(4):
            body.append(f"v_alignbit_b32 v{O1+i}, v{R1+i}, v{R0+i}, 16")
            body.append(f"v_alignbit_b32 v{O3+i}, v{R2+i}, v{R1+i}, 16")
        base = ch*CVCH
        body.append(f"ds_write_b128 v60, v[{R0}:{R0+3}] offset:{base}")
        body.append(f"ds_write_b128 v60, v[{O1}:{O1+3}] offset:{base+CVCOPY}")
        body.append(f"ds_write_b128 v60, v[{R1}:{R1+3}] offset:{base+2*CVCOPY}")
        body.append(f"ds_write_b128 v60, v[{O3}:{O3+3}] offset:{base+3*CVCOPY}")
    n = len(body); k = 0
    for i, x in enumerate(body):
        g.emit(x)
        while k < len(fill) and k < (i+1)*len(fill)//n:
            g.emit(*fill[k]); k += 1
    g(f"""
    s_cmp_eq_u32 s{s_w}, 0
    s_cbranch_scc0 CB_w1
    v_mov_b32 v64, 0
    v_mov_b32 v65, 0
    v_mov_b32 v66, 0
    v_mov_b32 v67, 0
    """)
    for ch in range(2):
        g(f"""
        v_readlane_b32 s96, v{R+12*ch}, 0
        v_readlane_b32 s97, v{R+12*ch+1}, 0
        s_nop 3
        s_lshl_b32 s98, s96, 16
        s_lshr_b32 s99, s96, 16
        s_lshl_b32 s97, s97, 16
        s_or_b32 s99, s99, s97
        v_writelane_b32 v67, s98, {8*ch+3}
        v_writelane_b32 v67, s96, {8*ch+5}
        v_writelane_b32 v67, s99, {8*ch+7}
        v_writelane_b32 v66, s98, {8*ch+7}
        """)
    g(f"""
    v_lshrrev_b32 v61, 3, v{v_lane}
    v_mul_u32_u24 v61, {CVCH}, v61
    v_bfe_u32 v62, v{v_lane}, 1, 2
    v_mul_u32_u24 v62, {CVCOPY}, v62
    v_add_u32 v61, v61, v62
    v_and_b32 v62, 1, v{v_lane}
    v_lshl_add_u32 v61, v62, 4, v61
    v_add_u32 v61, {LCV}, v61
    s_mov_b64 exec, 0xffff
    ds_write_b128 v61, v[64:67]
    s_mov_b64 exec, -1
    s_branch CB_done
    CB_w1:
    s_cmp_eq_u32 s{s_w}, 1
    s_cbranch_scc0 CB_done
    v_mov_b32 v64, 0
    v_mov_b32 v65, 0
    v_mov_b32 v66, 0
    v_mov_b32 v67, 0
    v_lshrrev_b32 v61, 5, v{v_lane}
    v_mul_u32_u24 v61, {CVCH}, v61
    v_and_b32 v62, 31, v{v_lane}
    v_lshl_add_u32 v61, v62, 4, v61
    v_add_u32 v61, {LCV+CVU+4096}, v61
    ds_write_b128 v61, v[64:67]
    CB_done:
    """)

def conv_u_dma():
    return lines(f"""
    s_lshl_b32 s{s_t3}, s2, 13
    s_add_u32 s{s_t3}, s{s_t3}, s{s_t4}
    s_add_u32 s{s_t3}, s{s_t3}, {WS_KVT}
    s_mul_i32 s{s_t2}, s{s_ns}, {CVCH}
    s_lshl_b32 s{s_t1}, s{s_mf}, 11
    s_add_u32 s{s_t2}, s{s_t2}, s{s_t1}
    s_add_u32 m0, s{s_t2}, {LCV+CVU}
    s_nop 0
    buffer_load_dwordx4 v{v_l16}, s[{sWS}:{sWS+3}], s{s_t3} offen sc1 lds
    buffer_load_dwordx4 v{v_l16}, s[{sWS}:{sWS+3}], s{s_t3} offen offset:1024 sc1 lds
    """)

cv_D = 128
cv_A = [160, 64]; cv_B = [192, 92]
cv_A = [160, 56]; cv_B = [192, 88]
v_la, v_lb = 124, 125
def conv_addr():
    return lines(f"""
    v_and_b32 v108, 15, v{v_lane}
    v_lshrrev_b32 v109, 4, v{v_lane}
    v_add_u32 v110, 1, v108
    v_and_b32 v111, 3, v110
    v_mul_u32_u24 v111, {CVCOPY}, v111
    v_lshrrev_b32 v110, 2, v110
    v_lshl_add_u32 v111, v110, 3, v111
    v_lshl_add_u32 v111, v109, 4, v111
    s_mul_i32 s{s_t0}, s{s_ns}, {CVCH}
    s_lshl_b32 s{s_t1}, s{s_mf}, 8
    s_add_u32 s{s_t0}, s{s_t0}, s{s_t1}
    s_add_u32 s{s_t0}, s{s_t0}, {LCV}
    v_add_u32 v{v_la}, s{s_t0}, v111
    v_lshlrev_b32 v110, 5, v108
    v_lshlrev_b32 v111, 4, v109
    v_sub_u32 v111, v111, v110
    s_add_u32 s{s_t0}, s{s_t0}, {CVU + 4064 - 3584}
    v_add_u32 v{v_lb}, s{s_t0}, v111
    """)
def conv_reads(cl):
    A, B = cv_A[cl & 1], cv_B[cl & 1]
    L = []
    for i in range(8):
        L.append(f"ds_read_b64 v[{A+4*i}:{A+4*i+1}], v{v_la} offset:{64*cl+512*i}")
        L.append(f"ds_read_b64 v[{A+4*i+2}:{A+4*i+3}], v{v_la} offset:{64*cl+512*i+8}")
        L.append(f"ds_read_b128 v[{B+4*i}:{B+4*i+3}], v{v_lb} offset:{64*cl+512*(7-i)}")
    return L
def conv_mfmas(cl):
    A, B = cv_A[cl & 1], cv_B[cl & 1]
    L = []
    pairs = sorted([(a, b) for a in range(8) for b in range(8) if a+b <= 7], key=lambda p: (max(p), p))
    first = set()
    for a, b in pairs:
        t = a + b
        d = cv_D + 4*t
        cin = "0" if (cl == 0 and t not in first) else f"v[{d}:{d+3}]"
        first.add(t)
        L.append(f"v_mfma_f32_16x16x32_bf16 v[{d}:{d+3}], v[{A+4*a}:{A+4*a+3}], v[{B+4*b}:{B+4*b+3}], {cin}")
    return L

def wd_setup_v():
    a, b, c, d, e, f = 112, 113, 114, 115, 116, 117
    return lines(f"""
    v_lshrrev_b32 v{a}, 3, v{v_lane}
    v_and_b32 v{b}, 7, v{v_lane}
    v_bfe_u32 v{c}, v{a}, 1, 1
    v_lshlrev_b32 v{c}, 2, v{c}
    v_xor_b32 v{b}, v{b}, v{c}
    v_mul_u32_u24 v{a}, 896, v{a}
    v_lshl_add_u32 v{e}, v{b}, 4, v{a}
    v_add_u32 v{f}, {8*896-1024}, v{e}
    v_accvgpr_write_b32 a248, v{e}
    v_accvgpr_write_b32 a249, v{f}
    v_lshrrev_b32 v{a}, 5, v{v_lane}
    v_bfe_u32 v{b}, v{v_lane}, 2, 2
    v_lshl_add_u32 v{a}, v{a}, 2, v{b}
    v_lshlrev_b32 v{a}, 7, v{a}
    v_bfe_u32 v{c}, v{v_lane}, 4, 1
    v_bfe_u32 v{d}, v{v_lane}, 1, 1
    v_lshl_add_u32 v{c}, v{c}, 1, v{d}
    v_lshl_add_u32 v{a}, v{c}, 4, v{a}
    v_and_b32 v{c}, 1, v{v_lane}
    v_lshl_add_u32 v{a}, v{c}, 3, v{a}
    v_bfe_u32 v{b}, v{v_lane}, 3, 1
    v_xor_b32 v{b}, s{s_ns}, v{b}
    v_lshl_add_u32 v{e}, v{b}, 6, v{a}
    v_xor_b32 v{b}, 1, v{b}
    v_lshl_add_u32 v{f}, v{b}, 6, v{a}
    s_mul_i32 s{s_t0}, s{s_w}, {RING}
    v_add_u32 v{a}, s{s_t0}, v{e}
    v_add_u32 v{b}, s{s_t0}, v{f}
    v_accvgpr_write_b32 a250, v{a}
    v_accvgpr_write_b32 a251, v{b}
    s_lshl_b32 s{s_t0}, s{s_w}, 13
    s_add_u32 s{s_t0}, s{s_t0}, 81920
    v_add_u32 v{a}, s{s_t0}, v{e}
    v_add_u32 v{b}, s{s_t0}, v{f}
    v_accvgpr_write_b32 a252, v{a}
    v_accvgpr_write_b32 a253, v{b}
    """)
def wd_setup_s():
    return lines(f"""
    s_mul_i32 s{s_woff}, s{s_w}, {448*896}
    s_lshl_b32 s{s_t0}, s{s_ct}, 7
    s_add_u32 s{s_woff}, s{s_woff}, s{s_t0}
    s_mul_i32 s{s_m0x}, s{s_w}, {RING}
    s_lshl_b32 s{s_eb}, s{s_w}, 13
    s_add_u32 s{s_eb}, s{s_eb}, 81920
    v_accvgpr_read_b32 v{vW0}, a248
    v_accvgpr_read_b32 v{vW1}, a249
    v_accvgpr_read_b32 v{vW2}, a250
    v_accvgpr_read_b32 v{vW3}, a251
    v_accvgpr_read_b32 v{vW4}, a252
    v_accvgpr_read_b32 v{vW5}, a253
    """)
NSLOT = 10
s_eb = 33
vW4, vW5 = 118, 119
def eaddr(e): return (e & 3)*2048 + (e >> 2)*32768
def wd_dma_e(j, e):
    return [f"s_add_u32 m0, s{s_eb}, {eaddr(e)}", f"s_add_u32 s{s_t3}, s{s_woff}, {16*j*896}",
            f"buffer_load_dwordx4 v{vW0}, s[{sWD2}:{sWD2+3}], s{s_t3} offen lds",
            f"buffer_load_dwordx4 v{vW1}, s[{sWD2}:{sWD2+3}], s{s_t3} offen offset:1024 lds"]
def wd_tr_e(j, e):
    L = []
    for sm in range(2):
        r = 8*j + 4*sm
        L.append(f"ds_read_b64_tr_b16 a[{r}:{r+1}], v{vW4+sm} offset:{eaddr(e)}")
        L.append(f"ds_read_b64_tr_b16 a[{r+2}:{r+3}], v{vW4+sm} offset:{eaddr(e)+1024}")
    return L
def wd_dma(j, sl=None):
    if sl is None: sl = j % NSLOT
    return [f"s_add_u32 m0, s{s_m0x}, {sl*2048}", f"s_add_u32 s{s_t3}, s{s_woff}, {16*j*896}",
            f"buffer_load_dwordx4 v{vW0}, s[{sWD2}:{sWD2+3}], s{s_t3} offen lds",
            f"buffer_load_dwordx4 v{vW1}, s[{sWD2}:{sWD2+3}], s{s_t3} offen offset:1024 lds"]
def wd_tr(j, sl=None):
    if sl is None: sl = j % NSLOT
    L = []
    for sm in range(2):
        r = 8*j + 4*sm
        L.append(f"ds_read_b64_tr_b16 a[{r}:{r+1}], v{vW2+sm} offset:{sl*2048}")
        L.append(f"ds_read_b64_tr_b16 a[{r+2}:{r+3}], v{vW2+sm} offset:{sl*2048+1024}")
    return L

vH0, vH1, vH2 = 2, 3, 4
def g2_setup():
    return lines(f"""
    s_lshl_b32 s{s_t0}, s{s_mi}, 2
    s_lshl_b32 s{s_t1}, s{s_hi}, 1
    s_add_u32 s{s_t0}, s{s_t0}, s{s_t1}
    s_mul_i32 s{s_t0}, s{s_t0}, 112
    s_mul_i32 s{s_t1}, s{s_w}, 28
    s_add_u32 s{s_t0}, s{s_t0}, s{s_t1}
    s_lshl_b32 s{s_xoff}, s{s_t0}, 10
    s_add_u32 s{s_xoff}, s{s_xoff}, {WS_H}
    s_mul_i32 s{s_t0}, s{s_mf}, {112*1024}
    v_add_u32 v{vH0}, s{s_t0}, v{v_l16}
    s_sub_u32 s{s_t0}, {112*1024 - 1024}, s{s_t0}
    v_add_u32 v{vH1}, s{s_t0}, v{v_l16}
    v_add_u32 v{vH2}, s{s_m0x}, v{v_l16}
    """)
def h_dma(j):
    sl = j % NSLOT
    return [f"s_add_u32 m0, s{s_m0x}, {sl*2048}", f"s_add_u32 s{s_t3}, s{s_xoff}, {j*1024}",
            f"buffer_load_dwordx4 v{vH0}, s[{sWS}:{sWS+3}], s{s_t3} offen sc1 lds",
            f"buffer_load_dwordx4 v{vH1}, s[{sWS}:{sWS+3}], s{s_t3} offen offset:1024 sc1 lds"]
def h_reads(j):
    sl = j % NSLOT
    b = g2_fr + (j & 1)*8
    return [f"ds_read_b128 v[{b}:{b+3}], v{vH2} offset:{sl*2048}", f"ds_read_b128 v[{b+4}:{b+7}], v{vH2} offset:{sl*2048+1024}"]
def hflag_offsets():
    return lines(f"""
    v_min_u32 v{v_poll}, 27, v{v_lane}
    v_lshrrev_b32 v{v_poll+1}, 1, v{v_poll}
    v_and_b32 v{v_poll}, 1, v{v_poll}
    v_lshl_add_u32 v{v_poll}, v{v_poll+1}, 2, v{v_poll}
    v_lshlrev_b32 v{v_poll}, 6, v{v_poll}
    s_lshl_b32 s{s_pb}, s{s_mi}, 12
    s_lshl_b32 s{s_t0}, s{s_hi}, 7
    s_add_u32 s{s_pb}, s{s_pb}, s{s_t0}
    s_add_u32 s{s_pb}, s{s_pb}, {WS_FH}
    """)

def conv_main(g):
    for x in conv_reads(0): g.ld(x, "cv0")
    NG = 144
    per = [[] for _ in range(NG)]
    m = []
    for cl in range(4):
        m += conv_mfmas(cl)
        if cl < 3:
            for i, x in enumerate(conv_reads(cl+1)): per[36*cl + 2 + i].append((x, f"cv{cl+1}"))
    for i, j in enumerate(range(22, 28)):
        gp = 27 + i
        per[gp].append(("VWAIT", f"wd{j}"))
        per[gp] += T(wd_tr(j, j-22), f"tr{j}")
    per[40] += T(hflag_offsets())
    per[44] += T(g2_setup())
    per[64] += poll_issue("ph")
    per[100].append(("HCHECK", None))
    for s_ in range(10):
        gp = 101 + 4*s_
        if s_ == 0: per[gp].append(("LWAIT", "tr27"))
        per[gp] += T(h_dma(s_), f"h{s_}")
    for i in range(NG):
        if i % 36 == 0: g.lwait(f"cv{i//36}")
        g(m[i])
        for x, tag in per[i]:
            if x == "HCHECK": poll_check(g, "G_p2", "ph")
            else: g.emit(x, tag)

def conv_epilogue(g):
    g("s_waitcnt lgkmcnt(0)\ns_barrier")
    g(f"""
    s_mul_i32 s{s_t0}, s{s_ns}, {CVCH}
    s_lshl_b32 s{s_t1}, s{s_mf}, 13
    s_add_u32 s{s_t0}, s{s_t0}, s{s_t1}
    s_add_u32 s{s_t0}, s{s_t0}, {LCV}
    v_add_u32 v22, s{s_t0}, v{v_l16}
    s_nop 2
    """)
    for t in range(8): g(f"ds_write_b128 v22, v[{cv_D+4*t}:{cv_D+4*t+3}] offset:{t*1024}")
    g(f"""
    v_add_u32 v22, s{s_t4}, v{v_l16}
    v_add_u32 v22, {LCV}, v22
    v_and_b32 v23, 15, v{v_lane}
    v_lshrrev_b32 v24, 4, v{v_lane}
    v_lshlrev_b32 v25, 6, v23
    v_lshl_add_u32 v25, v24, 4, v25
    v_lshlrev_b32 v23, 5, v23
    v_lshl_add_u32 v23, v24, 3, v23
    s_lshr_b32 s{s_t0}, s{s_t4}, 1
    s_sub_u32 s{s_t0}, {LCV + CVU + 4088 - 512}, s{s_t0}
    v_sub_u32 v23, s{s_t0}, v23
    """)
    KV = 64
    for ch in range(2):
        for tt in range(2):
            r = KV + (ch*2+tt)*2
            g(f"ds_read_b64 v[{r}:{r+1}], v23 offset:{ch*CVCH + (512 if tt == 0 else 0)}")
    g(f"""
    s_lshl_b32 s{s_t0}, s2, 13
    s_add_u32 s{s_t0}, s{s_t0}, s{s_t4}
    s_add_u32 s{s_t0}, s{s_t0}, {WS_ZP}
    s_waitcnt lgkmcnt(0)
    s_barrier
    """)
    Y = 32
    for ch in range(2):
        for hf in range(2):
            for tt in range(2):
                r = Y + ((ch*2+hf)*2+tt)*4
                g(f"ds_read_b128 v[{r}:{r+3}], v22 offset:{ch*CVCH + hf*8192 + tt*1024}")
    Z = 72
    for ch in range(2):
        for tt in range(2):
            k = KV + (ch*2+tt)*2
            u = Z + (ch*2+tt)*4
            g(f"v_and_b32 v{u}, 0xffff0000, v{k+1}\nv_lshlrev_b32 v{u+1}, 16, v{k+1}\nv_and_b32 v{u+2}, 0xffff0000, v{k}\nv_lshlrev_b32 v{u+3}, 16, v{k}")
    g("s_waitcnt lgkmcnt(0)")
    for ch in range(2):
        for tt in range(2):
            a = Y + ((ch*2+0)*2+tt)*4; b = Y + ((ch*2+1)*2+tt)*4
            u = Z + (ch*2+tt)*4
            g(f"v_pk_add_f32 v[{a}:{a+1}], v[{a}:{a+1}], v[{b}:{b+1}]\nv_pk_add_f32 v[{a+2}:{a+3}], v[{a+2}:{a+3}], v[{b+2}:{b+3}]")
            for r in range(4):
                g(f"v_fmac_f32 v{a+r}, s{100+ch}, v{u+r}")
    O = 96
    for tt in range(2):
        a0 = Y + ((0*2+0)*2+tt)*4; a1 = Y + ((1*2+0)*2+tt)*4
        for r in range(4):
            g(f"v_cvt_pk_bf16_f32 v{O+4*tt+r}, v{a0+r}, v{a1+r}")
    g.vm(f"buffer_store_dwordx4 v[{O}:{O+3}], v25, s[{sWS}:{sWS+3}], s{s_t0} offen sc1", "zst")
    g.vm(f"buffer_store_dwordx4 v[{O+4}:{O+7}], v25, s[{sWS}:{sWS+3}], s{s_t0} offen offset:1024 sc1", "zst")

g2_acc = 128
g2_fr = 192
def g2_main(g, extra):
    nd = 10
    g.vwait("h0")
    for x in h_reads(0): g(x)
    for j in range(28):
        b = g2_fr + (j & 1)*8
        g("s_waitcnt lgkmcnt(0)")
        fill = []
        if j >= 1 and nd < 28:
            fill += T(h_dma(nd), f"h{nd}"); nd += 1
        m = []
        for sm in range(2):
            for sn in range(2):
                acc = g2_acc + (sm*2+sn)*16
                cin = "0" if j == 0 else f"v[{acc}:{acc+15}]"
                m.append(f"v_mfma_f32_32x32x16_bf16 v[{acc}:{acc+15}], a[{8*j+4*sm}:{8*j+4*sm+3}], v[{b+4*sn}:{b+4*sn+3}], {cin}")
        per = [[] for _ in range(4)]
        if j+1 < 28:
            per[0].append(("VWAIT", f"h{j+1}"))
            per[0] += T(h_reads(j+1))
        for i, x in enumerate(fill): per[min(3, 1 + i//2)].append(x)
        ex = extra(j)
        if ex: spread(per, ex, 1, 3)
        for i in range(4):
            g(m[i])
            for x, tag in per[i]:
                if x == "CALL": tag()
                else: g.emit(x, tag)

def g2_reduce(g):
    g(f"v_add_u32 v22, s{s_m0x}, v{v_l16}\ns_nop 7\ns_nop 3")
    for sl in range(1, 4):
        for q in range(4):
            r = g2_acc + sl*16 + 4*q
            g(f"ds_write_b128 v22, v[{r}:{r+3}] offset:{sl*4096 + q*1024}")
    for x in range(1, 4):
        g(f"s_xor_b32 s{s_t0}, s{s_w}, {x}\ns_mul_i32 s{s_t0}, s{s_t0}, {RING}\nv_add_u32 v{22+x}, s{s_t0}, v{v_l16}")
def g2_reduce2(g):
    g("s_waitcnt lgkmcnt(0)\ns_barrier")
    for x in range(1, 4):
        for q in range(4):
            r = g2_acc + x*16 + 4*q
            g(f"ds_read_b128 v[{r}:{r+3}], v{22+x} offset:{x*4096 + q*1024}")
    for x in range(1, 4):
        g(f"s_waitcnt lgkmcnt({4*(3-x)})")
        for q in range(8):
            a = g2_acc + 2*q; b = g2_acc + x*16 + 2*q
            g(f"v_pk_add_f32 v[{a}:{a+1}], v[{a}:{a+1}], v[{b}:{b+1}]")

fx = 32
fz = 40
def final_loads_x():
    L = [f"v_and_b32 v26, 31, v{v_lane}", f"v_mul_u32_u24 v26, 896, v26", f"v_lshrrev_b32 v27, 5, v{v_lane}", f"v_lshl_add_u32 v26, v27, 3, v26",
         f"s_lshl_b32 s{s_t0}, s{s_mi}, 7", f"s_lshl_b32 s{s_t1}, s{s_hi}, 6", f"s_add_u32 s{s_t0}, s{s_t0}, s{s_t1}",
         f"s_lshl_b32 s{s_t1}, s{s_mf}, 5", f"s_add_u32 s{s_t0}, s{s_t0}, s{s_t1}",
         f"s_mul_i32 s{s_zoff}, s{s_t0}, 896",
         f"s_lshl_b32 s{s_t1}, s{s_ct}, 7", f"s_add_u32 s{s_zoff}, s{s_zoff}, s{s_t1}",
         f"s_lshl_b32 s{s_t1}, s{s_ns}, 6", f"s_add_u32 s{s_zoff}, s{s_zoff}, s{s_t1}"]
    for q in range(4):
        L.append(f"buffer_load_dwordx2 v[{fx+2*q}:{fx+2*q+1}], v26, s[{sX}:{sX+3}], s{s_zoff} offen offset:{16*q}")
    return L
s_zp = 49
def final_z_setup():
    return lines(f"""
    v_and_b32 v28, 31, v{v_lane}
    v_lshlrev_b32 v28, 2, v28
    v_lshrrev_b32 v27, 5, v{v_lane}
    v_lshl_add_u32 v28, v27, 14, v28
    s_lshl_b32 s{s_t0}, s{s_ct}, 5
    s_lshl_b32 s{s_t1}, s{s_ns}, 4
    s_add_u32 s{s_t0}, s{s_t0}, s{s_t1}
    s_lshl_b32 s{s_pb}, s{s_t0}, 8
    s_lshl_b32 s{s_t0}, s{s_t0}, 13
    s_lshl_b32 s{s_t1}, s{s_mi}, 7
    s_lshl_b32 s{s_t2}, s{s_hi}, 6
    s_add_u32 s{s_t1}, s{s_t1}, s{s_t2}
    s_lshl_b32 s{s_t2}, s{s_mf}, 5
    s_add_u32 s{s_t1}, s{s_t1}, s{s_t2}
    s_lshl_b32 s{s_t1}, s{s_t1}, 2
    s_add_u32 s{s_t0}, s{s_t0}, s{s_t1}
    s_add_u32 s{s_zp}, s{s_t0}, {WS_ZP}
    s_lshr_b32 s{s_t1}, s{s_mi}, 2
    s_lshl_b32 s{s_t1}, s{s_t1}, 6
    s_add_u32 s{s_pb}, s{s_pb}, s{s_t1}
    s_add_u32 s{s_pb}, s{s_pb}, {WS_FZ}
    v_min_u32 v{v_poll}, 15, v{v_lane}
    v_lshlrev_b32 v{v_poll}, 8, v{v_poll}
    """)
def final_loads_z(g):
    for q in range(4):
        for e in range(2):
            g(f"s_add_u32 s{s_t3}, s{s_zp}, {(4*q+e)*8192}")
            g.vm(f"buffer_load_dword v{fz+2*q+e}, v28, s[{sWS}:{sWS+3}], s{s_t3} offen sc1", "z")
LROW = LST + 8192
def final_pre():
    return lines(f"""
    v_and_b32 v22, 31, v{v_lane}
    s_lshl_b32 s{s_t0}, s{s_hi}, 9
    s_lshl_b32 s{s_t1}, s{s_mf}, 8
    s_add_u32 s{s_t0}, s{s_t0}, s{s_t1}
    s_add_u32 s{s_t0}, s{s_t0}, s{s_t4}
    s_add_u32 s{s_t0}, s{s_t0}, {LST}
    v_lshl_add_u32 v22, v22, 3, s{s_t0}
    ds_read_b64 v[30:31], v22
    v_and_b32 v29, 31, v{v_lane}
    v_mul_u32_u24 v29, 896, v29
    v_lshrrev_b32 v27, 5, v{v_lane}
    v_lshl_add_u32 v29, v27, 4, v29
    """)
def final(g):
    g(f"""
    v_rcp_f32 v31, v31
    v_mov_b32 v20, {fh(-math.log2(math.e))}
    v_mov_b32 v21, 1.0
    v_mul_f32 v30, v30, v31
    v_sub_f32 v30, 0, v30
    s_waitcnt vmcnt(0)
    """)
    O = g2_acc
    X = 48; Zz = 64; Tt = 80; XN = 96
    def pr(x): return f"v[{x}:{x+1}]"
    steps = [
      lambda i: [f"v_pk_mul_f32 {pr(Tt+2*i)}, {pr(O+2*i)}, v[20:21] op_sel_hi:[1,0]"],
      lambda i: [f"v_exp_f32 v{Tt+2*i}, v{Tt+2*i}", f"v_exp_f32 v{Tt+2*i+1}, v{Tt+2*i+1}"],
      lambda i: [f"v_lshlrev_b32 v{X+2*i}, 16, v{fx+i}", f"v_and_b32 v{X+2*i+1}, 0xffff0000, v{fx+i}"],
      lambda i: [f"v_pk_add_f32 {pr(Tt+2*i)}, {pr(Tt+2*i)}, v[20:21] op_sel:[0,1] op_sel_hi:[1,1]"],
      lambda i: [f"v_lshlrev_b32 v{Zz+2*i}, 16, v{fz+i}", f"v_and_b32 v{Zz+2*i+1}, 0xffff0000, v{fz+i}"],
      lambda i: [f"v_rcp_f32 v{Tt+2*i}, v{Tt+2*i}", f"v_rcp_f32 v{Tt+2*i+1}, v{Tt+2*i+1}"],
      lambda i: [f"v_pk_fma_f32 {pr(XN+2*i)}, {pr(X+2*i)}, v[30:31], v[30:31] op_sel:[0,1,0] op_sel_hi:[1,1,0]"],
      lambda i: [f"v_pk_mul_f32 {pr(Tt+2*i)}, {pr(Tt+2*i)}, {pr(O+2*i)}"],
      lambda i: [f"v_pk_mul_f32 {pr(Zz+2*i)}, {pr(Zz+2*i)}, {pr(XN+2*i)}"],
      lambda i: [f"v_pk_fma_f32 {pr(Tt+2*i)}, {pr(Tt+2*i)}, {pr(Zz+2*i)}, {pr(X+2*i)}"],
    ]
    for st in steps:
        for i in range(8):
            for x in st(i): g(x)
    P = 112
    for i in range(8): g(f"v_cvt_pk_bf16_f32 v{P+i}, v{Tt+2*i}, v{Tt+2*i+1}")
    g("s_nop 1")
    for qq in (0, 2):
        g(f"v_permlane32_swap_b32 v{P+2*qq}, v{P+2*qq+2}\nv_permlane32_swap_b32 v{P+2*qq+1}, v{P+2*qq+3}")
    for qq in (0, 2):
        g(f"buffer_store_dwordx4 v[{P+2*qq}:{P+2*qq+3}], v29, s[{sOUT2}:{sOUT2+3}], s{s_zoff} offen offset:{16*qq}")

def kflag_offsets():
    return lines(f"""
    v_min_u32 v{v_poll}, 31, v{v_lane}
    v_lshrrev_b32 v{v_poll+1}, 1, v{v_poll}
    v_and_b32 v{v_poll}, 1, v{v_poll}
    v_lshlrev_b32 v{v_poll}, 7, v{v_poll}
    v_lshl_add_u32 v{v_poll}, v{v_poll+1}, 12, v{v_poll}
    s_lshr_b32 s{s_pb}, s2, 4
    s_lshl_b32 s{s_pb}, s{s_pb}, 8
    s_bfe_u32 s{s_t0}, s2, 0x10003
    s_lshl_b32 s{s_t0}, s{s_t0}, 6
    s_add_u32 s{s_pb}, s{s_pb}, s{s_t0}
    s_add_u32 s{s_pb}, s{s_pb}, {WS_FK}
    """)
def flag_off(base):
    return lines(f"""s_lshl_b32 s{s_t0}, s{s_mi}, 4
    s_add_u32 s{s_t0}, s{s_t0}, s{s_fi}
    s_lshl_b32 s{s_t0}, s{s_t0}, 2
    s_add_u32 s{s_t0}, s{s_t0}, s{s_w}
    s_lshl_b32 s{s_t0}, s{s_t0}, 6
    s_add_u32 s{s_t0}, s{s_t0}, {base}""")
def wave_flag_L(vt):
    return [f"v_mov_b32 v{vt}, 0", f"v_mov_b32 v{vt+1}, s{s_tag}", "s_mov_b64 exec, 1",
            f"buffer_store_dword v{vt+1}, v{vt}, s[{sWS}:{sWS+3}], s{s_t0} offen sc1", "s_mov_b64 exec, -1"]

TOUCH = "after"
def gemm_path(g, stamps=False):
    S_ = lambda i: stamp(g, i, stamps)
    g.vreset()
    S_(0)
    g1_prologue(g)
    def touches():
        g(f"""s_lshl_b32 s{s_t0}, s2, 8
        v_add_u32 v{v_tch}, s{s_t0}, v0
        v_mul_u32_u24 v{v_hv}, 28, v{v_tch}
        v_lshlrev_b32 v{v_tch}, 5, v{v_tch}""")
        g.vm(f"buffer_load_dword a255, v{v_hv}, s[{sWG}:{sWG+3}], 0 offen", "t")
        g.vm(f"buffer_load_dword a255, v{v_hv}, s[{sWU}:{sWU+3}], 0 offen", "t")
        g.vm(f"buffer_load_dword a255, v{v_tch}, s[{sX}:{sX+3}], 0 offen", "t")
    if TOUCH == "before": touches()
    for grp in g1_groups(0): emit_mixed(g, grp, "c0")
    if TOUCH == "after": touches()
    load_tag(g)
    g(f"s_lshl_b32 s98, s2, 2\ns_load_dword s99, s[96:97], s98")
    for r, sz in ((sKK, S*D*2), (sVV, S*D*2), (sSH, D*8), (sWS, WS_END), (sWD2, D*F*2), (sSK2, D*S*2)):
        srd_fix(g, r, sz)
    emit_mixed(g, kp_shk_load(), "shk")
    for x in g1_addr(): g(x)
    for x in kp_setup_dma(): g(x)
    for x in kp_setup_addr(): g(x)
    for x in wd_setup_v(): g(x)
    for x in epi_hoff(): g(x)
    g.vwait("shk")
    for x in kp_build_B(): g(x)
    for grp in g1_groups(1): emit_mixed(g, grp, "c1")
    S_(1)
    g("s_waitcnt lgkmcnt(0)")
    make_tag(g)
    g(f"s_lshl_b32 s100, s99, 16\ns_and_b32 s101, s99, 0xffff0000")
    g.vwait("c0")
    g("s_barrier")
    S_(2)
    def pre(k): return {7: ["kp0"], 15: ["kp1"]}.get(k, [])
    def p1check(): poll_check(g, "G_p1", "p1")
    def post(k):
        E, L = [], []
        if k == 2: L += T(kp_dma(0), "kp0")
        if k in (8, 16): L += T(kp_reads(), f"kpr{k}")
        if k in (9, 17): E += [("LWAIT", f"kpr{k-1}")] + T(kp_mfma())
        if k in (10, 18): E += T(kp_finish()) + T(kp_readback(), f"kprb{k}")
        if k == 11: L += [("LWAIT", "kprb10")] + T(kp_store(0), "kvst0") + T(kp_dma(1), "kp1")
        if k == 19: L += [("LWAIT", "kprb18")] + T(kp_store(1), "kvst1")
        hl = conv_h_loads()
        if k == 6:
            E += T([f"s_lshl_b32 s{s_t0}, s2, 8", f"v_add_u32 v{v_tch}, s{s_t0}, v0", f"v_mul_u32_u24 v{v_tch}, 28, v{v_tch}"])
            L += [(f"buffer_load_dword a255, v{v_tch}, s[{sWD2}:{sWD2+3}], 0 offen", "t2")]
        if k == 14: L += T(hl[:5], "h")
        if k == 18: L += T(hl[5:], "h")
        if k == 20:
            L += T(f"""v_min_u32 v{v_poll}, 31, v{v_lane}
            v_lshlrev_b32 v{v_poll}, 6, v{v_poll}
            s_mov_b32 s{s_pb}, {WS_FA}""") + poll_issue("p1")
        if k == 19: E += T(wd_setup_s())
        if k == 20: E += T(wd_dma_e(0, 0), "wd0") + T(wd_dma_e(1, 1), "wd1")
        if k == 21: E += T(wd_dma_e(2, 2), "wd2") + T(wd_dma_e(3, 3), "wd3")
        if k == 22:
            E += T(f"""v_lshrrev_b32 v{v_tch}, 5, v{v_lane}
            v_mul_u32_u24 v{v_tch}, {7168-512}, v{v_tch}
            v_add_u32 v{v_tch}, v{v_tch}, v{v_l16}
            s_mov_b32 s{sOUT2}, s64
            s_and_b32 s{sOUT2+1}, s65, 0xffff
            s_mov_b32 s{sOUT2+2}, {S*D*2}
            s_mov_b32 s{sOUT2+3}, 0x20000""") + T(flag_off(WS_FK))
        if k == 23:
            E += [("CALL", p1check)] + T(f"""s_add_u32 m0, s{s_t4}, {LST}
            s_lshl_b32 s{s_t1}, s{s_mi}, 10
            s_add_u32 s{s_t1}, s{s_t1}, {WS_STATS}
            buffer_load_dwordx4 v{v_l16}, s[{sWS}:{sWS+3}], s{s_t1} offen sc1 lds
            s_add_u32 m0, m0, 1024
            s_lshl_b32 s{s_t1}, s{s_fi}, 9
            s_add_u32 s{s_t1}, s{s_t1}, {WS_CS}
            buffer_load_dwordx4 v{v_tch}, s[{sWS}:{sWS+3}], s{s_t1} offen sc1 lds""", "st")
            L += [("VWAIT", "kvst1")] + T(wave_flag_L(v_hv), "kflag")
        if k == 24:
            E += T(wd_dma_e(4, 4), "wd4") + T(wd_dma_e(5, 5), "wd5")
            L += [("VWAIT", "wd1")] + T(wd_tr_e(0, 0), "tr0") + T(wd_tr_e(1, 1), "tr1")
        if k == 25:
            E += T(wd_dma_e(6, 6), "wd6") + T(wd_dma_e(7, 7), "wd7")
            L += [("VWAIT", "wd3")] + T(wd_tr_e(2, 2), "tr2") + T(wd_tr_e(3, 3), "tr3")
        if k == 26:
            E += [("LWAIT", "tr1")] + T(wd_dma_e(8, 0), "wd8") + T(wd_dma_e(9, 1), "wd9")
            L += T(kflag_offsets())
        if k == 27:
            E += [("LWAIT", "tr3")] + T(wd_dma_e(10, 2), "wd10") + T(wd_dma_e(11, 3), "wd11")
            L += [("VWAIT", "st")] + T(epi_pre_reads())
        return E, L
    g1_main(g, pre, post, stamps={0: 3, 5: 4} if stamps else None)
    S_(5)
    g("s_waitcnt lgkmcnt(0)\ns_barrier")
    g1_epilogue(g)
    S_(6)
    for x, tg in poll_issue("pk"): g.emit(x, tg)
    g.ldops = []
    g.vwait("wd21")
    for j in range(4, 12):
        for x in wd_tr_e(j, j if j < 8 else j-8): g.ld(x, f"tr{j}")
    for j in range(12, 22):
        for x in wd_tr(j, j-12): g.ld(x, f"tr{j}")
    poll_check(g, "G_pk", "pk")
    for x in flag_off(WS_FH) + wave_flag_L(v_hv): g.emit(x, "hflag")
    g.lwait("tr17")
    for j in range(22, 28):
        for x in wd_dma(j, j-22): g.emit(x, f"wd{j}")
    g("s_waitcnt lgkmcnt(0)\ns_barrier")
    for x in conv_u_dma(): g.emit(x, "u")
    S_(7)
    conv_build(g, T(conv_addr()))
    g.vwait("u")
    g("s_waitcnt lgkmcnt(0)\ns_barrier")
    g.ldops = []
    S_(8)
    conv_main(g)
    S_(9)
    conv_epilogue(g)
    S_(10)
    for x in final_loads_x(): g.emit(x, "x")
    def zflag():
        g.vwait("zst")
        g(f"s_lshl_b32 s{s_t0}, s2, 2\ns_add_u32 s{s_t0}, s{s_t0}, s{s_w}\ns_lshl_b32 s{s_t0}, s{s_t0}, 6\ns_add_u32 s{s_t0}, s{s_t0}, {WS_FZ}")
        wave_flag(g, s_t0)
    def extra(j):
        if j == 3: return [("CALL", zflag)]
        if j == 12: return T(final_z_setup())
        if j == 20: return poll_issue("pz")
        if j == 24: return T(final_pre())
        return []
    g2_main(g, extra)
    S_(11)
    poll_check(g, "G_p3", "pz")
    final_loads_z(g)
    g2_reduce(g)
    g2_reduce2(g)
    S_(12)
    final(g)
    S_(13)
    g("s_waitcnt vmcnt(0)")
    S_(14)
    g(f"""s_cmp_lg_u32 s2, 0
    s_cbranch_scc1 G_noep
    s_cmp_lg_u32 s{s_w}, 0
    s_cbranch_scc1 G_noep""")
    for part in range(4):
        g(f"""v_add_u32 v{v_poll}, {part*64}, v{v_lane}
        v_min_u32 v{v_poll}, 223, v{v_poll}
        v_lshlrev_b32 v{v_poll}, 8, v{v_poll}
        s_mov_b32 s{s_pb}, {WS_FZ}""")
        poll_check(g, f"G_pe{part}", None)
    g(f"""v_min_u32 v{v_poll}, 31, v{v_lane}
    v_lshlrev_b32 v{v_poll}, 6, v{v_poll}
    s_mov_b32 s{s_pb}, {WS_FA}""")
    poll_check(g, "G_pe4", None)
    g(f"""v_mov_b32 v2, 0
    v_mov_b32 v3, s{s_tag}
    s_mov_b64 exec, 1
    buffer_store_dword v3, v2, s[{sWS}:{sWS+3}], 0 offen sc1
    s_mov_b64 exec, -1
    s_waitcnt vmcnt(0)
    G_noep:""")

def gen_full(stamps=False):
    g = G()
    g(header([f"grid=(256,1,1) block=(256,1,1) lds={LDS_TOTAL}"]))
    g(kstart(KN))
    g("s_cmp_ge_u32 s2, 224\ns_cbranch_scc1 L_spare")
    gemm_path(g, stamps=stamps)
    if stamps: dump_stamps(g)
    g("s_endpgm")
    g("L_spare:")
    g("s_cmp_ge_u32 s2, 256\ns_cbranch_scc1 L_end")
    spare(g, flags=True, stamps=stamps)
    if stamps: dump_stamps(g)
    g("L_end:\ns_endpgm")
    g(kdesc(KN, vgpr=512, sgpr=102, accum=256))
    return g.a.text()
def gen_full_stamps(): return gen_full(stamps=True)
def gen_kst0():
    global KSTAMP, stamp
    KSTAMP = 0
    return gen_kstx()
def gen_kst14():
    global KSTAMP
    KSTAMP = 14
    return gen_kstx()
def gen_kstx():
    g = G()
    g(header([f"grid=(256,1,1) block=(256,1,1) lds={LDS_TOTAL}"]))
    g(kstart(KN))
    g("s_cmp_ge_u32 s2, 224\ns_cbranch_scc1 L_spare")
    stamp(g, 0)
    gemm_path(g, stamps=False)
    dump_stamps(g)
    g("s_endpgm")
    g("L_spare:")
    g("s_cmp_ge_u32 s2, 256\ns_cbranch_scc1 L_end")
    spare(g, flags=True, stamps=False)
    g("L_end:\ns_endpgm")
    g(kdesc(KN, vgpr=512, sgpr=102, accum=256))
    return g.a.text()

if __name__ == "__main__":
    import runner
    which = sys.argv[1]
    txt = globals()["gen_"+which]()
    open(f"dev/{which}.s", "w").write(txt)
    runner.build(f"dev/{which}.s", KN, 13)
    from runner import cl
    print("ok", len(txt), cl.address_register_problem(f"dev/{which}.co", KN))
```

```python
import math, struct, sys
from dsl import *

S, D, F = 2048, 448, 1792
KN = "recurrent_scan__ssm_conv_h3__geglu_ffn__prompt_kernel"
def f2u(x): return struct.unpack('<I', struct.pack('<f', x))[0]
def fh(x): return hex(f2u(x))

import os
WSB = int(os.environ.get("WSB", "0"), 0)
WS_EPOCH = WSB + 0
WS_FA = WSB + 0x1000
WS_FK = WSB + 0x10000
WS_FH = WSB + 0x20000
WS_FZ = WSB + 0x30000
WS_STATS = WSB + 0x40000
WS_CS    = WS_STATS + 2048*8
WS_KVT   = WSB + 0x50000
WS_ZP    = WS_KVT + D*S*2
WS_H     = WS_ZP + D*S*2
WS_END   = WS_H + 64*112*1024
WS_STAMPS = 40<<20

KA = dict(q=0,k=8,v=16,shk=24,ssmk=32,ssmD=40,bx=48,wg=56,wu=64,wd=72,out=80,dbg=88,ws=96)
C1 = -2*math.sqrt(2/math.pi)*math.log2(math.e)
C2 = C1*0.044715
LDS_TOTAL = 163840

class G:
    def __init__(self):
        self.a = Asm()
        self.vmops = []
        self.ldops = []
        self.stags = set(["hst"])
    def __call__(self, s): self.a(s)
    def vm(self, s, tag=None):
        self.a(s); self.vmops.append(tag)
        if "store" in s: self.stags.add(tag)
    def vwait(self, tag):
        idx = max(i for i, t in enumerate(self.vmops) if t == tag)
        st = tag in self.stags
        n = len(self.vmops) - 1 - idx
        assert n <= 63, n
        self.a(f"s_waitcnt vmcnt({n})")
    def vreset(self): self.vmops = []
    def ld(self, s, tag=None):
        self.a(s); self.ldops.append(tag)
    def lwait(self, tag):
        idx = max(i for i, t in enumerate(self.ldops) if t == tag)
        n = min(15, len(self.ldops) - 1 - idx)
        self.a(f"s_waitcnt lgkmcnt({n})")
    def emit(self, s, tag=None):
        if "\n" in s:
            for x in s.split("\n"): self.emit(x, tag)
        elif s == "VWAIT": self.vwait(tag)
        elif s == "LWAIT": self.lwait(tag)
        elif s.startswith("buffer_"): self.vm(s, tag)
        elif s.startswith("ds_"): self.ld(s, tag)
        else: self.a(s)
    def lab(self, n): self.a.label(n)

def srd_load(g, r, name):
    g(f"s_load_dwordx2 s[{r}:{r+1}], s[0:1], {KA[name]}")
def srd_fix(g, r, size):
    g(f"s_and_b32 s{r+1}, s{r+1}, 0xffff\ns_mov_b32 s{r+2}, {size}\ns_mov_b32 s{r+3}, 0x20000")

sX, sWG, sWU, sWS, sWD, sSK, sOUT, sDD = 4, 8, 12, 16, 20, 24, 28, 32
s_w, s_mi, s_fi, s_mf, s_ns = 36, 37, 38, 39, 40
s_xoff, s_woff, s_m0x, s_m0w = 41, 42, 43, 44
s_t0, s_t1, s_t2, s_t3 = 45, 46, 47, 48
s_hoff = 49
s_tag = 50
s_spin = 51
STAMP0 = 66
NSTAMP = 15
def stamp(g, i, on=True):
    if on: g(f"s_memtime s[{STAMP0+2*i}:{STAMP0+2*i+1}]")
def start_rt(g):
    g("s_memrealtime s[98:99]\ns_waitcnt lgkmcnt(0)\nv_mov_b32 v20, s98\nv_accvgpr_write_b32 a254, v20")
def dump_stamps(g, n=NSTAMP):
    g(f"""s_waitcnt lgkmcnt(0) vmcnt(0)
    s_memrealtime s[{STAMP0+2*n}:{STAMP0+2*n+1}]
    s_waitcnt lgkmcnt(0)
    s_mov_b32 s{sWS+2}, 0x7fffffff
    s_lshl_b32 s{s_t0}, s2, 9
    s_lshl_b32 s{s_t1}, s{s_w}, 7
    s_add_u32 s{s_t0}, s{s_t0}, s{s_t1}
    s_add_u32 s{s_t0}, s{s_t0}, {WS_STAMPS}
    v_mov_b32 v2, 0""")
    for i in range(n+1):
        g(f"v_mov_b32 v3, s{STAMP0+2*i}\nbuffer_store_dword v3, v2, s[{sWS}:{sWS+3}], s{s_t0} offen offset:{4*i}")
    g(f"v_accvgpr_read_b32 v3, a254\nbuffer_store_dword v3, v2, s[{sWS}:{sWS+3}], s{s_t0} offen offset:{4*(n+1)}")
    g("s_waitcnt vmcnt(0)")

def load_tag(g):
    g(f"s_mov_b32 s{s_spin}, {WS_EPOCH}\ns_load_dword s{s_tag}, s[{sWS}:{sWS+1}], s{s_spin}")
def make_tag(g):
    g(f"s_mul_i32 s{s_tag}, s{s_tag}, 0x9E3779B1\ns_add_u32 s{s_tag}, s{s_tag}, 0x7F4A7C15")

def rnd_bf16(g, r, tmp=None):
    g(f"v_cvt_pk_bf16_f32 v{r}, v{r}, v{r}\nv_lshlrev_b32 v{r}, 16, v{r}")

def publish_flag(g, off_expr_sgpr, lab):
    g("s_waitcnt vmcnt(0)\ns_barrier")
    g(f"""s_cmp_lg_u32 s{s_w}, 0
    s_cbranch_scc1 {lab}
    v_mov_b32 v2, 0
    v_mov_b32 v3, s{s_tag}
    s_mov_b64 exec, 1
    buffer_store_dword v3, v2, s[{sWS}:{sWS+3}], s{off_expr_sgpr} offen sc1
    s_mov_b64 exec, -1
    {lab}:""")

def flag_store(g, off_sgpr, lab, vt=14):
    g(f"""s_cmp_lg_u32 s{s_w}, 0
    s_cbranch_scc1 {lab}
    v_mov_b32 v{vt}, 0
    v_mov_b32 v{vt+1}, s{s_tag}
    s_mov_b64 exec, 1
    buffer_store_dword v{vt+1}, v{vt}, s[{sWS}:{sWS+3}], s{off_sgpr} offen sc1
    s_mov_b64 exec, -1
    {lab}:""")

def spare(g, flags=True, stamps=False):
    sWC = 32
    s_j = 37
    vl = 1
    LC = 0
    srd_load(g, sX, 'q'); srd_load(g, sWG, 'wg'); srd_load(g, sWU, 'wu'); srd_load(g, sWS, 'ws')
    g(f"""
    v_and_b32 v{vl}, 63, v0
    v_lshrrev_b32 v2, 6, v0
    s_sub_u32 s{s_j}, s2, 224
    v_readfirstlane_b32 s{s_w}, v2
    v_and_b32 v3, 15, v{vl}              ; n / p
    v_lshrrev_b32 v4, 4, v{vl}           ; q / rgl
    s_lshl_b32 s{s_t0}, s{s_w}, 4
    v_add_u32 v5, s{s_t0}, v3            ; 16w + n
    v_mul_u32_u24 v5, 896, v5
    v_lshl_add_u32 v5, v4, 4, v5         ; R voffset
    s_and_b32 s{s_t0}, s{s_j}, 7              ; xcd
    s_lshr_b32 s{s_t1}, s{s_j}, 3             ; q
    s_lshr_b32 s{s_t2}, s{s_t0}, 1            ; xcd>>1
    s_and_b32 s{s_t0}, s{s_t0}, 1             ; p
    s_lshl_b32 s52, s{s_t2}, 3
    s_lshl_b32 s53, s{s_t0}, 2
    s_add_u32 s52, s52, s53
    s_add_u32 s52, s52, s{s_t1}               ; s52 = rb = 8*(x>>1) + 4p + q
    s_lshl_b32 s53, s{s_t2}, 2
    s_add_u32 s53, s53, s{s_t1}               ; s53 = i = 4*(x>>1) + q
    s_mul_i32 s54, s{s_t0}, 7                 ; 7p
    s_mul_i32 s{s_xoff}, s52, {64*896}
    s_lshl_b32 s{s_t0}, s{s_w}, 2
    v_add_u32 v6, s{s_t0}, v4
    v_mul_u32_u24 v6, 3584, v6
    v_lshl_add_u32 v6, v3, 4, v6         ; C voffset
    s_cmp_ge_u32 s53, 7
    s_cselect_b32 s{s_t1}, 7, 0
    s_sub_u32 s{s_fi}, s53, s{s_t1}
    s_add_u32 s{s_fi}, s{s_fi}, s54      ; fb
    s_lshl_b32 s{s_woff}, s{s_fi}, 8
    s_waitcnt lgkmcnt(0)
    """)
    load_tag(g)
    g(f"""s_cmp_ge_u32 s53, 7
    s_cselect_b32 s{sWC}, s{sWU}, s{sWG}
    s_cselect_b32 s{sWC+1}, s{sWU+1}, s{sWG+1}""")
    srd_fix(g, sX, S*D*2); srd_fix(g, sWC, D*F*2); srd_fix(g, sWS, WS_END)
    stamp(g, 0, stamps)
    RB = 16
    for ks in range(14):
        g(f"buffer_load_dwordx4 v[{RB+4*ks}:{RB+4*ks+3}], v5, s[{sX}:{sX+3}], s{s_xoff} offen offset:{64*ks}")
    CB = 72
    g(f"s_cmp_ge_u32 s53, 14\ns_cbranch_scc1 SP_noC1")
    g(f"s_mov_b32 s{s_t3}, s{s_woff}")
    for i in range(28):
        g(f"buffer_load_dwordx4 v[{CB+4*i}:{CB+4*i+3}], v6, s[{sWC}:{sWC+3}], s{s_t3} offen")
        if i < 27: g(f"s_add_u32 s{s_t3}, s{s_t3}, {16*3584}")
    g("s_waitcnt vmcnt(28)\ns_branch SP_w1\nSP_noC1:\ns_waitcnt vmcnt(0)\nSP_w1:")
    stamp(g, 1, stamps)
    g("v_mov_b32 v8, 0x3f803f80\nv_mov_b32 v9, 0x3f803f80\nv_mov_b32 v10, 0x3f803f80\nv_mov_b32 v11, 0x3f803f80\ns_nop 1")
    D1, D2 = 184, 188
    for ks in range(14):
        A = f"v[{RB+4*ks}:{RB+4*ks+3}]"
        c1 = "0" if ks == 0 else f"v[{D1}:{D1+3}]"
        c2 = "0" if ks == 0 else f"v[{D2}:{D2+3}]"
        g(f"v_mfma_f32_16x16x32_bf16 v[{D1}:{D1+3}], {A}, v[8:11], {c1}")
        g(f"v_mfma_f32_16x16x32_bf16 v[{D2}:{D2+3}], {A}, {A}, {c2}")
    g(f"""
    v_and_b32 v12, 3, v{vl}
    v_cmp_eq_u32 s[90:91], 1, v12
    v_cmp_eq_u32 s[92:93], 2, v12
    v_cmp_eq_u32 s[94:95], 3, v12
    v_lshrrev_b32 v13, 2, v3              ; n>>2
    v_cmp_eq_u32 s[96:97], v13, v4        ; q == n>>2
    s_nop 7
    v_cndmask_b32 v{D1}, v{D1}, v{D1+1}, s[90:91]
    v_cndmask_b32 v{D2}, v{D2}, v{D2+1}, s[90:91]
    v_cndmask_b32 v{D1}, v{D1}, v{D1+2}, s[92:93]
    v_cndmask_b32 v{D2}, v{D2}, v{D2+2}, s[92:93]
    v_cndmask_b32 v{D1}, v{D1}, v{D1+3}, s[94:95]
    v_cndmask_b32 v{D2}, v{D2}, v{D2+3}, s[94:95]
    v_mul_f32 v{D1}, {fh(1.0/448)}, v{D1}            ; mean
    v_mul_f32 v{D2}, {fh(1.0/448)}, v{D2}            ; E[x^2]
    v_fma_f32 v{D2}, -v{D1}, v{D1}, v{D2}            ; var
    v_max_f32 v{D2}, 0, v{D2}
    """)
    rnd_bf16(g, D1); rnd_bf16(g, D2)
    g(f"v_add_f32 v{D2}, {fh(1e-5)}, v{D2}"); rnd_bf16(g, D2)
    g(f"v_sqrt_f32 v{D2}, v{D2}\ns_nop 0"); rnd_bf16(g, D2)
    g(f"""
    v_mov_b32 v{D1+1}, v{D2}
    s_lshl_b32 s{s_t0}, s52, 9
    s_lshl_b32 s{s_t1}, s{s_w}, 7
    s_add_u32 s{s_t0}, s{s_t0}, s{s_t1}
    s_add_u32 s{s_t0}, s{s_t0}, {WS_STATS}
    v_lshlrev_b32 v13, 3, v3
    s_mov_b64 exec, s[96:97]
    buffer_store_dwordx2 v[{D1}:{D1+1}], v13, s[{sWS}:{sWS+3}], s{s_t0} offen sc1
    s_mov_b64 exec, -1
    """)
    stamp(g, 2, stamps)
    g(f"s_cmp_ge_u32 s53, 14\ns_cbranch_scc1 SP_noC2")
    CA = 200
    g(f"s_mov_b32 s90, 0x00003f80\ns_mov_b32 s91, 0x3f800000")
    for c in range(8): g(f"v_mov_b32 v{CA+c}, 0")
    g("s_waitcnt vmcnt(1)")
    g(f"s_mov_b32 s{s_t0}, 0")
    g.lab("SP_Cloop")
    g(f"s_set_gpr_idx_on s{s_t0}, gpr_idx(SRC0)")
    for i in range(7):
        for q in range(4):
            g(f"v_dot2_f32_bf16 v{CA+2*q}, v{CB+4*i+q}, s90, v{CA+2*q}")
            g(f"v_dot2_f32_bf16 v{CA+2*q+1}, v{CB+4*i+q}, s91, v{CA+2*q+1}")
    g(f"""s_set_gpr_idx_off
    s_add_u32 s{s_t0}, s{s_t0}, 28
    s_cmp_lt_u32 s{s_t0}, 112
    s_cbranch_scc1 SP_Cloop""")
    g(f"""
    s_lshl_b32 s{s_t0}, s{s_w}, 2
    v_add_u32 v13, s{s_t0}, v4            ; rg
    v_lshlrev_b32 v13, 9, v13
    v_lshl_add_u32 v13, v3, 5, v13
    v_add_u32 v13, {LC}, v13
    s_nop 2
    ds_write_b128 v13, v[{CA}:{CA+3}]
    ds_write_b128 v13, v[{CA+4}:{CA+7}] offset:16
    s_waitcnt lgkmcnt(0)
    s_barrier
    s_cmp_ge_u32 s{s_w}, 2
    s_cbranch_scc1 SP_noC2
    v_lshlrev_b32 v13, 2, v0
    v_add_u32 v14, {LC}, v13
    """)
    for r in range(16): g(f"ds_read_b32 v{CB+r}, v14 offset:{512*r}")
    g("s_waitcnt lgkmcnt(0)")
    for r in range(8): g(f"v_add_f32 v{CB+r}, v{CB+r}, v{CB+r+8}")
    for r in range(4): g(f"v_add_f32 v{CB+r}, v{CB+r}, v{CB+r+4}")
    g(f"v_add_f32 v{CB}, v{CB}, v{CB+2}\nv_add_f32 v{CB+1}, v{CB+1}, v{CB+3}\nv_add_f32 v{CB}, v{CB}, v{CB+1}")
    g(f"""
    s_cmp_ge_u32 s53, 7
    s_cselect_b32 s{s_t0}, 7168, 0
    s_lshl_b32 s{s_t1}, s{s_fi}, 9
    s_add_u32 s{s_t0}, s{s_t0}, s{s_t1}
    s_add_u32 s{s_t0}, s{s_t0}, {WS_CS}
    buffer_store_dword v{CB}, v13, s[{sWS}:{sWS+3}], s{s_t0} offen sc1
    SP_noC2:
    """)
    stamp(g, 3, stamps)
    g("s_waitcnt vmcnt(0) lgkmcnt(0)")
    make_tag(g)
    g("s_barrier")
    if flags:
        g(f"s_lshl_b32 s{s_t0}, s{s_j}, 6\ns_add_u32 s{s_t0}, s{s_t0}, {WS_FA}")
        flag_store(g, s_t0, "SP_nf1")
    stamp(g, 4, stamps)


def lines(txt):
    out = []
    for l in txt.strip().split("\n"):
        l = l.split(";")[0].strip()
        if l: out.append(l)
    return out
def emit_mixed(g, L, tag):
    for x in L: g.emit(x, tag)
def T(L, tag=None):
    L = lines(L) if isinstance(L, str) else list(L)
    out = []; cur = None
    for x in L:
        if "\n" in x:
            out.append((x, tag))
        elif x.startswith("s_mov_b64 exec,") and not x.endswith("-1"):
            cur = [x]
        elif cur is not None:
            cur.append(x)
            if x == "s_mov_b64 exec, -1":
                out.append(("\n".join(cur), tag)); cur = None
        else:
            out.append((x, tag))
    assert cur is None
    return out

LX = 0; LW = 49152
LKT = 147968; LVT = LKT + 4352; LKO = LKT + 8448
LST = 18432
RING = 20480
LCV = 114688; CVCOPY = 4160; CVCH = 4*CVCOPY
LU = 152576; CVUS = 4608
E1B = 81920; E2B = 16384

sKK, sVV, sSH = 20, 24, 28
sWD2, sSK2, sOUT2 = 56, 60, 8
s_kv, s_kk, s_kt, s_ko = 32, 33, 34, 35
s_hi, s_ct = 52, 53
s_zoff = 54
s_pb = 55
s_t4 = 3

v_lane = 1
v_xd = 2
v_wd = 6
v_xa = 10
v_wa = 14
v_l16 = 18
v_fr = 20
v_poll = 126
v_hv = 70
v_tch = 71
v_acc = 128
def accg(ft, nt): return v_acc + (ft*2+nt)*16
def accu(ft, nt): return v_acc + 64 + (ft*2+nt)*16
kB1, kB2, kvA, kvV, kvOW, kvOR, kvG, kvD0, kvD1 = 72, 76, 80, 81, 82, 83, 84, 85, 86
kA, kV, kD, kU, kO = 88, 104, 108, 116, 124

def poll_check(g, name, issued_tag):
    vt = v_poll
    if issued_tag is not None:
        g.vwait(issued_tag)
        g(f"v_cmp_ne_u32 vcc, s{s_tag}, v{vt+1}\ns_cbranch_vccz {name}_done")
    g(f"""
    s_mov_b32 s{s_spin}, 0x8000
    {name}_loop:
    buffer_load_dword v{vt+1}, v{vt}, s[{sWS}:{sWS+3}], s{s_pb} offen sc1
    s_waitcnt vmcnt(0)
    v_cmp_ne_u32 vcc, s{s_tag}, v{vt+1}
    s_cbranch_vccz {name}_done
    s_sleep 1
    s_sub_u32 s{s_spin}, s{s_spin}, 1
    s_cmp_lg_u32 s{s_spin}, 0
    s_cbranch_scc1 {name}_loop
    {name}_done:
    """)
def poll_issue(tag): return [(f"buffer_load_dword v{v_poll+1}, v{v_poll}, s[{sWS}:{sWS+3}], s{s_pb} offen sc1", tag)]
def wave_flag(g, off_sgpr):
    g(f"""v_mov_b32 v{v_hv}, 0
    v_mov_b32 v{v_tch}, s{s_tag}
    s_mov_b64 exec, 1""")
    g.vm(f"buffer_store_dword v{v_tch}, v{v_hv}, s[{sWS}:{sWS+3}], s{off_sgpr} offen sc1", "flag")
    g("s_mov_b64 exec, -1")

def g1_prologue(g):
    srd_load(g, sX, 'q'); srd_load(g, sWG, 'wg'); srd_load(g, sWU, 'wu')
    srd_load(g, sKK, 'k'); srd_load(g, sVV, 'v'); srd_load(g, sSH, 'shk'); srd_load(g, sWS, 'ws')
    srd_load(g, sWD2, 'wd'); srd_load(g, sSK2, 'ssmk'); srd_load(g, 64, 'out'); srd_load(g, 96, 'ssmD')
    g(f"""
    v_and_b32 v{v_lane}, 63, v0
    v_lshrrev_b32 v20, 6, v0
    s_lshr_b32 s{s_t0}, s2, 3
    s_and_b32 s{s_t1}, s2, 7
    v_readfirstlane_b32 s{s_w}, v20
    s_mul_i32 s{s_t2}, s{s_t0}, 37
    s_lshr_b32 s{s_t2}, s{s_t2}, 8
    s_mul_i32 s{s_t3}, s{s_t2}, 7
    s_sub_u32 s{s_ct}, s{s_t0}, s{s_t3}
    s_lshr_b32 s{s_mi}, s{s_t1}, 1
    s_lshl_b32 s{s_mi}, s{s_mi}, 2
    s_add_u32 s{s_mi}, s{s_mi}, s{s_t2}
    s_and_b32 s{s_hi}, s{s_t1}, 1
    s_mul_i32 s{s_t1}, s{s_hi}, 7
    s_add_u32 s{s_fi}, s{s_ct}, s{s_t1}
    v_lshrrev_b32 v20, 3, v{v_lane}
    v_lshrrev_b32 v21, 4, v{v_lane}
    v_and_b32 v22, 7, v{v_lane}
    v_mul_u32_u24 v20, 896, v20
    v_xor_b32 v23, v22, v21
    v_xor_b32 v28, 4, v23
    v_lshl_add_u32 v{v_xd}, v23, 4, v20
    v_lshl_add_u32 v28, v28, 4, v20
    v_add_u32 v{v_xd+1}, {8*896-1024}, v28
    v_add_u32 v{v_xd+2}, {2*(8*896-1024)}, v{v_xd}
    v_add_u32 v{v_xd+3}, {3*(8*896-1024)}, v28
    v_and_b32 v22, 15, v{v_lane}
    v_lshlrev_b32 v23, 2, v21
    v_sub_u32 v22, v22, v23
    v_and_b32 v22, 15, v22
    v_mul_u32_u24 v23, 3584, v21
    v_lshl_add_u32 v{v_wd}, v22, 4, v23
    v_add_u32 v{v_wd+1}, {4*3584-1024}, v{v_wd}
    v_add_u32 v{v_wd+2}, {2*(4*3584-1024)}, v{v_wd}
    v_add_u32 v{v_wd+3}, {3*(4*3584-1024)}, v{v_wd}
    s_lshl_b32 s{s_t0}, s{s_mi}, 7
    s_lshl_b32 s{s_t1}, s{s_w}, 5
    s_add_u32 s{s_t0}, s{s_t0}, s{s_t1}
    s_mul_i32 s{s_xoff}, s{s_t0}, 896
    s_mul_i32 s{s_woff}, s{s_w}, {16*3584}
    s_lshl_b32 s{s_t0}, s{s_fi}, 8
    s_add_u32 s{s_woff}, s{s_woff}, s{s_t0}
    s_lshl_b32 s{s_m0x}, s{s_w}, 12
    s_add_u32 s{s_m0w}, s{s_m0x}, {LW}
    s_and_b32 s{s_mf}, s{s_w}, 1
    s_lshr_b32 s{s_ns}, s{s_w}, 1
    s_lshl_b32 s{s_t4}, s{s_w}, 11
    v_lshlrev_b32 v{v_l16}, 4, v{v_lane}
    s_waitcnt lgkmcnt(0)
    """)
    srd_fix(g, sX, S*D*2); srd_fix(g, sWG, D*F*2); srd_fix(g, sWU, D*F*2)

def g1_dma_x(c):
    sl = c % 3
    L = [f"s_add_u32 m0, s{s_m0x}, {LX + sl*16384}", f"s_add_u32 s{s_t3}, s{s_xoff}, {128*c}"]
    for ii in range(4):
        L.append(f"buffer_load_dwordx4 v{v_xd+ii}, s[{sX}:{sX+3}], s{s_t3} offen offset:{1024*ii} lds")
    return L
def g1_dma_w(c, mat):
    sl = c % 3
    sr = sWG if mat == 0 else sWU
    L = [f"s_add_u32 m0, s{s_m0w}, {sl*32768 + mat*16384}", f"s_add_u32 s{s_t3}, s{s_woff}, {64*c*3584}"]
    for ii in range(4):
        L.append(f"buffer_load_dwordx4 v{v_wd+ii}, s[{sr}:{sr+3}], s{s_t3} offen offset:{1024*ii} lds")
    return L
def g1_groups(c): return [g1_dma_x(c), g1_dma_w(c,0), g1_dma_w(c,1)]

def kp_setup_dma():
    return lines(f"""
    v_lshrrev_b32 v104, 2, v{v_lane}
    v_and_b32 v105, 3, v{v_lane}
    v_mul_u32_u24 v104, 896, v104
    v_lshl_add_u32 v{kvD1}, v105, 4, v104
    s_lshl_b32 s{s_t0}, s{s_mi}, 7
    s_lshl_b32 s{s_t2}, s{s_fi}, 6
    s_add_u32 s{s_t1}, s{s_t0}, 61
    s_mul_i32 s{s_kt}, s{s_t1}, 896
    s_add_u32 s{s_kt}, s{s_kt}, s{s_t2}
    s_lshl_b32 s{s_t1}, s{s_w}, 4
    s_add_u32 s{s_t0}, s{s_t0}, s{s_t1}
    s_mul_i32 s{s_kv}, s{s_t0}, 896
    s_add_u32 s{s_kv}, s{s_kv}, s{s_t2}
    s_cmp_eq_u32 s{s_t0}, 0
    s_cselect_b32 s{s_t1}, 0, 2688
    s_cselect_b32 s{s_t2}, 2688, 0
    s_sub_u32 s{s_kk}, s{s_kv}, s{s_t1}
    v_subrev_u32 v{kvD0}, s{s_t2}, v{kvD1}
    """)
def kp_dma(h):
    NL = "\n"
    if h == 0:
        return [NL.join([f"s_lshr_b32 s{s_t0}, s{s_t4}, 1", f"s_add_u32 m0, s{s_t0}, {LKT}", "s_nop 0",
                         f"buffer_load_dwordx4 v{kvD0}, s[{sKK}:{sKK+3}], s{s_kk} offen lds"]),
                NL.join([f"s_lshr_b32 s{s_t0}, s{s_t4}, 1", f"s_add_u32 m0, s{s_t0}, {LVT}", "s_nop 0",
                         f"buffer_load_dwordx4 v{kvD1}, s[{sVV}:{sVV+3}], s{s_kv} offen lds"]),
                NL.join([f"s_mov_b32 m0, {LKT+4096}", "s_mov_b64 exec, 0xfff",
                         f"buffer_load_dwordx4 v{kvD1}, s[{sKK}:{sKK+3}], s{s_kt} offen lds", "s_mov_b64 exec, -1"])]
    return [NL.join([f"s_lshr_b32 s{s_t0}, s{s_t4}, 1", f"s_add_u32 m0, s{s_t0}, {LKT}", f"s_add_u32 s{s_t1}, s{s_kv}, {57344-2688}",
                     f"buffer_load_dwordx4 v{kvD1}, s[{sKK}:{sKK+3}], s{s_t1} offen lds"]),
            NL.join([f"s_lshr_b32 s{s_t0}, s{s_t4}, 1", f"s_add_u32 m0, s{s_t0}, {LVT}", f"s_add_u32 s{s_t1}, s{s_kv}, 57344",
                     f"buffer_load_dwordx4 v{kvD1}, s[{sVV}:{sVV+3}], s{s_t1} offen lds"]),
            NL.join([f"s_mov_b32 m0, {LKT+4096}", f"s_add_u32 s{s_t1}, s{s_kt}, 57344", "s_mov_b64 exec, 0xfff",
                     f"buffer_load_dwordx4 v{kvD1}, s[{sKK}:{sKK+3}], s{s_t1} offen lds", "s_mov_b64 exec, -1"])]
def kp_shk_load():
    return lines(f"""
    v_and_b32 v{kA+2}, 15, v{v_lane}
    s_lshl_b32 s{s_t0}, s{s_fi}, 5
    s_lshl_b32 s{s_t1}, s{s_mf}, 4
    s_add_u32 s{s_t0}, s{s_t0}, s{s_t1}
    s_lshl_b32 s{s_t1}, s{s_t0}, 3
    v_lshlrev_b32 v{kA+3}, 3, v{kA+2}
    buffer_load_dwordx2 v[{kA}:{kA+1}], v{kA+3}, s[{sSH}:{sSH+3}], s{s_t1} offen
    """)
def kp_setup_addr():
    n, kq, t0, t1 = 104, 105, 106, 107
    return lines(f"""
    v_and_b32 v{n}, 15, v{v_lane}
    v_lshrrev_b32 v{kq}, 4, v{v_lane}
    v_lshrrev_b32 v{t0}, 2, v{n}
    v_and_b32 v{t1}, 3, v{n}
    v_lshl_add_u32 v{t0}, v{t0}, 3, v{t1}
    v_lshrrev_b32 v{t1}, 1, v{kq}
    v_sub_u32 v{t0}, v{t0}, v{t1}
    v_add_u32 v{t0}, 1, v{t0}
    s_lshl_b32 s{s_t0}, s{s_ns}, 5
    v_add_u32 v{t0}, s{s_t0}, v{t0}
    v_lshlrev_b32 v{t0}, 6, v{t0}
    v_and_b32 v{t1}, 1, v{kq}
    v_lshl_add_u32 v{t0}, v{t1}, 4, v{t0}
    s_lshl_b32 s{s_t1}, s{s_mf}, 5
    s_add_u32 s{s_t2}, s{s_t1}, {LKT}
    v_add_u32 v{kvA}, s{s_t2}, v{t0}
    v_lshrrev_b32 v{t0}, 2, v{n}
    v_lshl_add_u32 v{t0}, v{kq}, 3, v{t0}
    v_add_u32 v{t0}, s{s_t0}, v{t0}
    v_lshlrev_b32 v{t0}, 6, v{t0}
    v_and_b32 v{t1}, 3, v{n}
    v_lshl_add_u32 v{t0}, v{t1}, 3, v{t0}
    s_add_u32 s{s_t2}, s{s_t1}, {LVT}
    v_add_u32 v{kvV}, s{s_t2}, v{t0}
    s_lshr_b32 s{s_t0}, s{s_t4}, 1
    s_add_u32 s{s_t0}, s{s_t0}, {LKO}
    v_sub_u32 v{t0}, 3, v{kq}
    v_lshlrev_b32 v{t0}, 4, v{t0}
    v_lshl_add_u32 v{t0}, v{n}, 6, v{t0}
    v_add_u32 v{kvOW}, s{s_t0}, v{t0}
    v_add_u32 v{kvOR}, s{s_t0}, v{v_l16}
    v_lshrrev_b32 v{t0}, 2, v{v_lane}
    v_lshlrev_b32 v{t0}, 12, v{t0}
    v_and_b32 v{t1}, 3, v{v_lane}
    v_lshl_add_u32 v{kvG}, v{t1}, 4, v{t0}
    s_lshl_b32 s{s_t0}, s{s_fi}, 5
    s_lshl_b32 s{s_t1}, s{s_mf}, 4
    s_add_u32 s{s_t0}, s{s_t0}, s{s_t1}
    s_lshl_b32 s{s_t0}, s{s_t0}, 12
    s_lshl_b32 s{s_t1}, s{s_mi}, 8
    s_sub_u32 s{s_t0}, s{s_t0}, s{s_t1}
    s_lshl_b32 s{s_t1}, s{s_ns}, 6
    s_sub_u32 s{s_t0}, s{s_t0}, s{s_t1}
    s_add_u32 s{s_ko}, s{s_t0}, {WS_KVT + 4032}
    """)
def kp_build_B():
    n, kq, a, b, c, d = 108, 109, 110, 111, 112, 113
    L = lines(f"""
    v_and_b32 v{n}, 15, v{v_lane}
    v_lshrrev_b32 v{kq}, 4, v{v_lane}
    v_lshrrev_b32 v{a}, 1, v{kq}
    v_lshlrev_b32 v{a}, 4, v{a}
    v_lshrrev_b32 v{b}, v{a}, v{kA}
    v_lshrrev_b32 v{c}, v{a}, v{kA+1}
    v_and_b32 v{b}, 0xffff, v{b}
    v_and_b32 v{c}, 0xffff, v{c}
    v_and_b32 v{a}, 1, v{n}
    v_lshlrev_b32 v{a}, 4, v{a}
    v_lshlrev_b32 v{b}, v{a}, v{b}
    v_lshlrev_b32 v{c}, v{a}, v{c}
    v_lshrrev_b32 v{a}, 3, v{n}
    v_and_b32 v{d}, 1, v{kq}
    v_cmp_eq_u32 vcc, v{a}, v{d}
    v_bfe_u32 v{a}, v{n}, 1, 2
    s_nop 0
    v_cndmask_b32 v{b}, 0, v{b}, vcc
    v_cndmask_b32 v{c}, 0, v{c}, vcc
    """)
    for i in range(4):
        L += [f"v_cmp_eq_u32 vcc, {i}, v{a}", "s_nop 1", f"v_cndmask_b32 v{kB1+i}, 0, v{b}, vcc", f"v_cndmask_b32 v{kB2+i}, 0, v{c}, vcc"]
    return L
def kp_reads():
    L = []
    for t in range(2):
        L.append(f"ds_read_b128 v[{kA+8*t}:{kA+8*t+3}], v{kvA} offset:{256*t+128}")
        L.append(f"ds_read_b128 v[{kA+8*t+4}:{kA+8*t+7}], v{kvA} offset:{256*t}")
        L.append(f"ds_read_b64_tr_b16 v[{kV+2*t}:{kV+2*t+1}], v{kvV} offset:{256*t}")
    return L
def kp_mfma():
    L = []
    for t in range(2): L.append(f"v_mfma_f32_16x16x32_bf16 v[{kD+4*t}:{kD+4*t+3}], v[{kA+8*t}:{kA+8*t+3}], v[{kB1}:{kB1+3}], 0")
    for t in range(2): L.append(f"v_mfma_f32_16x16x32_bf16 v[{kD+4*t}:{kD+4*t+3}], v[{kA+8*t+4}:{kA+8*t+7}], v[{kB2}:{kB2+3}], v[{kD+4*t}:{kD+4*t+3}]")
    for t in range(2):
        for h in range(2):
            L += [f"v_lshlrev_b32 v{kU+4*t+2*h}, 16, v{kV+2*t+h}", f"v_and_b32 v{kU+4*t+2*h+1}, 0xffff0000, v{kV+2*t+h}"]
    return L
def kp_finish():
    L = []
    for t in range(2):
        for h in range(2):
            L.append(f"v_pk_mul_f32 v[{kD+4*t+2*h}:{kD+4*t+2*h+1}], v[{kD+4*t+2*h}:{kD+4*t+2*h+1}], v[{kU+4*t+2*h}:{kU+4*t+2*h+1}]")
    for e in range(4):
        t = 1 - (e >> 1); r = 3 - 2*(e & 1)
        L.append(f"v_cvt_pk_bf16_f32 v{kO+e}, v{kD+4*t+r}, v{kD+4*t+r-1}")
    L.append(f"ds_write_b128 v{kvOW}, v[{kO}:{kO+3}]")
    return L
def kp_readback(): return [f"ds_read_b128 v[{kO}:{kO+3}], v{kvOR}"]
def kp_store(h):
    if h == 0: return [f"buffer_store_dwordx4 v[{kO}:{kO+3}], v{kvG}, s[{sWS}:{sWS+3}], s{s_ko} offen sc1"]
    return [f"s_sub_u32 s{s_t0}, s{s_ko}, 128", f"buffer_store_dwordx4 v[{kO}:{kO+3}], v{kvG}, s[{sWS}:{sWS+3}], s{s_t0} offen sc1"]


LKT2 = 147456; LVT2 = 155648; LKO2 = 147456
def kps_dma_setup():
    return lines(f"""
    v_lshrrev_b32 v106, 2, v{v_lane}
    v_and_b32 v107, 3, v{v_lane}
    v_mul_u32_u24 v106, 896, v106
    v_lshl_add_u32 v104, v107, 4, v106
    v_add_u32 v105, {16*896-1024}, v104
    s_lshl_b32 s{s_t0}, s{s_mi}, 7
    s_lshl_b32 s{s_t1}, s{s_w}, 5
    s_add_u32 s{s_t0}, s{s_t0}, s{s_t1}
    s_mul_i32 s34, s{s_t0}, 896
    s_lshl_b32 s{s_t2}, s{s_fi}, 6
    s_add_u32 s34, s34, s{s_t2}
    v_and_b32 v106, 15, v{v_lane}
    v_lshrrev_b32 v107, 2, v106
    v_and_b32 v106, 3, v106
    v_lshl_add_u32 v106, v107, 4, v106
    v_lshrrev_b32 v107, 5, v{v_lane}
    v_sub_u32 v106, v106, v107
    v_add_u32 v106, 1, v106
    v_mul_u32_u24 v106, 896, v106
    v_bfe_u32 v107, v{v_lane}, 4, 1
    v_lshl_add_u32 v106, v107, 4, v106
    s_lshl_b32 s{s_t0}, s{s_mi}, 7
    s_lshl_b32 s{s_t1}, s{s_ns}, 6
    s_add_u32 s{s_t0}, s{s_t0}, s{s_t1}
    s_mul_i32 s35, s{s_t0}, 896
    s_add_u32 s35, s35, s{s_t2}
    s_lshl_b32 s{s_t1}, s{s_mf}, 5
    s_add_u32 s35, s35, s{s_t1}
    s_cmp_eq_u32 s{s_t0}, 0
    s_cselect_b32 s{s_t1}, 0, 2688
    s_cselect_b32 s{s_t2}, 2688, 0
    s_sub_u32 s35, s35, s{s_t1}
    v_subrev_u32 v106, s{s_t2}, v106
    v_add_u32 v107, 1792, v106
    """)
def kps_dma_L():
    NL = "\n"
    return [NL.join([f"s_add_u32 m0, s{s_t4}, {LKT2}", "s_nop 0", f"buffer_load_dwordx4 v104, s[{sKK}:{sKK+3}], s34 offen lds"]),
            NL.join([f"s_add_u32 m0, s{s_t4}, {LKT2}", "s_nop 0", f"buffer_load_dwordx4 v105, s[{sKK}:{sKK+3}], s34 offen offset:1024 lds"]),
            NL.join([f"s_add_u32 m0, s{s_t4}, {LVT2}", "s_nop 0", f"buffer_load_dwordx4 v104, s[{sVV}:{sVV+3}], s34 offen lds"]),
            NL.join([f"s_add_u32 m0, s{s_t4}, {LVT2}", "s_nop 0", f"buffer_load_dwordx4 v105, s[{sVV}:{sVV+3}], s34 offen offset:1024 lds"])]
kT0 = 88
def kps_t0_L():
    return [f"buffer_load_dwordx4 v[{kT0}:{kT0+3}], v107, s[{sKK}:{sKK+3}], s35 offen",
            f"buffer_load_dwordx4 v[{kT0+4}:{kT0+7}], v106, s[{sKK}:{sKK+3}], s35 offen"]
def kps_setup(g):
    g(f"""
    v_and_b32 v108, 15, v{v_lane}
    v_lshrrev_b32 v109, 4, v{v_lane}
    v_lshrrev_b32 v110, 2, v108
    v_and_b32 v111, 3, v108
    v_lshl_add_u32 v110, v110, 4, v111
    v_lshrrev_b32 v111, 1, v109
    v_sub_u32 v110, v110, v111
    v_add_u32 v110, 2, v110
    s_lshl_b32 s{s_t0}, s{s_ns}, 6
    v_add_u32 v110, s{s_t0}, v110
    v_lshlrev_b32 v110, 6, v110
    v_and_b32 v111, 1, v109
    v_lshl_add_u32 v110, v111, 4, v110
    s_lshl_b32 s{s_t1}, s{s_mf}, 5
    s_add_u32 s{s_t2}, s{s_t1}, {LKT2}
    v_add_u32 v80, s{s_t2}, v110
    v_lshrrev_b32 v110, 2, v108
    v_lshl_add_u32 v110, v109, 4, v110
    v_add_u32 v110, s{s_t0}, v110
    v_lshlrev_b32 v110, 6, v110
    v_and_b32 v111, 3, v108
    v_lshl_add_u32 v110, v111, 3, v110
    s_add_u32 s{s_t2}, s{s_t1}, {LVT2}
    v_add_u32 v81, s{s_t2}, v110
    v_lshlrev_b32 v110, 1, v109
    v_sub_u32 v110, 6, v110
    v_and_b32 v111, 7, v108
    v_xor_b32 v110, v110, v111
    v_xor_b32 v111, 1, v110
    v_lshlrev_b32 v83, 7, v108
    s_add_u32 s{s_t1}, s{s_t4}, {LKO2}
    v_add_u32 v83, s{s_t1}, v83
    v_lshl_add_u32 v82, v110, 4, v83
    v_lshl_add_u32 v83, v111, 4, v83
    v_lshrrev_b32 v110, 3, v{v_lane}
    v_and_b32 v111, 7, v{v_lane}
    v_xor_b32 v84, v111, v110
    v_lshlrev_b32 v85, 7, v110
    v_lshl_add_u32 v84, v84, 4, v85
    v_add_u32 v84, s{s_t1}, v84
    v_lshlrev_b32 v85, 12, v110
    v_lshl_add_u32 v85, v111, 4, v85
    s_lshl_b32 s{s_t0}, s{s_fi}, 5
    s_lshl_b32 s{s_t1}, s{s_mf}, 4
    s_add_u32 s{s_t0}, s{s_t0}, s{s_t1}
    s_lshl_b32 s{s_t0}, s{s_t0}, 12
    s_lshl_b32 s{s_t1}, s{s_mi}, 8
    s_lshl_b32 s{s_t2}, s{s_ns}, 7
    s_add_u32 s{s_t1}, s{s_t1}, s{s_t2}
    s_sub_u32 s{s_t0}, s{s_t0}, s{s_t1}
    s_add_u32 s94, s{s_t0}, {WS_KVT + 1984*2}
    s_add_u32 s95, s94, {8*4096}
    """)
def kps_compute(g):
    A, V = 96, 120
    Dd = [68, 86, 0, 0]
    D = [68, 96, 104, 112]
    D = [68, 88, 92, 96]
    for t in range(1, 4):
        g(f"ds_read_b128 v[{A+8*(t-1)}:{A+8*(t-1)+3}], v80 offset:{256*(t-1)+128}")
        g(f"ds_read_b128 v[{A+8*(t-1)+4}:{A+8*(t-1)+7}], v80 offset:{256*(t-1)}")
    for t in range(4):
        g(f"ds_read_b64_tr_b16 v[{V+2*t}:{V+2*t+1}], v81 offset:{256*t}")
    for t in range(4):
        a = kT0 if t == 0 else A+8*(t-1)
        if t: g(f"s_waitcnt lgkmcnt({10-2*t})")
        if t in (1, 3): g("s_nop 7")
        g(f"v_mfma_f32_16x16x32_bf16 v[{D[t]}:{D[t]+3}], v[{a}:{a+3}], v[{kB1}:{kB1+3}], 0")
        g(f"v_mfma_f32_16x16x32_bf16 v[{D[t]}:{D[t]+3}], v[{a+4}:{a+7}], v[{kB2}:{kB2+3}], v[{D[t]}:{D[t]+3}]")
    g("s_waitcnt lgkmcnt(0)\ns_barrier")
    U = 100
    for t in range(4):
        for h in range(2):
            g(f"v_lshlrev_b32 v{U+4*t+2*h}, 16, v{V+2*t+h}\nv_and_b32 v{U+4*t+2*h+1}, 0xffff0000, v{V+2*t+h}")
    for t in range(4):
        for h in range(2):
            g(f"v_pk_mul_f32 v[{D[t]+2*h}:{D[t]+2*h+1}], v[{D[t]+2*h}:{D[t]+2*h+1}], v[{U+4*t+2*h}:{U+4*t+2*h+1}]")
    O = 116
    for e in range(8):
        t = 3 - (e >> 1); r = 3 - 2*(e & 1)
        g(f"v_cvt_pk_bf16_f32 v{O+e}, v{D[t]+r}, v{D[t]+r-1}")
    g.ld(f"ds_write_b128 v82, v[{O}:{O+3}]"); g.ld(f"ds_write_b128 v83, v[{O+4}:{O+7}]")
    g.ld(f"ds_read_b128 v[{O}:{O+3}], v84"); g.ld(f"ds_read_b128 v[{O+4}:{O+7}], v84 offset:1024", "kprb")
def kps_store_L():
    O = 116
    return [f"buffer_store_dwordx4 v[{O}:{O+3}], v85, s[{sWS}:{sWS+3}], s94 offen sc1",
            f"buffer_store_dwordx4 v[{O+4}:{O+7}], v85, s[{sWS}:{sWS+3}], s95 offen sc1"]

def g1_addr():
    L = lines(f"""
    v_and_b32 v20, 31, v{v_lane}
    v_lshrrev_b32 v21, 5, v{v_lane}
    v_bfe_u32 v22, v{v_lane}, 1, 3
    v_xor_b32 v22, v22, v21
    s_lshl_b32 s{s_t0}, s{s_ns}, 13
    v_lshl_add_u32 v20, v20, 7, s{s_t0}
    """)
    for ks in range(4):
        L += [f"v_xor_b32 v23, {2*ks}, v22", f"v_lshl_add_u32 v{v_xa+ks}, v23, 4, v20"]
    L += lines(f"""
    v_bfe_u32 v20, v{v_lane}, 2, 2
    v_bfe_u32 v22, v{v_lane}, 4, 1
    v_bfe_u32 v23, v{v_lane}, 1, 1
    v_and_b32 v24, 1, v{v_lane}
    v_lshl_add_u32 v22, v22, 1, v23
    v_lshlrev_b32 v25, 11, v21
    v_lshl_add_u32 v25, v20, 8, v25
    v_lshl_add_u32 v25, v24, 3, v25
    v_lshl_add_u32 v25, v22, 4, v25
    v_add_u32 v25, {LW}, v25
    s_lshl_b32 s{s_t0}, s{s_mf}, 1
    """)
    for ft in range(2):
        L += lines(f"""
        v_add_u32 v26, s{s_t0}, v20
        v_add_u32 v26, {ft}, v26
        v_and_b32 v26, 3, v26
        v_lshl_add_u32 v{v_wa+ft}, v26, 6, v25
        v_add_u32 v{v_wa+2+ft}, 65536, v{v_wa+ft}
        """)
    return L

def g1_frag_reads(kstep):
    c, ks = divmod(kstep, 4)
    sl = c % 3
    b = v_fr + (kstep & 1)*24
    L = []
    for nt in range(2):
        L.append(f"ds_read_b128 v[{b+4*nt}:{b+4*nt+3}], v{v_xa+ks} offset:{sl*16384 + nt*4096}")
    for mat in range(2):
        for ft in range(2):
            r = b + 8 + mat*8 + ft*4
            base = v_wa + ft + (2 if sl == 2 else 0)
            off = (sl*32768 if sl < 2 else 0) + mat*16384 + ks*4096
            L.append(f"ds_read_b64_tr_b16 v[{r}:{r+1}], v{base} offset:{off}")
            L.append(f"ds_read_b64_tr_b16 v[{r+2}:{r+3}], v{base} offset:{off+1024}")
    return L

def g1_mfmas(kstep):
    b = v_fr + (kstep & 1)*24
    L = []
    for ft in range(2):
        for nt in range(2):
            for mat in range(2):
                acc = accg(ft, nt) if mat == 0 else accu(ft, nt)
                A = b + 8 + mat*8 + ft*4
                B = b + 4*nt
                cin = "0" if kstep == 0 else f"v[{acc}:{acc+15}]"
                L.append(f"v_mfma_f32_32x32x16_bf16 v[{acc}:{acc+15}], v[{A}:{A+3}], v[{B}:{B+3}], {cin}")
    return L

def spread(per, items, lo, hi):
    n = len(items)
    for i, x in enumerate(items):
        per[min(hi, lo + (i*(hi-lo+1))//n)].append(x)

KSTAMP = None
EST = os.environ.get('EST') == '1'
CST = os.environ.get('CST') == '1'
GSTAMP = None
def g1_chunk_stream(c):
    out = []
    for grp in g1_groups(c):
        for i in range(4):
            out.append((grp[:2] if i == 0 else [], grp[2+i], grp[0]))
    return out
def g1_main(g, pre, post, stamps=None):
    g.ldops = []
    for s_ in g1_frag_reads(0): g.ld(s_, "fr0")
    sched = {k: [] for k in range(28)}
    st2 = g1_chunk_stream(2)
    for i, x in enumerate(st2): sched[i // 4].append((x, "c2"))
    for c in range(0, 4):
        stc = g1_chunk_stream(c+3)
        for i, x in enumerate(stc): sched[4*c + 3 + i // 3].append((x, f"c{c+3}"))
    cur_m0 = [None]
    for k in range(28):
        c, ks = divmod(k, 4)
        g.lwait(f"fr{k}")
        if KSTAMP is not None and KSTAMP <= k < KSTAMP + 14: stamp(g, k - KSTAMP + 1)
        if ks == 3 and c < 6:
            g.vwait(f"c{c+1}")
            for tg in pre(k): g.vwait(tg)
            g("s_barrier")
            if stamps and c in stamps: stamp(g, stamps[c])
            if k == KPK: kps_compute(g)
        per = [[] for _ in range(8)]
        if k+1 < 28: spread(per, T(g1_frag_reads(k+1), f"fr{k+1}"), 0, 4)
        items = sched[k]
        early, late, vx = post(k)
        dm = [[] for _ in range(8)]
        if len(items) == 4: sg, xg = [1, 3, 5, 7], [2, 6]
        elif len(items) == 3: sg, xg = ([1, 5, 7], [3, 6]) if vx else ([1, 4, 7], [])
        else: sg, xg = [], [1, 3, 5, 7, 2, 6, 4, 0]
        for it_, gp in zip(items, sg): dm[gp].append(it_)
        assert len(vx) <= len(xg), (k, len(vx))
        xs = sorted(xg[:len(vx)])
        if early: spread(per, early, 0, 7)
        for grp_, gp in zip(vx, xs): per[gp] += grp_
        if late: spread(per, late, 4, 7)
        m = g1_mfmas(k)
        for i in range(8):
            if GSTAMP is not None and k == GSTAMP: stamp(g, i + 1)
            if GSTAMP is not None and k == GSTAMP + 1 and i < 5: stamp(g, i + 9)
            g(m[i])
            for s_, tag in per[i]:
                if s_ == "CALL": tag()
                else:
                    g.emit(s_, tag)
                    if "m0" in s_ and not s_.startswith("buffer_") : m0_dirty[0] = True
                    if "m0," in s_: m0_dirty[0] = True
            for (salu, load, m0i), tag in dm[i]:
                if salu:
                    for x in salu: g(x)
                    m0_dirty[0] = False
                elif m0_dirty[0]:
                    g(m0i); g("s_nop 0"); m0_dirty[0] = False
                g.vm(load, tag)
m0_dirty = [False]
TCHK = eval(os.environ.get('TCHK', '(12,13,14,17,18,19,19,19,21,21,22,23,23,23)'))
KPK = int(os.environ.get('KPK', '15'))

v_cs = 72
v_rc = 100
v_t = 108
v_csa = v_t + 1
def epi_pre_reads():
    return lines(f"""
    v_and_b32 v{v_t}, 31, v{v_lane}
    s_lshl_b32 s{s_t1}, s{s_ns}, 9
    s_add_u32 s{s_t1}, s{s_t1}, {LST}
    v_lshl_add_u32 v{v_t}, v{v_t}, 3, s{s_t1}
    v_lshrrev_b32 v{v_csa}, 5, v{v_lane}
    s_lshl_b32 s{s_t1}, s{s_mf}, 8
    s_add_u32 s{s_t1}, s{s_t1}, {LST+1024}
    v_lshl_add_u32 v{v_csa}, v{v_csa}, 4, s{s_t1}
    ds_read_b64 v[{v_t+2}:{v_t+3}], v{v_t}
    ds_read_b64 v[{v_t+4}:{v_t+5}], v{v_t} offset:256
    """) + epi_cs_reads()
def epi_cs_reads():
    return [f"ds_read_b128 v[{v_cs}:{v_cs+3}], v{v_csa}", f"ds_read_b128 v[{v_cs+4}:{v_cs+7}], v{v_csa} offset:32",
            f"ds_read_b128 v[{v_cs+8}:{v_cs+11}], v{v_csa} offset:512", f"ds_read_b128 v[{v_cs+12}:{v_cs+15}], v{v_csa} offset:544",
            f"v_add_u32 v{v_csa}, 64, v{v_csa}"]
def epi_hoff():
    return lines(f"""
    s_lshl_b32 s{s_t0}, s{s_mi}, 2
    s_lshl_b32 s{s_t1}, s{s_ns}, 1
    s_add_u32 s{s_t0}, s{s_t0}, s{s_t1}
    s_mul_i32 s{s_t0}, s{s_t0}, 112
    s_lshl_b32 s{s_t1}, s{s_fi}, 3
    s_add_u32 s{s_t0}, s{s_t0}, s{s_t1}
    s_lshl_b32 s{s_t1}, s{s_mf}, 2
    s_add_u32 s{s_t0}, s{s_t0}, s{s_t1}
    s_lshl_b32 s{s_hoff}, s{s_t0}, 10
    s_add_u32 s{s_hoff}, s{s_hoff}, {WS_H}
    """)
vW0, vW1, vW2, vW3 = 120, 121, 122, 123
def g1_epilogue(g, blocks):
    for nt in range(2):
        m, sd = v_t+2+2*nt, v_t+3+2*nt
        rc = v_rc + 4*nt
        g(f"""
        v_rcp_f32 v{v_t+6}, v{sd}
        v_sub_f32 v{rc}, 0, v{m}
        v_mul_f32 v{rc+1}, v{sd}, v{sd}
        v_mul_f32 v{rc+2}, {fh(C1)}, v{v_t+6}
        v_mul_f32 v{v_t+7}, v{v_t+6}, v{v_t+6}
        v_mul_f32 v{v_t+7}, v{v_t+7}, v{v_t+6}
        v_mul_f32 v{rc+3}, {fh(C2)}, v{v_t+7}
        """)
    TG = 20
    P = 88
    g(f"s_mov_b32 s{s_t0}, 0\ns_mov_b32 s{s_t1}, s{s_hoff}\ns_mov_b32 s96, s{s_m0x}\ns_add_u32 s97, s{s_woff}, {8*16*896}")
    def wd_dyn():
        g(f"s_mov_b32 m0, s96\ns_add_u32 s96, s96, 2048")
        g(f"buffer_load_dwordx4 v{vW0}, s[{sWD2}:{sWD2+3}], s97 offen lds")
        g(f"buffer_load_dwordx4 v{vW1}, s[{sWD2}:{sWD2+3}], s97 offen offset:1024 lds")
        g(f"s_add_u32 s97, s97, {16*896}")
    wd_dyn()
    g.lab("E1_loop")
    g(f"s_set_gpr_idx_on s{s_t0}, gpr_idx(SRC2)")
    for nt in range(2):
        rc = v_rc + 4*nt; nm = f"v[{rc}:{rc+1}]"
        b = TG + 24*nt
        for pp in range(4):
            r = 2*pp
            g(f"v_pk_fma_f32 v[{b+r}:{b+r+1}], v[{v_cs+r}:{v_cs+r+1}], {nm}, v[{accg(0,nt)+r}:{accg(0,nt)+r+1}] op_sel_hi:[1,0,1]")
            g(f"v_pk_fma_f32 v[{b+8+r}:{b+8+r+1}], v[{v_cs+8+r}:{v_cs+8+r+1}], {nm}, v[{accu(0,nt)+r}:{accu(0,nt)+r+1}] op_sel_hi:[1,0,1]")
    g("s_set_gpr_idx_off")
    for x in epi_cs_reads(): g(x)
    for nt in range(2):
        wd_dyn()
        rc = v_rc + 4*nt; nm = f"v[{rc}:{rc+1}]"; cc = f"v[{rc+2}:{rc+3}]"
        b = TG + 24*nt
        def pr(x): return f"v[{x}:{x+1}]"
        steps = [
          lambda tg,tu,z: [f"v_pk_mul_f32 {pr(z)}, {pr(tg)}, {pr(tg)}"],
          lambda tg,tu,z: [f"v_pk_fma_f32 {pr(z)}, {pr(z)}, {cc}, {cc} op_sel:[0,1,0] op_sel_hi:[1,1,0]"],
          lambda tg,tu,z: [f"v_pk_mul_f32 {pr(z)}, {pr(z)}, {pr(tg)}"],
          lambda tg,tu,z: [f"v_exp_f32 v{z}, v{z}", f"v_exp_f32 v{z+1}, v{z+1}"],
          lambda tg,tu,z: [f"v_pk_mul_f32 {pr(tu)}, {pr(tu)}, {pr(tg)}"],
          lambda tg,tu,z: [f"v_pk_fma_f32 {pr(z)}, {pr(z)}, {nm}, {nm} op_sel:[0,1,1] op_sel_hi:[1,1,1]"],
          lambda tg,tu,z: [f"v_rcp_f32 v{z}, v{z}", f"v_rcp_f32 v{z+1}, v{z+1}"],
          lambda tg,tu,z: [f"v_pk_mul_f32 {pr(tu)}, {pr(tu)}, {pr(z)}"],
        ]
        for st in steps:
            for pp in range(4):
                for x in st(b+2*pp, b+8+2*pp, b+16+2*pp): g(x)
        for pp in range(4):
            g(f"v_cvt_pk_bf16_f32 v{P+4*nt+pp}, v{b+8+2*pp}, v{b+8+2*pp+1}")
        if nt == 0: g(f"buffer_store_dwordx4 v[{P}:{P+3}], v{v_l16}, s[{sWS}:{sWS+3}], s{s_t1} offen sc1")
        else: g(f"s_add_u32 s{s_t2}, s{s_t1}, {112*1024}\nbuffer_store_dwordx4 v[{P+4}:{P+7}], v{v_l16}, s[{sWS}:{sWS+3}], s{s_t2} offen sc1")
    g(f"s_cmp_eq_u32 s{s_t0}, 0\ns_cbranch_scc1 E1_b0\ns_cmp_eq_u32 s{s_t0}, 8\ns_cbranch_scc1 E1_b1\ns_cmp_eq_u32 s{s_t0}, 32\ns_cbranch_scc1 E1_b2\ns_branch E1_b3")
    base_vm = list(g.vmops)
    seq = ["wd", "wd"]
    g.vmops = base_vm + seq
    for it in range(4):
        g.vmops += [f"wd{9+2*it}", f"wd{9+2*it}", "hst", f"wd{10+2*it}", f"wd{10+2*it}", "hst"]
        g.lab(f"E1_b{it}")
        g.ldops = []
        if EST: stamp(g, 2 + 2*it)
        blocks[it]()
        if EST: stamp(g, 3 + 2*it)
        if it < 3: g("s_branch E1_next")
    g.lab("E1_next")
    g(f"""
    s_add_u32 s{s_t1}, s{s_t1}, 1024
    s_add_u32 s{s_t0}, s{s_t0}, 8
    s_bitcmp1_b32 s{s_t0}, 4
    s_cselect_b32 s{s_t2}, 16, 0
    s_add_u32 s{s_t0}, s{s_t0}, s{s_t2}
    s_cmp_lt_u32 s{s_t0}, 64
    s_waitcnt lgkmcnt(0)
    s_cbranch_scc1 E1_loop
    """)

a_h = 224
def conv_h_loads():
    L = [f"v_lshlrev_b32 v{v_hv}, 4, v0", f"s_lshl_b32 s{s_zoff}, s2, 13"]
    for ch in range(2):
        r = a_h + ch*8
        L.append(f"buffer_load_dwordx4 a[{r}:{r+3}], v{v_hv}, s[{sSK2}:{sSK2+3}], s{s_zoff} offen")
        L.append(f"buffer_load_dwordx2 a[{r+4}:{r+5}], v{v_hv}, s[{sSK2}:{sSK2+3}], s{s_zoff} offen offset:16")
        if ch == 0: L.append(f"s_add_u32 s{s_zoff}, s{s_zoff}, 4096")
    return L

def conv_build_L(ch):
    W, C1, C2, C3, AD = 2, 8, 12, 96, 16
    L = [f"v_lshlrev_b32 v{AD}, 4, v0", f"v_add_u32 v{AD}, {LCV+32+ch*CVCH}, v{AD}"]
    for i in range(6): L.append(f"v_accvgpr_read_b32 v{W+i}, a{a_h+8*ch+i}")
    for i in range(4): L.append(f"v_alignbit_b32 v{C1+i}, v{W+i+1}, v{W+i}, 16")
    for i in range(4): L.append(f"v_mov_b32 v{C2+i}, v{W+i+1}")
    for i in range(3): L.append(f"v_mov_b32 v{C3+i}, v{C1+i+1}")
    L.append(f"v_alignbit_b32 v{C3+3}, v{W+5}, v{W+4}, 16")
    L.append(f"ds_write_b128 v{AD}, v[{W}:{W+3}]")
    L.append(f"ds_write_b128 v{AD}, v[{C1}:{C1+3}] offset:{CVCOPY}")
    L.append(f"ds_write_b128 v{AD}, v[{C2}:{C2+3}] offset:{2*CVCOPY}")
    L.append(f"ds_write_b128 v{AD}, v[{C3}:{C3+3}] offset:{3*CVCOPY}")
    return L
def conv_pads(g):
    pass
def conv_pads_L():
    return None

def conv_u_dma():
    return lines(f"""
    s_lshl_b32 s98, s2, 13
    s_add_u32 s98, s98, s{s_t4}
    s_add_u32 s98, s98, {WS_KVT}
    s_mul_i32 s{s_t2}, s{s_ns}, {CVUS}
    s_lshl_b32 s99, s{s_mf}, 11
    s_add_u32 s{s_t2}, s{s_t2}, s99
    s_add_u32 m0, s{s_t2}, {LU}
    s_nop 0
    buffer_load_dwordx4 v{v_l16}, s[{sWS}:{sWS+3}], s98 offen sc1 lds
    buffer_load_dwordx4 v{v_l16}, s[{sWS}:{sWS+3}], s98 offen offset:1024 sc1 lds
    """)

def conv_pad_code(g):
    g(f"""
    s_cmp_eq_u32 s{s_w}, 0
    s_cbranch_scc0 CB_w1
    v_mov_b32 v8, 0
    v_mov_b32 v9, 0
    v_mov_b32 v10, 0
    v_mov_b32 v11, 0
    """)
    for ch in range(2):
        g(f"""
        v_accvgpr_read_b32 v12, a{a_h+8*ch}
        v_accvgpr_read_b32 v13, a{a_h+8*ch+1}
        s_nop 0
        v_readlane_b32 s34, v12, 0
        v_readlane_b32 s35, v13, 0
        s_nop 3
        s_lshl_b32 s98, s34, 16
        s_lshr_b32 s99, s34, 16
        s_lshl_b32 s35, s35, 16
        s_or_b32 s99, s99, s35
        v_writelane_b32 v11, s98, {8*ch+3}
        v_writelane_b32 v11, s34, {8*ch+5}
        v_writelane_b32 v11, s99, {8*ch+7}
        v_writelane_b32 v10, s98, {8*ch+7}
        """)
    g(f"""
    v_lshrrev_b32 v12, 3, v{v_lane}
    v_mul_u32_u24 v12, {CVCH}, v12
    v_bfe_u32 v13, v{v_lane}, 1, 2
    v_mul_u32_u24 v13, {CVCOPY}, v13
    v_add_u32 v12, v12, v13
    v_and_b32 v13, 1, v{v_lane}
    v_lshl_add_u32 v12, v13, 4, v12
    v_add_u32 v12, {LCV}, v12
    s_mov_b64 exec, 0xffff
    ds_write_b128 v12, v[8:11]
    s_mov_b64 exec, -1
    s_branch CB_done
    CB_w1:
    s_cmp_eq_u32 s{s_w}, 1
    s_cbranch_scc0 CB_done
    v_mov_b32 v8, 0
    v_mov_b32 v9, 0
    v_mov_b32 v10, 0
    v_mov_b32 v11, 0
    v_lshrrev_b32 v12, 5, v{v_lane}
    v_mul_u32_u24 v12, {CVUS}, v12
    v_and_b32 v13, 31, v{v_lane}
    v_lshl_add_u32 v12, v13, 4, v12
    v_add_u32 v12, {LU+4096}, v12
    ds_write_b128 v12, v[8:11]
    CB_done:
    """)

cv_D = 128
cv_A = [160, 64]; cv_B = [192, 92]
cv_A = [160, 20]; cv_B = [192, 56]
v_la, v_lb = 124, 125
def conv_addr():
    return lines(f"""
    v_and_b32 v2, 15, v{v_lane}
    v_lshrrev_b32 v3, 4, v{v_lane}
    v_add_u32 v4, 1, v2
    v_and_b32 v5, 3, v4
    v_mul_u32_u24 v5, {CVCOPY}, v5
    v_lshrrev_b32 v4, 2, v4
    v_lshl_add_u32 v5, v4, 3, v5
    v_lshl_add_u32 v5, v3, 4, v5
    s_mul_i32 s98, s{s_ns}, {CVCH}
    s_lshl_b32 s99, s{s_mf}, 8
    s_add_u32 s98, s98, s99
    s_add_u32 s98, s98, {LCV}
    v_add_u32 v{v_la}, s98, v5
    v_lshlrev_b32 v4, 5, v2
    v_lshlrev_b32 v5, 4, v3
    v_sub_u32 v5, v5, v4
    s_mul_i32 s98, s{s_ns}, {CVUS}
    s_add_u32 s98, s98, s99
    s_add_u32 s98, s98, {LU + 4064 - 3584}
    v_add_u32 v{v_lb}, s98, v5
    """)
def conv_reads(cl):
    A, B = cv_A[cl & 1], cv_B[cl & 1]
    L = []
    for i in range(8):
        L.append(f"ds_read_b64 v[{A+4*i}:{A+4*i+1}], v{v_la} offset:{64*cl+512*i}")
        L.append(f"ds_read_b64 v[{A+4*i+2}:{A+4*i+3}], v{v_la} offset:{64*cl+512*i+8}")
        L.append(f"ds_read_b128 v[{B+4*i}:{B+4*i+3}], v{v_lb} offset:{64*cl+512*(7-i)}")
    return L
def conv_mfmas(cl):
    A, B = cv_A[cl & 1], cv_B[cl & 1]
    L = []
    pairs = sorted([(a, b) for a in range(8) for b in range(8) if a+b <= 7], key=lambda p: (max(p), p))
    first = set()
    for a, b in pairs:
        t = a + b
        d = cv_D + 4*t
        cin = "0" if (cl == 0 and t not in first) else f"v[{d}:{d+3}]"
        first.add(t)
        L.append(f"v_mfma_f32_16x16x32_bf16 v[{d}:{d+3}], v[{A+4*a}:{A+4*a+3}], v[{B+4*b}:{B+4*b+3}], {cin}")
    return L

def wd_setup_v():
    a, b, c, d, e, f = 112, 113, 114, 115, 116, 117
    return lines(f"""
    v_lshrrev_b32 v{a}, 3, v{v_lane}
    v_and_b32 v{b}, 7, v{v_lane}
    v_bfe_u32 v{c}, v{a}, 1, 1
    v_lshlrev_b32 v{c}, 2, v{c}
    v_xor_b32 v{b}, v{b}, v{c}
    v_mul_u32_u24 v{a}, 896, v{a}
    v_lshl_add_u32 v{e}, v{b}, 4, v{a}
    v_add_u32 v{f}, {8*896-1024}, v{e}
    v_accvgpr_write_b32 a248, v{e}
    v_accvgpr_write_b32 a249, v{f}
    v_lshrrev_b32 v{a}, 5, v{v_lane}
    v_bfe_u32 v{b}, v{v_lane}, 2, 2
    v_lshl_add_u32 v{a}, v{a}, 2, v{b}
    v_lshlrev_b32 v{a}, 7, v{a}
    v_bfe_u32 v{c}, v{v_lane}, 4, 1
    v_bfe_u32 v{d}, v{v_lane}, 1, 1
    v_lshl_add_u32 v{c}, v{c}, 1, v{d}
    v_lshl_add_u32 v{a}, v{c}, 4, v{a}
    v_and_b32 v{c}, 1, v{v_lane}
    v_lshl_add_u32 v{a}, v{c}, 3, v{a}
    v_bfe_u32 v{b}, v{v_lane}, 3, 1
    v_xor_b32 v{b}, s{s_ns}, v{b}
    v_lshl_add_u32 v{e}, v{b}, 6, v{a}
    v_xor_b32 v{b}, 1, v{b}
    v_lshl_add_u32 v{f}, v{b}, 6, v{a}
    s_mul_i32 s{s_t0}, s{s_w}, {RING}
    v_add_u32 v{a}, s{s_t0}, v{e}
    v_add_u32 v{b}, s{s_t0}, v{f}
    v_accvgpr_write_b32 a250, v{a}
    v_accvgpr_write_b32 a251, v{b}
    s_lshl_b32 s{s_t0}, s{s_w}, 13
    s_add_u32 s{s_t0}, s{s_t0}, {E1B}
    v_add_u32 v{a}, s{s_t0}, v{e}
    v_add_u32 v{b}, s{s_t0}, v{f}
    v_accvgpr_write_b32 a252, v{a}
    v_accvgpr_write_b32 a253, v{b}
    """)
def wd_setup_s():
    return lines(f"""
    s_mul_i32 s{s_woff}, s{s_w}, {448*896}
    s_lshl_b32 s{s_t0}, s{s_ct}, 7
    s_add_u32 s{s_woff}, s{s_woff}, s{s_t0}
    s_mul_i32 s{s_m0x}, s{s_w}, {RING}
    s_lshl_b32 s{s_eb}, s{s_w}, 13
    s_add_u32 s{s_eb}, s{s_eb}, {E1B}
    v_accvgpr_read_b32 v{vW0}, a248
    v_accvgpr_read_b32 v{vW1}, a249
    v_accvgpr_read_b32 v{vW2}, a250
    v_accvgpr_read_b32 v{vW3}, a251
    v_accvgpr_read_b32 v{vW4}, a252
    v_accvgpr_read_b32 v{vW5}, a253
    v_subrev_u32 v{vW6}, {E1B-E2B}, v{vW4}
    v_subrev_u32 v{vW7}, {E1B-E2B}, v{vW5}
    """)
NSLOT = 10
s_eb = 33
vW4, vW5 = 118, 119
vW6, vW7 = 116, 117
def wd_dma_e(j, e):
    m0 = f"s_add_u32 m0, s{s_eb}, {e*2048}" if e < 4 else f"s_sub_u32 m0, s{s_eb}, {E1B-E2B-(e-4)*2048}"
    return ["\n".join([m0, f"s_add_u32 s{s_t3}, s{s_woff}, {16*j*896}",
            f"buffer_load_dwordx4 v{vW0}, s[{sWD2}:{sWD2+3}], s{s_t3} offen lds"]),
            "\n".join([m0, "s_nop 0", f"buffer_load_dwordx4 v{vW1}, s[{sWD2}:{sWD2+3}], s{s_t3} offen offset:1024 lds"])]
def wd_tr_e(j, e):
    L = []
    b = vW4 if e < 4 else vW6
    off = (e & 3)*2048
    for sm in range(2):
        r = 8*j + 4*sm
        L.append(f"ds_read_b64_tr_b16 a[{r}:{r+1}], v{b+sm} offset:{off}")
        L.append(f"ds_read_b64_tr_b16 a[{r+2}:{r+3}], v{b+sm} offset:{off+1024}")
    return L
def wd_dma(j, sl=None):
    if sl is None: sl = j % NSLOT
    return [f"s_add_u32 m0, s{s_m0x}, {sl*2048}", f"s_add_u32 s{s_t3}, s{s_woff}, {16*j*896}",
            f"buffer_load_dwordx4 v{vW0}, s[{sWD2}:{sWD2+3}], s{s_t3} offen lds",
            f"buffer_load_dwordx4 v{vW1}, s[{sWD2}:{sWD2+3}], s{s_t3} offen offset:1024 lds"]
def wd_tr(j, sl=None):
    if sl is None: sl = j % NSLOT
    L = []
    for sm in range(2):
        r = 8*j + 4*sm
        L.append(f"ds_read_b64_tr_b16 a[{r}:{r+1}], v{vW2+sm} offset:{sl*2048}")
        L.append(f"ds_read_b64_tr_b16 a[{r+2}:{r+3}], v{vW2+sm} offset:{sl*2048+1024}")
    return L

vH0, vH1, vH2 = 2, 3, 4
def g2_setup():
    return lines(f"""
    s_lshl_b32 s{s_t0}, s{s_mi}, 2
    s_lshl_b32 s{s_t1}, s{s_hi}, 1
    s_add_u32 s{s_t0}, s{s_t0}, s{s_t1}
    s_mul_i32 s{s_t0}, s{s_t0}, 112
    s_mul_i32 s{s_t1}, s{s_w}, 28
    s_add_u32 s{s_t0}, s{s_t0}, s{s_t1}
    s_lshl_b32 s{s_xoff}, s{s_t0}, 10
    s_add_u32 s{s_xoff}, s{s_xoff}, {WS_H}
    s_mul_i32 s{s_t0}, s{s_mf}, {112*1024}
    v_add_u32 v{vH0}, s{s_t0}, v{v_l16}
    s_sub_u32 s{s_t0}, {112*1024 - 1024}, s{s_t0}
    v_add_u32 v{vH1}, s{s_t0}, v{v_l16}
    v_add_u32 v{vH2}, s{s_m0x}, v{v_l16}
    """)
def h_dma(j):
    sl = j % NSLOT
    return [f"s_add_u32 m0, s{s_m0x}, {sl*2048}", f"s_add_u32 s{s_t3}, s{s_xoff}, {j*1024}",
            f"buffer_load_dwordx4 v{vH0}, s[{sWS}:{sWS+3}], s{s_t3} offen sc1 lds",
            f"buffer_load_dwordx4 v{vH1}, s[{sWS}:{sWS+3}], s{s_t3} offen offset:1024 sc1 lds"]
def h_reads(j):
    sl = j % NSLOT
    b = g2_fr + (j & 1)*8
    return [f"ds_read_b128 v[{b}:{b+3}], v{vH2} offset:{sl*2048}", f"ds_read_b128 v[{b+4}:{b+7}], v{vH2} offset:{sl*2048+1024}"]
def hflag_offsets():
    return lines(f"""
    v_min_u32 v{v_poll}, 27, v{v_lane}
    v_lshrrev_b32 v{v_poll+1}, 1, v{v_poll}
    v_and_b32 v{v_poll}, 1, v{v_poll}
    v_lshl_add_u32 v{v_poll}, v{v_poll+1}, 2, v{v_poll}
    v_lshlrev_b32 v{v_poll}, 6, v{v_poll}
    s_lshl_b32 s{s_pb}, s{s_mi}, 12
    s_lshl_b32 s{s_t0}, s{s_hi}, 7
    s_add_u32 s{s_pb}, s{s_pb}, s{s_t0}
    s_add_u32 s{s_pb}, s{s_pb}, {WS_FH}
    """)

HFG = int(os.environ.get('HFG', '12'))
def conv_main(g, hflag):
    NG = 144
    per = [[] for _ in range(NG)]
    m = []
    for cl in range(4):
        m += conv_mfmas(cl)
        if cl < 3:
            for i, x in enumerate(conv_reads(cl+1)): per[36*cl + 4 + i].append((x, f"cv{cl+1}"))
    per[0].append(("VWAIT", "wd16"))
    trg = {}
    for n_, j in enumerate(range(8, 21)):
        gp = 5*n_
        trg[j] = gp
        if j == 17: per[gp].append(("VWAIT", "wd20"))
        tl = T(wd_tr(j, j-8) if j < 17 else wd_tr_e(j, j-17), f"tr{j}")
        for q, x in enumerate(tl): per[gp + q].append(x)
    for i, j in enumerate(range(21, 28)):
        g2 = trg[8+i] + 7
        per[g2].append(("LWAIT", f"tr{8+i}"))
        dl = T(wd_dma(j, j-21), f"wd{j}")
        per[g2] += dl[:3]
        per[g2+1] += dl[3:]
    per[HFG].append(("CALL", hflag))
    for i, j in enumerate(range(21, 28)):
        gp = 72 + 5*i
        per[gp].append(("VWAIT", f"wd{j}"))
        for q, x in enumerate(T(wd_tr(j, j-21), f"tr{j}")): per[gp + q].append(x)
    spread(per, T(hflag_offsets()), 66, 71)
    spread(per, T(g2_setup()), 108, 118)
    per[120] += poll_issue("ph")
    for i in range(NG):
        if EST and i in (0, 36, 72, 108): stamp(g, 11 + i//36)
        if CST and i % 12 == 0: stamp(g, 1 + i//12)
        if i % 36 == 0: g.lwait(f"cv{i//36}")
        g(m[i])
        for x, tag in per[i]:
            if x == "HCHECK": poll_check(g, "G_p2", "ph")
            elif x == "CALL": tag()
            else: g.emit(x, tag)

def conv_epilogue(g, fill):
    g("s_waitcnt lgkmcnt(0)")
    fill(2)
    g("s_barrier")
    g(f"""
    s_lshl_b32 s{s_t0}, s{s_w}, 13
    s_add_u32 s{s_t0}, s{s_t0}, {LCV}
    v_add_u32 v22, s{s_t0}, v{v_l16}
    s_nop 4
    """)
    for t in range(8):
        g(f"ds_write_b128 v22, v[{cv_D+4*t}:{cv_D+4*t+3}] offset:{t*1024}")
        if t % 2 == 1: fill(1)
    g(f"""
    v_add_u32 v22, s{s_t4}, v{v_l16}
    v_add_u32 v22, {LCV}, v22
    v_and_b32 v23, 15, v{v_lane}
    v_lshrrev_b32 v24, 4, v{v_lane}
    v_lshlrev_b32 v25, 6, v23
    v_lshl_add_u32 v25, v24, 4, v25
    v_lshlrev_b32 v23, 5, v23
    v_lshl_add_u32 v23, v24, 3, v23
    s_lshr_b32 s{s_t0}, s{s_t4}, 1
    s_sub_u32 s{s_t0}, {LU + 4088 - 512}, s{s_t0}
    v_sub_u32 v23, s{s_t0}, v23
    """)
    KV = 64
    for ch in range(2):
        for tt in range(2):
            r = KV + (ch*2+tt)*2
            g(f"ds_read_b64 v[{r}:{r+1}], v23 offset:{ch*CVUS + (512 if tt == 0 else 0)}")
    g(f"""
    s_lshl_b32 s{s_t0}, s2, 13
    s_add_u32 s{s_t0}, s{s_t0}, s{s_t4}
    s_add_u32 s{s_t0}, s{s_t0}, {WS_ZP}
    s_waitcnt lgkmcnt(0)
    s_barrier
    """)
    Y = 32
    for ch in range(2):
        for hf in range(2):
            for tt in range(2):
                r = Y + ((ch*2+hf)*2+tt)*4
                g(f"ds_read_b128 v[{r}:{r+3}], v22 offset:{(ch*2+hf)*8192 + tt*1024}")
    fill(2)
    Z = 72
    for ch in range(2):
        for tt in range(2):
            k = KV + (ch*2+tt)*2
            u = Z + (ch*2+tt)*4
            g(f"v_and_b32 v{u}, 0xffff0000, v{k+1}\nv_lshlrev_b32 v{u+1}, 16, v{k+1}\nv_and_b32 v{u+2}, 0xffff0000, v{k}\nv_lshlrev_b32 v{u+3}, 16, v{k}")
    g("s_waitcnt lgkmcnt(0)")
    for ch in range(2):
        for tt in range(2):
            a = Y + ((ch*2+0)*2+tt)*4; b = Y + ((ch*2+1)*2+tt)*4
            u = Z + (ch*2+tt)*4
            g(f"v_pk_add_f32 v[{a}:{a+1}], v[{a}:{a+1}], v[{b}:{b+1}]\nv_pk_add_f32 v[{a+2}:{a+3}], v[{a+2}:{a+3}], v[{b+2}:{b+3}]")
            for r in range(4):
                g(f"v_fmac_f32 v{a+r}, s{100+ch}, v{u+r}")
    fill(2)
    O = 96
    for tt in range(2):
        a0 = Y + ((0*2+0)*2+tt)*4; a1 = Y + ((1*2+0)*2+tt)*4
        for r in range(4):
            g(f"v_cvt_pk_bf16_f32 v{O+4*tt+r}, v{a0+r}, v{a1+r}")
    g.vm(f"buffer_store_dwordx4 v[{O}:{O+3}], v25, s[{sWS}:{sWS+3}], s{s_t0} offen sc1", "zst")
    g.vm(f"buffer_store_dwordx4 v[{O+4}:{O+7}], v25, s[{sWS}:{sWS+3}], s{s_t0} offen offset:1024 sc1", "zst")

g2_acc = 128
g2_fr = 192
def g2_main(g, extra):
    nd = 10
    g.vwait("h0")
    for x in h_reads(0): g(x)
    for j in range(28):
        b = g2_fr + (j & 1)*8
        g("s_waitcnt lgkmcnt(0)")
        fill = []
        if j >= 1 and nd < 28:
            fill += T(h_dma(nd), f"h{nd}"); nd += 1
        m = []
        for sm in range(2):
            for sn in range(2):
                acc = g2_acc + (sm*2+sn)*16
                cin = "0" if j == 0 else f"v[{acc}:{acc+15}]"
                m.append(f"v_mfma_f32_32x32x16_bf16 v[{acc}:{acc+15}], a[{8*j+4*sm}:{8*j+4*sm+3}], v[{b+4*sn}:{b+4*sn+3}], {cin}")
        per = [[] for _ in range(4)]
        if j+1 < 28:
            per[0].append(("VWAIT", f"h{j+1}"))
            per[0] += T(h_reads(j+1))
        for i, x in enumerate(fill): per[min(3, 1 + i//2)].append(x)
        ex = extra(j)
        if ex: spread(per, ex, 1, 3)
        for i in range(4):
            g(m[i])
            for x, tag in per[i]:
                if x == "CALL": tag()
                else: g.emit(x, tag)

def g2_reduce(g):
    g(f"v_add_u32 v22, s{s_m0x}, v{v_l16}\ns_nop 7\ns_nop 3")
    for sl in range(1, 4):
        for q in range(4):
            r = g2_acc + sl*16 + 4*q
            g(f"ds_write_b128 v22, v[{r}:{r+3}] offset:{sl*4096 + q*1024}")
    for x in range(1, 4):
        g(f"s_xor_b32 s{s_t0}, s{s_w}, {x}\ns_mul_i32 s{s_t0}, s{s_t0}, {RING}\nv_add_u32 v{22+x}, s{s_t0}, v{v_l16}")
def g2_reduce2(g):
    g("s_waitcnt lgkmcnt(0)\ns_barrier")
    for x in range(1, 4):
        for q in range(4):
            r = g2_acc + x*16 + 4*q
            g(f"ds_read_b128 v[{r}:{r+3}], v{22+x} offset:{x*4096 + q*1024}")
    for x in range(1, 4):
        g(f"s_waitcnt lgkmcnt({4*(3-x)})")
        for q in range(8):
            a = g2_acc + 2*q; b = g2_acc + x*16 + 2*q
            g(f"v_pk_add_f32 v[{a}:{a+1}], v[{a}:{a+1}], v[{b}:{b+1}]")

fx = 32
fz = 40
def final_loads_x():
    L = [f"v_and_b32 v26, 31, v{v_lane}", f"v_mul_u32_u24 v26, 896, v26", f"v_lshrrev_b32 v27, 5, v{v_lane}", f"v_lshl_add_u32 v26, v27, 3, v26",
         f"s_lshl_b32 s{s_t0}, s{s_mi}, 7", f"s_lshl_b32 s{s_t1}, s{s_hi}, 6", f"s_add_u32 s{s_t0}, s{s_t0}, s{s_t1}",
         f"s_lshl_b32 s{s_t1}, s{s_mf}, 5", f"s_add_u32 s{s_t0}, s{s_t0}, s{s_t1}",
         f"s_mul_i32 s{s_zoff}, s{s_t0}, 896",
         f"s_lshl_b32 s{s_t1}, s{s_ct}, 7", f"s_add_u32 s{s_zoff}, s{s_zoff}, s{s_t1}",
         f"s_lshl_b32 s{s_t1}, s{s_ns}, 6", f"s_add_u32 s{s_zoff}, s{s_zoff}, s{s_t1}"]
    for q in range(4):
        L.append(f"buffer_load_dwordx2 v[{fx+2*q}:{fx+2*q+1}], v26, s[{sX}:{sX+3}], s{s_zoff} offen offset:{16*q}")
    return L
s_zp = 49
def final_z_setup():
    return lines(f"""
    v_and_b32 v28, 31, v{v_lane}
    v_lshlrev_b32 v28, 2, v28
    v_lshrrev_b32 v27, 5, v{v_lane}
    v_lshl_add_u32 v28, v27, 14, v28
    s_lshl_b32 s{s_t0}, s{s_ct}, 5
    s_lshl_b32 s{s_t1}, s{s_ns}, 4
    s_add_u32 s{s_t0}, s{s_t0}, s{s_t1}
    s_lshl_b32 s{s_pb}, s{s_t0}, 8
    s_lshl_b32 s{s_t0}, s{s_t0}, 13
    s_lshl_b32 s{s_t1}, s{s_mi}, 7
    s_lshl_b32 s{s_t2}, s{s_hi}, 6
    s_add_u32 s{s_t1}, s{s_t1}, s{s_t2}
    s_lshl_b32 s{s_t2}, s{s_mf}, 5
    s_add_u32 s{s_t1}, s{s_t1}, s{s_t2}
    s_lshl_b32 s{s_t1}, s{s_t1}, 2
    s_add_u32 s{s_t0}, s{s_t0}, s{s_t1}
    s_add_u32 s{s_zp}, s{s_t0}, {WS_ZP}
    s_lshr_b32 s{s_t1}, s{s_mi}, 2
    s_lshl_b32 s{s_t1}, s{s_t1}, 6
    s_add_u32 s{s_pb}, s{s_pb}, s{s_t1}
    s_add_u32 s{s_pb}, s{s_pb}, {WS_FZ}
    v_min_u32 v{v_poll}, 15, v{v_lane}
    v_lshlrev_b32 v{v_poll}, 8, v{v_poll}
    """)
def final_loads_z(g):
    for q in range(4):
        for e in range(2):
            g(f"s_add_u32 s{s_t3}, s{s_zp}, {(4*q+e)*8192}")
            g.vm(f"buffer_load_dword v{fz+2*q+e}, v28, s[{sWS}:{sWS+3}], s{s_t3} offen sc1", "z")
def final_pre():
    return lines(f"""
    v_and_b32 v22, 31, v{v_lane}
    v_lshlrev_b32 v22, 3, v22
    s_lshl_b32 s{s_t0}, s{s_mi}, 10
    s_lshl_b32 s{s_t1}, s{s_hi}, 9
    s_add_u32 s{s_t0}, s{s_t0}, s{s_t1}
    s_lshl_b32 s{s_t1}, s{s_mf}, 8
    s_add_u32 s{s_t0}, s{s_t0}, s{s_t1}
    s_add_u32 s{s_t0}, s{s_t0}, {WS_STATS}
    buffer_load_dwordx2 v[30:31], v22, s[{sWS}:{sWS+3}], s{s_t0} offen sc1
    v_and_b32 v29, 31, v{v_lane}
    v_mul_u32_u24 v29, 896, v29
    v_lshrrev_b32 v27, 5, v{v_lane}
    v_lshl_add_u32 v29, v27, 4, v29
    """)
def final(g):
    g(f"""
    s_waitcnt vmcnt(0)
    v_rcp_f32 v31, v31
    v_mov_b32 v20, {fh(-math.log2(math.e))}
    v_mov_b32 v21, 1.0
    v_mul_f32 v30, v30, v31
    v_sub_f32 v30, 0, v30
    """)
    O = g2_acc
    X = 48; Zz = 64; Tt = 80; XN = 96
    def pr(x): return f"v[{x}:{x+1}]"
    steps = [
      lambda i: [f"v_pk_mul_f32 {pr(Tt+2*i)}, {pr(O+2*i)}, v[20:21] op_sel_hi:[1,0]"],
      lambda i: [f"v_exp_f32 v{Tt+2*i}, v{Tt+2*i}", f"v_exp_f32 v{Tt+2*i+1}, v{Tt+2*i+1}"],
      lambda i: [f"v_lshlrev_b32 v{X+2*i}, 16, v{fx+i}", f"v_and_b32 v{X+2*i+1}, 0xffff0000, v{fx+i}"],
      lambda i: [f"v_pk_add_f32 {pr(Tt+2*i)}, {pr(Tt+2*i)}, v[20:21] op_sel:[0,1] op_sel_hi:[1,1]"],
      lambda i: [f"v_lshlrev_b32 v{Zz+2*i}, 16, v{fz+i}", f"v_and_b32 v{Zz+2*i+1}, 0xffff0000, v{fz+i}"],
      lambda i: [f"v_rcp_f32 v{Tt+2*i}, v{Tt+2*i}", f"v_rcp_f32 v{Tt+2*i+1}, v{Tt+2*i+1}"],
      lambda i: [f"v_pk_fma_f32 {pr(XN+2*i)}, {pr(X+2*i)}, v[30:31], v[30:31] op_sel:[0,1,0] op_sel_hi:[1,1,0]"],
      lambda i: [f"v_pk_mul_f32 {pr(Tt+2*i)}, {pr(Tt+2*i)}, {pr(O+2*i)}"],
      lambda i: [f"v_pk_mul_f32 {pr(Zz+2*i)}, {pr(Zz+2*i)}, {pr(XN+2*i)}"],
      lambda i: [f"v_pk_fma_f32 {pr(Tt+2*i)}, {pr(Tt+2*i)}, {pr(Zz+2*i)}, {pr(X+2*i)}"],
    ]
    for st in steps:
        for i in range(8):
            for x in st(i): g(x)
    P = 112
    for i in range(8): g(f"v_cvt_pk_bf16_f32 v{P+i}, v{Tt+2*i}, v{Tt+2*i+1}")
    g("s_nop 1")
    for qq in (0, 2):
        g(f"v_permlane32_swap_b32 v{P+2*qq}, v{P+2*qq+2}\nv_permlane32_swap_b32 v{P+2*qq+1}, v{P+2*qq+3}")
    for qq in (0, 2):
        g(f"buffer_store_dwordx4 v[{P+2*qq}:{P+2*qq+3}], v29, s[{sOUT2}:{sOUT2+3}], s{s_zoff} offen offset:{16*qq}")

def kflag_offsets():
    return lines(f"""
    v_min_u32 v{v_poll}, 31, v{v_lane}
    v_lshrrev_b32 v{v_poll+1}, 1, v{v_poll}
    v_and_b32 v{v_poll}, 1, v{v_poll}
    v_lshlrev_b32 v{v_poll}, 7, v{v_poll}
    v_lshl_add_u32 v{v_poll}, v{v_poll+1}, 12, v{v_poll}
    s_lshr_b32 s{s_pb}, s2, 4
    s_lshl_b32 s{s_pb}, s{s_pb}, 8
    s_bfe_u32 s{s_t0}, s2, 0x10003
    s_lshl_b32 s{s_t0}, s{s_t0}, 6
    s_add_u32 s{s_pb}, s{s_pb}, s{s_t0}
    s_add_u32 s{s_pb}, s{s_pb}, {WS_FK}
    """)
s_fo = 32
def flag_off(base):
    return lines(f"""s_lshl_b32 s{s_fo}, s{s_mi}, 4
    s_add_u32 s{s_fo}, s{s_fo}, s{s_fi}
    s_lshl_b32 s{s_fo}, s{s_fo}, 2
    s_add_u32 s{s_fo}, s{s_fo}, s{s_w}
    s_lshl_b32 s{s_fo}, s{s_fo}, 6
    s_add_u32 s{s_fo}, s{s_fo}, {base}""")
def wave_flag_L(vt, so=s_fo):
    return [f"v_mov_b32 v{vt}, 0", f"v_mov_b32 v{vt+1}, s{s_tag}", "s_mov_b64 exec, 1",
            f"buffer_store_dword v{vt+1}, v{vt}, s[{sWS}:{sWS+3}], s{so} offen sc1", "s_mov_b64 exec, -1"]

sTC = 28
def touch_setup():
    a, b = 104, 105
    return lines(f"""
    s_mov_b32 s{sTC}, s{sWD2}
    s_mov_b32 s{sTC+1}, s{sWD2+1}
    s_mov_b32 s{sTC+2}, {D*F*2}
    s_mov_b32 s{sTC+3}, 0x20000
    s_lshr_b32 s96, s2, 3
    s_mul_i32 s96, s96, 57344
    s_sub_u32 s96, s96, {32*128}
    s_movk_i32 s97, {32*128}
    s_mul_i32 s{s_t0}, s{s_w}, 8
    v_add_u32 v{a}, s{s_t0}, v{v_lane}
    v_lshlrev_b32 v{a}, 7, v{a}
    v_mov_b32 v{b}, 0x7ffffff0
    v_cmp_gt_u32 vcc, 8, v{v_lane}
    s_nop 1
    v_cndmask_b32 v19, v{b}, v{a}, vcc
    """)
sTG = 84
def g1touch_setup(first_chunk=1):
    a, b = 104, 105
    return lines(f"""
    s_and_b32 s{s_t0}, s{s_mi}, 1
    s_cmp_eq_u32 s{s_t0}, 1
    s_cselect_b32 s{sTG}, s{sWU}, s{sWG}
    s_cselect_b32 s{sTG+1}, s{sWU+1}, s{sWG+1}
    s_mov_b32 s{sTG+2}, {D*F*2}
    s_mov_b32 s92, {first_chunk*64*3584}
    s_mov_b32 s93, {64*3584}
    s_cmp_ge_u32 s{s_w}, 2
    s_cselect_b32 s{sTG}, s{sX}, s{sTG}
    s_cselect_b32 s{sTG+1}, s{sX+1}, s{sTG+1}
    s_cselect_b32 s{sTG+2}, {S*D*2}, s{sTG+2}
    s_cselect_b32 s92, {128*first_chunk}, s92
    s_cselect_b32 s93, 128, s93
    s_mov_b32 s{sTG+3}, 0x20000
    s_bfe_u32 s{s_t0}, s{s_mi}, 0x10001
    s_lshl_b32 s{s_t0}, s{s_t0}, 5
    s_lshl_b32 s{s_t1}, s{s_mf}, 4
    s_add_u32 s{s_t0}, s{s_t0}, s{s_t1}
    v_lshrrev_b32 v{a}, 1, v{v_lane}
    v_add_u32 v{a}, s{s_t0}, v{a}
    v_mul_u32_u24 v{a}, 3584, v{a}
    v_and_b32 v{b}, 1, v{v_lane}
    v_lshl_add_u32 v{a}, v{b}, 7, v{a}
    s_lshl_b32 s{s_t0}, s{s_fi}, 8
    v_add_u32 v{a}, s{s_t0}, v{a}
    v_cmp_gt_u32 vcc, 32, v{v_lane}
    v_mov_b32 v{b}, 0x7ffffff0
    s_mul_i32 s{s_t0}, s{s_ct}, 19
    s_mul_i32 s{s_t2}, s{s_mf}, 10
    s_add_u32 s{s_t0}, s{s_t0}, s{s_t2}
    s_lshl_b32 s{s_t1}, s{s_mi}, 7
    v_cndmask_b32 v87, v{b}, v{a}, vcc
    v_add_u32 v{a}, s{s_t0}, v{v_lane}
    s_movk_i32 s{s_t2}, 128
    v_cmp_gt_u32 vcc, 10, v{v_lane}
    v_cmp_gt_u32 s[94:95], s{s_t2}, v{a}
    v_add_u32 v{a}, s{s_t1}, v{a}
    v_mul_u32_u24 v{a}, 896, v{a}
    s_and_b64 vcc, vcc, s[94:95]
    s_nop 1
    v_cndmask_b32 v{a}, v{b}, v{a}, vcc
    s_cmp_ge_u32 s{s_w}, 2
    s_cselect_b64 vcc, -1, 0
    s_nop 1
    v_cndmask_b32 v87, v87, v{a}, vcc
    """)
def g1pref_setup():
    return lines(f"""
    s_and_b32 s{s_t0}, s{s_mi}, 1
    s_cmp_eq_u32 s{s_t0}, 1
    s_cselect_b32 s{sTG}, s{sWU}, s{sWG}
    s_cselect_b32 s{sTG+1}, s{sWU+1}, s{sWG+1}
    s_mov_b32 s{sTG+2}, {D*F*2}
    s_mov_b32 s{sTG+3}, 0x20000
    s_lshl_b32 s{s_t0}, s{s_mi}, 7
    s_mul_i32 s{s_t1}, s{s_ct}, 19
    s_add_u32 s{s_t0}, s{s_t0}, s{s_t1}
    s_mul_i32 s{s_t0}, s{s_t0}, 896
    s_mul_i32 s{s_t1}, s{s_w}, 4352
    s_add_u32 s92, s{s_t0}, s{s_t1}
    s_bfe_u32 s{s_t0}, s{s_mi}, 0x10001
    s_lshl_b32 s{s_t0}, s{s_t0}, 5
    s_lshl_b32 s{s_t1}, s{s_w}, 3
    s_add_u32 s{s_t0}, s{s_t0}, s{s_t1}
    s_mul_i32 s93, s{s_t0}, 3584
    s_lshl_b32 s{s_t0}, s{s_fi}, 8
    s_add_u32 s93, s93, s{s_t0}
    v_lshrrev_b32 v104, 4, v{v_lane}
    v_mul_u32_u24 v104, 3584, v104
    v_and_b32 v105, 15, v{v_lane}
    v_lshl_add_u32 v87, v105, 4, v104
    """)
def g1pref_w(c, h):
    return ["\n".join([f"s_add_u32 s91, s93, {(64*c+4*h)*3584}", f"buffer_load_dwordx4 a[244:247], v87, s[{sTG}:{sTG+3}], s91 offen"])]
def g1pref_x(i):
    return ["\n".join([f"s_add_u32 s91, s92, {1024*i}", f"buffer_load_dwordx4 a[244:247], v{v_l16}, s[{sX}:{sX+3}], s91 offen"])]
def g1touch_L():
    return [f"buffer_load_dword a255, v87, s[{sTG}:{sTG+3}], s92 offen", "s_add_u32 s92, s92, s93"]
def wdpref(i):
    return ["\n".join([f"s_add_u32 s91, s96, {1024*i}", f"buffer_load_dwordx4 a[244:247], v{v_l16}, s[{sWD2}:{sWD2+3}], s91 offen"])]
def wdpref_setup():
    return [f"s_lshr_b32 s96, s2, 3", f"s_mul_i32 s96, s96, 57344", f"s_mul_i32 s97, s{s_w}, {14*1024}", "s_add_u32 s96, s96, s97"]
def touch_L():
    return ["s_add_u32 s96, s96, s97", f"buffer_load_dword a255, v19, s[{sTC}:{sTC+3}], s96 offen"]
TOUCH = os.environ.get("TOUCH", "wide")
def gemm_path(g, stamps=False):
    S_ = lambda i: stamp(g, i, stamps)
    g.vreset()
    S_(0)
    g1_prologue(g)
    TG1 = os.environ.get("TG1", "c")
    NPF = int(os.environ.get("NPF", "4"))
    pf = []
    if TG1 == "c":
        for x in g1pref_setup(): g(x)
        pf = g1pref_w(0, 0) + g1pref_w(0, 1) + [g1pref_x(i)[0] for i in range(5)]
        for c in range(1, NPF): pf += g1pref_w(c, 0) + g1pref_w(c, 1)
    else:
        for grp in g1_groups(0): emit_mixed(g, grp, "c0")
    setup = []
    setup += [f"s_mov_b32 s{s_spin}, {WS_EPOCH}", f"s_load_dword s{s_tag}, s[{sWS}:{sWS+1}], s{s_spin}", "s_lshl_b32 s98, s2, 2", "s_load_dword s99, s[96:97], s98"]
    for r, sz in ((sKK, S*D*2), (sVV, S*D*2), (sSH, D*8), (sWS, WS_END), (sWD2, D*F*2), (sSK2, D*S*2)):
        setup += [f"s_and_b32 s{r+1}, s{r+1}, 0xffff", f"s_mov_b32 s{r+2}, {sz}", f"s_mov_b32 s{r+3}, 0x20000"]
    setup += g1_addr() + ["SHK"] + (touch_setup() if TOUCH == "roll" else wdpref_setup()) + kps_dma_setup() + wd_setup_v() + epi_hoff()
    step = max(1, len(setup) // (len(pf) + 1)) if pf else 10**9
    pi = 0
    for i, x in enumerate(setup):
        if i % step == 0 and pi < len(pf):
            g.emit(pf[pi], "tg"); pi += 1
        if x == "SHK": emit_mixed(g, kp_shk_load(), "shk")
        else: g(x)
    while pi < len(pf):
        g.emit(pf[pi], "tg"); pi += 1
    if TG1 == "c":
        for grp in g1_groups(0): emit_mixed(g, grp, "c0")
    kps_setup(g)
    for grp in g1_groups(1): emit_mixed(g, grp, "c1")
    g.vwait("shk")
    for x in kp_build_B(): g(x)
    S_(1)
    g("s_waitcnt lgkmcnt(0)")
    make_tag(g)
    g(f"s_lshl_b32 s100, s99, 16\ns_and_b32 s101, s99, 0xffff0000")
    g.vwait("c0")
    g("s_barrier")
    S_(2)
    def pre(k): return ["kp"] if k == KPK else []
    def p1check(): poll_check(g, "G_p1", "p1")
    def post(k):
        E, L, X = [], [], []
        hl = conv_h_loads()
        if k == 19: E += T(wd_setup_s())
        kdl = kps_dma_L()
        if TOUCH == "roll":
            for _ in range(list(TCHK).count(k)): X.append(T(touch_L(), "t2"))
        if TOUCH == "wide":
            WK0 = int(os.environ.get("WK0", "19"))
            plan = {}
            kk = WK0; i = 0
            while i < 14:
                n = 1 if kk <= 18 else int(os.environ.get('WN', '3'))
                plan[kk] = list(range(i, min(14, i+n))); i += n; kk += 1
            for i in plan.get(k, []): X.append(T(wdpref(i), "t2"))
        if TG1 == "c":
            later = [(c, h) for c in range(NPF, 7) for h in range(2)]
            if k < len(later): X.append(T(g1pref_w(*later[k]), "tg2"))
        if k in (6, 7, 8, 9): X.append(T(kdl[k-6:k-5], "kp"))
        if k in (10, 11): X.append(T(kps_t0_L()[k-10:k-9], "kp"))
        if k == KPK: X.append([("LWAIT", "kprb")] + T(kps_store_L()[:1], "kvst"))
        if k == KPK + 1: X.append(T(kps_store_L()[1:], "kvst"))
        if k == KPK + 4: E += T(flag_off(WS_FK))
        if k == KPK + 5: X.append([("VWAIT", "kvst")] + T(wave_flag_L(86), "kflag"))
        if k == 22: L += T(hl[:4], "h")
        if k == 23: L += T(hl[4:], "h")
        if k == 20:
            L += T(f"""v_min_u32 v{v_poll}, 31, v{v_lane}
            v_lshlrev_b32 v{v_poll}, 6, v{v_poll}
            s_mov_b32 s{s_pb}, {WS_FA}""")
        if k == 20: E += T(wd_dma_e(0, 0), "wd0") + T(wd_dma_e(1, 1), "wd1")
        if k == 21: E += T(wd_dma_e(2, 2), "wd2") + T(wd_dma_e(3, 3), "wd3"); L += poll_issue("p1")
        if k == 22:
            E += T(f"""v_lshrrev_b32 v{v_tch}, 5, v{v_lane}
            v_mul_u32_u24 v{v_tch}, {7168-512}, v{v_tch}
            v_add_u32 v{v_tch}, v{v_tch}, v{v_l16}
            s_mov_b32 s{sOUT2}, s64
            s_and_b32 s{sOUT2+1}, s65, 0xffff
            s_mov_b32 s{sOUT2+2}, {S*D*2}
            s_mov_b32 s{sOUT2+3}, 0x20000""")
        if k == 24:
            E += [("CALL", p1check)] + [("\n".join(lines(f"""s_mov_b32 m0, {LST}
            s_lshl_b32 s{s_t1}, s{s_mi}, 10
            s_add_u32 s{s_t1}, s{s_t1}, {WS_STATS}
            buffer_load_dwordx4 v{v_l16}, s[{sWS}:{sWS+3}], s{s_t1} offen sc1 lds""")), "st"), ("\n".join(lines(f"""s_mov_b32 m0, {LST+1024}
            s_lshl_b32 s{s_t1}, s{s_fi}, 9
            s_add_u32 s{s_t1}, s{s_t1}, {WS_CS}
            buffer_load_dwordx4 v{v_tch}, s[{sWS}:{sWS+3}], s{s_t1} offen sc1 lds""")), "st")]
            L += [("VWAIT", "wd1")] + T(wd_tr_e(0, 0), "tr0") + T(wd_tr_e(1, 1), "tr1")
        if k == 25:
            E += T(kflag_offsets()) + poll_issue("pk")
            L += [("VWAIT", "wd3")] + T(wd_tr_e(2, 2), "tr2") + T(wd_tr_e(3, 3), "tr3")
        if k == 26:
            E += [("LWAIT", "tr1")] + T(wd_dma_e(4, 0), "wd4") + T(wd_dma_e(5, 1), "wd5")
        if k == 27:
            E += [("LWAIT", "tr3")] + T(wd_dma_e(6, 2), "wd6") + T(wd_dma_e(7, 3), "wd7")
            L += [("VWAIT", "st")] + T(epi_pre_reads())
        return E, L, X
    g1_main(g, pre, post, stamps={0: 3, 5: 4} if stamps else None)
    S_(5)
    g("s_waitcnt lgkmcnt(0)\ns_barrier")
    def b0():
        poll_check(g, "G_pk", "pk")
        for x in conv_u_dma(): g.emit(x, "u")
        g.vwait("h")
        for x in conv_build_L(0): g.emit(x)
    def b1():
        for x in conv_build_L(1): g.emit(x)
        g.vwait("wd7")
        for j in range(4, 8):
            for x in wd_tr_e(j, j-4): g.ld(x, f"tr{j}")
    def b2():
        for j in range(17, 21):
            for x, tg in T(wd_dma_e(j, j-17), f"wd{j}"): g.emit(x, tg)
        conv_pad_code(g)
    def b3():
        for x in conv_addr(): g.emit(x)
    if EST: stamp(g, 1)
    g1_epilogue(g, [b0, b1, b2, b3])
    if EST: stamp(g, 10)
    S_(6)
    g.vwait("u")
    g("s_barrier")
    g.ldops = []
    for x in conv_reads(0): g.ld(x, "cv0")
    S_(7)
    def hflag():
        g.vwait("hst")
        for x in flag_off(WS_FH) + wave_flag_L(52): g.emit(x, "hflag")
    S_(8)
    conv_main(g, hflag)
    if CST: stamp(g, 13)
    poll_check(g, "G_p2", "ph")
    hq = list(range(10))
    def fill(n):
        for _ in range(n):
            if hq:
                s_ = hq.pop(0)
                for x in h_dma(s_): g.emit(x, f"h{s_}")
    S_(9)
    conv_epilogue(g, fill)
    fill(10)
    if CST: stamp(g, 14)
    S_(10)
    for x in final_loads_x(): g.emit(x, "x")
    def zflag():
        g.vwait("zst")
        g(f"s_lshl_b32 s{s_t0}, s2, 2\ns_add_u32 s{s_t0}, s{s_t0}, s{s_w}\ns_lshl_b32 s{s_t0}, s{s_t0}, 6\ns_add_u32 s{s_t0}, s{s_t0}, {WS_FZ}")
        wave_flag(g, s_t0)
    def extra(j):
        if j == 3: return [("CALL", zflag)]
        if j == 12: return T(final_z_setup())
        if j == 20: return poll_issue("pz")
        if j == 24: return T(final_pre())
        return []
    g2_main(g, extra)
    S_(11)
    poll_check(g, "G_p3", "pz")
    final_loads_z(g)
    g2_reduce(g)
    g2_reduce2(g)
    S_(12)
    final(g)
    S_(13)
    g("s_waitcnt vmcnt(0)")
    S_(14)
    g(f"""s_cmp_lg_u32 s2, 0
    s_cbranch_scc1 G_noep
    s_cmp_lg_u32 s{s_w}, 0
    s_cbranch_scc1 G_noep""")
    for part in range(4):
        g(f"""v_add_u32 v{v_poll}, {part*64}, v{v_lane}
        v_min_u32 v{v_poll}, 223, v{v_poll}
        v_lshlrev_b32 v{v_poll}, 8, v{v_poll}
        s_mov_b32 s{s_pb}, {WS_FZ}""")
        poll_check(g, f"G_pe{part}", None)
    g(f"""v_min_u32 v{v_poll}, 31, v{v_lane}
    v_lshlrev_b32 v{v_poll}, 6, v{v_poll}
    s_mov_b32 s{s_pb}, {WS_FA}""")
    poll_check(g, "G_pe4", None)
    g(f"""v_mov_b32 v2, {WS_EPOCH}
    v_mov_b32 v3, s{s_tag}
    s_mov_b64 exec, 1
    buffer_store_dword v3, v2, s[{sWS}:{sWS+3}], 0 offen sc1
    s_mov_b64 exec, -1
    s_waitcnt vmcnt(0)
    G_noep:""")

def gen_full(stamps=False):
    g = G()
    g(header([f"grid=(256,1,1) block=(256,1,1) lds={LDS_TOTAL}"]))
    g(kstart(KN))
    g("s_cmp_ge_u32 s2, 224\ns_cbranch_scc1 L_spare")
    if stamps: start_rt(g)
    gemm_path(g, stamps=stamps)
    if stamps: dump_stamps(g)
    g("s_endpgm")
    g("L_spare:")
    g("s_cmp_ge_u32 s2, 256\ns_cbranch_scc1 L_end")
    if stamps: start_rt(g)
    spare(g, flags=True, stamps=stamps)
    if stamps: dump_stamps(g)
    g("L_end:\ns_endpgm")
    g(kdesc(KN, vgpr=512, sgpr=102, accum=256))
    return g.a.text()
def gen_full_stamps(): return gen_full(stamps=True)
def gen_kst0():
    global KSTAMP, stamp
    KSTAMP = 0
    return gen_kstx()
def gen_kst14():
    global KSTAMP
    KSTAMP = 14
    return gen_kstx()
def gen_est():
    return gen_kstx()
def gen_gst():
    global GSTAMP
    GSTAMP = int(os.environ["GK"])
    return gen_kstx()
def gen_kstx():
    g = G()
    g(header([f"grid=(256,1,1) block=(256,1,1) lds={LDS_TOTAL}"]))
    g(kstart(KN))
    g("s_cmp_ge_u32 s2, 224\ns_cbranch_scc1 L_spare")
    stamp(g, 0)
    gemm_path(g, stamps=False)
    dump_stamps(g)
    g("s_endpgm")
    g("L_spare:")
    g("s_cmp_ge_u32 s2, 256\ns_cbranch_scc1 L_end")
    spare(g, flags=True, stamps=False)
    g("L_end:\ns_endpgm")
    g(kdesc(KN, vgpr=512, sgpr=102, accum=256))
    return g.a.text()

if __name__ == "__main__":
    import runner
    which = sys.argv[1]
    txt = globals()["gen_"+which]()
    open(f"dev/{which}.s", "w").write(txt)
    runner.build(f"dev/{which}.s", KN, 13)
    from runner import cl
    print("ok", len(txt), cl.address_register_problem(f"dev/{which}.co", KN))
```

```python
import math, struct, sys
from dsl import *

S, D, F = 2048, 448, 1792
KN = "recurrent_scan__ssm_conv_h3__geglu_ffn__prompt_kernel"
def f2u(x): return struct.unpack('<I', struct.pack('<f', x))[0]
def fh(x): return hex(f2u(x))

import os
WSB = int(os.environ.get("WSB", "0"), 0)
WS_EPOCH = WSB + 0
WS_FA = WSB + 0x1000
WS_FK = WSB + 0x10000
WS_FH = WSB + 0x20000
WS_FZ = WSB + 0x30000
WS_STATS = WSB + 0x40000
WS_CS    = WS_STATS + 2048*8
WS_KVT   = WSB + 0x50000
WS_ZP    = WS_KVT + D*S*2
WS_H     = WS_ZP + D*S*2
WS_END   = WS_H + 64*112*1024
WS_STAMPS = 40<<20

KA = dict(q=0,k=8,v=16,shk=24,ssmk=32,ssmD=40,bx=48,wg=56,wu=64,wd=72,out=80,dbg=88,ws=96)
C1 = -2*math.sqrt(2/math.pi)*math.log2(math.e)
C2 = C1*0.044715
LDS_TOTAL = 163840

class G:
    def __init__(self):
        self.a = Asm()
        self.vmops = []
        self.ldops = []
        self.stags = set(["hst"])
    def __call__(self, s): self.a(s)
    def vm(self, s, tag=None):
        self.a(s); self.vmops.append(tag)
        if "store" in s: self.stags.add(tag)
    def vwait(self, tag):
        idx = max(i for i, t in enumerate(self.vmops) if t == tag)
        st = tag in self.stags
        n = len(self.vmops) - 1 - idx
        assert n <= 63, n
        self.a(f"s_waitcnt vmcnt({n})")
    def vreset(self): self.vmops = []
    def ld(self, s, tag=None):
        self.a(s); self.ldops.append(tag)
    def lwait(self, tag):
        idx = max(i for i, t in enumerate(self.ldops) if t == tag)
        n = min(15, len(self.ldops) - 1 - idx)
        self.a(f"s_waitcnt lgkmcnt({n})")
    def emit(self, s, tag=None):
        if "\n" in s:
            for x in s.split("\n"): self.emit(x, tag)
        elif s == "VWAIT": self.vwait(tag)
        elif s == "LWAIT": self.lwait(tag)
        elif s.startswith("buffer_"): self.vm(s, tag)
        elif s.startswith("ds_"): self.ld(s, tag)
        else: self.a(s)
    def lab(self, n): self.a.label(n)

def srd_load(g, r, name):
    g(f"s_load_dwordx2 s[{r}:{r+1}], s[0:1], {KA[name]}")
def srd_fix(g, r, size):
    g(f"s_and_b32 s{r+1}, s{r+1}, 0xffff\ns_mov_b32 s{r+2}, {size}\ns_mov_b32 s{r+3}, 0x20000")

sX, sWG, sWU, sWS, sWD, sSK, sOUT, sDD = 4, 8, 12, 16, 20, 24, 28, 32
s_w, s_mi, s_fi, s_mf, s_ns = 36, 37, 38, 39, 40
s_xoff, s_woff, s_m0x, s_m0w = 41, 42, 43, 44
s_t0, s_t1, s_t2, s_t3 = 45, 46, 47, 48
s_hoff = 49
s_tag = 50
s_spin = 51
STAMP0 = 66
NSTAMP = 15
def stamp(g, i, on=True):
    if on: g(f"s_memtime s[{STAMP0+2*i}:{STAMP0+2*i+1}]")
def start_rt(g):
    g("s_memrealtime s[98:99]\ns_waitcnt lgkmcnt(0)\nv_mov_b32 v20, s98\nv_accvgpr_write_b32 a254, v20")
def dump_stamps(g, n=NSTAMP):
    g(f"""s_waitcnt lgkmcnt(0) vmcnt(0)
    s_memrealtime s[{STAMP0+2*n}:{STAMP0+2*n+1}]
    s_waitcnt lgkmcnt(0)
    s_mov_b32 s{sWS+2}, 0x7fffffff
    s_lshl_b32 s{s_t0}, s2, 9
    s_lshl_b32 s{s_t1}, s{s_w}, 7
    s_add_u32 s{s_t0}, s{s_t0}, s{s_t1}
    s_add_u32 s{s_t0}, s{s_t0}, {WS_STAMPS}
    v_mov_b32 v2, 0""")
    for i in range(n+1):
        g(f"v_mov_b32 v3, s{STAMP0+2*i}\nbuffer_store_dword v3, v2, s[{sWS}:{sWS+3}], s{s_t0} offen offset:{4*i}")
    g(f"v_accvgpr_read_b32 v3, a254\nbuffer_store_dword v3, v2, s[{sWS}:{sWS+3}], s{s_t0} offen offset:{4*(n+1)}")
    g("s_waitcnt vmcnt(0)")

def load_tag(g):
    g(f"s_mov_b32 s{s_spin}, {WS_EPOCH}\ns_load_dword s{s_tag}, s[{sWS}:{sWS+1}], s{s_spin}")
def make_tag(g):
    g(f"s_mul_i32 s{s_tag}, s{s_tag}, 0x9E3779B1\ns_add_u32 s{s_tag}, s{s_tag}, 0x7F4A7C15")

def rnd_bf16(g, r, tmp=None):
    g(f"v_cvt_pk_bf16_f32 v{r}, v{r}, v{r}\nv_lshlrev_b32 v{r}, 16, v{r}")

def publish_flag(g, off_expr_sgpr, lab):
    g("s_waitcnt vmcnt(0)\ns_barrier")
    g(f"""s_cmp_lg_u32 s{s_w}, 0
    s_cbranch_scc1 {lab}
    v_mov_b32 v2, 0
    v_mov_b32 v3, s{s_tag}
    s_mov_b64 exec, 1
    buffer_store_dword v3, v2, s[{sWS}:{sWS+3}], s{off_expr_sgpr} offen sc1
    s_mov_b64 exec, -1
    {lab}:""")

def flag_store(g, off_sgpr, lab, vt=14):
    g(f"""s_cmp_lg_u32 s{s_w}, 0
    s_cbranch_scc1 {lab}
    v_mov_b32 v{vt}, 0
    v_mov_b32 v{vt+1}, s{s_tag}
    s_mov_b64 exec, 1
    buffer_store_dword v{vt+1}, v{vt}, s[{sWS}:{sWS+3}], s{off_sgpr} offen sc1
    s_mov_b64 exec, -1
    {lab}:""")

def spare(g, flags=True, stamps=False):
    sWC = 32
    s_j = 37
    vl = 1
    LC = 0
    srd_load(g, sX, 'q'); srd_load(g, sWG, 'wg'); srd_load(g, sWU, 'wu'); srd_load(g, sWS, 'ws')
    g(f"""
    v_and_b32 v{vl}, 63, v0
    v_lshrrev_b32 v2, 6, v0
    s_sub_u32 s{s_j}, s2, 224
    v_readfirstlane_b32 s{s_w}, v2
    v_and_b32 v3, 15, v{vl}              ; n / p
    v_lshrrev_b32 v4, 4, v{vl}           ; q / rgl
    s_lshl_b32 s{s_t0}, s{s_w}, 4
    v_add_u32 v5, s{s_t0}, v3            ; 16w + n
    v_mul_u32_u24 v5, 896, v5
    v_lshl_add_u32 v5, v4, 4, v5         ; R voffset
    s_and_b32 s{s_t0}, s{s_j}, 7              ; xcd
    s_lshr_b32 s{s_t1}, s{s_j}, 3             ; q
    s_lshr_b32 s{s_t2}, s{s_t0}, 1            ; xcd>>1
    s_and_b32 s{s_t0}, s{s_t0}, 1             ; p
    s_lshl_b32 s52, s{s_t2}, 3
    s_lshl_b32 s53, s{s_t0}, 2
    s_add_u32 s52, s52, s53
    s_add_u32 s52, s52, s{s_t1}               ; s52 = rb = 8*(x>>1) + 4p + q
    s_lshl_b32 s53, s{s_t2}, 2
    s_add_u32 s53, s53, s{s_t1}               ; s53 = i = 4*(x>>1) + q
    s_mul_i32 s54, s{s_t0}, 7                 ; 7p
    s_mul_i32 s{s_xoff}, s52, {64*896}
    s_lshl_b32 s{s_t0}, s{s_w}, 2
    v_add_u32 v6, s{s_t0}, v4
    v_mul_u32_u24 v6, 3584, v6
    v_lshl_add_u32 v6, v3, 4, v6         ; C voffset
    s_cmp_ge_u32 s53, 7
    s_cselect_b32 s{s_t1}, 7, 0
    s_sub_u32 s{s_fi}, s53, s{s_t1}
    s_add_u32 s{s_fi}, s{s_fi}, s54      ; fb
    s_lshl_b32 s{s_woff}, s{s_fi}, 8
    s_waitcnt lgkmcnt(0)
    """)
    load_tag(g)
    g(f"""s_cmp_ge_u32 s53, 7
    s_cselect_b32 s{sWC}, s{sWU}, s{sWG}
    s_cselect_b32 s{sWC+1}, s{sWU+1}, s{sWG+1}""")
    srd_fix(g, sX, S*D*2); srd_fix(g, sWC, D*F*2); srd_fix(g, sWS, WS_END)
    stamp(g, 0, stamps)
    RB = 16
    for ks in range(14):
        g(f"buffer_load_dwordx4 v[{RB+4*ks}:{RB+4*ks+3}], v5, s[{sX}:{sX+3}], s{s_xoff} offen offset:{64*ks}")
    CB = 72
    g(f"s_cmp_ge_u32 s53, 14\ns_cbranch_scc1 SP_noC1")
    g(f"s_mov_b32 s{s_t3}, s{s_woff}")
    for i in range(28):
        g(f"buffer_load_dwordx4 v[{CB+4*i}:{CB+4*i+3}], v6, s[{sWC}:{sWC+3}], s{s_t3} offen")
        if i < 27: g(f"s_add_u32 s{s_t3}, s{s_t3}, {16*3584}")
    g("s_waitcnt vmcnt(28)\ns_branch SP_w1\nSP_noC1:\ns_waitcnt vmcnt(0)\nSP_w1:")
    stamp(g, 1, stamps)
    g("v_mov_b32 v8, 0x3f803f80\nv_mov_b32 v9, 0x3f803f80\nv_mov_b32 v10, 0x3f803f80\nv_mov_b32 v11, 0x3f803f80\ns_nop 1")
    D1, D2 = 184, 188
    for ks in range(14):
        A = f"v[{RB+4*ks}:{RB+4*ks+3}]"
        c1 = "0" if ks == 0 else f"v[{D1}:{D1+3}]"
        c2 = "0" if ks == 0 else f"v[{D2}:{D2+3}]"
        g(f"v_mfma_f32_16x16x32_bf16 v[{D1}:{D1+3}], {A}, v[8:11], {c1}")
        g(f"v_mfma_f32_16x16x32_bf16 v[{D2}:{D2+3}], {A}, {A}, {c2}")
    g(f"""
    v_and_b32 v12, 3, v{vl}
    v_cmp_eq_u32 s[90:91], 1, v12
    v_cmp_eq_u32 s[92:93], 2, v12
    v_cmp_eq_u32 s[94:95], 3, v12
    v_lshrrev_b32 v13, 2, v3              ; n>>2
    v_cmp_eq_u32 s[96:97], v13, v4        ; q == n>>2
    s_nop 7
    v_cndmask_b32 v{D1}, v{D1}, v{D1+1}, s[90:91]
    v_cndmask_b32 v{D2}, v{D2}, v{D2+1}, s[90:91]
    v_cndmask_b32 v{D1}, v{D1}, v{D1+2}, s[92:93]
    v_cndmask_b32 v{D2}, v{D2}, v{D2+2}, s[92:93]
    v_cndmask_b32 v{D1}, v{D1}, v{D1+3}, s[94:95]
    v_cndmask_b32 v{D2}, v{D2}, v{D2+3}, s[94:95]
    v_mul_f32 v{D1}, {fh(1.0/448)}, v{D1}            ; mean
    v_mul_f32 v{D2}, {fh(1.0/448)}, v{D2}            ; E[x^2]
    v_fma_f32 v{D2}, -v{D1}, v{D1}, v{D2}            ; var
    v_max_f32 v{D2}, 0, v{D2}
    """)
    rnd_bf16(g, D1); rnd_bf16(g, D2)
    g(f"v_add_f32 v{D2}, {fh(1e-5)}, v{D2}"); rnd_bf16(g, D2)
    g(f"v_sqrt_f32 v{D2}, v{D2}\ns_nop 0"); rnd_bf16(g, D2)
    g(f"""
    v_mov_b32 v{D1+1}, v{D2}
    s_lshl_b32 s{s_t0}, s52, 9
    s_lshl_b32 s{s_t1}, s{s_w}, 7
    s_add_u32 s{s_t0}, s{s_t0}, s{s_t1}
    s_add_u32 s{s_t0}, s{s_t0}, {WS_STATS}
    v_lshlrev_b32 v13, 3, v3
    s_mov_b64 exec, s[96:97]
    buffer_store_dwordx2 v[{D1}:{D1+1}], v13, s[{sWS}:{sWS+3}], s{s_t0} offen sc1
    s_mov_b64 exec, -1
    """)
    stamp(g, 2, stamps)
    g(f"s_cmp_ge_u32 s53, 14\ns_cbranch_scc1 SP_noC2")
    CA = 200
    g(f"s_mov_b32 s90, 0x00003f80\ns_mov_b32 s91, 0x3f800000")
    for c in range(8): g(f"v_mov_b32 v{CA+c}, 0")
    g("s_waitcnt vmcnt(1)")
    g(f"s_mov_b32 s{s_t0}, 0")
    g.lab("SP_Cloop")
    g(f"s_set_gpr_idx_on s{s_t0}, gpr_idx(SRC0)")
    for i in range(7):
        for q in range(4):
            g(f"v_dot2_f32_bf16 v{CA+2*q}, v{CB+4*i+q}, s90, v{CA+2*q}")
            g(f"v_dot2_f32_bf16 v{CA+2*q+1}, v{CB+4*i+q}, s91, v{CA+2*q+1}")
    g(f"""s_set_gpr_idx_off
    s_add_u32 s{s_t0}, s{s_t0}, 28
    s_cmp_lt_u32 s{s_t0}, 112
    s_cbranch_scc1 SP_Cloop""")
    g(f"""
    s_lshl_b32 s{s_t0}, s{s_w}, 2
    v_add_u32 v13, s{s_t0}, v4            ; rg
    v_lshlrev_b32 v13, 9, v13
    v_lshl_add_u32 v13, v3, 5, v13
    v_add_u32 v13, {LC}, v13
    s_nop 2
    ds_write_b128 v13, v[{CA}:{CA+3}]
    ds_write_b128 v13, v[{CA+4}:{CA+7}] offset:16
    s_waitcnt lgkmcnt(0)
    s_barrier
    s_cmp_ge_u32 s{s_w}, 2
    s_cbranch_scc1 SP_noC2
    v_lshlrev_b32 v13, 2, v0
    v_add_u32 v14, {LC}, v13
    """)
    for r in range(16): g(f"ds_read_b32 v{CB+r}, v14 offset:{512*r}")
    g("s_waitcnt lgkmcnt(0)")
    for r in range(8): g(f"v_add_f32 v{CB+r}, v{CB+r}, v{CB+r+8}")
    for r in range(4): g(f"v_add_f32 v{CB+r}, v{CB+r}, v{CB+r+4}")
    g(f"v_add_f32 v{CB}, v{CB}, v{CB+2}\nv_add_f32 v{CB+1}, v{CB+1}, v{CB+3}\nv_add_f32 v{CB}, v{CB}, v{CB+1}")
    g(f"""
    s_cmp_ge_u32 s53, 7
    s_cselect_b32 s{s_t0}, 7168, 0
    s_lshl_b32 s{s_t1}, s{s_fi}, 9
    s_add_u32 s{s_t0}, s{s_t0}, s{s_t1}
    s_add_u32 s{s_t0}, s{s_t0}, {WS_CS}
    buffer_store_dword v{CB}, v13, s[{sWS}:{sWS+3}], s{s_t0} offen sc1
    SP_noC2:
    """)
    stamp(g, 3, stamps)
    g("s_waitcnt vmcnt(0) lgkmcnt(0)")
    make_tag(g)
    g("s_barrier")
    if flags:
        g(f"s_lshl_b32 s{s_t0}, s{s_j}, 6\ns_add_u32 s{s_t0}, s{s_t0}, {WS_FA}")
        flag_store(g, s_t0, "SP_nf1")
    stamp(g, 4, stamps)


def lines(txt):
    out = []
    for l in txt.strip().split("\n"):
        l = l.split(";")[0].strip()
        if l: out.append(l)
    return out
def emit_mixed(g, L, tag):
    for x in L: g.emit(x, tag)
def T(L, tag=None):
    L = lines(L) if isinstance(L, str) else list(L)
    out = []; cur = None
    for x in L:
        if "\n" in x:
            out.append((x, tag))
        elif x.startswith("s_mov_b64 exec,") and not x.endswith("-1"):
            cur = [x]
        elif cur is not None:
            cur.append(x)
            if x == "s_mov_b64 exec, -1":
                out.append(("\n".join(cur), tag)); cur = None
        else:
            out.append((x, tag))
    assert cur is None
    return out

LX = 0; LW = 49152
LKT = 147968; LVT = LKT + 4352; LKO = LKT + 8448
LST = 18432
RING = 20480
LCV = 114688; CVCOPY = 4160; CVCH = 4*CVCOPY
LU = 152576; CVUS = 5120
E1B = 81920; E2B = 16384

sKK, sVV, sSH = 20, 24, 28
sWD2, sSK2, sOUT2 = 56, 60, 8
s_kv, s_kk, s_kt, s_ko = 32, 33, 34, 35
s_hi, s_ct = 52, 53
s_zoff = 54
s_pb = 55
s_t4 = 3

v_lane = 1
v_xd = 2
v_wd = 6
v_xa = 10
v_wa = 14
v_l16 = 18
v_fr = 20
v_poll = 126
v_hv = 70
v_tch = 71
v_acc = 128
def accg(ft, nt): return v_acc + (ft*2+nt)*16
def accu(ft, nt): return v_acc + 64 + (ft*2+nt)*16
kB1, kB2, kvA, kvV, kvOW, kvOR, kvG, kvD0, kvD1 = 72, 76, 80, 81, 82, 83, 84, 85, 86
kA, kV, kD, kU, kO = 88, 104, 108, 116, 124

def poll_check(g, name, issued_tag):
    vt = v_poll
    if issued_tag is not None:
        g.vwait(issued_tag)
        g(f"v_cmp_ne_u32 vcc, s{s_tag}, v{vt+1}\ns_cbranch_vccz {name}_done")
    g(f"""
    s_mov_b32 s{s_spin}, 0x8000
    {name}_loop:
    buffer_load_dword v{vt+1}, v{vt}, s[{sWS}:{sWS+3}], s{s_pb} offen sc1
    s_waitcnt vmcnt(0)
    v_cmp_ne_u32 vcc, s{s_tag}, v{vt+1}
    s_cbranch_vccz {name}_done
    s_sleep 1
    s_sub_u32 s{s_spin}, s{s_spin}, 1
    s_cmp_lg_u32 s{s_spin}, 0
    s_cbranch_scc1 {name}_loop
    {name}_done:
    """)
def poll_issue(tag): return [(f"buffer_load_dword v{v_poll+1}, v{v_poll}, s[{sWS}:{sWS+3}], s{s_pb} offen sc1", tag)]
def wave_flag(g, off_sgpr):
    g(f"""v_mov_b32 v{v_hv}, 0
    v_mov_b32 v{v_tch}, s{s_tag}
    s_mov_b64 exec, 1""")
    g.vm(f"buffer_store_dword v{v_tch}, v{v_hv}, s[{sWS}:{sWS+3}], s{off_sgpr} offen sc1", "flag")
    g("s_mov_b64 exec, -1")

def g1_prologue(g):
    srd_load(g, sX, 'q'); srd_load(g, sWG, 'wg'); srd_load(g, sWU, 'wu')
    srd_load(g, sKK, 'k'); srd_load(g, sVV, 'v'); srd_load(g, sSH, 'shk'); srd_load(g, sWS, 'ws')
    srd_load(g, sWD2, 'wd'); srd_load(g, sSK2, 'ssmk'); srd_load(g, 64, 'out'); srd_load(g, 96, 'ssmD')
    g(f"""
    v_and_b32 v{v_lane}, 63, v0
    v_lshrrev_b32 v20, 6, v0
    s_lshr_b32 s{s_t0}, s2, 3
    s_and_b32 s{s_t1}, s2, 7
    v_readfirstlane_b32 s{s_w}, v20
    s_mul_i32 s{s_t2}, s{s_t0}, 37
    s_lshr_b32 s{s_t2}, s{s_t2}, 8
    s_mul_i32 s{s_t3}, s{s_t2}, 7
    s_sub_u32 s{s_ct}, s{s_t0}, s{s_t3}
    s_lshr_b32 s{s_mi}, s{s_t1}, 1
    s_lshl_b32 s{s_mi}, s{s_mi}, 2
    s_add_u32 s{s_mi}, s{s_mi}, s{s_t2}
    s_and_b32 s{s_hi}, s{s_t1}, 1
    s_mul_i32 s{s_t1}, s{s_hi}, 7
    s_add_u32 s{s_fi}, s{s_ct}, s{s_t1}
    v_lshrrev_b32 v20, 3, v{v_lane}
    v_lshrrev_b32 v21, 4, v{v_lane}
    v_and_b32 v22, 7, v{v_lane}
    v_mul_u32_u24 v20, 896, v20
    v_xor_b32 v23, v22, v21
    v_xor_b32 v28, 4, v23
    v_lshl_add_u32 v{v_xd}, v23, 4, v20
    v_lshl_add_u32 v28, v28, 4, v20
    v_add_u32 v{v_xd+1}, {8*896-1024}, v28
    v_add_u32 v{v_xd+2}, {2*(8*896-1024)}, v{v_xd}
    v_add_u32 v{v_xd+3}, {3*(8*896-1024)}, v28
    v_and_b32 v22, 15, v{v_lane}
    v_lshlrev_b32 v23, 2, v21
    v_sub_u32 v22, v22, v23
    v_and_b32 v22, 15, v22
    v_mul_u32_u24 v23, 3584, v21
    v_lshl_add_u32 v{v_wd}, v22, 4, v23
    v_add_u32 v{v_wd+1}, {4*3584-1024}, v{v_wd}
    v_add_u32 v{v_wd+2}, {2*(4*3584-1024)}, v{v_wd}
    v_add_u32 v{v_wd+3}, {3*(4*3584-1024)}, v{v_wd}
    s_lshl_b32 s{s_t0}, s{s_mi}, 7
    s_lshl_b32 s{s_t1}, s{s_w}, 5
    s_add_u32 s{s_t0}, s{s_t0}, s{s_t1}
    s_mul_i32 s{s_xoff}, s{s_t0}, 896
    s_mul_i32 s{s_woff}, s{s_w}, {16*3584}
    s_lshl_b32 s{s_t0}, s{s_fi}, 8
    s_add_u32 s{s_woff}, s{s_woff}, s{s_t0}
    s_lshl_b32 s{s_m0x}, s{s_w}, 12
    s_add_u32 s{s_m0w}, s{s_m0x}, {LW}
    s_and_b32 s{s_mf}, s{s_w}, 1
    s_lshr_b32 s{s_ns}, s{s_w}, 1
    s_lshl_b32 s{s_t4}, s{s_w}, 11
    v_lshlrev_b32 v{v_l16}, 4, v{v_lane}
    s_waitcnt lgkmcnt(0)
    """)
    srd_fix(g, sX, S*D*2); srd_fix(g, sWG, D*F*2); srd_fix(g, sWU, D*F*2)

def g1_dma_x(c):
    sl = c % 3
    L = [f"s_add_u32 m0, s{s_m0x}, {LX + sl*16384}", f"s_add_u32 s{s_t3}, s{s_xoff}, {128*c}"]
    for ii in range(4):
        L.append(f"buffer_load_dwordx4 v{v_xd+ii}, s[{sX}:{sX+3}], s{s_t3} offen offset:{1024*ii} lds")
    return L
def g1_dma_w(c, mat):
    sl = c % 3
    sr = sWG if mat == 0 else sWU
    L = [f"s_add_u32 m0, s{s_m0w}, {sl*32768 + mat*16384}", f"s_add_u32 s{s_t3}, s{s_woff}, {64*c*3584}"]
    for ii in range(4):
        L.append(f"buffer_load_dwordx4 v{v_wd+ii}, s[{sr}:{sr+3}], s{s_t3} offen offset:{1024*ii} lds")
    return L
def g1_groups(c): return [g1_dma_x(c), g1_dma_w(c,0), g1_dma_w(c,1)]

def kp_setup_dma():
    return lines(f"""
    v_lshrrev_b32 v104, 2, v{v_lane}
    v_and_b32 v105, 3, v{v_lane}
    v_mul_u32_u24 v104, 896, v104
    v_lshl_add_u32 v{kvD1}, v105, 4, v104
    s_lshl_b32 s{s_t0}, s{s_mi}, 7
    s_lshl_b32 s{s_t2}, s{s_fi}, 6
    s_add_u32 s{s_t1}, s{s_t0}, 61
    s_mul_i32 s{s_kt}, s{s_t1}, 896
    s_add_u32 s{s_kt}, s{s_kt}, s{s_t2}
    s_lshl_b32 s{s_t1}, s{s_w}, 4
    s_add_u32 s{s_t0}, s{s_t0}, s{s_t1}
    s_mul_i32 s{s_kv}, s{s_t0}, 896
    s_add_u32 s{s_kv}, s{s_kv}, s{s_t2}
    s_cmp_eq_u32 s{s_t0}, 0
    s_cselect_b32 s{s_t1}, 0, 2688
    s_cselect_b32 s{s_t2}, 2688, 0
    s_sub_u32 s{s_kk}, s{s_kv}, s{s_t1}
    v_subrev_u32 v{kvD0}, s{s_t2}, v{kvD1}
    """)
def kp_dma(h):
    NL = "\n"
    if h == 0:
        return [NL.join([f"s_lshr_b32 s{s_t0}, s{s_t4}, 1", f"s_add_u32 m0, s{s_t0}, {LKT}", "s_nop 0",
                         f"buffer_load_dwordx4 v{kvD0}, s[{sKK}:{sKK+3}], s{s_kk} offen lds"]),
                NL.join([f"s_lshr_b32 s{s_t0}, s{s_t4}, 1", f"s_add_u32 m0, s{s_t0}, {LVT}", "s_nop 0",
                         f"buffer_load_dwordx4 v{kvD1}, s[{sVV}:{sVV+3}], s{s_kv} offen lds"]),
                NL.join([f"s_mov_b32 m0, {LKT+4096}", "s_mov_b64 exec, 0xfff",
                         f"buffer_load_dwordx4 v{kvD1}, s[{sKK}:{sKK+3}], s{s_kt} offen lds", "s_mov_b64 exec, -1"])]
    return [NL.join([f"s_lshr_b32 s{s_t0}, s{s_t4}, 1", f"s_add_u32 m0, s{s_t0}, {LKT}", f"s_add_u32 s{s_t1}, s{s_kv}, {57344-2688}",
                     f"buffer_load_dwordx4 v{kvD1}, s[{sKK}:{sKK+3}], s{s_t1} offen lds"]),
            NL.join([f"s_lshr_b32 s{s_t0}, s{s_t4}, 1", f"s_add_u32 m0, s{s_t0}, {LVT}", f"s_add_u32 s{s_t1}, s{s_kv}, 57344",
                     f"buffer_load_dwordx4 v{kvD1}, s[{sVV}:{sVV+3}], s{s_t1} offen lds"]),
            NL.join([f"s_mov_b32 m0, {LKT+4096}", f"s_add_u32 s{s_t1}, s{s_kt}, 57344", "s_mov_b64 exec, 0xfff",
                     f"buffer_load_dwordx4 v{kvD1}, s[{sKK}:{sKK+3}], s{s_t1} offen lds", "s_mov_b64 exec, -1"])]
def kp_shk_load():
    return lines(f"""
    v_and_b32 v{kA+2}, 15, v{v_lane}
    s_lshl_b32 s{s_t0}, s{s_fi}, 5
    s_lshl_b32 s{s_t1}, s{s_mf}, 4
    s_add_u32 s{s_t0}, s{s_t0}, s{s_t1}
    s_lshl_b32 s{s_t1}, s{s_t0}, 3
    v_lshlrev_b32 v{kA+3}, 3, v{kA+2}
    buffer_load_dwordx2 v[{kA}:{kA+1}], v{kA+3}, s[{sSH}:{sSH+3}], s{s_t1} offen
    """)
def kp_setup_addr():
    n, kq, t0, t1 = 104, 105, 106, 107
    return lines(f"""
    v_and_b32 v{n}, 15, v{v_lane}
    v_lshrrev_b32 v{kq}, 4, v{v_lane}
    v_lshrrev_b32 v{t0}, 2, v{n}
    v_and_b32 v{t1}, 3, v{n}
    v_lshl_add_u32 v{t0}, v{t0}, 3, v{t1}
    v_lshrrev_b32 v{t1}, 1, v{kq}
    v_sub_u32 v{t0}, v{t0}, v{t1}
    v_add_u32 v{t0}, 1, v{t0}
    s_lshl_b32 s{s_t0}, s{s_ns}, 5
    v_add_u32 v{t0}, s{s_t0}, v{t0}
    v_lshlrev_b32 v{t0}, 6, v{t0}
    v_and_b32 v{t1}, 1, v{kq}
    v_lshl_add_u32 v{t0}, v{t1}, 4, v{t0}
    s_lshl_b32 s{s_t1}, s{s_mf}, 5
    s_add_u32 s{s_t2}, s{s_t1}, {LKT}
    v_add_u32 v{kvA}, s{s_t2}, v{t0}
    v_lshrrev_b32 v{t0}, 2, v{n}
    v_lshl_add_u32 v{t0}, v{kq}, 3, v{t0}
    v_add_u32 v{t0}, s{s_t0}, v{t0}
    v_lshlrev_b32 v{t0}, 6, v{t0}
    v_and_b32 v{t1}, 3, v{n}
    v_lshl_add_u32 v{t0}, v{t1}, 3, v{t0}
    s_add_u32 s{s_t2}, s{s_t1}, {LVT}
    v_add_u32 v{kvV}, s{s_t2}, v{t0}
    s_lshr_b32 s{s_t0}, s{s_t4}, 1
    s_add_u32 s{s_t0}, s{s_t0}, {LKO}
    v_sub_u32 v{t0}, 3, v{kq}
    v_lshlrev_b32 v{t0}, 4, v{t0}
    v_lshl_add_u32 v{t0}, v{n}, 6, v{t0}
    v_add_u32 v{kvOW}, s{s_t0}, v{t0}
    v_add_u32 v{kvOR}, s{s_t0}, v{v_l16}
    v_lshrrev_b32 v{t0}, 2, v{v_lane}
    v_lshlrev_b32 v{t0}, 12, v{t0}
    v_and_b32 v{t1}, 3, v{v_lane}
    v_lshl_add_u32 v{kvG}, v{t1}, 4, v{t0}
    s_lshl_b32 s{s_t0}, s{s_fi}, 5
    s_lshl_b32 s{s_t1}, s{s_mf}, 4
    s_add_u32 s{s_t0}, s{s_t0}, s{s_t1}
    s_lshl_b32 s{s_t0}, s{s_t0}, 12
    s_lshl_b32 s{s_t1}, s{s_mi}, 8
    s_sub_u32 s{s_t0}, s{s_t0}, s{s_t1}
    s_lshl_b32 s{s_t1}, s{s_ns}, 6
    s_sub_u32 s{s_t0}, s{s_t0}, s{s_t1}
    s_add_u32 s{s_ko}, s{s_t0}, {WS_KVT + 4032}
    """)
def kp_build_B():
    n, kq, a, b, c, d = 108, 109, 110, 111, 112, 113
    L = lines(f"""
    v_and_b32 v{n}, 15, v{v_lane}
    v_lshrrev_b32 v{kq}, 4, v{v_lane}
    v_lshrrev_b32 v{a}, 1, v{kq}
    v_lshlrev_b32 v{a}, 4, v{a}
    v_lshrrev_b32 v{b}, v{a}, v{kA}
    v_lshrrev_b32 v{c}, v{a}, v{kA+1}
    v_and_b32 v{b}, 0xffff, v{b}
    v_and_b32 v{c}, 0xffff, v{c}
    v_and_b32 v{a}, 1, v{n}
    v_lshlrev_b32 v{a}, 4, v{a}
    v_lshlrev_b32 v{b}, v{a}, v{b}
    v_lshlrev_b32 v{c}, v{a}, v{c}
    v_lshrrev_b32 v{a}, 3, v{n}
    v_and_b32 v{d}, 1, v{kq}
    v_cmp_eq_u32 vcc, v{a}, v{d}
    v_bfe_u32 v{a}, v{n}, 1, 2
    s_nop 0
    v_cndmask_b32 v{b}, 0, v{b}, vcc
    v_cndmask_b32 v{c}, 0, v{c}, vcc
    """)
    for i in range(4):
        L += [f"v_cmp_eq_u32 vcc, {i}, v{a}", "s_nop 1", f"v_cndmask_b32 v{kB1+i}, 0, v{b}, vcc", f"v_cndmask_b32 v{kB2+i}, 0, v{c}, vcc"]
    return L
def kp_reads():
    L = []
    for t in range(2):
        L.append(f"ds_read_b128 v[{kA+8*t}:{kA+8*t+3}], v{kvA} offset:{256*t+128}")
        L.append(f"ds_read_b128 v[{kA+8*t+4}:{kA+8*t+7}], v{kvA} offset:{256*t}")
        L.append(f"ds_read_b64_tr_b16 v[{kV+2*t}:{kV+2*t+1}], v{kvV} offset:{256*t}")
    return L
def kp_mfma():
    L = []
    for t in range(2): L.append(f"v_mfma_f32_16x16x32_bf16 v[{kD+4*t}:{kD+4*t+3}], v[{kA+8*t}:{kA+8*t+3}], v[{kB1}:{kB1+3}], 0")
    for t in range(2): L.append(f"v_mfma_f32_16x16x32_bf16 v[{kD+4*t}:{kD+4*t+3}], v[{kA+8*t+4}:{kA+8*t+7}], v[{kB2}:{kB2+3}], v[{kD+4*t}:{kD+4*t+3}]")
    for t in range(2):
        for h in range(2):
            L += [f"v_lshlrev_b32 v{kU+4*t+2*h}, 16, v{kV+2*t+h}", f"v_and_b32 v{kU+4*t+2*h+1}, 0xffff0000, v{kV+2*t+h}"]
    return L
def kp_finish():
    L = []
    for t in range(2):
        for h in range(2):
            L.append(f"v_pk_mul_f32 v[{kD+4*t+2*h}:{kD+4*t+2*h+1}], v[{kD+4*t+2*h}:{kD+4*t+2*h+1}], v[{kU+4*t+2*h}:{kU+4*t+2*h+1}]")
    for e in range(4):
        t = 1 - (e >> 1); r = 3 - 2*(e & 1)
        L.append(f"v_cvt_pk_bf16_f32 v{kO+e}, v{kD+4*t+r}, v{kD+4*t+r-1}")
    L.append(f"ds_write_b128 v{kvOW}, v[{kO}:{kO+3}]")
    return L
def kp_readback(): return [f"ds_read_b128 v[{kO}:{kO+3}], v{kvOR}"]
def kp_store(h):
    if h == 0: return [f"buffer_store_dwordx4 v[{kO}:{kO+3}], v{kvG}, s[{sWS}:{sWS+3}], s{s_ko} offen sc1"]
    return [f"s_sub_u32 s{s_t0}, s{s_ko}, 128", f"buffer_store_dwordx4 v[{kO}:{kO+3}], v{kvG}, s[{sWS}:{sWS+3}], s{s_t0} offen sc1"]


LKT2 = 147456; LVT2 = 155648; LKO2 = 147456
def kps_dma_setup():
    return lines(f"""
    v_lshrrev_b32 v106, 2, v{v_lane}
    v_and_b32 v107, 3, v{v_lane}
    v_mul_u32_u24 v106, 896, v106
    v_lshl_add_u32 v104, v107, 4, v106
    v_add_u32 v105, {16*896-1024}, v104
    s_lshl_b32 s{s_t0}, s{s_mi}, 7
    s_lshl_b32 s{s_t1}, s{s_w}, 5
    s_add_u32 s{s_t0}, s{s_t0}, s{s_t1}
    s_mul_i32 s34, s{s_t0}, 896
    s_lshl_b32 s{s_t2}, s{s_fi}, 6
    s_add_u32 s34, s34, s{s_t2}
    v_and_b32 v106, 15, v{v_lane}
    v_lshrrev_b32 v107, 2, v106
    v_and_b32 v106, 3, v106
    v_lshl_add_u32 v106, v107, 4, v106
    v_lshrrev_b32 v107, 5, v{v_lane}
    v_sub_u32 v106, v106, v107
    v_add_u32 v106, 1, v106
    v_mul_u32_u24 v106, 896, v106
    v_bfe_u32 v107, v{v_lane}, 4, 1
    v_lshl_add_u32 v106, v107, 4, v106
    s_lshl_b32 s{s_t0}, s{s_mi}, 7
    s_lshl_b32 s{s_t1}, s{s_ns}, 6
    s_add_u32 s{s_t0}, s{s_t0}, s{s_t1}
    s_mul_i32 s35, s{s_t0}, 896
    s_add_u32 s35, s35, s{s_t2}
    s_lshl_b32 s{s_t1}, s{s_mf}, 5
    s_add_u32 s35, s35, s{s_t1}
    s_cmp_eq_u32 s{s_t0}, 0
    s_cselect_b32 s{s_t1}, 0, 2688
    s_cselect_b32 s{s_t2}, 2688, 0
    s_sub_u32 s35, s35, s{s_t1}
    v_subrev_u32 v106, s{s_t2}, v106
    v_add_u32 v107, 1792, v106
    """)
def kps_dma_L():
    NL = "\n"
    return [NL.join([f"s_add_u32 m0, s{s_t4}, {LKT2}", "s_nop 0", f"buffer_load_dwordx4 v104, s[{sKK}:{sKK+3}], s34 offen lds"]),
            NL.join([f"s_add_u32 m0, s{s_t4}, {LKT2}", "s_nop 0", f"buffer_load_dwordx4 v105, s[{sKK}:{sKK+3}], s34 offen offset:1024 lds"]),
            NL.join([f"s_add_u32 m0, s{s_t4}, {LVT2}", "s_nop 0", f"buffer_load_dwordx4 v104, s[{sVV}:{sVV+3}], s34 offen lds"]),
            NL.join([f"s_add_u32 m0, s{s_t4}, {LVT2}", "s_nop 0", f"buffer_load_dwordx4 v105, s[{sVV}:{sVV+3}], s34 offen offset:1024 lds"])]
kT0 = 88
def kps_t0_L():
    return [f"buffer_load_dwordx4 v[{kT0}:{kT0+3}], v107, s[{sKK}:{sKK+3}], s35 offen",
            f"buffer_load_dwordx4 v[{kT0+4}:{kT0+7}], v106, s[{sKK}:{sKK+3}], s35 offen"]
def kps_setup(g):
    g(f"""
    v_and_b32 v108, 15, v{v_lane}
    v_lshrrev_b32 v109, 4, v{v_lane}
    v_lshrrev_b32 v110, 2, v108
    v_and_b32 v111, 3, v108
    v_lshl_add_u32 v110, v110, 4, v111
    v_lshrrev_b32 v111, 1, v109
    v_sub_u32 v110, v110, v111
    v_add_u32 v110, 2, v110
    s_lshl_b32 s{s_t0}, s{s_ns}, 6
    v_add_u32 v110, s{s_t0}, v110
    v_lshlrev_b32 v110, 6, v110
    v_and_b32 v111, 1, v109
    v_lshl_add_u32 v110, v111, 4, v110
    s_lshl_b32 s{s_t1}, s{s_mf}, 5
    s_add_u32 s{s_t2}, s{s_t1}, {LKT2}
    v_add_u32 v80, s{s_t2}, v110
    v_lshrrev_b32 v110, 2, v108
    v_lshl_add_u32 v110, v109, 4, v110
    v_add_u32 v110, s{s_t0}, v110
    v_lshlrev_b32 v110, 6, v110
    v_and_b32 v111, 3, v108
    v_lshl_add_u32 v110, v111, 3, v110
    s_add_u32 s{s_t2}, s{s_t1}, {LVT2}
    v_add_u32 v81, s{s_t2}, v110
    v_lshlrev_b32 v110, 1, v109
    v_sub_u32 v110, 6, v110
    v_and_b32 v111, 7, v108
    v_xor_b32 v110, v110, v111
    v_xor_b32 v111, 1, v110
    v_lshlrev_b32 v83, 7, v108
    s_add_u32 s{s_t1}, s{s_t4}, {LKO2}
    v_add_u32 v83, s{s_t1}, v83
    v_lshl_add_u32 v82, v110, 4, v83
    v_lshl_add_u32 v83, v111, 4, v83
    v_lshrrev_b32 v110, 3, v{v_lane}
    v_and_b32 v111, 7, v{v_lane}
    v_xor_b32 v84, v111, v110
    v_lshlrev_b32 v85, 7, v110
    v_lshl_add_u32 v84, v84, 4, v85
    v_add_u32 v84, s{s_t1}, v84
    v_lshlrev_b32 v85, 12, v110
    v_lshl_add_u32 v85, v111, 4, v85
    s_lshl_b32 s{s_t0}, s{s_fi}, 5
    s_lshl_b32 s{s_t1}, s{s_mf}, 4
    s_add_u32 s{s_t0}, s{s_t0}, s{s_t1}
    s_lshl_b32 s{s_t0}, s{s_t0}, 12
    s_lshl_b32 s{s_t1}, s{s_mi}, 8
    s_lshl_b32 s{s_t2}, s{s_ns}, 7
    s_add_u32 s{s_t1}, s{s_t1}, s{s_t2}
    s_sub_u32 s{s_t0}, s{s_t0}, s{s_t1}
    s_add_u32 s94, s{s_t0}, {WS_KVT + 1984*2}
    s_add_u32 s95, s94, {8*4096}
    """)
kpA, kpV, kpU, kpO = 96, 120, 100, 116
kpD = [68, 88, 92, 96]
def kps_stage1():
    L = []
    for t in range(1, 4):
        L.append(f"ds_read_b128 v[{kpA+8*(t-1)}:{kpA+8*(t-1)+3}], v80 offset:{256*(t-1)+128}")
        L.append(f"ds_read_b128 v[{kpA+8*(t-1)+4}:{kpA+8*(t-1)+7}], v80 offset:{256*(t-1)}")
    for t in range(4):
        L.append(f"ds_read_b64_tr_b16 v[{kpV+2*t}:{kpV+2*t+1}], v81 offset:{256*t}")
    return L
def kps_stage2():
    L = []
    for t in range(4):
        a = kT0 if t == 0 else kpA+8*(t-1)
        L.append(f"v_mfma_f32_16x16x32_bf16 v[{kpD[t]}:{kpD[t]+3}], v[{a}:{a+3}], v[{kB1}:{kB1+3}], 0")
        L.append(f"v_mfma_f32_16x16x32_bf16 v[{kpD[t]}:{kpD[t]+3}], v[{a+4}:{a+7}], v[{kB2}:{kB2+3}], v[{kpD[t]}:{kpD[t]+3}]")
    return L
def kps_stage3():
    L = []
    for t in range(4):
        for h in range(2):
            L += [f"v_lshlrev_b32 v{kpU+4*t+2*h}, 16, v{kpV+2*t+h}", f"v_and_b32 v{kpU+4*t+2*h+1}, 0xffff0000, v{kpV+2*t+h}"]
    return L
def kps_stage4():
    L = []
    for t in range(4):
        for r in range(4): L.append(f"v_mul_f32 v{kpD[t]+r}, v{kpD[t]+r}, v{kpU+4*t+r}")
    for e in range(8):
        t = 3 - (e >> 1); r = 3 - 2*(e & 1)
        L.append(f"v_cvt_pk_bf16_f32 v{kpO+e}, v{kpD[t]+r}, v{kpD[t]+r-1}")
    return L
def kps_stage5():
    O = kpO
    return [(f"ds_write_b128 v82, v[{O}:{O+3}]", None), (f"ds_write_b128 v83, v[{O+4}:{O+7}]", None),
            (f"ds_read_b128 v[{O}:{O+3}], v84", None), (f"ds_read_b128 v[{O+4}:{O+7}], v84 offset:1024", "kprb")]
def kps_store_L():
    O = 116
    return [f"buffer_store_dwordx4 v[{O}:{O+3}], v85, s[{sWS}:{sWS+3}], s94 offen sc1",
            f"buffer_store_dwordx4 v[{O+4}:{O+7}], v85, s[{sWS}:{sWS+3}], s95 offen sc1"]

def g1_addr():
    L = lines(f"""
    v_and_b32 v20, 31, v{v_lane}
    v_lshrrev_b32 v21, 5, v{v_lane}
    v_bfe_u32 v22, v{v_lane}, 1, 3
    v_xor_b32 v22, v22, v21
    s_lshl_b32 s{s_t0}, s{s_ns}, 13
    v_lshl_add_u32 v20, v20, 7, s{s_t0}
    """)
    for ks in range(4):
        L += [f"v_xor_b32 v23, {2*ks}, v22", f"v_lshl_add_u32 v{v_xa+ks}, v23, 4, v20"]
    L += lines(f"""
    v_bfe_u32 v20, v{v_lane}, 2, 2
    v_bfe_u32 v22, v{v_lane}, 4, 1
    v_bfe_u32 v23, v{v_lane}, 1, 1
    v_and_b32 v24, 1, v{v_lane}
    v_lshl_add_u32 v22, v22, 1, v23
    v_lshlrev_b32 v25, 11, v21
    v_lshl_add_u32 v25, v20, 8, v25
    v_lshl_add_u32 v25, v24, 3, v25
    v_lshl_add_u32 v25, v22, 4, v25
    v_add_u32 v25, {LW}, v25
    s_lshl_b32 s{s_t0}, s{s_mf}, 1
    """)
    for ft in range(2):
        L += lines(f"""
        v_add_u32 v26, s{s_t0}, v20
        v_add_u32 v26, {ft}, v26
        v_and_b32 v26, 3, v26
        v_lshl_add_u32 v{v_wa+ft}, v26, 6, v25
        v_add_u32 v{v_wa+2+ft}, 65536, v{v_wa+ft}
        """)
    return L

def g1_frag_reads(kstep):
    c, ks = divmod(kstep, 4)
    sl = c % 3
    b = v_fr + (kstep & 1)*24
    L = []
    for nt in range(2):
        L.append(f"ds_read_b128 v[{b+4*nt}:{b+4*nt+3}], v{v_xa+ks} offset:{sl*16384 + nt*4096}")
    for mat in range(2):
        for ft in range(2):
            r = b + 8 + mat*8 + ft*4
            base = v_wa + ft + (2 if sl == 2 else 0)
            off = (sl*32768 if sl < 2 else 0) + mat*16384 + ks*4096
            L.append(f"ds_read_b64_tr_b16 v[{r}:{r+1}], v{base} offset:{off}")
            L.append(f"ds_read_b64_tr_b16 v[{r+2}:{r+3}], v{base} offset:{off+1024}")
    return L

def g1_mfmas(kstep):
    b = v_fr + (kstep & 1)*24
    L = []
    for ft in range(2):
        for nt in range(2):
            for mat in range(2):
                acc = accg(ft, nt) if mat == 0 else accu(ft, nt)
                A = b + 8 + mat*8 + ft*4
                B = b + 4*nt
                cin = "0" if kstep == 0 else f"v[{acc}:{acc+15}]"
                L.append(f"v_mfma_f32_32x32x16_bf16 v[{acc}:{acc+15}], v[{A}:{A+3}], v[{B}:{B+3}], {cin}")
    return L

def spread(per, items, lo, hi):
    n = len(items)
    for i, x in enumerate(items):
        per[min(hi, lo + (i*(hi-lo+1))//n)].append(x)

KSTAMP = None
EST = os.environ.get('EST') == '1'
CST = os.environ.get('CST') == '1'
GSTAMP = None
def g1_chunk_stream(c):
    out = []
    for grp in g1_groups(c):
        for i in range(4):
            out.append((grp[:2] if i == 0 else [], grp[2+i], grp[0]))
    return out
def g1_main(g, pre, post, stamps=None):
    g.ldops = []
    for s_ in g1_frag_reads(0): g.ld(s_, "fr0")
    sched = {k: [] for k in range(28)}
    st2 = g1_chunk_stream(2)
    for i, x in enumerate(st2): sched[i // 4].append((x, "c2"))
    for c in range(0, 4):
        stc = g1_chunk_stream(c+3)
        for i, x in enumerate(stc): sched[4*c + 3 + i // 3].append((x, f"c{c+3}"))
    cur_m0 = [None]
    for k in range(28):
        c, ks = divmod(k, 4)
        g.lwait(f"fr{k}")
        if KSTAMP is not None and KSTAMP <= k < KSTAMP + 14: stamp(g, k - KSTAMP + 1)
        if ks == 3 and c < 6:
            g.vwait(f"c{c+1}")
            for tg in pre(k): g.vwait(tg)
            g("s_barrier")
            if stamps and c in stamps: stamp(g, stamps[c])
        per = [[] for _ in range(8)]
        if k+1 < 28: spread(per, T(g1_frag_reads(k+1), f"fr{k+1}"), 0, 4)
        items = sched[k]
        early, late, vx = post(k)
        dm = [[] for _ in range(8)]
        if len(items) == 4: sg, xg = [1, 3, 5, 7], [2, 6]
        elif len(items) == 3: sg, xg = ([1, 5, 7], [3, 6]) if vx else ([1, 4, 7], [])
        else: sg, xg = [], [1, 3, 5, 7, 2, 6, 4, 0]
        for it_, gp in zip(items, sg): dm[gp].append(it_)
        assert len(vx) <= len(xg), (k, len(vx))
        xs = sorted(xg[:len(vx)])
        if early: spread(per, early, 0, 7)
        for grp_, gp in zip(vx, xs): per[gp] += grp_
        if late: spread(per, late, 4, 7)
        m = g1_mfmas(k)
        for i in range(8):
            if GSTAMP is not None and k == GSTAMP: stamp(g, i + 1)
            if GSTAMP is not None and k == GSTAMP + 1 and i < 5: stamp(g, i + 9)
            g(m[i])
            for s_, tag in per[i]:
                if s_ == "CALL": tag()
                else:
                    g.emit(s_, tag)
                    if "m0" in s_ and not s_.startswith("buffer_") : m0_dirty[0] = True
                    if "m0," in s_: m0_dirty[0] = True
            for (salu, load, m0i), tag in dm[i]:
                if salu:
                    for x in salu: g(x)
                    m0_dirty[0] = False
                elif m0_dirty[0]:
                    g(m0i); g("s_nop 0"); m0_dirty[0] = False
                g.vm(load, tag)
m0_dirty = [False]
TCHK = eval(os.environ.get('TCHK', '(12,13,14,17,18,19,19,19,21,21,22,23,23,23)'))
KPK = int(os.environ.get('KPK', '11'))

v_cs = 72
v_rc = 100
v_t = 108
v_csa = v_t + 1
def epi_pre_reads():
    return lines(f"""
    v_and_b32 v{v_t}, 31, v{v_lane}
    s_lshl_b32 s{s_t1}, s{s_ns}, 9
    s_add_u32 s{s_t1}, s{s_t1}, {LST}
    v_lshl_add_u32 v{v_t}, v{v_t}, 3, s{s_t1}
    v_lshrrev_b32 v{v_csa}, 5, v{v_lane}
    s_lshl_b32 s{s_t1}, s{s_mf}, 8
    s_add_u32 s{s_t1}, s{s_t1}, {LST+1024}
    v_lshl_add_u32 v{v_csa}, v{v_csa}, 4, s{s_t1}
    ds_read_b64 v[{v_t+2}:{v_t+3}], v{v_t}
    ds_read_b64 v[{v_t+4}:{v_t+5}], v{v_t} offset:256
    """) + epi_cs_reads()
def epi_cs_reads():
    return [f"ds_read_b128 v[{v_cs}:{v_cs+3}], v{v_csa}", f"ds_read_b128 v[{v_cs+4}:{v_cs+7}], v{v_csa} offset:32",
            f"ds_read_b128 v[{v_cs+8}:{v_cs+11}], v{v_csa} offset:512", f"ds_read_b128 v[{v_cs+12}:{v_cs+15}], v{v_csa} offset:544",
            f"v_add_u32 v{v_csa}, 64, v{v_csa}"]
def epi_hoff():
    return lines(f"""
    s_lshl_b32 s{s_t0}, s{s_mi}, 2
    s_lshl_b32 s{s_t1}, s{s_ns}, 1
    s_add_u32 s{s_t0}, s{s_t0}, s{s_t1}
    s_mul_i32 s{s_t0}, s{s_t0}, 112
    s_lshl_b32 s{s_t1}, s{s_fi}, 3
    s_add_u32 s{s_t0}, s{s_t0}, s{s_t1}
    s_lshl_b32 s{s_t1}, s{s_mf}, 2
    s_add_u32 s{s_t0}, s{s_t0}, s{s_t1}
    s_lshl_b32 s{s_hoff}, s{s_t0}, 10
    s_add_u32 s{s_hoff}, s{s_hoff}, {WS_H}
    """)
HST = os.environ.get('HST', 'sc1')
vW0, vW1, vW2, vW3 = 120, 121, 122, 123
def g1_epilogue(g, aux):
    for nt in range(2):
        m, sd = v_t+2+2*nt, v_t+3+2*nt
        rc = v_rc + 4*nt
        g(f"""
        v_rcp_f32 v{v_t+6}, v{sd}
        v_sub_f32 v{rc}, 0, v{m}
        v_mul_f32 v{rc+1}, v{sd}, v{sd}
        v_mul_f32 v{rc+2}, {fh(C1)}, v{v_t+6}
        v_mul_f32 v{v_t+7}, v{v_t+6}, v{v_t+6}
        v_mul_f32 v{v_t+7}, v{v_t+7}, v{v_t+6}
        v_mul_f32 v{rc+3}, {fh(C2)}, v{v_t+7}
        """)
    P = 88
    Z = 20
    def pr(x): return f"v[{x}:{x+1}]"
    for it in range(4):
        ft, hq = it >> 1, it & 1
        if EST: stamp(g, 2 + it)
        main = []
        main.append(("LWAIT", "cs"))
        for nt in range(2):
            rc = v_rc + 4*nt; nm = f"v[{rc}:{rc+1}]"
            for pp in range(4):
                r = 8*hq + 2*pp
                tg = accg(ft, nt) + r; tu = accu(ft, nt) + r
                main.append((f"v_pk_fma_f32 {pr(tg)}, {pr(v_cs+2*pp)}, {nm}, {pr(tg)} op_sel_hi:[1,0,1]", None))
                main.append((f"v_pk_fma_f32 {pr(tu)}, {pr(v_cs+8+2*pp)}, {nm}, {pr(tu)} op_sel_hi:[1,0,1]", None))
        if it < 3: main += T(epi_cs_reads(), "cs")
        for nt in range(2):
            rc = v_rc + 4*nt; nm = f"v[{rc}:{rc+1}]"; cc = f"v[{rc+2}:{rc+3}]"
            steps = [
              lambda tg,tu,z: [f"v_pk_mul_f32 {pr(z)}, {pr(tg)}, {pr(tg)}"],
              lambda tg,tu,z: [f"v_pk_fma_f32 {pr(z)}, {pr(z)}, {cc}, {cc} op_sel:[0,1,0] op_sel_hi:[1,1,0]"],
              lambda tg,tu,z: [f"v_pk_mul_f32 {pr(z)}, {pr(z)}, {pr(tg)}"],
              lambda tg,tu,z: [f"v_exp_f32 v{z}, v{z}", f"v_exp_f32 v{z+1}, v{z+1}"],
              lambda tg,tu,z: [f"v_pk_mul_f32 {pr(tu)}, {pr(tu)}, {pr(tg)}"],
              lambda tg,tu,z: [f"v_pk_fma_f32 {pr(z)}, {pr(z)}, {nm}, {nm} op_sel:[0,1,1] op_sel_hi:[1,1,1]"],
              lambda tg,tu,z: [f"v_rcp_f32 v{z}, v{z}", f"v_rcp_f32 v{z+1}, v{z+1}"],
              lambda tg,tu,z: [f"v_pk_mul_f32 {pr(tu)}, {pr(tu)}, {pr(z)}"],
            ]
            for st in steps:
                for pp in range(4):
                    r = 8*hq + 2*pp
                    main += T(st(accg(ft, nt) + r, accu(ft, nt) + r, Z + 8*nt + 2*pp))
            for pp in range(4):
                r = 8*hq + 2*pp
                main.append((f"v_cvt_pk_bf16_f32 v{P+4*nt+pp}, v{accu(ft, nt)+r}, v{accu(ft, nt)+r+1}", None))
            off = (nt*112 + 2*ft + hq) * 1024
            main.append((f"s_add_u32 s{s_t2}, s{s_hoff}, {off}\nbuffer_store_dwordx4 v[{P+4*nt}:{P+4*nt+3}], v{v_l16}, s[{sWS}:{sWS+3}], s{s_t2} offen {HST}", "hst"))
        a = aux[it]
        if os.environ.get("XAUX") == "front":
            for x2, t2 in a:
                if x2 == "CALL": t2()
                else: g.emit(x2, t2)
            a = []
            if EST: stamp(g, 6 + it)
        n, k = len(main), 0
        for i, (x, tg_) in enumerate(main):
            g.emit(x, tg_)
            while k < len(a) and k < ((i+1)*len(a))//n:
                x2, t2 = a[k]
                if x2 == "CALL": t2()
                else: g.emit(x2, t2)
                k += 1

a_h = 224
def conv_h_loads():
    L = [f"v_lshlrev_b32 v{v_hv}, 4, v0", f"s_lshl_b32 s{s_zoff}, s2, 13"]
    for ch in range(2):
        r = a_h + ch*8
        L.append(f"buffer_load_dwordx4 a[{r}:{r+3}], v{v_hv}, s[{sSK2}:{sSK2+3}], s{s_zoff} offen")
        L.append(f"buffer_load_dwordx2 a[{r+4}:{r+5}], v{v_hv}, s[{sSK2}:{sSK2+3}], s{s_zoff} offen offset:16")
        if ch == 0: L.append(f"s_add_u32 s{s_zoff}, s{s_zoff}, 4096")
    return L

def conv_build_L(ch):
    W, C1, C2, C3, AD = 2, 8, 12, 96, 16
    L = [f"v_lshlrev_b32 v{AD}, 4, v0", f"v_add_u32 v{AD}, {LCV+32+ch*CVCH}, v{AD}"]
    for i in range(6): L.append(f"v_accvgpr_read_b32 v{W+i}, a{a_h+8*ch+i}")
    for i in range(4): L.append(f"v_alignbit_b32 v{C1+i}, v{W+i+1}, v{W+i}, 16")
    for i in range(4): L.append(f"v_mov_b32 v{C2+i}, v{W+i+1}")
    for i in range(3): L.append(f"v_mov_b32 v{C3+i}, v{C1+i+1}")
    L.append(f"v_alignbit_b32 v{C3+3}, v{W+5}, v{W+4}, 16")
    L.append(f"ds_write_b128 v{AD}, v[{W}:{W+3}]")
    L.append(f"ds_write_b128 v{AD}, v[{C1}:{C1+3}] offset:{CVCOPY}")
    L.append(f"ds_write_b128 v{AD}, v[{C2}:{C2+3}] offset:{2*CVCOPY}")
    L.append(f"ds_write_b128 v{AD}, v[{C3}:{C3+3}] offset:{3*CVCOPY}")
    return L
def conv_pads(g):
    pass
def conv_pads_L():
    return None

def conv_u_dma():
    return lines(f"""
    s_lshl_b32 s98, s2, 13
    s_add_u32 s98, s98, s{s_t4}
    s_add_u32 s98, s98, {WS_KVT}
    s_mul_i32 s{s_t2}, s{s_ns}, {CVUS}
    s_lshl_b32 s99, s{s_mf}, 11
    s_add_u32 s{s_t2}, s{s_t2}, s99
    s_add_u32 m0, s{s_t2}, {LU}
    s_nop 0
    buffer_load_dwordx4 v{v_l16}, s[{sWS}:{sWS+3}], s98 offen sc1 lds
    buffer_load_dwordx4 v{v_l16}, s[{sWS}:{sWS+3}], s98 offen offset:1024 sc1 lds
    """)

def conv_pad_code(g):
    g(f"""
    s_cmp_eq_u32 s{s_w}, 0
    s_cbranch_scc0 CB_w1
    v_mov_b32 v8, 0
    v_mov_b32 v9, 0
    v_mov_b32 v10, 0
    v_mov_b32 v11, 0
    """)
    for ch in range(2):
        g(f"""
        v_accvgpr_read_b32 v12, a{a_h+8*ch}
        v_accvgpr_read_b32 v13, a{a_h+8*ch+1}
        s_nop 0
        v_readlane_b32 s34, v12, 0
        v_readlane_b32 s35, v13, 0
        s_nop 3
        s_lshl_b32 s98, s34, 16
        s_lshr_b32 s99, s34, 16
        s_lshl_b32 s35, s35, 16
        s_or_b32 s99, s99, s35
        v_writelane_b32 v11, s98, {8*ch+3}
        v_writelane_b32 v11, s34, {8*ch+5}
        v_writelane_b32 v11, s99, {8*ch+7}
        v_writelane_b32 v10, s98, {8*ch+7}
        """)
    g(f"""
    v_lshrrev_b32 v12, 3, v{v_lane}
    v_mul_u32_u24 v12, {CVCH}, v12
    v_bfe_u32 v13, v{v_lane}, 1, 2
    v_mul_u32_u24 v13, {CVCOPY}, v13
    v_add_u32 v12, v12, v13
    v_and_b32 v13, 1, v{v_lane}
    v_lshl_add_u32 v12, v13, 4, v12
    v_add_u32 v12, {LCV}, v12
    s_mov_b64 exec, 0xffff
    ds_write_b128 v12, v[8:11]
    s_mov_b64 exec, -1
    s_branch CB_done
    CB_w1:
    s_cmp_eq_u32 s{s_w}, 1
    s_cbranch_scc0 CB_done
    v_mov_b32 v8, 0
    v_mov_b32 v9, 0
    v_mov_b32 v10, 0
    v_mov_b32 v11, 0
    v_add_u32 v12, {LU+4096}, v{v_l16}
    ds_write_b128 v12, v[8:11]
    ds_write_b128 v12, v[8:11] offset:{CVUS}
    CB_done:
    """)

cv_D = 128
cv_A = [160, 64]; cv_B = [192, 92]
cv_A = [160, 20]; cv_B = [192, 56]
v_la, v_lb = 124, 125
def conv_addr():
    return lines(f"""
    v_and_b32 v2, 15, v{v_lane}
    v_lshrrev_b32 v3, 4, v{v_lane}
    v_add_u32 v4, 1, v2
    v_and_b32 v5, 3, v4
    v_mul_u32_u24 v5, {CVCOPY}, v5
    v_lshrrev_b32 v4, 2, v4
    v_lshl_add_u32 v5, v4, 3, v5
    v_lshl_add_u32 v5, v3, 4, v5
    s_mul_i32 s98, s{s_ns}, {CVCH}
    s_add_u32 s98, s98, {LCV}
    v_add_u32 v{v_la}, s98, v5
    v_lshlrev_b32 v4, 5, v2
    v_lshlrev_b32 v5, 4, v3
    v_sub_u32 v5, v5, v4
    s_mul_i32 s98, s{s_ns}, {CVUS}
    s_lshl_b32 s99, s{s_mf}, 9
    s_sub_u32 s98, s98, s99
    s_add_u32 s98, s98, {LU + 4064 - 3072}
    v_add_u32 v{v_lb}, s98, v5
    """)
def conv_reads(cl):
    A, B = cv_A[cl & 1], cv_B[cl & 1]
    L = []
    for i in range(8):
        L.append(f"ds_read_b64 v[{A+4*i}:{A+4*i+1}], v{v_la} offset:{64*cl+512*i}")
        L.append(f"ds_read_b64 v[{A+4*i+2}:{A+4*i+3}], v{v_la} offset:{64*cl+512*i+8}")
        L.append(f"ds_read_b128 v[{B+4*i}:{B+4*i+3}], v{v_lb} offset:{64*cl+512*(7-i)}")
    return L
def conv_mfmas(cl):
    A, B = cv_A[cl & 1], cv_B[cl & 1]
    L = []
    pairs = sorted([(a, ib) for a in range(8) for ib in range(8) if (a + ib - 1) in (0, 2, 4, 6)], key=lambda p: (max(p), p))
    first = set()
    for a, ib in pairs:
        tau = (a + ib - 1) // 2
        d = cv_D + 4*tau
        cin = "0" if (cl == 0 and tau not in first) else f"v[{d}:{d+3}]"
        first.add(tau)
        L.append(f"v_mfma_f32_16x16x32_bf16 v[{d}:{d+3}], v[{A+4*a}:{A+4*a+3}], v[{B+4*ib}:{B+4*ib+3}], {cin}")
    assert len(L) == 20
    return L

def wd_setup_v():
    a, b, c, d, e, f = 112, 113, 114, 115, 116, 117
    return lines(f"""
    v_lshrrev_b32 v{a}, 3, v{v_lane}
    v_and_b32 v{b}, 7, v{v_lane}
    v_bfe_u32 v{c}, v{a}, 1, 1
    v_lshlrev_b32 v{c}, 2, v{c}
    v_xor_b32 v{b}, v{b}, v{c}
    v_mul_u32_u24 v{a}, 896, v{a}
    v_lshl_add_u32 v{e}, v{b}, 4, v{a}
    v_add_u32 v{f}, {8*896-1024}, v{e}
    v_accvgpr_write_b32 a248, v{e}
    v_accvgpr_write_b32 a249, v{f}
    v_lshrrev_b32 v{a}, 5, v{v_lane}
    v_bfe_u32 v{b}, v{v_lane}, 2, 2
    v_lshl_add_u32 v{a}, v{a}, 2, v{b}
    v_lshlrev_b32 v{a}, 7, v{a}
    v_bfe_u32 v{c}, v{v_lane}, 4, 1
    v_bfe_u32 v{d}, v{v_lane}, 1, 1
    v_lshl_add_u32 v{c}, v{c}, 1, v{d}
    v_lshl_add_u32 v{a}, v{c}, 4, v{a}
    v_and_b32 v{c}, 1, v{v_lane}
    v_lshl_add_u32 v{a}, v{c}, 3, v{a}
    v_bfe_u32 v{b}, v{v_lane}, 3, 1
    v_xor_b32 v{b}, s{s_ns}, v{b}
    v_lshl_add_u32 v{e}, v{b}, 6, v{a}
    v_xor_b32 v{b}, 1, v{b}
    v_lshl_add_u32 v{f}, v{b}, 6, v{a}
    s_mul_i32 s{s_t0}, s{s_w}, {RING}
    v_add_u32 v{a}, s{s_t0}, v{e}
    v_add_u32 v{b}, s{s_t0}, v{f}
    v_accvgpr_write_b32 a250, v{a}
    v_accvgpr_write_b32 a251, v{b}
    s_lshl_b32 s{s_t0}, s{s_w}, 13
    s_add_u32 s{s_t0}, s{s_t0}, {E1B}
    v_add_u32 v{a}, s{s_t0}, v{e}
    v_add_u32 v{b}, s{s_t0}, v{f}
    v_accvgpr_write_b32 a252, v{a}
    v_accvgpr_write_b32 a253, v{b}
    """)
def wd_setup_s():
    return lines(f"""
    s_mul_i32 s{s_woff}, s{s_w}, {448*896}
    s_lshl_b32 s{s_t0}, s{s_ct}, 7
    s_add_u32 s{s_woff}, s{s_woff}, s{s_t0}
    s_mul_i32 s{s_m0x}, s{s_w}, {RING}
    s_lshl_b32 s{s_eb}, s{s_w}, 13
    s_add_u32 s{s_eb}, s{s_eb}, {E1B}
    v_accvgpr_read_b32 v{vW0}, a248
    v_accvgpr_read_b32 v{vW1}, a249
    v_accvgpr_read_b32 v{vW2}, a250
    v_accvgpr_read_b32 v{vW3}, a251
    v_accvgpr_read_b32 v{vW4}, a252
    v_accvgpr_read_b32 v{vW5}, a253
    """) + rot_setup(28, 29, s_woff, 14336) + lines(f"""
    v_subrev_u32 v{vW6}, {E1B-E2B}, v{vW4}
    v_subrev_u32 v{vW7}, {E1B-E2B}, v{vW5}
    """)
NSLOT = 10
ROT = os.environ.get("ROT", "0") == "1"
def ptr_next(p, pend, pbase, stride):
    return ["\n".join([f"s_mov_b32 s{s_t3}, s{p}", f"s_add_u32 s{p}, s{p}, {stride}", f"s_cmp_eq_u32 s{p}, s{pend}", f"s_cselect_b32 s{p}, s{pbase}, s{p}"])]
def rot_setup(p, pend, pbase, stride):
    L = [f"s_add_u32 s{pend}, s{pbase}, {28*stride}"]
    if not ROT: return L + [f"s_mov_b32 s{p}, s{pbase}"]
    return L + [f"s_and_b32 s{p}, s{s_mi}, 3", f"s_mul_i32 s{p}, s{p}, 7", f"s_lshl_b32 s{s_t2}, s{s_ct}, 2", f"s_add_u32 s{p}, s{p}, s{s_t2}",
                f"s_cmp_ge_u32 s{p}, 28\ns_cselect_b32 s{s_t2}, 28, 0\ns_sub_u32 s{p}, s{p}, s{s_t2}",
                f"s_mul_i32 s{p}, s{p}, {stride}", f"s_add_u32 s{p}, s{p}, s{pbase}"]
s_eb = 33
vW4, vW5 = 118, 119
vW6, vW7 = 116, 117
def wd_dma_e(j, e):
    m0 = f"s_add_u32 m0, s{s_eb}, {e*2048}" if e < 4 else f"s_sub_u32 m0, s{s_eb}, {E1B-E2B-(e-4)*2048}"
    return ["\n".join([m0] + ptr_next(28, 29, s_woff, 14336) + [
            f"buffer_load_dwordx4 v{vW0}, s[{sWD2}:{sWD2+3}], s{s_t3} offen lds"]),
            "\n".join([m0, "s_nop 0", f"buffer_load_dwordx4 v{vW1}, s[{sWD2}:{sWD2+3}], s{s_t3} offen offset:1024 lds"])]
def wd_tr_e(j, e):
    L = []
    b = vW4 if e < 4 else vW6
    off = (e & 3)*2048
    for sm in range(2):
        r = 8*j + 4*sm
        L.append(f"ds_read_b64_tr_b16 a[{r}:{r+1}], v{b+sm} offset:{off}")
        L.append(f"ds_read_b64_tr_b16 a[{r+2}:{r+3}], v{b+sm} offset:{off+1024}")
    return L
def wd_dma(j, sl=None):
    if sl is None: sl = j % NSLOT
    return [f"s_add_u32 m0, s{s_m0x}, {sl*2048}"] + ptr_next(28, 29, s_woff, 14336) + [
            f"buffer_load_dwordx4 v{vW0}, s[{sWD2}:{sWD2+3}], s{s_t3} offen lds",
            f"buffer_load_dwordx4 v{vW1}, s[{sWD2}:{sWD2+3}], s{s_t3} offen offset:1024 lds"]
def wd_tr(j, sl=None):
    if sl is None: sl = j % NSLOT
    L = []
    for sm in range(2):
        r = 8*j + 4*sm
        L.append(f"ds_read_b64_tr_b16 a[{r}:{r+1}], v{vW2+sm} offset:{sl*2048}")
        L.append(f"ds_read_b64_tr_b16 a[{r+2}:{r+3}], v{vW2+sm} offset:{sl*2048+1024}")
    return L

vH0, vH1, vH2 = 2, 3, 4
def g2_setup():
    return lines(f"""
    s_lshl_b32 s{s_t0}, s{s_mi}, 2
    s_lshl_b32 s{s_t1}, s{s_hi}, 1
    s_add_u32 s{s_t0}, s{s_t0}, s{s_t1}
    s_mul_i32 s{s_t0}, s{s_t0}, 112
    s_mul_i32 s{s_t1}, s{s_w}, 28
    s_add_u32 s{s_t0}, s{s_t0}, s{s_t1}
    s_lshl_b32 s{s_xoff}, s{s_t0}, 10
    s_add_u32 s{s_xoff}, s{s_xoff}, {WS_H}
    s_mul_i32 s{s_t0}, s{s_mf}, {112*1024}
    v_add_u32 v{vH0}, s{s_t0}, v{v_l16}
    s_sub_u32 s{s_t0}, {112*1024 - 1024}, s{s_t0}
    v_add_u32 v{vH1}, s{s_t0}, v{v_l16}
    v_add_u32 v{vH2}, s{s_m0x}, v{v_l16}
    """) + rot_setup(30, 31, s_xoff, 1024)
HSC = os.environ.get('HSC', 'sc1')
def h_dma(j):
    sl = j % NSLOT
    return [f"s_add_u32 m0, s{s_m0x}, {sl*2048}"] + ptr_next(30, 31, s_xoff, 1024) + [
            f"buffer_load_dwordx4 v{vH0}, s[{sWS}:{sWS+3}], s{s_t3} offen {HSC} lds",
            f"buffer_load_dwordx4 v{vH1}, s[{sWS}:{sWS+3}], s{s_t3} offen offset:1024 {HSC} lds"]
def h_reads(j):
    sl = j % NSLOT
    b = g2_fr + (j % 3)*8
    return [f"ds_read_b128 v[{b}:{b+3}], v{vH2} offset:{sl*2048}", f"ds_read_b128 v[{b+4}:{b+7}], v{vH2} offset:{sl*2048+1024}"]
def hflag_offsets():
    return lines(f"""
    v_min_u32 v{v_poll}, 27, v{v_lane}
    v_lshrrev_b32 v{v_poll+1}, 1, v{v_poll}
    v_and_b32 v{v_poll}, 1, v{v_poll}
    v_lshl_add_u32 v{v_poll}, v{v_poll+1}, 2, v{v_poll}
    v_lshlrev_b32 v{v_poll}, 6, v{v_poll}
    s_lshl_b32 s{s_pb}, s{s_mi}, 12
    s_lshl_b32 s{s_t0}, s{s_hi}, 7
    s_add_u32 s{s_pb}, s{s_pb}, s{s_t0}
    s_add_u32 s{s_pb}, s{s_pb}, {WS_FH}
    """)

HFG = int(os.environ.get('HFG', '12'))
def conv_main(g, hflag):
    CL = 20; NG = 8*CL
    per = [[] for _ in range(NG + 8)]
    m = []
    for cl in range(8):
        m += conv_mfmas(cl)
        if cl < 7:
            rd = conv_reads(cl+1)
            for i, x in enumerate(rd): per[CL*cl + (i*16)//24].append((x, f"cv{cl+1}"))
    per[0].append(("VWAIT", "wd16"))
    trg = {}
    for n_, j in enumerate(range(8, 21)):
        gp = 6*n_
        trg[j] = gp
        if j == 17: per[gp].append(("VWAIT", "wd20"))
        tl = T(wd_tr(j, j-8) if j < 17 else wd_tr_e(j, j-17), f"tr{j}")
        for q, x in enumerate(tl): per[gp + q].append(x)
    for i, j in enumerate(range(21, 28)):
        g2 = trg[8+i] + 8
        per[g2].append(("LWAIT", f"tr{8+i}"))
        dl = T(wd_dma(j, j-21), f"wd{j}")
        per[g2] += dl[:2]
        per[g2+1] += dl[2:]
    per[HFG].append(("CALL", hflag))
    for i, j in enumerate(range(21, 28)):
        gp = 80 + 3*i
        per[gp].append(("VWAIT", f"wd{j}"))
        tl = T(wd_tr(j, j-21), f"tr{j}")
        per[gp] += tl[:2]; per[gp+1] += tl[2:]
    spread(per, T(hflag_offsets()), 66, 71)
    spread(per, T(g2_setup()), 72, 79)
    HCG = int(os.environ.get("HCG", "104"))
    per[HCG - 14] += poll_issue("ph")
    per[HCG].append(("HCHECK", None))
    per[HCG].append(("LWAIT", "tr27"))
    nh = min(10, (NG - 2 - HCG) // 5)
    for s_ in range(nh):
        gp = HCG + 1 + 5*s_
        hl_ = T(h_dma(s_), f"h{s_}")
        per[gp] += hl_[:3]; per[gp+2] += hl_[3:]
    global NH0
    NH0 = nh
    spread(per, T(conv_epi_pre()), 139, 150)
    for i in range(NG):
        if EST and i in (0, 40, 80, 120): stamp(g, 11 + i//40)
        if CST and i % 13 == 0: stamp(g, 1 + i//13)
        if i % CL == 0: g.lwait(f"cv{i//CL}")
        g(m[i])
        for x, tag in per[i]:
            if x == "CALL": tag()
            elif x == "HCHECK": poll_check(g, "G_p2", "ph")
            else: g.emit(x, tag)

def conv_epi_pre():
    L = lines(f"""
    v_and_b32 v54, 15, v{v_lane}
    v_lshrrev_b32 v55, 4, v{v_lane}
    v_lshlrev_b32 v54, 5, v54
    v_lshl_add_u32 v53, v55, 3, v54
    s_mul_i32 s98, s{s_ns}, {CVUS}
    s_lshl_b32 s99, s{s_mf}, 9
    s_sub_u32 s98, s98, s99
    s_add_u32 s98, s98, {LU + 4088 - 3072}
    v_sub_u32 v52, s98, v53
    s_lshl_b32 s98, s2, 13
    s_lshl_b32 s34, s{s_ns}, 12
    s_add_u32 s98, s98, s34
    s_add_u32 s98, s98, s99
    s_add_u32 s98, s98, {WS_ZP}
    """)
    L += [f"s_cmp_eq_u32 s{s_ns}, 0\ns_cselect_b32 s99, s100, s101"]
    for tau in range(4):
        L.append(f"ds_read_b64 v[{88+2*tau}:{89+2*tau}], v52 offset:{1024*(3-tau)}")
    return L
def conv_epilogue(g):
    KV, U, O = 88, 96, 112
    g("s_waitcnt lgkmcnt(0)")
    for tau in range(4):
        k = KV + 2*tau; u = U + 4*tau
        g(f"v_and_b32 v{u}, 0xffff0000, v{k+1}\nv_lshlrev_b32 v{u+1}, 16, v{k+1}\nv_and_b32 v{u+2}, 0xffff0000, v{k}\nv_lshlrev_b32 v{u+3}, 16, v{k}")
    for tau in range(4):
        for r in range(4): g(f"v_fmac_f32 v{cv_D+4*tau+r}, s99, v{U+4*tau+r}")
    for tau in range(4):
        g(f"v_cvt_pk_bf16_f32 v{O+2*tau}, v{cv_D+4*tau}, v{cv_D+4*tau+1}\nv_cvt_pk_bf16_f32 v{O+2*tau+1}, v{cv_D+4*tau+2}, v{cv_D+4*tau+3}")
    for tau in range(4):
        g.vm(f"buffer_store_dwordx2 v[{O+2*tau}:{O+2*tau+1}], v53, s[{sWS}:{sWS+3}], s98 offen offset:{1024*tau} sc1", "zst")

g2_acc = 192
g2_fr = 160
G2ST = os.environ.get('G2ST') == '1'
NH0 = int(os.environ.get('NH0', '4'))
def g2_main(g, extra):
    nd = NH0
    g.ldops = []
    g.vwait("h1")
    for x in h_reads(0): g.ld(x, "hr0")
    for x in h_reads(1): g.ld(x, "hr1")
    for j in range(28):
        b = g2_fr + (j % 3)*8
        if G2ST and j % 2 == 0: stamp(g, 1 + j//2)
        g.lwait(f"hr{j}")
        fill = []
        cnt = 0
        while nd < 28 and nd <= j + 9 and cnt < 2:
            fill += T(h_dma(nd), f"h{nd}"); nd += 1; cnt += 1
        m = []
        for sm in range(2):
            for sn in range(2):
                acc = g2_acc + (sm*2+sn)*16
                cin = "0" if j == 0 else f"v[{acc}:{acc+15}]"
                m.append(f"v_mfma_f32_32x32x16_bf16 v[{acc}:{acc+15}], a[{8*j+4*sm}:{8*j+4*sm+3}], v[{b+4*sn}:{b+4*sn+3}], {cin}")
        per = [[] for _ in range(4)]
        if fill: spread(per, fill, 0, 3)
        ex = extra(j)
        if ex: spread(per, ex, 0, 3)
        if j+2 < 28:
            per[3].append(("VWAIT", f"h{j+2}"))
            per[3] += T(h_reads(j+2), f"hr{j+2}")
        for i in range(4):
            g(m[i])
            for x, tag in per[i]:
                if x == "CALL": tag()
                else: g.emit(x, tag)

def g2_reduce(g):
    g(f"v_add_u32 v22, s{s_m0x}, v{v_l16}\ns_nop 7\ns_nop 3")
    for sl in range(1, 4):
        for q in range(4):
            r = g2_acc + sl*16 + 4*q
            g(f"ds_write_b128 v22, v[{r}:{r+3}] offset:{sl*4096 + q*1024}")
    for x in range(1, 4):
        g(f"s_xor_b32 s{s_t0}, s{s_w}, {x}\ns_mul_i32 s{s_t0}, s{s_t0}, {RING}\nv_add_u32 v{22+x}, s{s_t0}, v{v_l16}")
def g2_reduce2(g):
    g("s_waitcnt lgkmcnt(0)\ns_barrier")
    for x in range(1, 4):
        for q in range(4):
            r = g2_acc + x*16 + 4*q
            g(f"ds_read_b128 v[{r}:{r+3}], v{22+x} offset:{x*4096 + q*1024}")
    for x in range(1, 4):
        g(f"s_waitcnt lgkmcnt({4*(3-x)})")
        for q in range(8):
            a = g2_acc + 2*q; b = g2_acc + x*16 + 2*q
            g(f"v_pk_add_f32 v[{a}:{a+1}], v[{a}:{a+1}], v[{b}:{b+1}]")

fx = 32
def final_loads_x():
    L = [f"v_and_b32 v26, 31, v{v_lane}", f"v_mul_u32_u24 v26, 896, v26", f"v_lshrrev_b32 v27, 5, v{v_lane}", f"v_lshl_add_u32 v26, v27, 3, v26",
         f"s_lshl_b32 s{s_t0}, s{s_mi}, 7", f"s_lshl_b32 s{s_t1}, s{s_hi}, 6", f"s_add_u32 s{s_t0}, s{s_t0}, s{s_t1}",
         f"s_lshl_b32 s{s_t1}, s{s_mf}, 5", f"s_add_u32 s{s_t0}, s{s_t0}, s{s_t1}",
         f"s_mul_i32 s{s_zoff}, s{s_t0}, 896",
         f"s_lshl_b32 s{s_t1}, s{s_ct}, 7", f"s_add_u32 s{s_zoff}, s{s_zoff}, s{s_t1}",
         f"s_lshl_b32 s{s_t1}, s{s_ns}, 6", f"s_add_u32 s{s_zoff}, s{s_zoff}, s{s_t1}"]
    for q in range(4):
        L.append(f"buffer_load_dwordx2 v[{fx+2*q}:{fx+2*q+1}], v26, s[{sX}:{sX+3}], s{s_zoff} offen offset:{16*q}")
    return L
s_zp = 49
def final_z_setup():
    return lines(f"""
    v_and_b32 v28, 31, v{v_lane}
    v_lshlrev_b32 v28, 1, v28
    v_lshrrev_b32 v27, 5, v{v_lane}
    v_lshl_add_u32 v28, v27, 14, v28
    s_lshl_b32 s{s_t0}, s{s_ct}, 5
    s_lshl_b32 s{s_t1}, s{s_ns}, 4
    s_add_u32 s{s_t0}, s{s_t0}, s{s_t1}
    s_lshl_b32 s{s_pb}, s{s_t0}, 8
    s_lshl_b32 s{s_t0}, s{s_t0}, 13
    s_lshl_b32 s{s_t1}, s{s_mi}, 7
    s_lshl_b32 s{s_t2}, s{s_hi}, 6
    s_add_u32 s{s_t1}, s{s_t1}, s{s_t2}
    s_lshl_b32 s{s_t2}, s{s_mf}, 5
    s_add_u32 s{s_t1}, s{s_t1}, s{s_t2}
    s_lshl_b32 s{s_t1}, s{s_t1}, 1
    s_add_u32 s{s_t0}, s{s_t0}, s{s_t1}
    s_add_u32 s{s_zp}, s{s_t0}, {WS_ZP}
    s_bfe_u32 s{s_t1}, s{s_mi}, 0x10001
    s_lshl_b32 s{s_t1}, s{s_t1}, 6
    s_add_u32 s{s_pb}, s{s_pb}, s{s_t1}
    s_add_u32 s{s_pb}, s{s_pb}, {WS_FZ}
    v_min_u32 v{v_poll}, 31, v{v_lane}
    v_lshrrev_b32 v{v_poll+1}, 1, v{v_poll}
    v_and_b32 v{v_poll}, 1, v{v_poll}
    v_lshlrev_b32 v{v_poll}, 7, v{v_poll}
    v_lshl_add_u32 v{v_poll}, v{v_poll+1}, 8, v{v_poll}
    """)
fz = 64
def final_loads_z(g):
    for q in range(4):
        for i in range(4):
            g(f"s_add_u32 s{s_t3}, s{s_zp}, {(8*q+i)*4096}")
            g.vm(f"buffer_load_ushort v{fz+4*q+i}, v28, s[{sWS}:{sWS+3}], s{s_t3} offen sc1", "z")
def final_pre():
    return lines(f"""
    v_and_b32 v22, 31, v{v_lane}
    v_lshlrev_b32 v22, 3, v22
    s_lshl_b32 s{s_t0}, s{s_mi}, 10
    s_lshl_b32 s{s_t1}, s{s_hi}, 9
    s_add_u32 s{s_t0}, s{s_t0}, s{s_t1}
    s_lshl_b32 s{s_t1}, s{s_mf}, 8
    s_add_u32 s{s_t0}, s{s_t0}, s{s_t1}
    s_add_u32 s{s_t0}, s{s_t0}, {WS_STATS}
    buffer_load_dwordx2 v[30:31], v22, s[{sWS}:{sWS+3}], s{s_t0} offen sc1
    v_and_b32 v29, 31, v{v_lane}
    v_mul_u32_u24 v29, 896, v29
    v_lshrrev_b32 v27, 5, v{v_lane}
    v_lshl_add_u32 v29, v27, 4, v29
    """)
def final(g):
    g(f"""
    s_waitcnt vmcnt(0)
    v_rcp_f32 v31, v31
    v_mov_b32 v20, {fh(-math.log2(math.e))}
    v_mov_b32 v21, 1.0
    v_mul_f32 v30, v30, v31
    v_sub_f32 v30, 0, v30
    """)
    O = g2_acc
    X = 48; Zz = 64; Tt = 80; XN = 96
    def pr(x): return f"v[{x}:{x+1}]"
    steps = [
      lambda i: [f"v_pk_mul_f32 {pr(Tt+2*i)}, {pr(O+2*i)}, v[20:21] op_sel_hi:[1,0]"],
      lambda i: [f"v_exp_f32 v{Tt+2*i}, v{Tt+2*i}", f"v_exp_f32 v{Tt+2*i+1}, v{Tt+2*i+1}"],
      lambda i: [f"v_lshlrev_b32 v{X+2*i}, 16, v{fx+i}", f"v_and_b32 v{X+2*i+1}, 0xffff0000, v{fx+i}"],
      lambda i: [f"v_pk_add_f32 {pr(Tt+2*i)}, {pr(Tt+2*i)}, v[20:21] op_sel:[0,1] op_sel_hi:[1,1]"],
      lambda i: [f"v_lshlrev_b32 v{Zz+2*i}, 16, v{fz+2*i}", f"v_lshlrev_b32 v{Zz+2*i+1}, 16, v{fz+2*i+1}"],
      lambda i: [f"v_rcp_f32 v{Tt+2*i}, v{Tt+2*i}", f"v_rcp_f32 v{Tt+2*i+1}, v{Tt+2*i+1}"],
      lambda i: [f"v_pk_fma_f32 {pr(XN+2*i)}, {pr(X+2*i)}, v[30:31], v[30:31] op_sel:[0,1,0] op_sel_hi:[1,1,0]"],
      lambda i: [f"v_pk_mul_f32 {pr(Tt+2*i)}, {pr(Tt+2*i)}, {pr(O+2*i)}"],
      lambda i: [f"v_pk_mul_f32 {pr(Zz+2*i)}, {pr(Zz+2*i)}, {pr(XN+2*i)}"],
      lambda i: [f"v_pk_fma_f32 {pr(Tt+2*i)}, {pr(Tt+2*i)}, {pr(Zz+2*i)}, {pr(X+2*i)}"],
    ]
    for st in steps:
        for i in range(8):
            for x in st(i): g(x)
    P = 112
    for i in range(8): g(f"v_cvt_pk_bf16_f32 v{P+i}, v{Tt+2*i}, v{Tt+2*i+1}")
    g("s_nop 1")
    for qq in (0, 2):
        g(f"v_permlane32_swap_b32 v{P+2*qq}, v{P+2*qq+2}\nv_permlane32_swap_b32 v{P+2*qq+1}, v{P+2*qq+3}")
    for qq in (0, 2):
        g(f"buffer_store_dwordx4 v[{P+2*qq}:{P+2*qq+3}], v29, s[{sOUT2}:{sOUT2+3}], s{s_zoff} offen offset:{16*qq}")

def kflag_offsets():
    return lines(f"""
    v_min_u32 v{v_poll}, 31, v{v_lane}
    v_lshrrev_b32 v{v_poll+1}, 1, v{v_poll}
    v_and_b32 v{v_poll}, 1, v{v_poll}
    v_lshlrev_b32 v{v_poll}, 7, v{v_poll}
    v_lshl_add_u32 v{v_poll}, v{v_poll+1}, 12, v{v_poll}
    s_lshr_b32 s{s_pb}, s2, 4
    s_lshl_b32 s{s_pb}, s{s_pb}, 8
    s_bfe_u32 s{s_t0}, s2, 0x10003
    s_lshl_b32 s{s_t0}, s{s_t0}, 6
    s_add_u32 s{s_pb}, s{s_pb}, s{s_t0}
    s_add_u32 s{s_pb}, s{s_pb}, {WS_FK}
    """)
s_fo = 32
def flag_off(base):
    return lines(f"""s_lshl_b32 s{s_fo}, s{s_mi}, 4
    s_add_u32 s{s_fo}, s{s_fo}, s{s_fi}
    s_lshl_b32 s{s_fo}, s{s_fo}, 2
    s_add_u32 s{s_fo}, s{s_fo}, s{s_w}
    s_lshl_b32 s{s_fo}, s{s_fo}, 6
    s_add_u32 s{s_fo}, s{s_fo}, {base}""")
def wave_flag_L(vt, so=s_fo):
    return [f"v_mov_b32 v{vt}, 0", f"v_mov_b32 v{vt+1}, s{s_tag}", "s_mov_b64 exec, 1",
            f"buffer_store_dword v{vt+1}, v{vt}, s[{sWS}:{sWS+3}], s{so} offen sc1", "s_mov_b64 exec, -1"]

sTC = 28
def touch_setup():
    a, b = 104, 105
    return lines(f"""
    s_mov_b32 s{sTC}, s{sWD2}
    s_mov_b32 s{sTC+1}, s{sWD2+1}
    s_mov_b32 s{sTC+2}, {D*F*2}
    s_mov_b32 s{sTC+3}, 0x20000
    s_lshr_b32 s96, s2, 3
    s_mul_i32 s96, s96, 57344
    s_sub_u32 s96, s96, {32*128}
    s_movk_i32 s97, {32*128}
    s_mul_i32 s{s_t0}, s{s_w}, 8
    v_add_u32 v{a}, s{s_t0}, v{v_lane}
    v_lshlrev_b32 v{a}, 7, v{a}
    v_mov_b32 v{b}, 0x7ffffff0
    v_cmp_gt_u32 vcc, 8, v{v_lane}
    s_nop 1
    v_cndmask_b32 v19, v{b}, v{a}, vcc
    """)
sTG = 84
def g1touch_setup(first_chunk=1):
    a, b = 104, 105
    return lines(f"""
    s_and_b32 s{s_t0}, s{s_mi}, 1
    s_cmp_eq_u32 s{s_t0}, 1
    s_cselect_b32 s{sTG}, s{sWU}, s{sWG}
    s_cselect_b32 s{sTG+1}, s{sWU+1}, s{sWG+1}
    s_mov_b32 s{sTG+2}, {D*F*2}
    s_mov_b32 s92, {first_chunk*64*3584}
    s_mov_b32 s93, {64*3584}
    s_cmp_ge_u32 s{s_w}, 2
    s_cselect_b32 s{sTG}, s{sX}, s{sTG}
    s_cselect_b32 s{sTG+1}, s{sX+1}, s{sTG+1}
    s_cselect_b32 s{sTG+2}, {S*D*2}, s{sTG+2}
    s_cselect_b32 s92, {128*first_chunk}, s92
    s_cselect_b32 s93, 128, s93
    s_mov_b32 s{sTG+3}, 0x20000
    s_bfe_u32 s{s_t0}, s{s_mi}, 0x10001
    s_lshl_b32 s{s_t0}, s{s_t0}, 5
    s_lshl_b32 s{s_t1}, s{s_mf}, 4
    s_add_u32 s{s_t0}, s{s_t0}, s{s_t1}
    v_lshrrev_b32 v{a}, 1, v{v_lane}
    v_add_u32 v{a}, s{s_t0}, v{a}
    v_mul_u32_u24 v{a}, 3584, v{a}
    v_and_b32 v{b}, 1, v{v_lane}
    v_lshl_add_u32 v{a}, v{b}, 7, v{a}
    s_lshl_b32 s{s_t0}, s{s_fi}, 8
    v_add_u32 v{a}, s{s_t0}, v{a}
    v_cmp_gt_u32 vcc, 32, v{v_lane}
    v_mov_b32 v{b}, 0x7ffffff0
    s_mul_i32 s{s_t0}, s{s_ct}, 19
    s_mul_i32 s{s_t2}, s{s_mf}, 10
    s_add_u32 s{s_t0}, s{s_t0}, s{s_t2}
    s_lshl_b32 s{s_t1}, s{s_mi}, 7
    v_cndmask_b32 v87, v{b}, v{a}, vcc
    v_add_u32 v{a}, s{s_t0}, v{v_lane}
    s_movk_i32 s{s_t2}, 128
    v_cmp_gt_u32 vcc, 10, v{v_lane}
    v_cmp_gt_u32 s[94:95], s{s_t2}, v{a}
    v_add_u32 v{a}, s{s_t1}, v{a}
    v_mul_u32_u24 v{a}, 896, v{a}
    s_and_b64 vcc, vcc, s[94:95]
    s_nop 1
    v_cndmask_b32 v{a}, v{b}, v{a}, vcc
    s_cmp_ge_u32 s{s_w}, 2
    s_cselect_b64 vcc, -1, 0
    s_nop 1
    v_cndmask_b32 v87, v87, v{a}, vcc
    """)
def g1pref_setup():
    return lines(f"""
    s_and_b32 s{s_t0}, s{s_mi}, 1
    s_cmp_eq_u32 s{s_t0}, 1
    s_cselect_b32 s{sTG}, s{sWU}, s{sWG}
    s_cselect_b32 s{sTG+1}, s{sWU+1}, s{sWG+1}
    s_mov_b32 s{sTG+2}, {D*F*2}
    s_mov_b32 s{sTG+3}, 0x20000
    s_lshl_b32 s{s_t0}, s{s_mi}, 7
    s_mul_i32 s{s_t1}, s{s_ct}, 19
    s_add_u32 s{s_t0}, s{s_t0}, s{s_t1}
    s_mul_i32 s{s_t0}, s{s_t0}, 896
    s_mul_i32 s{s_t1}, s{s_w}, 4352
    s_add_u32 s92, s{s_t0}, s{s_t1}
    s_bfe_u32 s{s_t0}, s{s_mi}, 0x10001
    s_lshl_b32 s{s_t0}, s{s_t0}, 5
    s_lshl_b32 s{s_t1}, s{s_w}, 3
    s_add_u32 s{s_t0}, s{s_t0}, s{s_t1}
    s_mul_i32 s93, s{s_t0}, 3584
    s_lshl_b32 s{s_t0}, s{s_fi}, 8
    s_add_u32 s93, s93, s{s_t0}
    v_lshrrev_b32 v104, 4, v{v_lane}
    v_mul_u32_u24 v104, 3584, v104
    v_and_b32 v105, 15, v{v_lane}
    v_lshl_add_u32 v87, v105, 4, v104
    """)
def g1pref_w(c, h):
    return ["\n".join([f"s_add_u32 s91, s93, {(64*c+4*h)*3584}", f"buffer_load_dwordx4 a[244:247], v87, s[{sTG}:{sTG+3}], s91 offen"])]
def g1pref_x(i):
    return ["\n".join([f"s_add_u32 s91, s92, {1024*i}", f"buffer_load_dwordx4 a[244:247], v{v_l16}, s[{sX}:{sX+3}], s91 offen"])]
def g1touch_L():
    return [f"buffer_load_dword a255, v87, s[{sTG}:{sTG+3}], s92 offen", "s_add_u32 s92, s92, s93"]
def wdpref(i):
    return ["\n".join([f"s_add_u32 s91, s96, {1024*i}", f"buffer_load_dwordx4 a[244:247], v{v_l16}, s[{sWD2}:{sWD2+3}], s91 offen"])]
def wdpref_setup():
    return [f"s_lshr_b32 s96, s2, 3", f"s_mul_i32 s96, s96, 57344", f"s_mul_i32 s97, s{s_w}, {14*1024}", "s_add_u32 s96, s96, s97"]
def touch_L():
    return ["s_add_u32 s96, s96, s97", f"buffer_load_dword a255, v19, s[{sTC}:{sTC+3}], s96 offen"]
TOUCH = os.environ.get("TOUCH", "none")
def gemm_path(g, stamps=False):
    S_ = lambda i: stamp(g, i, stamps)
    g.vreset()
    S_(0)
    g1_prologue(g)
    TG1 = os.environ.get("TG1", "none")
    NPF = int(os.environ.get("NPF", "4"))
    pf = []
    if TG1 == "c":
        for x in g1pref_setup(): g(x)
        pf = g1pref_w(0, 0) + g1pref_w(0, 1) + [g1pref_x(i)[0] for i in range(5)]
        for c in range(1, NPF): pf += g1pref_w(c, 0) + g1pref_w(c, 1)
    else:
        for grp in g1_groups(0): emit_mixed(g, grp, "c0")
    g(f"s_mov_b32 s{s_spin}, {WS_EPOCH}\ns_load_dword s{s_tag}, s[{sWS}:{sWS+1}], s{s_spin}\ns_lshl_b32 s98, s2, 2\ns_load_dword s99, s[96:97], s98")
    for x in g1_addr(): g(x)
    for grp in g1_groups(1): emit_mixed(g, grp, "c1")
    for r, sz in ((sKK, S*D*2), (sVV, S*D*2), (sSH, D*8), (sWS, WS_END), (sWD2, D*F*2), (sSK2, D*S*2)): srd_fix(g, r, sz)
    emit_mixed(g, kp_shk_load(), "shk")
    for x in kps_dma_setup(): g(x)
    S_(1)
    g("s_waitcnt lgkmcnt(0)")
    make_tag(g)
    g(f"s_lshl_b32 s100, s99, 16\ns_and_b32 s101, s99, 0xffff0000")
    g.vwait("c0")
    g("s_barrier")
    S_(2)
    def pre(k): return ["kp"] if k == KPK else []
    class _C:
        def __init__(self): self.L = []
        def __call__(self, t): self.L += lines(t)
    _c = _C(); kps_setup(_c); ksu = _c.L
    bB = kp_build_B()
    wsv = wd_setup_v(); eh = epi_hoff()
    def p1check(): poll_check(g, "G_p1", "p1")
    def post(k):
        E, L, X = [], [], []
        hl = conv_h_loads()
        if k == 19: E += T(wd_setup_s())
        kdl = kps_dma_L()
        if k == 0: E += T(ksu[:24])
        if k == 1: E += T(ksu[24:48])
        if k == 2: E += T(ksu[48:])
        if k == 4: E += [("VWAIT", "shk")] + T(bB[:19])
        if k == 5: E += T(bB[19:])
        if k == 8: E += T(wsv[:20])
        if k == 9: E += T(wsv[20:])
        if k == 10: E += T(eh)
        if TOUCH == "roll":
            for _ in range(list(TCHK).count(k)): X.append(T(touch_L(), "t2"))
        if TOUCH == "wide":
            WK0 = int(os.environ.get("WK0", "19"))
            plan = {}
            kk = WK0; i = 0
            while i < 14:
                n = 1 if kk <= 18 else int(os.environ.get('WN', '3'))
                plan[kk] = list(range(i, min(14, i+n))); i += n; kk += 1
            for i in plan.get(k, []): X.append(T(wdpref(i), "t2"))
        if TG1 == "c":
            later = [(c, h) for c in range(NPF, 7) for h in range(2)]
            if k < len(later): X.append(T(g1pref_w(*later[k]), "tg2"))
        if k in (3, 4, 5, 6): X.append(T(kdl[k-3:k-2], "kp"))
        if k in (7, 8): X.append(T(kps_t0_L()[k-7:k-6], "kp"))
        if k == KPK + 1: L += T(kps_stage1(), "kp1r")
        if k == KPK + 2: E += [("LWAIT", "kp1r")] + T(kps_stage2()) + T(kps_stage3())
        if k == KPK + 3: E += T(kps_stage4())
        if k == KPK + 5: E += kps_stage5()
        if k == KPK + 6: X.append([("LWAIT", "kprb")] + T(kps_store_L()[:1], "kvst"))
        if k == KPK + 7: X.append(T(kps_store_L()[1:], "kvst"))
        if k == KPK + 10: E += T(flag_off(WS_FK))
        if k == KPK + 11: X.append([("VWAIT", "kvst")] + T(wave_flag_L(86), "kflag"))
        if k == 22: L += T(hl[:4], "h")
        if k == 23: L += T(hl[4:], "h")
        if k == 20:
            L += T(f"""v_min_u32 v{v_poll}, 31, v{v_lane}
            v_lshlrev_b32 v{v_poll}, 6, v{v_poll}
            s_mov_b32 s{s_pb}, {WS_FA}""")
        if k == 20: E += T(wd_dma_e(0, 0), "wd0") + T(wd_dma_e(1, 1), "wd1")
        if k == 21: E += T(wd_dma_e(2, 2), "wd2") + T(wd_dma_e(3, 3), "wd3"); L += poll_issue("p1")
        if k == 22:
            E += T(f"""v_lshrrev_b32 v{v_tch}, 5, v{v_lane}
            v_mul_u32_u24 v{v_tch}, {7168-512}, v{v_tch}
            v_add_u32 v{v_tch}, v{v_tch}, v{v_l16}
            s_mov_b32 s{sOUT2}, s64
            s_and_b32 s{sOUT2+1}, s65, 0xffff
            s_mov_b32 s{sOUT2+2}, {S*D*2}
            s_mov_b32 s{sOUT2+3}, 0x20000""")
        if k == 24:
            E += [("CALL", p1check)] + [("\n".join(lines(f"""s_mov_b32 m0, {LST}
            s_lshl_b32 s{s_t1}, s{s_mi}, 10
            s_add_u32 s{s_t1}, s{s_t1}, {WS_STATS}
            buffer_load_dwordx4 v{v_l16}, s[{sWS}:{sWS+3}], s{s_t1} offen sc1 lds""")), "st"), ("\n".join(lines(f"""s_mov_b32 m0, {LST+1024}
            s_lshl_b32 s{s_t1}, s{s_fi}, 9
            s_add_u32 s{s_t1}, s{s_t1}, {WS_CS}
            buffer_load_dwordx4 v{v_tch}, s[{sWS}:{sWS+3}], s{s_t1} offen sc1 lds""")), "st")]
            L += [("VWAIT", "wd1")] + T(wd_tr_e(0, 0), "tr0") + T(wd_tr_e(1, 1), "tr1")
        if k == 25:
            E += T(kflag_offsets()) + poll_issue("pk")
            L += [("VWAIT", "wd3")] + T(wd_tr_e(2, 2), "tr2") + T(wd_tr_e(3, 3), "tr3")
        if k == 26:
            E += [("LWAIT", "tr1")] + T(wd_dma_e(4, 0), "wd4") + T(wd_dma_e(5, 1), "wd5")
        if k == 27:
            E += [("LWAIT", "tr3")] + T(wd_dma_e(6, 2), "wd6") + T(wd_dma_e(7, 3), "wd7")
            L += [("VWAIT", "st")] + T(epi_pre_reads(), "cs")
        return E, L, X
    g1_main(g, pre, post, stamps={0: 3, 5: 4} if stamps else None)
    S_(5)
    g("s_waitcnt lgkmcnt(0)\ns_barrier")
    def pkc(): poll_check(g, "G_pk", "pk")
    def padc(): conv_pad_code(g)
    def wdring(j): return T(wd_dma(j, j-8), f"wd{j}")
    aux0 = wdring(8) + wdring(9) + [("CALL", pkc)] + [("\n".join(conv_u_dma()), "u")] + wdring(10) + [("VWAIT", "h")] + T(conv_build_L(0))
    aux1 = wdring(11) + wdring(12) + T(conv_build_L(1)) + [("VWAIT", "wd7")]
    for j in range(4, 8): aux1 += T(wd_tr_e(j, j-4), f"tr{j}")
    aux2 = wdring(13) + wdring(14) + [("CALL", padc)] + wdring(15) + wdring(16)
    aux3 = [("LWAIT", "tr7")]
    for j in range(17, 21): aux3 += T(wd_dma_e(j, j-17), f"wd{j}")
    aux3 += T(conv_addr())
    if EST: stamp(g, 1)
    g1_epilogue(g, [aux0, aux1, aux2, aux3])
    if EST: stamp(g, 10)
    S_(6)
    g.vwait("u")
    g("s_waitcnt lgkmcnt(0)\ns_barrier")
    g.ldops = []
    for x in conv_reads(0): g.ld(x, "cv0")
    S_(7)
    def hflag():
        g.vwait("hst")
        for x in flag_off(WS_FH) + wave_flag_L(52): g.emit(x, "hflag")
    S_(8)
    conv_main(g, hflag)
    if CST: stamp(g, 13)
    S_(9)
    conv_epilogue(g)
    S_(10)
    def zflag():
        g.vwait("zst")
        g(f"s_lshl_b32 s{s_fo}, s2, 2\ns_add_u32 s{s_fo}, s{s_fo}, s{s_w}\ns_lshl_b32 s{s_fo}, s{s_fo}, 6\ns_add_u32 s{s_fo}, s{s_fo}, {WS_FZ}")
        for x in wave_flag_L(52): g.emit(x, "zflag")
    ZFJ = int(os.environ.get('ZFJ', '10'))
    def extra(j):
        L = []
        if j == 14: L += T(final_loads_x(), "x")
        if j == ZFJ: L += [("CALL", zflag)]
        if j == 17: L += T(final_z_setup())
        if j == 24: L += poll_issue("pz")
        if j == 20: L += T(final_pre())
        return L
    g2_main(g, extra)
    S_(11)
    poll_check(g, "G_p3", "pz")
    final_loads_z(g)
    g2_reduce(g)
    g2_reduce2(g)
    S_(12)
    final(g)
    S_(13)
    g("s_waitcnt vmcnt(0)")
    S_(14)
    g(f"""s_cmp_lg_u32 s2, 0
    s_cbranch_scc1 G_noep
    s_cmp_lg_u32 s{s_w}, 0
    s_cbranch_scc1 G_noep""")
    for part in range(4):
        g(f"""v_add_u32 v{v_poll}, {part*64}, v{v_lane}
        v_min_u32 v{v_poll}, 223, v{v_poll}
        v_lshlrev_b32 v{v_poll}, 8, v{v_poll}
        s_mov_b32 s{s_pb}, {WS_FZ}""")
        poll_check(g, f"G_pe{part}", None)
    g(f"""v_min_u32 v{v_poll}, 31, v{v_lane}
    v_lshlrev_b32 v{v_poll}, 6, v{v_poll}
    s_mov_b32 s{s_pb}, {WS_FA}""")
    poll_check(g, "G_pe4", None)
    g(f"""v_mov_b32 v2, {WS_EPOCH}
    v_mov_b32 v3, s{s_tag}
    s_mov_b64 exec, 1
    buffer_store_dword v3, v2, s[{sWS}:{sWS+3}], 0 offen sc1
    s_mov_b64 exec, -1
    s_waitcnt vmcnt(0)
    G_noep:""")

def gen_full(stamps=False):
    g = G()
    g(header([f"grid=(256,1,1) block=(256,1,1) lds={LDS_TOTAL}"]))
    g(kstart(KN))
    g("s_cmp_ge_u32 s2, 224\ns_cbranch_scc1 L_spare")
    if stamps: start_rt(g)
    gemm_path(g, stamps=stamps)
    if stamps: dump_stamps(g)
    g("s_endpgm")
    g("L_spare:")
    g("s_cmp_ge_u32 s2, 256\ns_cbranch_scc1 L_end")
    if stamps: start_rt(g)
    spare(g, flags=True, stamps=stamps)
    if stamps: dump_stamps(g)
    g("L_end:\ns_endpgm")
    g(kdesc(KN, vgpr=512, sgpr=102, accum=256))
    return g.a.text()
def gen_full_stamps(): return gen_full(stamps=True)
def gen_kst0():
    global KSTAMP, stamp
    KSTAMP = 0
    return gen_kstx()
def gen_kst14():
    global KSTAMP
    KSTAMP = 14
    return gen_kstx()
def gen_est():
    return gen_kstx()
def gen_gst():
    global GSTAMP
    GSTAMP = int(os.environ["GK"])
    return gen_kstx()
def gen_kstx():
    g = G()
    g(header([f"grid=(256,1,1) block=(256,1,1) lds={LDS_TOTAL}"]))
    g(kstart(KN))
    g("s_cmp_ge_u32 s2, 224\ns_cbranch_scc1 L_spare")
    stamp(g, 0)
    gemm_path(g, stamps=False)
    dump_stamps(g)
    g("s_endpgm")
    g("L_spare:")
    g("s_cmp_ge_u32 s2, 256\ns_cbranch_scc1 L_end")
    spare(g, flags=True, stamps=False)
    g("L_end:\ns_endpgm")
    g(kdesc(KN, vgpr=512, sgpr=102, accum=256))
    return g.a.text()

if __name__ == "__main__":
    import runner
    which = sys.argv[1]
    txt = globals()["gen_"+which]()
    open(f"dev/{which}.s", "w").write(txt)
    runner.build(f"dev/{which}.s", KN, 13)
    from runner import cl
    print("ok", len(txt), cl.address_register_problem(f"dev/{which}.co", KN))
```

```python
import math, struct, sys
from dsl import *

S, D, F = 2048, 448, 1792
KN = "recurrent_scan__ssm_conv_h3__geglu_ffn__prompt_kernel"
def f2u(x): return struct.unpack('<I', struct.pack('<f', x))[0]
def fh(x): return hex(f2u(x))

import os
WSB = int(os.environ.get("WSB", "0"), 0)
WS_EPOCH = WSB + 0
WS_FA = WSB + 0x1000
WS_FK = WSB + 0x10000
WS_FH = WSB + 0x20000
WS_FZ = WSB + 0x30000
WS_STATS = WSB + 0x40000
WS_CS    = WS_STATS + 2048*8
WS_KVT   = WSB + 0x50000
WS_ZP    = WS_KVT + D*S*2
WS_H     = WS_ZP + D*S*2
WS_END   = WS_H + 64*112*1024
WS_STAMPS = 40<<20

KA = dict(q=0,k=8,v=16,shk=24,ssmk=32,ssmD=40,bx=48,wg=56,wu=64,wd=72,out=80,dbg=88,ws=96)
C1 = -2*math.sqrt(2/math.pi)*math.log2(math.e)
C2 = C1*0.044715
LDS_TOTAL = 163840

class G:
    def __init__(self):
        self.a = Asm()
        self.vmops = []
        self.ldops = []
        self.stags = set(["hst"])
    def __call__(self, s): self.a(s)
    def vm(self, s, tag=None):
        self.a(s); self.vmops.append(tag)
        if "store" in s: self.stags.add(tag)
    def vwait(self, tag):
        idx = max(i for i, t in enumerate(self.vmops) if t == tag)
        st = tag in self.stags
        n = len(self.vmops) - 1 - idx
        assert n <= 63, n
        self.a(f"s_waitcnt vmcnt({n})")
    def vreset(self): self.vmops = []
    def ld(self, s, tag=None):
        self.a(s); self.ldops.append(tag)
    def lwait(self, tag):
        idx = max(i for i, t in enumerate(self.ldops) if t == tag)
        n = min(15, len(self.ldops) - 1 - idx)
        self.a(f"s_waitcnt lgkmcnt({n})")
    def emit(self, s, tag=None):
        if "\n" in s:
            for x in s.split("\n"): self.emit(x, tag)
        elif s == "VWAIT": self.vwait(tag)
        elif s == "LWAIT": self.lwait(tag)
        elif s.startswith("buffer_"): self.vm(s, tag)
        elif s.startswith("ds_"): self.ld(s, tag)
        else: self.a(s)
    def lab(self, n): self.a.label(n)

def srd_load(g, r, name):
    g(f"s_load_dwordx2 s[{r}:{r+1}], s[0:1], {KA[name]}")
def srd_fix(g, r, size):
    g(f"s_and_b32 s{r+1}, s{r+1}, 0xffff\ns_mov_b32 s{r+2}, {size}\ns_mov_b32 s{r+3}, 0x20000")

sX, sWG, sWU, sWS, sWD, sSK, sOUT, sDD = 4, 8, 12, 16, 20, 24, 28, 32
s_w, s_mi, s_fi, s_mf, s_ns = 36, 37, 38, 39, 40
s_xoff, s_woff, s_m0x, s_m0w = 41, 42, 43, 44
s_t0, s_t1, s_t2, s_t3 = 45, 46, 47, 48
s_hoff = 49
s_tag = 50
s_spin = 51
STAMP0 = 66
NSTAMP = 15
def stamp(g, i, on=True):
    if on: g(f"s_memtime s[{STAMP0+2*i}:{STAMP0+2*i+1}]")
def start_rt(g):
    g("s_memrealtime s[98:99]\ns_waitcnt lgkmcnt(0)\nv_mov_b32 v20, s98\nv_accvgpr_write_b32 a254, v20")
def dump_stamps(g, n=NSTAMP):
    g(f"""s_waitcnt lgkmcnt(0) vmcnt(0)
    s_memrealtime s[{STAMP0+2*n}:{STAMP0+2*n+1}]
    s_waitcnt lgkmcnt(0)
    s_mov_b32 s{sWS+2}, 0x7fffffff
    s_lshl_b32 s{s_t0}, s2, 9
    s_lshl_b32 s{s_t1}, s{s_w}, 7
    s_add_u32 s{s_t0}, s{s_t0}, s{s_t1}
    s_add_u32 s{s_t0}, s{s_t0}, {WS_STAMPS}
    v_mov_b32 v2, 0""")
    for i in range(n+1):
        g(f"v_mov_b32 v3, s{STAMP0+2*i}\nbuffer_store_dword v3, v2, s[{sWS}:{sWS+3}], s{s_t0} offen offset:{4*i}")
    g(f"v_accvgpr_read_b32 v3, a254\nbuffer_store_dword v3, v2, s[{sWS}:{sWS+3}], s{s_t0} offen offset:{4*(n+1)}")
    g("s_waitcnt vmcnt(0)")

def load_tag(g):
    g(f"s_mov_b32 s{s_spin}, {WS_EPOCH}\ns_load_dword s{s_tag}, s[{sWS}:{sWS+1}], s{s_spin}")
def make_tag(g):
    g(f"s_mul_i32 s{s_tag}, s{s_tag}, 0x9E3779B1\ns_add_u32 s{s_tag}, s{s_tag}, 0x7F4A7C15")

def rnd_bf16(g, r, tmp=None):
    g(f"v_cvt_pk_bf16_f32 v{r}, v{r}, v{r}\nv_lshlrev_b32 v{r}, 16, v{r}")

def publish_flag(g, off_expr_sgpr, lab):
    g("s_waitcnt vmcnt(0)\ns_barrier")
    g(f"""s_cmp_lg_u32 s{s_w}, 0
    s_cbranch_scc1 {lab}
    v_mov_b32 v2, 0
    v_mov_b32 v3, s{s_tag}
    s_mov_b64 exec, 1
    buffer_store_dword v3, v2, s[{sWS}:{sWS+3}], s{off_expr_sgpr} offen sc1
    s_mov_b64 exec, -1
    {lab}:""")

def flag_store(g, off_sgpr, lab, vt=14):
    g(f"""s_cmp_lg_u32 s{s_w}, 0
    s_cbranch_scc1 {lab}
    v_mov_b32 v{vt}, 0
    v_mov_b32 v{vt+1}, s{s_tag}
    s_mov_b64 exec, 1
    buffer_store_dword v{vt+1}, v{vt}, s[{sWS}:{sWS+3}], s{off_sgpr} offen sc1
    s_mov_b64 exec, -1
    {lab}:""")

def spare(g, flags=True, stamps=False):
    sWC = 32
    s_j = 37
    vl = 1
    LC = 0
    srd_load(g, sX, 'q'); srd_load(g, sWG, 'wg'); srd_load(g, sWU, 'wu'); srd_load(g, sWS, 'ws')
    g(f"""
    v_and_b32 v{vl}, 63, v0
    v_lshrrev_b32 v2, 6, v0
    s_sub_u32 s{s_j}, s2, 224
    v_readfirstlane_b32 s{s_w}, v2
    v_and_b32 v3, 15, v{vl}              ; n / p
    v_lshrrev_b32 v4, 4, v{vl}           ; q / rgl
    s_lshl_b32 s{s_t0}, s{s_w}, 4
    v_add_u32 v5, s{s_t0}, v3            ; 16w + n
    v_mul_u32_u24 v5, 896, v5
    v_lshl_add_u32 v5, v4, 4, v5         ; R voffset
    s_and_b32 s{s_t0}, s{s_j}, 7              ; xcd
    s_lshr_b32 s{s_t1}, s{s_j}, 3             ; q
    s_lshr_b32 s{s_t2}, s{s_t0}, 1            ; xcd>>1
    s_and_b32 s{s_t0}, s{s_t0}, 1             ; p
    s_lshl_b32 s52, s{s_t2}, 3
    s_lshl_b32 s53, s{s_t0}, 2
    s_add_u32 s52, s52, s53
    s_add_u32 s52, s52, s{s_t1}               ; s52 = rb = 8*(x>>1) + 4p + q
    s_lshl_b32 s53, s{s_t2}, 2
    s_add_u32 s53, s53, s{s_t1}               ; s53 = i = 4*(x>>1) + q
    s_mul_i32 s54, s{s_t0}, 7                 ; 7p
    s_mul_i32 s{s_xoff}, s52, {64*896}
    s_lshl_b32 s{s_t0}, s{s_w}, 2
    v_add_u32 v6, s{s_t0}, v4
    v_mul_u32_u24 v6, 3584, v6
    v_lshl_add_u32 v6, v3, 4, v6         ; C voffset
    s_cmp_ge_u32 s53, 7
    s_cselect_b32 s{s_t1}, 7, 0
    s_sub_u32 s{s_fi}, s53, s{s_t1}
    s_add_u32 s{s_fi}, s{s_fi}, s54      ; fb
    s_lshl_b32 s{s_woff}, s{s_fi}, 8
    s_waitcnt lgkmcnt(0)
    """)
    load_tag(g)
    g(f"""s_cmp_ge_u32 s53, 7
    s_cselect_b32 s{sWC}, s{sWU}, s{sWG}
    s_cselect_b32 s{sWC+1}, s{sWU+1}, s{sWG+1}""")
    srd_fix(g, sX, S*D*2); srd_fix(g, sWC, D*F*2); srd_fix(g, sWS, WS_END)
    stamp(g, 0, stamps)
    RB = 16
    for ks in range(14):
        g(f"buffer_load_dwordx4 v[{RB+4*ks}:{RB+4*ks+3}], v5, s[{sX}:{sX+3}], s{s_xoff} offen offset:{64*ks}")
    CB = 72
    g(f"s_cmp_ge_u32 s53, 14\ns_cbranch_scc1 SP_noC1")
    g(f"s_mov_b32 s{s_t3}, s{s_woff}")
    for i in range(28):
        g(f"buffer_load_dwordx4 v[{CB+4*i}:{CB+4*i+3}], v6, s[{sWC}:{sWC+3}], s{s_t3} offen")
        if i < 27: g(f"s_add_u32 s{s_t3}, s{s_t3}, {16*3584}")
    g("s_waitcnt vmcnt(28)\ns_branch SP_w1\nSP_noC1:\ns_waitcnt vmcnt(0)\nSP_w1:")
    stamp(g, 1, stamps)
    g("v_mov_b32 v8, 0x3f803f80\nv_mov_b32 v9, 0x3f803f80\nv_mov_b32 v10, 0x3f803f80\nv_mov_b32 v11, 0x3f803f80\ns_nop 1")
    D1, D2 = 184, 188
    for ks in range(14):
        A = f"v[{RB+4*ks}:{RB+4*ks+3}]"
        c1 = "0" if ks == 0 else f"v[{D1}:{D1+3}]"
        c2 = "0" if ks == 0 else f"v[{D2}:{D2+3}]"
        g(f"v_mfma_f32_16x16x32_bf16 v[{D1}:{D1+3}], {A}, v[8:11], {c1}")
        g(f"v_mfma_f32_16x16x32_bf16 v[{D2}:{D2+3}], {A}, {A}, {c2}")
    g(f"""
    v_and_b32 v12, 3, v{vl}
    v_cmp_eq_u32 s[90:91], 1, v12
    v_cmp_eq_u32 s[92:93], 2, v12
    v_cmp_eq_u32 s[94:95], 3, v12
    v_lshrrev_b32 v13, 2, v3              ; n>>2
    v_cmp_eq_u32 s[96:97], v13, v4        ; q == n>>2
    s_nop 7
    v_cndmask_b32 v{D1}, v{D1}, v{D1+1}, s[90:91]
    v_cndmask_b32 v{D2}, v{D2}, v{D2+1}, s[90:91]
    v_cndmask_b32 v{D1}, v{D1}, v{D1+2}, s[92:93]
    v_cndmask_b32 v{D2}, v{D2}, v{D2+2}, s[92:93]
    v_cndmask_b32 v{D1}, v{D1}, v{D1+3}, s[94:95]
    v_cndmask_b32 v{D2}, v{D2}, v{D2+3}, s[94:95]
    v_mul_f32 v{D1}, {fh(1.0/448)}, v{D1}            ; mean
    v_mul_f32 v{D2}, {fh(1.0/448)}, v{D2}            ; E[x^2]
    v_fma_f32 v{D2}, -v{D1}, v{D1}, v{D2}            ; var
    v_max_f32 v{D2}, 0, v{D2}
    """)
    rnd_bf16(g, D1); rnd_bf16(g, D2)
    g(f"v_add_f32 v{D2}, {fh(1e-5)}, v{D2}"); rnd_bf16(g, D2)
    g(f"v_sqrt_f32 v{D2}, v{D2}\ns_nop 0"); rnd_bf16(g, D2)
    g(f"""
    v_mov_b32 v{D1+1}, v{D2}
    s_lshl_b32 s{s_t0}, s52, 9
    s_lshl_b32 s{s_t1}, s{s_w}, 7
    s_add_u32 s{s_t0}, s{s_t0}, s{s_t1}
    s_add_u32 s{s_t0}, s{s_t0}, {WS_STATS}
    v_lshlrev_b32 v13, 3, v3
    s_mov_b64 exec, s[96:97]
    buffer_store_dwordx2 v[{D1}:{D1+1}], v13, s[{sWS}:{sWS+3}], s{s_t0} offen sc1
    s_mov_b64 exec, -1
    """)
    stamp(g, 2, stamps)
    g(f"s_cmp_ge_u32 s53, 14\ns_cbranch_scc1 SP_noC2")
    CA = 200
    g(f"s_mov_b32 s90, 0x00003f80\ns_mov_b32 s91, 0x3f800000")
    for c in range(8): g(f"v_mov_b32 v{CA+c}, 0")
    g("s_waitcnt vmcnt(1)")
    g(f"s_mov_b32 s{s_t0}, 0")
    g.lab("SP_Cloop")
    g(f"s_set_gpr_idx_on s{s_t0}, gpr_idx(SRC0)")
    for i in range(7):
        for q in range(4):
            g(f"v_dot2_f32_bf16 v{CA+2*q}, v{CB+4*i+q}, s90, v{CA+2*q}")
            g(f"v_dot2_f32_bf16 v{CA+2*q+1}, v{CB+4*i+q}, s91, v{CA+2*q+1}")
    g(f"""s_set_gpr_idx_off
    s_add_u32 s{s_t0}, s{s_t0}, 28
    s_cmp_lt_u32 s{s_t0}, 112
    s_cbranch_scc1 SP_Cloop""")
    g(f"""
    s_lshl_b32 s{s_t0}, s{s_w}, 2
    v_add_u32 v13, s{s_t0}, v4            ; rg
    v_lshlrev_b32 v13, 9, v13
    v_lshl_add_u32 v13, v3, 5, v13
    v_add_u32 v13, {LC}, v13
    s_nop 2
    ds_write_b128 v13, v[{CA}:{CA+3}]
    ds_write_b128 v13, v[{CA+4}:{CA+7}] offset:16
    s_waitcnt lgkmcnt(0)
    s_barrier
    s_cmp_ge_u32 s{s_w}, 2
    s_cbranch_scc1 SP_noC2
    v_lshlrev_b32 v13, 2, v0
    v_add_u32 v14, {LC}, v13
    """)
    for r in range(16): g(f"ds_read_b32 v{CB+r}, v14 offset:{512*r}")
    g("s_waitcnt lgkmcnt(0)")
    for r in range(8): g(f"v_add_f32 v{CB+r}, v{CB+r}, v{CB+r+8}")
    for r in range(4): g(f"v_add_f32 v{CB+r}, v{CB+r}, v{CB+r+4}")
    g(f"v_add_f32 v{CB}, v{CB}, v{CB+2}\nv_add_f32 v{CB+1}, v{CB+1}, v{CB+3}\nv_add_f32 v{CB}, v{CB}, v{CB+1}")
    g(f"""
    s_cmp_ge_u32 s53, 7
    s_cselect_b32 s{s_t0}, 7168, 0
    s_lshl_b32 s{s_t1}, s{s_fi}, 9
    s_add_u32 s{s_t0}, s{s_t0}, s{s_t1}
    s_add_u32 s{s_t0}, s{s_t0}, {WS_CS}
    buffer_store_dword v{CB}, v13, s[{sWS}:{sWS+3}], s{s_t0} offen sc1
    SP_noC2:
    """)
    stamp(g, 3, stamps)
    g("s_waitcnt vmcnt(0) lgkmcnt(0)")
    make_tag(g)
    g("s_barrier")
    if flags:
        g(f"s_lshl_b32 s{s_t0}, s{s_j}, 6\ns_add_u32 s{s_t0}, s{s_t0}, {WS_FA}")
        flag_store(g, s_t0, "SP_nf1")
    stamp(g, 4, stamps)


def lines(txt):
    out = []
    for l in txt.strip().split("\n"):
        l = l.split(";")[0].strip()
        if l: out.append(l)
    return out
def emit_mixed(g, L, tag):
    for x in L: g.emit(x, tag)
def T(L, tag=None):
    L = lines(L) if isinstance(L, str) else list(L)
    out = []; cur = None
    for x in L:
        if "\n" in x:
            out.append((x, tag))
        elif x.startswith("s_mov_b64 exec,") and not x.endswith("-1"):
            cur = [x]
        elif cur is not None:
            cur.append(x)
            if x == "s_mov_b64 exec, -1":
                out.append(("\n".join(cur), tag)); cur = None
        else:
            out.append((x, tag))
    assert cur is None
    return out

LX = 0; LW = 49152
LKT = 147968; LVT = LKT + 4352; LKO = LKT + 8448
LST = 18432
RING = 20480
LCV = 114688; CVCOPY = 4160; CVCH = 4*CVCOPY
LU = 152576; CVUS = 5120
E1B = 81920; E2B = 16384

sKK, sVV, sSH = 20, 24, 28
sWD2, sSK2, sOUT2 = 56, 60, 8
s_kv, s_kk, s_kt, s_ko = 32, 33, 34, 35
s_hi, s_ct = 52, 53
s_zoff = 54
s_pb = 55
s_t4 = 3

v_lane = 1
v_xd = 2
v_wd = 6
v_xa = 10
v_wa = 14
v_l16 = 18
v_fr = 20
v_poll = 126
v_hv = 70
v_tch = 71
v_acc = 128
def accg(ft, nt): return v_acc + (ft*2+nt)*16
def accu(ft, nt): return v_acc + 64 + (ft*2+nt)*16
kB1, kB2, kvA, kvV, kvOW, kvOR, kvG, kvD0, kvD1 = 72, 76, 80, 81, 82, 83, 84, 85, 86
kA, kV, kD, kU, kO = 88, 104, 108, 116, 124

def poll_check(g, name, issued_tag):
    vt = v_poll
    if issued_tag is not None:
        g.vwait(issued_tag)
        g(f"v_cmp_ne_u32 vcc, s{s_tag}, v{vt+1}\ns_cbranch_vccz {name}_done")
    g(f"""
    s_mov_b32 s{s_spin}, 0x8000
    {name}_loop:
    buffer_load_dword v{vt+1}, v{vt}, s[{sWS}:{sWS+3}], s{s_pb} offen sc1
    s_waitcnt vmcnt(0)
    v_cmp_ne_u32 vcc, s{s_tag}, v{vt+1}
    s_cbranch_vccz {name}_done
    s_sleep 1
    s_sub_u32 s{s_spin}, s{s_spin}, 1
    s_cmp_lg_u32 s{s_spin}, 0
    s_cbranch_scc1 {name}_loop
    {name}_done:
    """)
def poll_issue(tag): return [(f"buffer_load_dword v{v_poll+1}, v{v_poll}, s[{sWS}:{sWS+3}], s{s_pb} offen sc1", tag)]
def wave_flag(g, off_sgpr):
    g(f"""v_mov_b32 v{v_hv}, 0
    v_mov_b32 v{v_tch}, s{s_tag}
    s_mov_b64 exec, 1""")
    g.vm(f"buffer_store_dword v{v_tch}, v{v_hv}, s[{sWS}:{sWS+3}], s{off_sgpr} offen sc1", "flag")
    g("s_mov_b64 exec, -1")

def g1_prologue(g):
    srd_load(g, sX, 'q'); srd_load(g, sWG, 'wg'); srd_load(g, sWU, 'wu')
    srd_load(g, sKK, 'k'); srd_load(g, sVV, 'v'); srd_load(g, sSH, 'shk'); srd_load(g, sWS, 'ws')
    srd_load(g, sWD2, 'wd'); srd_load(g, sSK2, 'ssmk'); srd_load(g, 64, 'out'); srd_load(g, 96, 'ssmD')
    g(f"""
    v_and_b32 v{v_lane}, 63, v0
    v_lshrrev_b32 v20, 6, v0
    s_lshr_b32 s{s_t0}, s2, 3
    s_and_b32 s{s_t1}, s2, 7
    v_readfirstlane_b32 s{s_w}, v20
    s_mul_i32 s{s_t2}, s{s_t0}, 37
    s_lshr_b32 s{s_t2}, s{s_t2}, 8
    s_mul_i32 s{s_t3}, s{s_t2}, 7
    s_sub_u32 s{s_ct}, s{s_t0}, s{s_t3}
    s_lshr_b32 s{s_mi}, s{s_t1}, 1
    s_lshl_b32 s{s_mi}, s{s_mi}, 2
    s_add_u32 s{s_mi}, s{s_mi}, s{s_t2}
    s_and_b32 s{s_hi}, s{s_t1}, 1
    s_mul_i32 s{s_t1}, s{s_hi}, 7
    s_add_u32 s{s_fi}, s{s_ct}, s{s_t1}
    v_lshrrev_b32 v20, 3, v{v_lane}
    v_lshrrev_b32 v21, 4, v{v_lane}
    v_and_b32 v22, 7, v{v_lane}
    v_mul_u32_u24 v20, 896, v20
    v_xor_b32 v23, v22, v21
    v_xor_b32 v28, 4, v23
    v_lshl_add_u32 v{v_xd}, v23, 4, v20
    v_lshl_add_u32 v28, v28, 4, v20
    v_add_u32 v{v_xd+1}, {8*896-1024}, v28
    v_add_u32 v{v_xd+2}, {2*(8*896-1024)}, v{v_xd}
    v_add_u32 v{v_xd+3}, {3*(8*896-1024)}, v28
    v_and_b32 v22, 15, v{v_lane}
    v_lshlrev_b32 v23, 2, v21
    v_sub_u32 v22, v22, v23
    v_and_b32 v22, 15, v22
    v_mul_u32_u24 v23, 3584, v21
    v_lshl_add_u32 v{v_wd}, v22, 4, v23
    v_add_u32 v{v_wd+1}, {4*3584-1024}, v{v_wd}
    v_add_u32 v{v_wd+2}, {2*(4*3584-1024)}, v{v_wd}
    v_add_u32 v{v_wd+3}, {3*(4*3584-1024)}, v{v_wd}
    s_lshl_b32 s{s_t0}, s{s_mi}, 7
    s_lshl_b32 s{s_t1}, s{s_w}, 5
    s_add_u32 s{s_t0}, s{s_t0}, s{s_t1}
    s_mul_i32 s{s_xoff}, s{s_t0}, 896
    s_mul_i32 s{s_woff}, s{s_w}, {16*3584}
    s_lshl_b32 s{s_t0}, s{s_fi}, 8
    s_add_u32 s{s_woff}, s{s_woff}, s{s_t0}
    s_lshl_b32 s{s_m0x}, s{s_w}, 12
    s_add_u32 s{s_m0w}, s{s_m0x}, {LW}
    s_and_b32 s{s_mf}, s{s_w}, 1
    s_lshr_b32 s{s_ns}, s{s_w}, 1
    s_lshl_b32 s{s_t4}, s{s_w}, 11
    v_lshlrev_b32 v{v_l16}, 4, v{v_lane}
    s_waitcnt lgkmcnt(0)
    """)
    srd_fix(g, sX, S*D*2); srd_fix(g, sWG, D*F*2); srd_fix(g, sWU, D*F*2)

def g1_dma_x(c):
    sl = c % 3
    L = [f"s_add_u32 m0, s{s_m0x}, {LX + sl*16384}", f"s_add_u32 s{s_t3}, s{s_xoff}, {128*c}"]
    for ii in range(4):
        L.append(f"buffer_load_dwordx4 v{v_xd+ii}, s[{sX}:{sX+3}], s{s_t3} offen offset:{1024*ii} lds")
    return L
def g1_dma_w(c, mat):
    sl = c % 3
    sr = sWG if mat == 0 else sWU
    L = [f"s_add_u32 m0, s{s_m0w}, {sl*32768 + mat*16384}", f"s_add_u32 s{s_t3}, s{s_woff}, {64*c*3584}"]
    for ii in range(4):
        L.append(f"buffer_load_dwordx4 v{v_wd+ii}, s[{sr}:{sr+3}], s{s_t3} offen offset:{1024*ii} lds")
    return L
def g1_groups(c): return [g1_dma_x(c), g1_dma_w(c,0), g1_dma_w(c,1)]

def kp_setup_dma():
    return lines(f"""
    v_lshrrev_b32 v104, 2, v{v_lane}
    v_and_b32 v105, 3, v{v_lane}
    v_mul_u32_u24 v104, 896, v104
    v_lshl_add_u32 v{kvD1}, v105, 4, v104
    s_lshl_b32 s{s_t0}, s{s_mi}, 7
    s_lshl_b32 s{s_t2}, s{s_fi}, 6
    s_add_u32 s{s_t1}, s{s_t0}, 61
    s_mul_i32 s{s_kt}, s{s_t1}, 896
    s_add_u32 s{s_kt}, s{s_kt}, s{s_t2}
    s_lshl_b32 s{s_t1}, s{s_w}, 4
    s_add_u32 s{s_t0}, s{s_t0}, s{s_t1}
    s_mul_i32 s{s_kv}, s{s_t0}, 896
    s_add_u32 s{s_kv}, s{s_kv}, s{s_t2}
    s_cmp_eq_u32 s{s_t0}, 0
    s_cselect_b32 s{s_t1}, 0, 2688
    s_cselect_b32 s{s_t2}, 2688, 0
    s_sub_u32 s{s_kk}, s{s_kv}, s{s_t1}
    v_subrev_u32 v{kvD0}, s{s_t2}, v{kvD1}
    """)
def kp_dma(h):
    NL = "\n"
    if h == 0:
        return [NL.join([f"s_lshr_b32 s{s_t0}, s{s_t4}, 1", f"s_add_u32 m0, s{s_t0}, {LKT}", "s_nop 0",
                         f"buffer_load_dwordx4 v{kvD0}, s[{sKK}:{sKK+3}], s{s_kk} offen lds"]),
                NL.join([f"s_lshr_b32 s{s_t0}, s{s_t4}, 1", f"s_add_u32 m0, s{s_t0}, {LVT}", "s_nop 0",
                         f"buffer_load_dwordx4 v{kvD1}, s[{sVV}:{sVV+3}], s{s_kv} offen lds"]),
                NL.join([f"s_mov_b32 m0, {LKT+4096}", "s_mov_b64 exec, 0xfff",
                         f"buffer_load_dwordx4 v{kvD1}, s[{sKK}:{sKK+3}], s{s_kt} offen lds", "s_mov_b64 exec, -1"])]
    return [NL.join([f"s_lshr_b32 s{s_t0}, s{s_t4}, 1", f"s_add_u32 m0, s{s_t0}, {LKT}", f"s_add_u32 s{s_t1}, s{s_kv}, {57344-2688}",
                     f"buffer_load_dwordx4 v{kvD1}, s[{sKK}:{sKK+3}], s{s_t1} offen lds"]),
            NL.join([f"s_lshr_b32 s{s_t0}, s{s_t4}, 1", f"s_add_u32 m0, s{s_t0}, {LVT}", f"s_add_u32 s{s_t1}, s{s_kv}, 57344",
                     f"buffer_load_dwordx4 v{kvD1}, s[{sVV}:{sVV+3}], s{s_t1} offen lds"]),
            NL.join([f"s_mov_b32 m0, {LKT+4096}", f"s_add_u32 s{s_t1}, s{s_kt}, 57344", "s_mov_b64 exec, 0xfff",
                     f"buffer_load_dwordx4 v{kvD1}, s[{sKK}:{sKK+3}], s{s_t1} offen lds", "s_mov_b64 exec, -1"])]
def kp_shk_load():
    return lines(f"""
    v_and_b32 v{kA+2}, 15, v{v_lane}
    s_lshl_b32 s{s_t0}, s{s_fi}, 5
    s_lshl_b32 s{s_t1}, s{s_mf}, 4
    s_add_u32 s{s_t0}, s{s_t0}, s{s_t1}
    s_lshl_b32 s{s_t1}, s{s_t0}, 3
    v_lshlrev_b32 v{kA+3}, 3, v{kA+2}
    buffer_load_dwordx2 v[{kA}:{kA+1}], v{kA+3}, s[{sSH}:{sSH+3}], s{s_t1} offen
    """)
def kp_setup_addr():
    n, kq, t0, t1 = 104, 105, 106, 107
    return lines(f"""
    v_and_b32 v{n}, 15, v{v_lane}
    v_lshrrev_b32 v{kq}, 4, v{v_lane}
    v_lshrrev_b32 v{t0}, 2, v{n}
    v_and_b32 v{t1}, 3, v{n}
    v_lshl_add_u32 v{t0}, v{t0}, 3, v{t1}
    v_lshrrev_b32 v{t1}, 1, v{kq}
    v_sub_u32 v{t0}, v{t0}, v{t1}
    v_add_u32 v{t0}, 1, v{t0}
    s_lshl_b32 s{s_t0}, s{s_ns}, 5
    v_add_u32 v{t0}, s{s_t0}, v{t0}
    v_lshlrev_b32 v{t0}, 6, v{t0}
    v_and_b32 v{t1}, 1, v{kq}
    v_lshl_add_u32 v{t0}, v{t1}, 4, v{t0}
    s_lshl_b32 s{s_t1}, s{s_mf}, 5
    s_add_u32 s{s_t2}, s{s_t1}, {LKT}
    v_add_u32 v{kvA}, s{s_t2}, v{t0}
    v_lshrrev_b32 v{t0}, 2, v{n}
    v_lshl_add_u32 v{t0}, v{kq}, 3, v{t0}
    v_add_u32 v{t0}, s{s_t0}, v{t0}
    v_lshlrev_b32 v{t0}, 6, v{t0}
    v_and_b32 v{t1}, 3, v{n}
    v_lshl_add_u32 v{t0}, v{t1}, 3, v{t0}
    s_add_u32 s{s_t2}, s{s_t1}, {LVT}
    v_add_u32 v{kvV}, s{s_t2}, v{t0}
    s_lshr_b32 s{s_t0}, s{s_t4}, 1
    s_add_u32 s{s_t0}, s{s_t0}, {LKO}
    v_sub_u32 v{t0}, 3, v{kq}
    v_lshlrev_b32 v{t0}, 4, v{t0}
    v_lshl_add_u32 v{t0}, v{n}, 6, v{t0}
    v_add_u32 v{kvOW}, s{s_t0}, v{t0}
    v_add_u32 v{kvOR}, s{s_t0}, v{v_l16}
    v_lshrrev_b32 v{t0}, 2, v{v_lane}
    v_lshlrev_b32 v{t0}, 12, v{t0}
    v_and_b32 v{t1}, 3, v{v_lane}
    v_lshl_add_u32 v{kvG}, v{t1}, 4, v{t0}
    s_lshl_b32 s{s_t0}, s{s_fi}, 5
    s_lshl_b32 s{s_t1}, s{s_mf}, 4
    s_add_u32 s{s_t0}, s{s_t0}, s{s_t1}
    s_lshl_b32 s{s_t0}, s{s_t0}, 12
    s_lshl_b32 s{s_t1}, s{s_mi}, 8
    s_sub_u32 s{s_t0}, s{s_t0}, s{s_t1}
    s_lshl_b32 s{s_t1}, s{s_ns}, 6
    s_sub_u32 s{s_t0}, s{s_t0}, s{s_t1}
    s_add_u32 s{s_ko}, s{s_t0}, {WS_KVT + 4032}
    """)
def kp_build_B():
    n, kq, a, b, c, d = 108, 109, 110, 111, 112, 113
    L = lines(f"""
    v_and_b32 v{n}, 15, v{v_lane}
    v_lshrrev_b32 v{kq}, 4, v{v_lane}
    v_lshrrev_b32 v{a}, 1, v{kq}
    v_lshlrev_b32 v{a}, 4, v{a}
    v_lshrrev_b32 v{b}, v{a}, v{kA}
    v_lshrrev_b32 v{c}, v{a}, v{kA+1}
    v_and_b32 v{b}, 0xffff, v{b}
    v_and_b32 v{c}, 0xffff, v{c}
    v_and_b32 v{a}, 1, v{n}
    v_lshlrev_b32 v{a}, 4, v{a}
    v_lshlrev_b32 v{b}, v{a}, v{b}
    v_lshlrev_b32 v{c}, v{a}, v{c}
    v_lshrrev_b32 v{a}, 3, v{n}
    v_and_b32 v{d}, 1, v{kq}
    v_cmp_eq_u32 vcc, v{a}, v{d}
    v_bfe_u32 v{a}, v{n}, 1, 2
    s_nop 0
    v_cndmask_b32 v{b}, 0, v{b}, vcc
    v_cndmask_b32 v{c}, 0, v{c}, vcc
    """)
    for i in range(4):
        L += [f"v_cmp_eq_u32 vcc, {i}, v{a}", "s_nop 1", f"v_cndmask_b32 v{kB1+i}, 0, v{b}, vcc", f"v_cndmask_b32 v{kB2+i}, 0, v{c}, vcc"]
    return L
def kp_reads():
    L = []
    for t in range(2):
        L.append(f"ds_read_b128 v[{kA+8*t}:{kA+8*t+3}], v{kvA} offset:{256*t+128}")
        L.append(f"ds_read_b128 v[{kA+8*t+4}:{kA+8*t+7}], v{kvA} offset:{256*t}")
        L.append(f"ds_read_b64_tr_b16 v[{kV+2*t}:{kV+2*t+1}], v{kvV} offset:{256*t}")
    return L
def kp_mfma():
    L = []
    for t in range(2): L.append(f"v_mfma_f32_16x16x32_bf16 v[{kD+4*t}:{kD+4*t+3}], v[{kA+8*t}:{kA+8*t+3}], v[{kB1}:{kB1+3}], 0")
    for t in range(2): L.append(f"v_mfma_f32_16x16x32_bf16 v[{kD+4*t}:{kD+4*t+3}], v[{kA+8*t+4}:{kA+8*t+7}], v[{kB2}:{kB2+3}], v[{kD+4*t}:{kD+4*t+3}]")
    for t in range(2):
        for h in range(2):
            L += [f"v_lshlrev_b32 v{kU+4*t+2*h}, 16, v{kV+2*t+h}", f"v_and_b32 v{kU+4*t+2*h+1}, 0xffff0000, v{kV+2*t+h}"]
    return L
def kp_finish():
    L = []
    for t in range(2):
        for h in range(2):
            L.append(f"v_pk_mul_f32 v[{kD+4*t+2*h}:{kD+4*t+2*h+1}], v[{kD+4*t+2*h}:{kD+4*t+2*h+1}], v[{kU+4*t+2*h}:{kU+4*t+2*h+1}]")
    for e in range(4):
        t = 1 - (e >> 1); r = 3 - 2*(e & 1)
        L.append(f"v_cvt_pk_bf16_f32 v{kO+e}, v{kD+4*t+r}, v{kD+4*t+r-1}")
    L.append(f"ds_write_b128 v{kvOW}, v[{kO}:{kO+3}]")
    return L
def kp_readback(): return [f"ds_read_b128 v[{kO}:{kO+3}], v{kvOR}"]
def kp_store(h):
    if h == 0: return [f"buffer_store_dwordx4 v[{kO}:{kO+3}], v{kvG}, s[{sWS}:{sWS+3}], s{s_ko} offen sc1"]
    return [f"s_sub_u32 s{s_t0}, s{s_ko}, 128", f"buffer_store_dwordx4 v[{kO}:{kO+3}], v{kvG}, s[{sWS}:{sWS+3}], s{s_t0} offen sc1"]


LKT2 = 147456; LVT2 = 155648; LKO2 = 147456
def kps_dma_setup():
    return lines(f"""
    v_lshrrev_b32 v106, 2, v{v_lane}
    v_and_b32 v107, 3, v{v_lane}
    v_mul_u32_u24 v106, 896, v106
    v_lshl_add_u32 v104, v107, 4, v106
    v_add_u32 v105, {16*896-1024}, v104
    s_lshl_b32 s{s_t0}, s{s_mi}, 7
    s_lshl_b32 s{s_t1}, s{s_w}, 5
    s_add_u32 s{s_t0}, s{s_t0}, s{s_t1}
    s_mul_i32 s34, s{s_t0}, 896
    s_lshl_b32 s{s_t2}, s{s_fi}, 6
    s_add_u32 s34, s34, s{s_t2}
    v_and_b32 v106, 15, v{v_lane}
    v_lshrrev_b32 v107, 2, v106
    v_and_b32 v106, 3, v106
    v_lshl_add_u32 v106, v107, 4, v106
    v_lshrrev_b32 v107, 5, v{v_lane}
    v_sub_u32 v106, v106, v107
    v_add_u32 v106, 1, v106
    v_mul_u32_u24 v106, 896, v106
    v_bfe_u32 v107, v{v_lane}, 4, 1
    v_lshl_add_u32 v106, v107, 4, v106
    s_lshl_b32 s{s_t0}, s{s_mi}, 7
    s_lshl_b32 s{s_t1}, s{s_ns}, 6
    s_add_u32 s{s_t0}, s{s_t0}, s{s_t1}
    s_mul_i32 s35, s{s_t0}, 896
    s_add_u32 s35, s35, s{s_t2}
    s_lshl_b32 s{s_t1}, s{s_mf}, 5
    s_add_u32 s35, s35, s{s_t1}
    s_cmp_eq_u32 s{s_t0}, 0
    s_cselect_b32 s{s_t1}, 0, 2688
    s_cselect_b32 s{s_t2}, 2688, 0
    s_sub_u32 s35, s35, s{s_t1}
    v_subrev_u32 v106, s{s_t2}, v106
    v_add_u32 v107, 1792, v106
    """)
def kps_dma_L():
    NL = "\n"
    return [NL.join([f"s_add_u32 m0, s{s_t4}, {LKT2}", "s_nop 0", f"buffer_load_dwordx4 v104, s[{sKK}:{sKK+3}], s34 offen lds"]),
            NL.join([f"s_add_u32 m0, s{s_t4}, {LKT2}", "s_nop 0", f"buffer_load_dwordx4 v105, s[{sKK}:{sKK+3}], s34 offen offset:1024 lds"]),
            NL.join([f"s_add_u32 m0, s{s_t4}, {LVT2}", "s_nop 0", f"buffer_load_dwordx4 v104, s[{sVV}:{sVV+3}], s34 offen lds"]),
            NL.join([f"s_add_u32 m0, s{s_t4}, {LVT2}", "s_nop 0", f"buffer_load_dwordx4 v105, s[{sVV}:{sVV+3}], s34 offen offset:1024 lds"])]
kT0 = 88
def kps_t0_L():
    return [f"buffer_load_dwordx4 v[{kT0}:{kT0+3}], v107, s[{sKK}:{sKK+3}], s35 offen",
            f"buffer_load_dwordx4 v[{kT0+4}:{kT0+7}], v106, s[{sKK}:{sKK+3}], s35 offen"]
def kps_setup(g):
    g(f"""
    v_and_b32 v108, 15, v{v_lane}
    v_lshrrev_b32 v109, 4, v{v_lane}
    v_lshrrev_b32 v110, 2, v108
    v_and_b32 v111, 3, v108
    v_lshl_add_u32 v110, v110, 4, v111
    v_lshrrev_b32 v111, 1, v109
    v_sub_u32 v110, v110, v111
    v_add_u32 v110, 2, v110
    s_lshl_b32 s{s_t0}, s{s_ns}, 6
    v_add_u32 v110, s{s_t0}, v110
    v_lshlrev_b32 v110, 6, v110
    v_and_b32 v111, 1, v109
    v_lshl_add_u32 v110, v111, 4, v110
    s_lshl_b32 s{s_t1}, s{s_mf}, 5
    s_add_u32 s{s_t2}, s{s_t1}, {LKT2}
    v_add_u32 v80, s{s_t2}, v110
    v_lshrrev_b32 v110, 2, v108
    v_lshl_add_u32 v110, v109, 4, v110
    v_add_u32 v110, s{s_t0}, v110
    v_lshlrev_b32 v110, 6, v110
    v_and_b32 v111, 3, v108
    v_lshl_add_u32 v110, v111, 3, v110
    s_add_u32 s{s_t2}, s{s_t1}, {LVT2}
    v_add_u32 v81, s{s_t2}, v110
    v_lshlrev_b32 v110, 1, v109
    v_sub_u32 v110, 6, v110
    v_and_b32 v111, 7, v108
    v_xor_b32 v110, v110, v111
    v_xor_b32 v111, 1, v110
    v_lshlrev_b32 v83, 7, v108
    s_add_u32 s{s_t1}, s{s_t4}, {LKO2}
    v_add_u32 v83, s{s_t1}, v83
    v_lshl_add_u32 v82, v110, 4, v83
    v_lshl_add_u32 v83, v111, 4, v83
    v_lshrrev_b32 v110, 3, v{v_lane}
    v_and_b32 v111, 7, v{v_lane}
    v_xor_b32 v84, v111, v110
    v_lshlrev_b32 v85, 7, v110
    v_lshl_add_u32 v84, v84, 4, v85
    v_add_u32 v84, s{s_t1}, v84
    v_lshlrev_b32 v85, 12, v110
    v_lshl_add_u32 v85, v111, 4, v85
    s_lshl_b32 s{s_t0}, s{s_fi}, 5
    s_lshl_b32 s{s_t1}, s{s_mf}, 4
    s_add_u32 s{s_t0}, s{s_t0}, s{s_t1}
    s_lshl_b32 s{s_t0}, s{s_t0}, 12
    s_lshl_b32 s{s_t1}, s{s_mi}, 8
    s_lshl_b32 s{s_t2}, s{s_ns}, 7
    s_add_u32 s{s_t1}, s{s_t1}, s{s_t2}
    s_sub_u32 s{s_t0}, s{s_t0}, s{s_t1}
    s_add_u32 s94, s{s_t0}, {WS_KVT + 1984*2}
    s_add_u32 s95, s94, {8*4096}
    """)
kpA, kpV, kpU, kpO = 96, 120, 100, 116
kpD = [68, 88, 92, 96]
def kps_stage1():
    L = []
    for t in range(1, 4):
        L.append(f"ds_read_b128 v[{kpA+8*(t-1)}:{kpA+8*(t-1)+3}], v80 offset:{256*(t-1)+128}")
        L.append(f"ds_read_b128 v[{kpA+8*(t-1)+4}:{kpA+8*(t-1)+7}], v80 offset:{256*(t-1)}")
    for t in range(4):
        L.append(f"ds_read_b64_tr_b16 v[{kpV+2*t}:{kpV+2*t+1}], v81 offset:{256*t}")
    return L
def kps_stage2():
    L = []
    for t in range(4):
        a = kT0 if t == 0 else kpA+8*(t-1)
        L.append(f"v_mfma_f32_16x16x32_bf16 v[{kpD[t]}:{kpD[t]+3}], v[{a}:{a+3}], v[{kB1}:{kB1+3}], 0")
        L.append(f"v_mfma_f32_16x16x32_bf16 v[{kpD[t]}:{kpD[t]+3}], v[{a+4}:{a+7}], v[{kB2}:{kB2+3}], v[{kpD[t]}:{kpD[t]+3}]")
    return L
def kps_stage3():
    L = []
    for t in range(4):
        for h in range(2):
            L += [f"v_lshlrev_b32 v{kpU+4*t+2*h}, 16, v{kpV+2*t+h}", f"v_and_b32 v{kpU+4*t+2*h+1}, 0xffff0000, v{kpV+2*t+h}"]
    return L
def kps_stage4():
    L = []
    for t in range(4):
        for r in range(4): L.append(f"v_mul_f32 v{kpD[t]+r}, v{kpD[t]+r}, v{kpU+4*t+r}")
    for e in range(8):
        t = 3 - (e >> 1); r = 3 - 2*(e & 1)
        L.append(f"v_cvt_pk_bf16_f32 v{kpO+e}, v{kpD[t]+r}, v{kpD[t]+r-1}")
    return L
def kps_stage5():
    O = kpO
    return [(f"ds_write_b128 v82, v[{O}:{O+3}]", None), (f"ds_write_b128 v83, v[{O+4}:{O+7}]", None),
            (f"ds_read_b128 v[{O}:{O+3}], v84", None), (f"ds_read_b128 v[{O+4}:{O+7}], v84 offset:1024", "kprb")]
def kps_store_L():
    O = 116
    return [f"buffer_store_dwordx4 v[{O}:{O+3}], v85, s[{sWS}:{sWS+3}], s94 offen sc1",
            f"buffer_store_dwordx4 v[{O+4}:{O+7}], v85, s[{sWS}:{sWS+3}], s95 offen sc1"]

def g1_addr():
    L = lines(f"""
    v_and_b32 v20, 31, v{v_lane}
    v_lshrrev_b32 v21, 5, v{v_lane}
    v_bfe_u32 v22, v{v_lane}, 1, 3
    v_xor_b32 v22, v22, v21
    s_lshl_b32 s{s_t0}, s{s_ns}, 13
    v_lshl_add_u32 v20, v20, 7, s{s_t0}
    """)
    for ks in range(4):
        L += [f"v_xor_b32 v23, {2*ks}, v22", f"v_lshl_add_u32 v{v_xa+ks}, v23, 4, v20"]
    L += lines(f"""
    v_bfe_u32 v20, v{v_lane}, 2, 2
    v_bfe_u32 v22, v{v_lane}, 4, 1
    v_bfe_u32 v23, v{v_lane}, 1, 1
    v_and_b32 v24, 1, v{v_lane}
    v_lshl_add_u32 v22, v22, 1, v23
    v_lshlrev_b32 v25, 11, v21
    v_lshl_add_u32 v25, v20, 8, v25
    v_lshl_add_u32 v25, v24, 3, v25
    v_lshl_add_u32 v25, v22, 4, v25
    v_add_u32 v25, {LW}, v25
    s_lshl_b32 s{s_t0}, s{s_mf}, 1
    """)
    for ft in range(2):
        L += lines(f"""
        v_add_u32 v26, s{s_t0}, v20
        v_add_u32 v26, {ft}, v26
        v_and_b32 v26, 3, v26
        v_lshl_add_u32 v{v_wa+ft}, v26, 6, v25
        v_add_u32 v{v_wa+2+ft}, 65536, v{v_wa+ft}
        """)
    return L

def g1_frag_reads(kstep):
    c, ks = divmod(kstep, 4)
    sl = c % 3
    b = v_fr + (kstep & 1)*24
    L = []
    for nt in range(2):
        L.append(f"ds_read_b128 v[{b+4*nt}:{b+4*nt+3}], v{v_xa+ks} offset:{sl*16384 + nt*4096}")
    for mat in range(2):
        for ft in range(2):
            r = b + 8 + mat*8 + ft*4
            base = v_wa + ft + (2 if sl == 2 else 0)
            off = (sl*32768 if sl < 2 else 0) + mat*16384 + ks*4096
            L.append(f"ds_read_b64_tr_b16 v[{r}:{r+1}], v{base} offset:{off}")
            L.append(f"ds_read_b64_tr_b16 v[{r+2}:{r+3}], v{base} offset:{off+1024}")
    return L

def g1_mfmas(kstep):
    b = v_fr + (kstep & 1)*24
    L = []
    for ft in range(2):
        for nt in range(2):
            for mat in range(2):
                acc = accg(ft, nt) if mat == 0 else accu(ft, nt)
                A = b + 8 + mat*8 + ft*4
                B = b + 4*nt
                cin = "0" if kstep == 0 else f"v[{acc}:{acc+15}]"
                L.append(f"v_mfma_f32_32x32x16_bf16 v[{acc}:{acc+15}], v[{A}:{A+3}], v[{B}:{B+3}], {cin}")
    return L

def spread(per, items, lo, hi):
    n = len(items)
    for i, x in enumerate(items):
        per[min(hi, lo + (i*(hi-lo+1))//n)].append(x)

KSTAMP = None
EST = os.environ.get('EST') == '1'
CST = os.environ.get('CST') == '1'
GSTAMP = None
def g1_chunk_stream(c):
    out = []
    for grp in g1_groups(c):
        for i in range(4):
            out.append((grp[:2] if i == 0 else [], grp[2+i], grp[0]))
    return out
def g1_main(g, pre, post, stamps=None):
    g.ldops = []
    for s_ in g1_frag_reads(0): g.ld(s_, "fr0")
    sched = {k: [] for k in range(28)}
    st2 = g1_chunk_stream(2)
    for i, x in enumerate(st2): sched[i // 4].append((x, "c2"))
    for c in range(0, 4):
        stc = g1_chunk_stream(c+3)
        for i, x in enumerate(stc): sched[4*c + 3 + i // 3].append((x, f"c{c+3}"))
    cur_m0 = [None]
    for k in range(28):
        c, ks = divmod(k, 4)
        g.lwait(f"fr{k}")
        if KSTAMP is not None and KSTAMP <= k < KSTAMP + 14: stamp(g, k - KSTAMP + 1)
        if ks == 3 and c < 6:
            g.vwait(f"c{c+1}")
            for tg in pre(k): g.vwait(tg)
            g("s_barrier")
            if stamps and c in stamps: stamp(g, stamps[c])
        per = [[] for _ in range(8)]
        if k+1 < 28: spread(per, T(g1_frag_reads(k+1), f"fr{k+1}"), 0, 4)
        items = sched[k]
        early, late, vx = post(k)
        dm = [[] for _ in range(8)]
        if len(items) == 4: sg, xg = [1, 3, 5, 7], [2, 6]
        elif len(items) == 3: sg, xg = ([1, 5, 7], [3, 6]) if vx else ([1, 4, 7], [])
        else: sg, xg = [], [1, 3, 5, 7, 2, 6, 4, 0]
        for it_, gp in zip(items, sg): dm[gp].append(it_)
        assert len(vx) <= len(xg), (k, len(vx))
        xs = sorted(xg[:len(vx)])
        if early: spread(per, early, 0, 7)
        for grp_, gp in zip(vx, xs): per[gp] += grp_
        if late: spread(per, late, 4, 7)
        m = g1_mfmas(k)
        for i in range(8):
            if GSTAMP is not None and k == GSTAMP: stamp(g, i + 1)
            if GSTAMP is not None and k == GSTAMP + 1 and i < 5: stamp(g, i + 9)
            g(m[i])
            for s_, tag in per[i]:
                if s_ == "CALL": tag()
                else:
                    g.emit(s_, tag)
                    if "m0" in s_ and not s_.startswith("buffer_") : m0_dirty[0] = True
                    if "m0," in s_: m0_dirty[0] = True
            for (salu, load, m0i), tag in dm[i]:
                if salu:
                    for x in salu: g(x)
                    m0_dirty[0] = False
                elif m0_dirty[0]:
                    g(m0i); g("s_nop 0"); m0_dirty[0] = False
                g.vm(load, tag)
m0_dirty = [False]
TCHK = eval(os.environ.get('TCHK', '(12,13,14,17,18,19,19,19,21,21,22,23,23,23)'))
KPK = int(os.environ.get('KPK', '11'))

v_cs = 72
v_rc = 100
v_t = 108
v_csa = v_t + 1
def epi_pre_reads():
    return lines(f"""
    v_and_b32 v{v_t}, 31, v{v_lane}
    s_lshl_b32 s{s_t1}, s{s_ns}, 9
    s_add_u32 s{s_t1}, s{s_t1}, {LST}
    v_lshl_add_u32 v{v_t}, v{v_t}, 3, s{s_t1}
    v_lshrrev_b32 v{v_csa}, 5, v{v_lane}
    s_lshl_b32 s{s_t1}, s{s_mf}, 8
    s_add_u32 s{s_t1}, s{s_t1}, {LST+1024}
    v_lshl_add_u32 v{v_csa}, v{v_csa}, 4, s{s_t1}
    ds_read_b64 v[{v_t+2}:{v_t+3}], v{v_t}
    ds_read_b64 v[{v_t+4}:{v_t+5}], v{v_t} offset:256
    """) + epi_cs_reads()
def epi_cs_reads():
    return [f"ds_read_b128 v[{v_cs}:{v_cs+3}], v{v_csa}", f"ds_read_b128 v[{v_cs+4}:{v_cs+7}], v{v_csa} offset:32",
            f"ds_read_b128 v[{v_cs+8}:{v_cs+11}], v{v_csa} offset:512", f"ds_read_b128 v[{v_cs+12}:{v_cs+15}], v{v_csa} offset:544",
            f"v_add_u32 v{v_csa}, 64, v{v_csa}"]
def epi_hoff():
    return lines(f"""
    s_lshl_b32 s{s_t0}, s{s_mi}, 2
    s_lshl_b32 s{s_t1}, s{s_ns}, 1
    s_add_u32 s{s_t0}, s{s_t0}, s{s_t1}
    s_mul_i32 s{s_t0}, s{s_t0}, 112
    s_lshl_b32 s{s_t1}, s{s_fi}, 3
    s_add_u32 s{s_t0}, s{s_t0}, s{s_t1}
    s_lshl_b32 s{s_t1}, s{s_mf}, 2
    s_add_u32 s{s_t0}, s{s_t0}, s{s_t1}
    s_lshl_b32 s{s_hoff}, s{s_t0}, 10
    s_add_u32 s{s_hoff}, s{s_hoff}, {WS_H}
    """)
HST = os.environ.get('HST', 'sc1')
vW0, vW1, vW2, vW3 = 120, 121, 122, 123
def g1_epilogue(g, aux):
    for nt in range(2):
        m, sd = v_t+2+2*nt, v_t+3+2*nt
        rc = v_rc + 4*nt
        g(f"""
        v_rcp_f32 v{v_t+6}, v{sd}
        v_sub_f32 v{rc}, 0, v{m}
        v_mul_f32 v{rc+1}, v{sd}, v{sd}
        v_mul_f32 v{rc+2}, {fh(C1)}, v{v_t+6}
        v_mul_f32 v{v_t+7}, v{v_t+6}, v{v_t+6}
        v_mul_f32 v{v_t+7}, v{v_t+7}, v{v_t+6}
        v_mul_f32 v{rc+3}, {fh(C2)}, v{v_t+7}
        """)
    P = 88
    Z = 20
    def pr(x): return f"v[{x}:{x+1}]"
    for it in range(4):
        ft, hq = it >> 1, it & 1
        if EST: stamp(g, 2 + it)
        main = []
        main.append(("LWAIT", "cs"))
        for nt in range(2):
            rc = v_rc + 4*nt; nm = f"v[{rc}:{rc+1}]"
            for pp in range(4):
                r = 8*hq + 2*pp
                tg = accg(ft, nt) + r; tu = accu(ft, nt) + r
                main.append((f"v_pk_fma_f32 {pr(tg)}, {pr(v_cs+2*pp)}, {nm}, {pr(tg)} op_sel_hi:[1,0,1]", None))
                main.append((f"v_pk_fma_f32 {pr(tu)}, {pr(v_cs+8+2*pp)}, {nm}, {pr(tu)} op_sel_hi:[1,0,1]", None))
        if it < 3: main += T(epi_cs_reads(), "cs")
        for nt in range(2):
            rc = v_rc + 4*nt; nm = f"v[{rc}:{rc+1}]"; cc = f"v[{rc+2}:{rc+3}]"
            steps = [
              lambda tg,tu,z: [f"v_pk_mul_f32 {pr(z)}, {pr(tg)}, {pr(tg)}"],
              lambda tg,tu,z: [f"v_pk_fma_f32 {pr(z)}, {pr(z)}, {cc}, {cc} op_sel:[0,1,0] op_sel_hi:[1,1,0]"],
              lambda tg,tu,z: [f"v_pk_mul_f32 {pr(z)}, {pr(z)}, {pr(tg)}"],
              lambda tg,tu,z: [f"v_exp_f32 v{z}, v{z}", f"v_exp_f32 v{z+1}, v{z+1}"],
              lambda tg,tu,z: [f"v_pk_mul_f32 {pr(tu)}, {pr(tu)}, {pr(tg)}"],
              lambda tg,tu,z: [f"v_pk_fma_f32 {pr(z)}, {pr(z)}, {nm}, {nm} op_sel:[0,1,1] op_sel_hi:[1,1,1]"],
              lambda tg,tu,z: [f"v_rcp_f32 v{z}, v{z}", f"v_rcp_f32 v{z+1}, v{z+1}"],
              lambda tg,tu,z: [f"v_pk_mul_f32 {pr(tu)}, {pr(tu)}, {pr(z)}"],
            ]
            for st in steps:
                for pp in range(4):
                    r = 8*hq + 2*pp
                    main += T(st(accg(ft, nt) + r, accu(ft, nt) + r, Z + 8*nt + 2*pp))
            for pp in range(4):
                r = 8*hq + 2*pp
                main.append((f"v_cvt_pk_bf16_f32 v{P+4*nt+pp}, v{accu(ft, nt)+r}, v{accu(ft, nt)+r+1}", None))
            off = (nt*112 + 2*ft + hq) * 1024
            main.append((f"s_add_u32 s{s_t2}, s{s_hoff}, {off}\nbuffer_store_dwordx4 v[{P+4*nt}:{P+4*nt+3}], v{v_l16}, s[{sWS}:{sWS+3}], s{s_t2} offen {HST}", "hst"))
        a = aux[it]
        if os.environ.get("XAUX") == "front":
            for x2, t2 in a:
                if x2 == "CALL": t2()
                else: g.emit(x2, t2)
            a = []
            if EST: stamp(g, 6 + it)
        n, k = len(main), 0
        for i, (x, tg_) in enumerate(main):
            g.emit(x, tg_)
            while k < len(a) and k < ((i+1)*len(a))//n:
                x2, t2 = a[k]
                if x2 == "CALL": t2()
                else: g.emit(x2, t2)
                k += 1

def g1_epilogue_loop(g, blocks):
    for nt in range(2):
        m, sd = v_t+2+2*nt, v_t+3+2*nt
        rc = v_rc + 4*nt
        g(f"""
        v_rcp_f32 v{v_t+6}, v{sd}
        v_sub_f32 v{rc}, 0, v{m}
        v_mul_f32 v{rc+1}, v{sd}, v{sd}
        v_mul_f32 v{rc+2}, {fh(C1)}, v{v_t+6}
        v_mul_f32 v{v_t+7}, v{v_t+6}, v{v_t+6}
        v_mul_f32 v{v_t+7}, v{v_t+7}, v{v_t+6}
        v_mul_f32 v{rc+3}, {fh(C2)}, v{v_t+7}
        """)
    TG = 20
    P = 88
    g(f"s_mov_b32 s{s_t0}, 0\ns_mov_b32 s{s_t1}, s{s_hoff}\ns_mov_b32 s96, s{s_m0x}")
    def wd_dyn():
        if os.environ.get("XNOWD"): return
        g(f"s_mov_b32 m0, s96\ns_add_u32 s96, s96, 2048")
        for x in ptr_next(28, 29, s_woff, 14336): g(x)
        g(f"buffer_load_dwordx4 v{vW0}, s[{sWD2}:{sWD2+3}], s{s_t3} offen lds")
        g(f"buffer_load_dwordx4 v{vW1}, s[{sWD2}:{sWD2+3}], s{s_t3} offen offset:1024 lds")
    wd_dyn()
    g.lab("E1_loop")
    g(f"s_set_gpr_idx_on s{s_t0}, gpr_idx(SRC2)")
    for nt in range(2):
        rc = v_rc + 4*nt; nm = f"v[{rc}:{rc+1}]"
        b = TG + 24*nt
        for pp in range(4):
            r = 2*pp
            g(f"v_pk_fma_f32 v[{b+r}:{b+r+1}], v[{v_cs+r}:{v_cs+r+1}], {nm}, v[{accg(0,nt)+r}:{accg(0,nt)+r+1}] op_sel_hi:[1,0,1]")
            g(f"v_pk_fma_f32 v[{b+8+r}:{b+8+r+1}], v[{v_cs+8+r}:{v_cs+8+r+1}], {nm}, v[{accu(0,nt)+r}:{accu(0,nt)+r+1}] op_sel_hi:[1,0,1]")
    g("s_set_gpr_idx_off")
    for x in epi_cs_reads(): g(x)
    for nt in range(2):
        wd_dyn()
        rc = v_rc + 4*nt; nm = f"v[{rc}:{rc+1}]"; cc = f"v[{rc+2}:{rc+3}]"
        b = TG + 24*nt
        def pr(x): return f"v[{x}:{x+1}]"
        steps = [
          lambda tg,tu,z: [f"v_pk_mul_f32 {pr(z)}, {pr(tg)}, {pr(tg)}"],
          lambda tg,tu,z: [f"v_pk_fma_f32 {pr(z)}, {pr(z)}, {cc}, {cc} op_sel:[0,1,0] op_sel_hi:[1,1,0]"],
          lambda tg,tu,z: [f"v_pk_mul_f32 {pr(z)}, {pr(z)}, {pr(tg)}"],
          lambda tg,tu,z: [f"v_exp_f32 v{z}, v{z}", f"v_exp_f32 v{z+1}, v{z+1}"],
          lambda tg,tu,z: [f"v_pk_mul_f32 {pr(tu)}, {pr(tu)}, {pr(tg)}"],
          lambda tg,tu,z: [f"v_pk_fma_f32 {pr(z)}, {pr(z)}, {nm}, {nm} op_sel:[0,1,1] op_sel_hi:[1,1,1]"],
          lambda tg,tu,z: [f"v_rcp_f32 v{z}, v{z}", f"v_rcp_f32 v{z+1}, v{z+1}"],
          lambda tg,tu,z: [f"v_pk_mul_f32 {pr(tu)}, {pr(tu)}, {pr(z)}"],
        ]
        for st in steps:
            for pp in range(4):
                for x in st(b+2*pp, b+8+2*pp, b+16+2*pp): g(x)
        for pp in range(4):
            g(f"v_cvt_pk_bf16_f32 v{P+4*nt+pp}, v{b+8+2*pp}, v{b+8+2*pp+1}")
        if os.environ.get("XNOST"): pass
        elif nt == 0: g(f"buffer_store_dwordx4 v[{P}:{P+3}], v{v_l16}, s[{sWS}:{sWS+3}], s{s_t1} offen {HST}")
        else: g(f"s_add_u32 s{s_t2}, s{s_t1}, {112*1024}\nbuffer_store_dwordx4 v[{P+4}:{P+7}], v{v_l16}, s[{sWS}:{sWS+3}], s{s_t2} offen {HST}")
    g(f"s_cmp_eq_u32 s{s_t0}, 0\ns_cbranch_scc1 E1_b0\ns_cmp_eq_u32 s{s_t0}, 8\ns_cbranch_scc1 E1_b1\ns_cmp_eq_u32 s{s_t0}, 32\ns_cbranch_scc1 E1_b2\ns_branch E1_b3")
    base_vm = list(g.vmops)
    seq = ["wd", "wd"]
    g.vmops = base_vm + seq
    for it in range(4):
        g.vmops += [f"wd{9+2*it}", f"wd{9+2*it}", "hst", f"wd{10+2*it}", f"wd{10+2*it}", "hst"]
        g.lab(f"E1_b{it}")
        g.ldops = []
        if EST: stamp(g, 2 + 2*it)
        blocks[it]()
        if EST: stamp(g, 3 + 2*it)
        if it < 3: g("s_branch E1_next")
    g.lab("E1_next")
    g(f"""
    s_add_u32 s{s_t1}, s{s_t1}, 1024
    s_add_u32 s{s_t0}, s{s_t0}, 8
    s_bitcmp1_b32 s{s_t0}, 4
    s_cselect_b32 s{s_t2}, 16, 0
    s_add_u32 s{s_t0}, s{s_t0}, s{s_t2}
    s_cmp_lt_u32 s{s_t0}, 64
    s_waitcnt lgkmcnt(0)
    s_cbranch_scc1 E1_loop
    """)

a_h = 224
def conv_h_loads():
    L = [f"v_lshlrev_b32 v{v_hv}, 4, v0", f"s_lshl_b32 s{s_zoff}, s2, 13"]
    for ch in range(2):
        r = a_h + ch*8
        L.append(f"buffer_load_dwordx4 a[{r}:{r+3}], v{v_hv}, s[{sSK2}:{sSK2+3}], s{s_zoff} offen")
        L.append(f"buffer_load_dwordx2 a[{r+4}:{r+5}], v{v_hv}, s[{sSK2}:{sSK2+3}], s{s_zoff} offen offset:16")
        if ch == 0: L.append(f"s_add_u32 s{s_zoff}, s{s_zoff}, 4096")
    return L

def conv_build_L(ch):
    W, C1, C2, C3, AD = 2, 8, 12, 96, 16
    L = [f"v_lshlrev_b32 v{AD}, 4, v0", f"v_add_u32 v{AD}, {LCV+32+ch*CVCH}, v{AD}"]
    for i in range(6): L.append(f"v_accvgpr_read_b32 v{W+i}, a{a_h+8*ch+i}")
    for i in range(4): L.append(f"v_alignbit_b32 v{C1+i}, v{W+i+1}, v{W+i}, 16")
    for i in range(4): L.append(f"v_mov_b32 v{C2+i}, v{W+i+1}")
    for i in range(3): L.append(f"v_mov_b32 v{C3+i}, v{C1+i+1}")
    L.append(f"v_alignbit_b32 v{C3+3}, v{W+5}, v{W+4}, 16")
    L.append(f"ds_write_b128 v{AD}, v[{W}:{W+3}]")
    L.append(f"ds_write_b128 v{AD}, v[{C1}:{C1+3}] offset:{CVCOPY}")
    L.append(f"ds_write_b128 v{AD}, v[{C2}:{C2+3}] offset:{2*CVCOPY}")
    L.append(f"ds_write_b128 v{AD}, v[{C3}:{C3+3}] offset:{3*CVCOPY}")
    return L
def conv_pads(g):
    pass
def conv_pads_L():
    return None

def conv_u_dma():
    return lines(f"""
    s_lshl_b32 s98, s2, 13
    s_add_u32 s98, s98, s{s_t4}
    s_add_u32 s98, s98, {WS_KVT}
    s_mul_i32 s{s_t2}, s{s_ns}, {CVUS}
    s_lshl_b32 s99, s{s_mf}, 11
    s_add_u32 s{s_t2}, s{s_t2}, s99
    s_add_u32 m0, s{s_t2}, {LU}
    s_nop 0
    buffer_load_dwordx4 v{v_l16}, s[{sWS}:{sWS+3}], s98 offen sc1 lds
    buffer_load_dwordx4 v{v_l16}, s[{sWS}:{sWS+3}], s98 offen offset:1024 sc1 lds
    """)

def conv_pad_code(g):
    g(f"""
    s_cmp_eq_u32 s{s_w}, 0
    s_cbranch_scc0 CB_w1
    v_mov_b32 v8, 0
    v_mov_b32 v9, 0
    v_mov_b32 v10, 0
    v_mov_b32 v11, 0
    """)
    for ch in range(2):
        g(f"""
        v_accvgpr_read_b32 v12, a{a_h+8*ch}
        v_accvgpr_read_b32 v13, a{a_h+8*ch+1}
        s_nop 0
        v_readlane_b32 s34, v12, 0
        v_readlane_b32 s35, v13, 0
        s_nop 3
        s_lshl_b32 s98, s34, 16
        s_lshr_b32 s99, s34, 16
        s_lshl_b32 s35, s35, 16
        s_or_b32 s99, s99, s35
        v_writelane_b32 v11, s98, {8*ch+3}
        v_writelane_b32 v11, s34, {8*ch+5}
        v_writelane_b32 v11, s99, {8*ch+7}
        v_writelane_b32 v10, s98, {8*ch+7}
        """)
    g(f"""
    v_lshrrev_b32 v12, 3, v{v_lane}
    v_mul_u32_u24 v12, {CVCH}, v12
    v_bfe_u32 v13, v{v_lane}, 1, 2
    v_mul_u32_u24 v13, {CVCOPY}, v13
    v_add_u32 v12, v12, v13
    v_and_b32 v13, 1, v{v_lane}
    v_lshl_add_u32 v12, v13, 4, v12
    v_add_u32 v12, {LCV}, v12
    s_mov_b64 exec, 0xffff
    ds_write_b128 v12, v[8:11]
    s_mov_b64 exec, -1
    s_branch CB_done
    CB_w1:
    s_cmp_eq_u32 s{s_w}, 1
    s_cbranch_scc0 CB_done
    v_mov_b32 v8, 0
    v_mov_b32 v9, 0
    v_mov_b32 v10, 0
    v_mov_b32 v11, 0
    v_add_u32 v12, {LU+4096}, v{v_l16}
    ds_write_b128 v12, v[8:11]
    ds_write_b128 v12, v[8:11] offset:{CVUS}
    CB_done:
    """)

cv_D = 128
cv_A = [160, 64]; cv_B = [192, 92]
cv_A = [160, 20]; cv_B = [192, 56]
v_la, v_lb = 124, 125
def conv_addr():
    return lines(f"""
    v_and_b32 v2, 15, v{v_lane}
    v_lshrrev_b32 v3, 4, v{v_lane}
    v_add_u32 v4, 1, v2
    v_and_b32 v5, 3, v4
    v_mul_u32_u24 v5, {CVCOPY}, v5
    v_lshrrev_b32 v4, 2, v4
    v_lshl_add_u32 v5, v4, 3, v5
    v_lshl_add_u32 v5, v3, 4, v5
    s_mul_i32 s98, s{s_ns}, {CVCH}
    s_add_u32 s98, s98, {LCV}
    v_add_u32 v{v_la}, s98, v5
    v_lshlrev_b32 v4, 5, v2
    v_lshlrev_b32 v5, 4, v3
    v_sub_u32 v5, v5, v4
    s_mul_i32 s98, s{s_ns}, {CVUS}
    s_lshl_b32 s99, s{s_mf}, 9
    s_sub_u32 s98, s98, s99
    s_add_u32 s98, s98, {LU + 4064 - 3072}
    v_add_u32 v{v_lb}, s98, v5
    """)
def conv_reads(cl):
    A, B = cv_A[cl & 1], cv_B[cl & 1]
    L = []
    for i in range(8):
        L.append(f"ds_read_b64 v[{A+4*i}:{A+4*i+1}], v{v_la} offset:{64*cl+512*i}")
        L.append(f"ds_read_b64 v[{A+4*i+2}:{A+4*i+3}], v{v_la} offset:{64*cl+512*i+8}")
        L.append(f"ds_read_b128 v[{B+4*i}:{B+4*i+3}], v{v_lb} offset:{64*cl+512*(7-i)}")
    return L
def conv_mfmas(cl):
    A, B = cv_A[cl & 1], cv_B[cl & 1]
    L = []
    pairs = sorted([(a, ib) for a in range(8) for ib in range(8) if (a + ib - 1) in (0, 2, 4, 6)], key=lambda p: (max(p), p))
    first = set()
    for a, ib in pairs:
        tau = (a + ib - 1) // 2
        d = cv_D + 4*tau
        cin = "0" if (cl == 0 and tau not in first) else f"v[{d}:{d+3}]"
        first.add(tau)
        L.append(f"v_mfma_f32_16x16x32_bf16 v[{d}:{d+3}], v[{A+4*a}:{A+4*a+3}], v[{B+4*ib}:{B+4*ib+3}], {cin}")
    assert len(L) == 20
    return L

def wd_setup_v():
    a, b, c, d, e, f = 112, 113, 114, 115, 116, 117
    return lines(f"""
    v_lshrrev_b32 v{a}, 3, v{v_lane}
    v_and_b32 v{b}, 7, v{v_lane}
    v_bfe_u32 v{c}, v{a}, 1, 1
    v_lshlrev_b32 v{c}, 2, v{c}
    v_xor_b32 v{b}, v{b}, v{c}
    v_mul_u32_u24 v{a}, 896, v{a}
    v_lshl_add_u32 v{e}, v{b}, 4, v{a}
    v_add_u32 v{f}, {8*896-1024}, v{e}
    v_accvgpr_write_b32 a248, v{e}
    v_accvgpr_write_b32 a249, v{f}
    v_lshrrev_b32 v{a}, 5, v{v_lane}
    v_bfe_u32 v{b}, v{v_lane}, 2, 2
    v_lshl_add_u32 v{a}, v{a}, 2, v{b}
    v_lshlrev_b32 v{a}, 7, v{a}
    v_bfe_u32 v{c}, v{v_lane}, 4, 1
    v_bfe_u32 v{d}, v{v_lane}, 1, 1
    v_lshl_add_u32 v{c}, v{c}, 1, v{d}
    v_lshl_add_u32 v{a}, v{c}, 4, v{a}
    v_and_b32 v{c}, 1, v{v_lane}
    v_lshl_add_u32 v{a}, v{c}, 3, v{a}
    v_bfe_u32 v{b}, v{v_lane}, 3, 1
    v_xor_b32 v{b}, s{s_ns}, v{b}
    v_lshl_add_u32 v{e}, v{b}, 6, v{a}
    v_xor_b32 v{b}, 1, v{b}
    v_lshl_add_u32 v{f}, v{b}, 6, v{a}
    s_mul_i32 s{s_t0}, s{s_w}, {RING}
    v_add_u32 v{a}, s{s_t0}, v{e}
    v_add_u32 v{b}, s{s_t0}, v{f}
    v_accvgpr_write_b32 a250, v{a}
    v_accvgpr_write_b32 a251, v{b}
    s_lshl_b32 s{s_t0}, s{s_w}, 13
    s_add_u32 s{s_t0}, s{s_t0}, {E1B}
    v_add_u32 v{a}, s{s_t0}, v{e}
    v_add_u32 v{b}, s{s_t0}, v{f}
    v_accvgpr_write_b32 a252, v{a}
    v_accvgpr_write_b32 a253, v{b}
    """)
def wd_setup_s():
    return lines(f"""
    s_mul_i32 s{s_woff}, s{s_w}, {448*896}
    s_lshl_b32 s{s_t0}, s{s_ct}, 7
    s_add_u32 s{s_woff}, s{s_woff}, s{s_t0}
    s_mul_i32 s{s_m0x}, s{s_w}, {RING}
    s_lshl_b32 s{s_eb}, s{s_w}, 13
    s_add_u32 s{s_eb}, s{s_eb}, {E1B}
    v_accvgpr_read_b32 v{vW0}, a248
    v_accvgpr_read_b32 v{vW1}, a249
    v_accvgpr_read_b32 v{vW2}, a250
    v_accvgpr_read_b32 v{vW3}, a251
    v_accvgpr_read_b32 v{vW4}, a252
    v_accvgpr_read_b32 v{vW5}, a253
    """) + rot_setup(28, 29, s_woff, 14336) + lines(f"""
    v_subrev_u32 v{vW6}, {E1B-E2B}, v{vW4}
    v_subrev_u32 v{vW7}, {E1B-E2B}, v{vW5}
    """)
NSLOT = 10
ROT = os.environ.get("ROT", "0") == "1"
def ptr_next(p, pend, pbase, stride):
    return ["\n".join([f"s_mov_b32 s{s_t3}, s{p}", f"s_add_u32 s{p}, s{p}, {stride}", f"s_cmp_eq_u32 s{p}, s{pend}", f"s_cselect_b32 s{p}, s{pbase}, s{p}"])]
def rot_setup(p, pend, pbase, stride):
    L = [f"s_add_u32 s{pend}, s{pbase}, {28*stride}"]
    if not ROT: return L + [f"s_mov_b32 s{p}, s{pbase}"]
    return L + [f"s_and_b32 s{p}, s{s_mi}, 3", f"s_mul_i32 s{p}, s{p}, 7", f"s_lshl_b32 s{s_t2}, s{s_ct}, 2", f"s_add_u32 s{p}, s{p}, s{s_t2}",
                f"s_cmp_ge_u32 s{p}, 28\ns_cselect_b32 s{s_t2}, 28, 0\ns_sub_u32 s{p}, s{p}, s{s_t2}",
                f"s_mul_i32 s{p}, s{p}, {stride}", f"s_add_u32 s{p}, s{p}, s{pbase}"]
s_eb = 33
vW4, vW5 = 118, 119
vW6, vW7 = 116, 117
def wd_dma_e(j, e):
    m0 = f"s_add_u32 m0, s{s_eb}, {e*2048}" if e < 4 else f"s_sub_u32 m0, s{s_eb}, {E1B-E2B-(e-4)*2048}"
    return ["\n".join([m0] + ptr_next(28, 29, s_woff, 14336) + [
            f"buffer_load_dwordx4 v{vW0}, s[{sWD2}:{sWD2+3}], s{s_t3} offen lds"]),
            "\n".join([m0, "s_nop 0", f"buffer_load_dwordx4 v{vW1}, s[{sWD2}:{sWD2+3}], s{s_t3} offen offset:1024 lds"])]
def wd_tr_e(j, e):
    L = []
    b = vW4 if e < 4 else vW6
    off = (e & 3)*2048
    for sm in range(2):
        r = 8*j + 4*sm
        L.append(f"ds_read_b64_tr_b16 a[{r}:{r+1}], v{b+sm} offset:{off}")
        L.append(f"ds_read_b64_tr_b16 a[{r+2}:{r+3}], v{b+sm} offset:{off+1024}")
    return L
def wd_dma(j, sl=None):
    if sl is None: sl = j % NSLOT
    return [f"s_add_u32 m0, s{s_m0x}, {sl*2048}"] + ptr_next(28, 29, s_woff, 14336) + [
            f"buffer_load_dwordx4 v{vW0}, s[{sWD2}:{sWD2+3}], s{s_t3} offen lds",
            f"buffer_load_dwordx4 v{vW1}, s[{sWD2}:{sWD2+3}], s{s_t3} offen offset:1024 lds"]
def wd_tr(j, sl=None):
    if sl is None: sl = j % NSLOT
    L = []
    for sm in range(2):
        r = 8*j + 4*sm
        L.append(f"ds_read_b64_tr_b16 a[{r}:{r+1}], v{vW2+sm} offset:{sl*2048}")
        L.append(f"ds_read_b64_tr_b16 a[{r+2}:{r+3}], v{vW2+sm} offset:{sl*2048+1024}")
    return L

vH0, vH1, vH2 = 2, 3, 4
def g2_setup():
    return lines(f"""
    s_lshl_b32 s{s_t0}, s{s_mi}, 2
    s_lshl_b32 s{s_t1}, s{s_hi}, 1
    s_add_u32 s{s_t0}, s{s_t0}, s{s_t1}
    s_mul_i32 s{s_t0}, s{s_t0}, 112
    s_mul_i32 s{s_t1}, s{s_w}, 28
    s_add_u32 s{s_t0}, s{s_t0}, s{s_t1}
    s_lshl_b32 s{s_xoff}, s{s_t0}, 10
    s_add_u32 s{s_xoff}, s{s_xoff}, {WS_H}
    s_mul_i32 s{s_t0}, s{s_mf}, {112*1024}
    v_add_u32 v{vH0}, s{s_t0}, v{v_l16}
    s_sub_u32 s{s_t0}, {112*1024 - 1024}, s{s_t0}
    v_add_u32 v{vH1}, s{s_t0}, v{v_l16}
    v_add_u32 v{vH2}, s{s_m0x}, v{v_l16}
    """) + rot_setup(30, 31, s_xoff, 1024)
HSC = os.environ.get('HSC', 'sc1')
def h_dma(j):
    sl = j % NSLOT
    return [f"s_add_u32 m0, s{s_m0x}, {sl*2048}"] + ptr_next(30, 31, s_xoff, 1024) + [
            f"buffer_load_dwordx4 v{vH0}, s[{sWS}:{sWS+3}], s{s_t3} offen {HSC} lds",
            f"buffer_load_dwordx4 v{vH1}, s[{sWS}:{sWS+3}], s{s_t3} offen offset:1024 {HSC} lds"]
def h_reads(j):
    sl = j % NSLOT
    b = g2_fr + (j % 3)*8
    return [f"ds_read_b128 v[{b}:{b+3}], v{vH2} offset:{sl*2048}", f"ds_read_b128 v[{b+4}:{b+7}], v{vH2} offset:{sl*2048+1024}"]
def hflag_offsets():
    return lines(f"""
    v_min_u32 v{v_poll}, 27, v{v_lane}
    v_lshrrev_b32 v{v_poll+1}, 1, v{v_poll}
    v_and_b32 v{v_poll}, 1, v{v_poll}
    v_lshl_add_u32 v{v_poll}, v{v_poll+1}, 2, v{v_poll}
    v_lshlrev_b32 v{v_poll}, 6, v{v_poll}
    s_lshl_b32 s{s_pb}, s{s_mi}, 12
    s_lshl_b32 s{s_t0}, s{s_hi}, 7
    s_add_u32 s{s_pb}, s{s_pb}, s{s_t0}
    s_add_u32 s{s_pb}, s{s_pb}, {WS_FH}
    """)

HFG = int(os.environ.get('HFG', '12'))
def conv_main(g, hflag):
    CL = 20; NG = 8*CL
    per = [[] for _ in range(NG + 8)]
    m = []
    for cl in range(8):
        m += conv_mfmas(cl)
        if cl < 7:
            rd = conv_reads(cl+1)
            for i, x in enumerate(rd): per[CL*cl + (i*16)//24].append((x, f"cv{cl+1}"))
    per[0].append(("VWAIT", "wd16"))
    trg = {}
    for n_, j in enumerate(range(8, 21)):
        gp = 6*n_
        trg[j] = gp
        if j == 17: per[gp].append(("VWAIT", "wd20"))
        tl = T(wd_tr(j, j-8) if j < 17 else wd_tr_e(j, j-17), f"tr{j}")
        for q, x in enumerate(tl): per[gp + q].append(x)
    for i, j in enumerate(range(21, 28)):
        g2 = trg[8+i] + 8
        per[g2].append(("LWAIT", f"tr{8+i}"))
        dl = T(wd_dma(j, j-21), f"wd{j}")
        per[g2] += dl[:2]
        per[g2+1] += dl[2:]
    per[HFG].append(("CALL", hflag))
    for i, j in enumerate(range(21, 28)):
        gp = 80 + 3*i
        per[gp].append(("VWAIT", f"wd{j}"))
        tl = T(wd_tr(j, j-21), f"tr{j}")
        per[gp] += tl[:2]; per[gp+1] += tl[2:]
    spread(per, T(hflag_offsets()), 66, 71)
    spread(per, T(g2_setup()), 72, 79)
    HCG = int(os.environ.get("HCG", "104"))
    per[HCG - 14] += poll_issue("ph")
    per[HCG].append(("HCHECK", None))
    per[HCG].append(("LWAIT", "tr27"))
    nh = min(10, (NG - 2 - HCG) // 5)
    for s_ in range(nh):
        gp = HCG + 1 + 5*s_
        hl_ = T(h_dma(s_), f"h{s_}")
        per[gp] += hl_[:3]; per[gp+2] += hl_[3:]
    global NH0
    NH0 = nh
    spread(per, T(conv_epi_pre()), 139, 150)
    for i in range(NG):
        if EST and i in (0, 40, 80, 120): stamp(g, 11 + i//40)
        if CST and i % 13 == 0: stamp(g, 1 + i//13)
        if i % CL == 0: g.lwait(f"cv{i//CL}")
        g(m[i])
        for x, tag in per[i]:
            if x == "CALL": tag()
            elif x == "HCHECK": poll_check(g, "G_p2", "ph")
            else: g.emit(x, tag)

def conv_epi_pre():
    L = lines(f"""
    v_and_b32 v54, 15, v{v_lane}
    v_lshrrev_b32 v55, 4, v{v_lane}
    v_lshlrev_b32 v54, 5, v54
    v_lshl_add_u32 v53, v55, 3, v54
    s_mul_i32 s98, s{s_ns}, {CVUS}
    s_lshl_b32 s99, s{s_mf}, 9
    s_sub_u32 s98, s98, s99
    s_add_u32 s98, s98, {LU + 4088 - 3072}
    v_sub_u32 v52, s98, v53
    s_lshl_b32 s98, s2, 13
    s_lshl_b32 s34, s{s_ns}, 12
    s_add_u32 s98, s98, s34
    s_add_u32 s98, s98, s99
    s_add_u32 s98, s98, {WS_ZP}
    """)
    L += [f"s_cmp_eq_u32 s{s_ns}, 0\ns_cselect_b32 s99, s100, s101"]
    for tau in range(4):
        L.append(f"ds_read_b64 v[{88+2*tau}:{89+2*tau}], v52 offset:{1024*(3-tau)}")
    return L
def conv_epilogue(g):
    KV, U, O = 88, 96, 112
    g("s_waitcnt lgkmcnt(0)")
    for tau in range(4):
        k = KV + 2*tau; u = U + 4*tau
        g(f"v_and_b32 v{u}, 0xffff0000, v{k+1}\nv_lshlrev_b32 v{u+1}, 16, v{k+1}\nv_and_b32 v{u+2}, 0xffff0000, v{k}\nv_lshlrev_b32 v{u+3}, 16, v{k}")
    for tau in range(4):
        for r in range(4): g(f"v_fmac_f32 v{cv_D+4*tau+r}, s99, v{U+4*tau+r}")
    for tau in range(4):
        g(f"v_cvt_pk_bf16_f32 v{O+2*tau}, v{cv_D+4*tau}, v{cv_D+4*tau+1}\nv_cvt_pk_bf16_f32 v{O+2*tau+1}, v{cv_D+4*tau+2}, v{cv_D+4*tau+3}")
    for tau in range(4):
        g.vm(f"buffer_store_dwordx2 v[{O+2*tau}:{O+2*tau+1}], v53, s[{sWS}:{sWS+3}], s98 offen offset:{1024*tau} sc1", "zst")

g2_acc = 192
g2_fr = 160
G2ST = os.environ.get('G2ST') == '1'
NH0 = int(os.environ.get('NH0', '4'))
def g2_main(g, extra):
    nd = NH0
    g.ldops = []
    g.vwait("h1")
    for x in h_reads(0): g.ld(x, "hr0")
    for x in h_reads(1): g.ld(x, "hr1")
    for j in range(28):
        b = g2_fr + (j % 3)*8
        if G2ST and j % 2 == 0: stamp(g, 1 + j//2)
        g.lwait(f"hr{j}")
        fill = []
        cnt = 0
        while nd < 28 and nd <= j + 9 and cnt < 2:
            fill += T(h_dma(nd), f"h{nd}"); nd += 1; cnt += 1
        m = []
        for sm in range(2):
            for sn in range(2):
                acc = g2_acc + (sm*2+sn)*16
                cin = "0" if j == 0 else f"v[{acc}:{acc+15}]"
                m.append(f"v_mfma_f32_32x32x16_bf16 v[{acc}:{acc+15}], a[{8*j+4*sm}:{8*j+4*sm+3}], v[{b+4*sn}:{b+4*sn+3}], {cin}")
        per = [[] for _ in range(4)]
        if fill: spread(per, fill, 0, 3)
        ex = extra(j)
        if ex: spread(per, ex, 0, 3)
        if j+2 < 28:
            per[3].append(("VWAIT", f"h{j+2}"))
            per[3] += T(h_reads(j+2), f"hr{j+2}")
        for i in range(4):
            g(m[i])
            for x, tag in per[i]:
                if x == "CALL": tag()
                else: g.emit(x, tag)

def g2_reduce(g):
    g(f"v_add_u32 v22, s{s_m0x}, v{v_l16}\ns_nop 7\ns_nop 3")
    for sl in range(1, 4):
        for q in range(4):
            r = g2_acc + sl*16 + 4*q
            g(f"ds_write_b128 v22, v[{r}:{r+3}] offset:{sl*4096 + q*1024}")
    for x in range(1, 4):
        g(f"s_xor_b32 s{s_t0}, s{s_w}, {x}\ns_mul_i32 s{s_t0}, s{s_t0}, {RING}\nv_add_u32 v{22+x}, s{s_t0}, v{v_l16}")
def g2_reduce2(g):
    g("s_waitcnt lgkmcnt(0)\ns_barrier")
    for x in range(1, 4):
        for q in range(4):
            r = g2_acc + x*16 + 4*q
            g(f"ds_read_b128 v[{r}:{r+3}], v{22+x} offset:{x*4096 + q*1024}")
    for x in range(1, 4):
        g(f"s_waitcnt lgkmcnt({4*(3-x)})")
        for q in range(8):
            a = g2_acc + 2*q; b = g2_acc + x*16 + 2*q
            g(f"v_pk_add_f32 v[{a}:{a+1}], v[{a}:{a+1}], v[{b}:{b+1}]")

fx = 32
def final_loads_x():
    L = [f"v_and_b32 v26, 31, v{v_lane}", f"v_mul_u32_u24 v26, 896, v26", f"v_lshrrev_b32 v27, 5, v{v_lane}", f"v_lshl_add_u32 v26, v27, 3, v26",
         f"s_lshl_b32 s{s_t0}, s{s_mi}, 7", f"s_lshl_b32 s{s_t1}, s{s_hi}, 6", f"s_add_u32 s{s_t0}, s{s_t0}, s{s_t1}",
         f"s_lshl_b32 s{s_t1}, s{s_mf}, 5", f"s_add_u32 s{s_t0}, s{s_t0}, s{s_t1}",
         f"s_mul_i32 s{s_zoff}, s{s_t0}, 896",
         f"s_lshl_b32 s{s_t1}, s{s_ct}, 7", f"s_add_u32 s{s_zoff}, s{s_zoff}, s{s_t1}",
         f"s_lshl_b32 s{s_t1}, s{s_ns}, 6", f"s_add_u32 s{s_zoff}, s{s_zoff}, s{s_t1}"]
    for q in range(4):
        L.append(f"buffer_load_dwordx2 v[{fx+2*q}:{fx+2*q+1}], v26, s[{sX}:{sX+3}], s{s_zoff} offen offset:{16*q}")
    return L
s_zp = 49
def final_z_setup():
    return lines(f"""
    v_and_b32 v28, 31, v{v_lane}
    v_lshlrev_b32 v28, 1, v28
    v_lshrrev_b32 v27, 5, v{v_lane}
    v_lshl_add_u32 v28, v27, 14, v28
    s_lshl_b32 s{s_t0}, s{s_ct}, 5
    s_lshl_b32 s{s_t1}, s{s_ns}, 4
    s_add_u32 s{s_t0}, s{s_t0}, s{s_t1}
    s_lshl_b32 s{s_pb}, s{s_t0}, 8
    s_lshl_b32 s{s_t0}, s{s_t0}, 13
    s_lshl_b32 s{s_t1}, s{s_mi}, 7
    s_lshl_b32 s{s_t2}, s{s_hi}, 6
    s_add_u32 s{s_t1}, s{s_t1}, s{s_t2}
    s_lshl_b32 s{s_t2}, s{s_mf}, 5
    s_add_u32 s{s_t1}, s{s_t1}, s{s_t2}
    s_lshl_b32 s{s_t1}, s{s_t1}, 1
    s_add_u32 s{s_t0}, s{s_t0}, s{s_t1}
    s_add_u32 s{s_zp}, s{s_t0}, {WS_ZP}
    s_bfe_u32 s{s_t1}, s{s_mi}, 0x10001
    s_lshl_b32 s{s_t1}, s{s_t1}, 6
    s_add_u32 s{s_pb}, s{s_pb}, s{s_t1}
    s_add_u32 s{s_pb}, s{s_pb}, {WS_FZ}
    v_min_u32 v{v_poll}, 31, v{v_lane}
    v_lshrrev_b32 v{v_poll+1}, 1, v{v_poll}
    v_and_b32 v{v_poll}, 1, v{v_poll}
    v_lshlrev_b32 v{v_poll}, 7, v{v_poll}
    v_lshl_add_u32 v{v_poll}, v{v_poll+1}, 8, v{v_poll}
    """)
fz = 64
def final_loads_z(g):
    for q in range(4):
        for i in range(4):
            g(f"s_add_u32 s{s_t3}, s{s_zp}, {(8*q+i)*4096}")
            g.vm(f"buffer_load_ushort v{fz+4*q+i}, v28, s[{sWS}:{sWS+3}], s{s_t3} offen sc1", "z")
def final_pre():
    return lines(f"""
    v_and_b32 v22, 31, v{v_lane}
    v_lshlrev_b32 v22, 3, v22
    s_lshl_b32 s{s_t0}, s{s_mi}, 10
    s_lshl_b32 s{s_t1}, s{s_hi}, 9
    s_add_u32 s{s_t0}, s{s_t0}, s{s_t1}
    s_lshl_b32 s{s_t1}, s{s_mf}, 8
    s_add_u32 s{s_t0}, s{s_t0}, s{s_t1}
    s_add_u32 s{s_t0}, s{s_t0}, {WS_STATS}
    buffer_load_dwordx2 v[30:31], v22, s[{sWS}:{sWS+3}], s{s_t0} offen sc1
    v_and_b32 v29, 31, v{v_lane}
    v_mul_u32_u24 v29, 896, v29
    v_lshrrev_b32 v27, 5, v{v_lane}
    v_lshl_add_u32 v29, v27, 4, v29
    """)
def final(g):
    g(f"""
    s_waitcnt vmcnt(0)
    v_rcp_f32 v31, v31
    v_mov_b32 v20, {fh(-math.log2(math.e))}
    v_mov_b32 v21, 1.0
    v_mul_f32 v30, v30, v31
    v_sub_f32 v30, 0, v30
    """)
    O = g2_acc
    X = 48; Zz = 64; Tt = 80; XN = 96
    def pr(x): return f"v[{x}:{x+1}]"
    steps = [
      lambda i: [f"v_pk_mul_f32 {pr(Tt+2*i)}, {pr(O+2*i)}, v[20:21] op_sel_hi:[1,0]"],
      lambda i: [f"v_exp_f32 v{Tt+2*i}, v{Tt+2*i}", f"v_exp_f32 v{Tt+2*i+1}, v{Tt+2*i+1}"],
      lambda i: [f"v_lshlrev_b32 v{X+2*i}, 16, v{fx+i}", f"v_and_b32 v{X+2*i+1}, 0xffff0000, v{fx+i}"],
      lambda i: [f"v_pk_add_f32 {pr(Tt+2*i)}, {pr(Tt+2*i)}, v[20:21] op_sel:[0,1] op_sel_hi:[1,1]"],
      lambda i: [f"v_lshlrev_b32 v{Zz+2*i}, 16, v{fz+2*i}", f"v_lshlrev_b32 v{Zz+2*i+1}, 16, v{fz+2*i+1}"],
      lambda i: [f"v_rcp_f32 v{Tt+2*i}, v{Tt+2*i}", f"v_rcp_f32 v{Tt+2*i+1}, v{Tt+2*i+1}"],
      lambda i: [f"v_pk_fma_f32 {pr(XN+2*i)}, {pr(X+2*i)}, v[30:31], v[30:31] op_sel:[0,1,0] op_sel_hi:[1,1,0]"],
      lambda i: [f"v_pk_mul_f32 {pr(Tt+2*i)}, {pr(Tt+2*i)}, {pr(O+2*i)}"],
      lambda i: [f"v_pk_mul_f32 {pr(Zz+2*i)}, {pr(Zz+2*i)}, {pr(XN+2*i)}"],
      lambda i: [f"v_pk_fma_f32 {pr(Tt+2*i)}, {pr(Tt+2*i)}, {pr(Zz+2*i)}, {pr(X+2*i)}"],
    ]
    for st in steps:
        for i in range(8):
            for x in st(i): g(x)
    P = 112
    for i in range(8): g(f"v_cvt_pk_bf16_f32 v{P+i}, v{Tt+2*i}, v{Tt+2*i+1}")
    g("s_nop 1")
    for qq in (0, 2):
        g(f"v_permlane32_swap_b32 v{P+2*qq}, v{P+2*qq+2}\nv_permlane32_swap_b32 v{P+2*qq+1}, v{P+2*qq+3}")
    for qq in (0, 2):
        g(f"buffer_store_dwordx4 v[{P+2*qq}:{P+2*qq+3}], v29, s[{sOUT2}:{sOUT2+3}], s{s_zoff} offen offset:{16*qq}")

def kflag_offsets():
    return lines(f"""
    v_min_u32 v{v_poll}, 31, v{v_lane}
    v_lshrrev_b32 v{v_poll+1}, 1, v{v_poll}
    v_and_b32 v{v_poll}, 1, v{v_poll}
    v_lshlrev_b32 v{v_poll}, 7, v{v_poll}
    v_lshl_add_u32 v{v_poll}, v{v_poll+1}, 12, v{v_poll}
    s_lshr_b32 s{s_pb}, s2, 4
    s_lshl_b32 s{s_pb}, s{s_pb}, 8
    s_bfe_u32 s{s_t0}, s2, 0x10003
    s_lshl_b32 s{s_t0}, s{s_t0}, 6
    s_add_u32 s{s_pb}, s{s_pb}, s{s_t0}
    s_add_u32 s{s_pb}, s{s_pb}, {WS_FK}
    """)
s_fo = 32
def flag_off(base):
    return lines(f"""s_lshl_b32 s{s_fo}, s{s_mi}, 4
    s_add_u32 s{s_fo}, s{s_fo}, s{s_fi}
    s_lshl_b32 s{s_fo}, s{s_fo}, 2
    s_add_u32 s{s_fo}, s{s_fo}, s{s_w}
    s_lshl_b32 s{s_fo}, s{s_fo}, 6
    s_add_u32 s{s_fo}, s{s_fo}, {base}""")
def wave_flag_L(vt, so=s_fo):
    return [f"v_mov_b32 v{vt}, 0", f"v_mov_b32 v{vt+1}, s{s_tag}", "s_mov_b64 exec, 1",
            f"buffer_store_dword v{vt+1}, v{vt}, s[{sWS}:{sWS+3}], s{so} offen sc1", "s_mov_b64 exec, -1"]

sTC = 28
def touch_setup():
    a, b = 104, 105
    return lines(f"""
    s_mov_b32 s{sTC}, s{sWD2}
    s_mov_b32 s{sTC+1}, s{sWD2+1}
    s_mov_b32 s{sTC+2}, {D*F*2}
    s_mov_b32 s{sTC+3}, 0x20000
    s_lshr_b32 s96, s2, 3
    s_mul_i32 s96, s96, 57344
    s_sub_u32 s96, s96, {32*128}
    s_movk_i32 s97, {32*128}
    s_mul_i32 s{s_t0}, s{s_w}, 8
    v_add_u32 v{a}, s{s_t0}, v{v_lane}
    v_lshlrev_b32 v{a}, 7, v{a}
    v_mov_b32 v{b}, 0x7ffffff0
    v_cmp_gt_u32 vcc, 8, v{v_lane}
    s_nop 1
    v_cndmask_b32 v19, v{b}, v{a}, vcc
    """)
sTG = 84
def g1touch_setup(first_chunk=1):
    a, b = 104, 105
    return lines(f"""
    s_and_b32 s{s_t0}, s{s_mi}, 1
    s_cmp_eq_u32 s{s_t0}, 1
    s_cselect_b32 s{sTG}, s{sWU}, s{sWG}
    s_cselect_b32 s{sTG+1}, s{sWU+1}, s{sWG+1}
    s_mov_b32 s{sTG+2}, {D*F*2}
    s_mov_b32 s92, {first_chunk*64*3584}
    s_mov_b32 s93, {64*3584}
    s_cmp_ge_u32 s{s_w}, 2
    s_cselect_b32 s{sTG}, s{sX}, s{sTG}
    s_cselect_b32 s{sTG+1}, s{sX+1}, s{sTG+1}
    s_cselect_b32 s{sTG+2}, {S*D*2}, s{sTG+2}
    s_cselect_b32 s92, {128*first_chunk}, s92
    s_cselect_b32 s93, 128, s93
    s_mov_b32 s{sTG+3}, 0x20000
    s_bfe_u32 s{s_t0}, s{s_mi}, 0x10001
    s_lshl_b32 s{s_t0}, s{s_t0}, 5
    s_lshl_b32 s{s_t1}, s{s_mf}, 4
    s_add_u32 s{s_t0}, s{s_t0}, s{s_t1}
    v_lshrrev_b32 v{a}, 1, v{v_lane}
    v_add_u32 v{a}, s{s_t0}, v{a}
    v_mul_u32_u24 v{a}, 3584, v{a}
    v_and_b32 v{b}, 1, v{v_lane}
    v_lshl_add_u32 v{a}, v{b}, 7, v{a}
    s_lshl_b32 s{s_t0}, s{s_fi}, 8
    v_add_u32 v{a}, s{s_t0}, v{a}
    v_cmp_gt_u32 vcc, 32, v{v_lane}
    v_mov_b32 v{b}, 0x7ffffff0
    s_mul_i32 s{s_t0}, s{s_ct}, 19
    s_mul_i32 s{s_t2}, s{s_mf}, 10
    s_add_u32 s{s_t0}, s{s_t0}, s{s_t2}
    s_lshl_b32 s{s_t1}, s{s_mi}, 7
    v_cndmask_b32 v87, v{b}, v{a}, vcc
    v_add_u32 v{a}, s{s_t0}, v{v_lane}
    s_movk_i32 s{s_t2}, 128
    v_cmp_gt_u32 vcc, 10, v{v_lane}
    v_cmp_gt_u32 s[94:95], s{s_t2}, v{a}
    v_add_u32 v{a}, s{s_t1}, v{a}
    v_mul_u32_u24 v{a}, 896, v{a}
    s_and_b64 vcc, vcc, s[94:95]
    s_nop 1
    v_cndmask_b32 v{a}, v{b}, v{a}, vcc
    s_cmp_ge_u32 s{s_w}, 2
    s_cselect_b64 vcc, -1, 0
    s_nop 1
    v_cndmask_b32 v87, v87, v{a}, vcc
    """)
def g1pref_setup():
    return lines(f"""
    s_and_b32 s{s_t0}, s{s_mi}, 1
    s_cmp_eq_u32 s{s_t0}, 1
    s_cselect_b32 s{sTG}, s{sWU}, s{sWG}
    s_cselect_b32 s{sTG+1}, s{sWU+1}, s{sWG+1}
    s_mov_b32 s{sTG+2}, {D*F*2}
    s_mov_b32 s{sTG+3}, 0x20000
    s_lshl_b32 s{s_t0}, s{s_mi}, 7
    s_mul_i32 s{s_t1}, s{s_ct}, 19
    s_add_u32 s{s_t0}, s{s_t0}, s{s_t1}
    s_mul_i32 s{s_t0}, s{s_t0}, 896
    s_mul_i32 s{s_t1}, s{s_w}, 4352
    s_add_u32 s92, s{s_t0}, s{s_t1}
    s_bfe_u32 s{s_t0}, s{s_mi}, 0x10001
    s_lshl_b32 s{s_t0}, s{s_t0}, 5
    s_lshl_b32 s{s_t1}, s{s_w}, 3
    s_add_u32 s{s_t0}, s{s_t0}, s{s_t1}
    s_mul_i32 s93, s{s_t0}, 3584
    s_lshl_b32 s{s_t0}, s{s_fi}, 8
    s_add_u32 s93, s93, s{s_t0}
    v_lshrrev_b32 v104, 4, v{v_lane}
    v_mul_u32_u24 v104, 3584, v104
    v_and_b32 v105, 15, v{v_lane}
    v_lshl_add_u32 v87, v105, 4, v104
    """)
def g1pref_w(c, h):
    return ["\n".join([f"s_add_u32 s91, s93, {(64*c+4*h)*3584}", f"buffer_load_dwordx4 a[244:247], v87, s[{sTG}:{sTG+3}], s91 offen"])]
def g1pref_x(i):
    return ["\n".join([f"s_add_u32 s91, s92, {1024*i}", f"buffer_load_dwordx4 a[244:247], v{v_l16}, s[{sX}:{sX+3}], s91 offen"])]
def g1touch_L():
    return [f"buffer_load_dword a255, v87, s[{sTG}:{sTG+3}], s92 offen", "s_add_u32 s92, s92, s93"]
def wdpref(i):
    return ["\n".join([f"s_add_u32 s91, s96, {1024*i}", f"buffer_load_dwordx4 a[244:247], v{v_l16}, s[{sWD2}:{sWD2+3}], s91 offen"])]
def wdpref_setup():
    return [f"s_lshr_b32 s96, s2, 3", f"s_mul_i32 s96, s96, 57344", f"s_mul_i32 s97, s{s_w}, {14*1024}", "s_add_u32 s96, s96, s97"]
def touch_L():
    return ["s_add_u32 s96, s96, s97", f"buffer_load_dword a255, v19, s[{sTC}:{sTC+3}], s96 offen"]
TOUCH = os.environ.get("TOUCH", "none")
def gemm_path(g, stamps=False):
    S_ = lambda i: stamp(g, i, stamps)
    g.vreset()
    S_(0)
    g1_prologue(g)
    TG1 = os.environ.get("TG1", "none")
    NPF = int(os.environ.get("NPF", "4"))
    pf = []
    if TG1 == "c":
        for x in g1pref_setup(): g(x)
        pf = g1pref_w(0, 0) + g1pref_w(0, 1) + [g1pref_x(i)[0] for i in range(5)]
        for c in range(1, NPF): pf += g1pref_w(c, 0) + g1pref_w(c, 1)
    else:
        for grp in g1_groups(0): emit_mixed(g, grp, "c0")
    g(f"s_mov_b32 s{s_spin}, {WS_EPOCH}\ns_load_dword s{s_tag}, s[{sWS}:{sWS+1}], s{s_spin}\ns_lshl_b32 s98, s2, 2\ns_load_dword s99, s[96:97], s98")
    for x in g1_addr(): g(x)
    for grp in g1_groups(1): emit_mixed(g, grp, "c1")
    for r, sz in ((sKK, S*D*2), (sVV, S*D*2), (sSH, D*8), (sWS, WS_END), (sWD2, D*F*2), (sSK2, D*S*2)): srd_fix(g, r, sz)
    emit_mixed(g, kp_shk_load(), "shk")
    for x in kps_dma_setup(): g(x)
    S_(1)
    g("s_waitcnt lgkmcnt(0)")
    make_tag(g)
    g(f"s_lshl_b32 s100, s99, 16\ns_and_b32 s101, s99, 0xffff0000")
    g.vwait("c0")
    g("s_barrier")
    S_(2)
    def pre(k): return ["kp"] if k == KPK else []
    class _C:
        def __init__(self): self.L = []
        def __call__(self, t): self.L += lines(t)
    _c = _C(); kps_setup(_c); ksu = _c.L
    bB = kp_build_B()
    wsv = wd_setup_v(); eh = epi_hoff()
    def p1check(): poll_check(g, "G_p1", "p1")
    def post(k):
        E, L, X = [], [], []
        hl = conv_h_loads()
        if k == 19: E += T(wd_setup_s())
        kdl = kps_dma_L()
        if k == 0: E += T(ksu[:24])
        if k == 1: E += T(ksu[24:48])
        if k == 2: E += T(ksu[48:])
        if k == 4: E += [("VWAIT", "shk")] + T(bB[:19])
        if k == 5: E += T(bB[19:])
        if k == 8: E += T(wsv[:20])
        if k == 9: E += T(wsv[20:])
        if k == 10: E += T(eh)
        if TOUCH == "roll":
            for _ in range(list(TCHK).count(k)): X.append(T(touch_L(), "t2"))
        if TOUCH == "wide":
            WK0 = int(os.environ.get("WK0", "19"))
            plan = {}
            kk = WK0; i = 0
            while i < 14:
                n = 1 if kk <= 18 else int(os.environ.get('WN', '3'))
                plan[kk] = list(range(i, min(14, i+n))); i += n; kk += 1
            for i in plan.get(k, []): X.append(T(wdpref(i), "t2"))
        if TG1 == "c":
            later = [(c, h) for c in range(NPF, 7) for h in range(2)]
            if k < len(later): X.append(T(g1pref_w(*later[k]), "tg2"))
        if k in (3, 4, 5, 6): X.append(T(kdl[k-3:k-2], "kp"))
        if k in (7, 8): X.append(T(kps_t0_L()[k-7:k-6], "kp"))
        if k == KPK + 1: L += T(kps_stage1(), "kp1r")
        if k == KPK + 2: E += [("LWAIT", "kp1r")] + T(kps_stage2()) + T(kps_stage3())
        if k == KPK + 3: E += T(kps_stage4())
        if k == KPK + 5: E += kps_stage5()
        if k == KPK + 6: X.append([("LWAIT", "kprb")] + T(kps_store_L()[:1], "kvst"))
        if k == KPK + 7: X.append(T(kps_store_L()[1:], "kvst"))
        if k == KPK + 10: E += T(flag_off(WS_FK))
        if k == KPK + 11: X.append([("VWAIT", "kvst")] + T(wave_flag_L(86), "kflag"))
        if k == 22: L += T(hl[:4], "h")
        if k == 23: L += T(hl[4:], "h")
        if k == 20:
            L += T(f"""v_min_u32 v{v_poll}, 31, v{v_lane}
            v_lshlrev_b32 v{v_poll}, 6, v{v_poll}
            s_mov_b32 s{s_pb}, {WS_FA}""")
        if k == 20: E += T(wd_dma_e(0, 0), "wd0") + T(wd_dma_e(1, 1), "wd1")
        if k == 21: E += T(wd_dma_e(2, 2), "wd2") + T(wd_dma_e(3, 3), "wd3"); L += poll_issue("p1")
        if k == 22:
            E += T(f"""v_lshrrev_b32 v{v_tch}, 5, v{v_lane}
            v_mul_u32_u24 v{v_tch}, {7168-512}, v{v_tch}
            v_add_u32 v{v_tch}, v{v_tch}, v{v_l16}
            s_mov_b32 s{sOUT2}, s64
            s_and_b32 s{sOUT2+1}, s65, 0xffff
            s_mov_b32 s{sOUT2+2}, {S*D*2}
            s_mov_b32 s{sOUT2+3}, 0x20000""")
        if k == 24:
            E += [("CALL", p1check)] + [("\n".join(lines(f"""s_mov_b32 m0, {LST}
            s_lshl_b32 s{s_t1}, s{s_mi}, 10
            s_add_u32 s{s_t1}, s{s_t1}, {WS_STATS}
            buffer_load_dwordx4 v{v_l16}, s[{sWS}:{sWS+3}], s{s_t1} offen sc1 lds""")), "st"), ("\n".join(lines(f"""s_mov_b32 m0, {LST+1024}
            s_lshl_b32 s{s_t1}, s{s_fi}, 9
            s_add_u32 s{s_t1}, s{s_t1}, {WS_CS}
            buffer_load_dwordx4 v{v_tch}, s[{sWS}:{sWS+3}], s{s_t1} offen sc1 lds""")), "st")]
            L += [("VWAIT", "wd1")] + T(wd_tr_e(0, 0), "tr0") + T(wd_tr_e(1, 1), "tr1")
        if k == 25:
            E += T(kflag_offsets()) + poll_issue("pk")
            L += [("VWAIT", "wd3")] + T(wd_tr_e(2, 2), "tr2") + T(wd_tr_e(3, 3), "tr3")
        if k == 26:
            E += [("LWAIT", "tr1")] + T(wd_dma_e(4, 0), "wd4") + T(wd_dma_e(5, 1), "wd5")
        if k == 27:
            E += [("LWAIT", "tr3")] + T(wd_dma_e(6, 2), "wd6") + T(wd_dma_e(7, 3), "wd7")
            L += [("VWAIT", "st")] + T(epi_pre_reads(), "cs")
        return E, L, X
    g1_main(g, pre, post, stamps={0: 3, 5: 4} if stamps else None)
    S_(5)
    g("s_waitcnt lgkmcnt(0)\ns_barrier")
    def pkc(): poll_check(g, "G_pk", "pk")
    def padc(): conv_pad_code(g)
    def wdring(j): return T(wd_dma(j, j-8), f"wd{j}")
    aux0 = wdring(8) + wdring(9) + [("CALL", pkc)] + [("\n".join(conv_u_dma()), "u")] + wdring(10) + [("VWAIT", "h")] + T(conv_build_L(0))
    aux1 = wdring(11) + wdring(12) + T(conv_build_L(1)) + [("VWAIT", "wd7")]
    for j in range(4, 8): aux1 += T(wd_tr_e(j, j-4), f"tr{j}")
    aux2 = wdring(13) + wdring(14) + [("CALL", padc)] + wdring(15) + wdring(16)
    aux3 = [("LWAIT", "tr7")]
    for j in range(17, 21): aux3 += T(wd_dma_e(j, j-17), f"wd{j}")
    aux3 += T(conv_addr())
    if EST: stamp(g, 1)
    if os.environ.get("ELOOP", "1") == "1":
        def mk(L):
            def f():
                for x2, t2 in L:
                    if x2 == "CALL": t2()
                    else: g.emit(x2, t2)
            return f
        b0 = [("CALL", pkc)] + [("\n".join(conv_u_dma()), "u")] + [("VWAIT", "h")] + T(conv_build_L(0))
        b1 = T(conv_build_L(1)) + [("VWAIT", "wd7")]
        for j in range(4, 8): b1 += T(wd_tr_e(j, j-4), f"tr{j}")
        b2 = [("CALL", padc)]
        b3 = []
        for j in range(17, 21): b3 += T(wd_dma_e(j, j-17), f"wd{j}")
        b3 += T(conv_addr())
        g1_epilogue_loop(g, [mk(b0), mk(b1), mk(b2), mk(b3)])
    else:
        g1_epilogue(g, [aux0, aux1, aux2, aux3])
    if EST: stamp(g, 10)
    S_(6)
    g.vwait("u")
    g("s_waitcnt lgkmcnt(0)\ns_barrier")
    g.ldops = []
    for x in conv_reads(0): g.ld(x, "cv0")
    S_(7)
    def hflag():
        g.vwait("hst")
        for x in flag_off(WS_FH) + wave_flag_L(52): g.emit(x, "hflag")
    S_(8)
    conv_main(g, hflag)
    if CST: stamp(g, 13)
    S_(9)
    conv_epilogue(g)
    S_(10)
    def zflag():
        g.vwait("zst")
        g(f"s_lshl_b32 s{s_fo}, s2, 2\ns_add_u32 s{s_fo}, s{s_fo}, s{s_w}\ns_lshl_b32 s{s_fo}, s{s_fo}, 6\ns_add_u32 s{s_fo}, s{s_fo}, {WS_FZ}")
        for x in wave_flag_L(52): g.emit(x, "zflag")
    ZFJ = int(os.environ.get('ZFJ', '10'))
    def extra(j):
        L = []
        if j == 14: L += T(final_loads_x(), "x")
        if j == ZFJ: L += [("CALL", zflag)]
        if j == 17: L += T(final_z_setup())
        if j == 24: L += poll_issue("pz")
        if j == 20: L += T(final_pre())
        return L
    g2_main(g, extra)
    S_(11)
    poll_check(g, "G_p3", "pz")
    final_loads_z(g)
    g2_reduce(g)
    g2_reduce2(g)
    S_(12)
    final(g)
    S_(13)
    g("s_waitcnt vmcnt(0)")
    S_(14)
    g(f"""s_cmp_lg_u32 s2, 0
    s_cbranch_scc1 G_noep
    s_cmp_lg_u32 s{s_w}, 0
    s_cbranch_scc1 G_noep""")
    for part in range(4):
        g(f"""v_add_u32 v{v_poll}, {part*64}, v{v_lane}
        v_min_u32 v{v_poll}, 223, v{v_poll}
        v_lshlrev_b32 v{v_poll}, 8, v{v_poll}
        s_mov_b32 s{s_pb}, {WS_FZ}""")
        poll_check(g, f"G_pe{part}", None)
    g(f"""v_min_u32 v{v_poll}, 31, v{v_lane}
    v_lshlrev_b32 v{v_poll}, 6, v{v_poll}
    s_mov_b32 s{s_pb}, {WS_FA}""")
    poll_check(g, "G_pe4", None)
    g(f"""v_mov_b32 v2, {WS_EPOCH}
    v_mov_b32 v3, s{s_tag}
    s_mov_b64 exec, 1
    buffer_store_dword v3, v2, s[{sWS}:{sWS+3}], 0 offen sc1
    s_mov_b64 exec, -1
    s_waitcnt vmcnt(0)
    G_noep:""")

def gen_full(stamps=False):
    g = G()
    g(header([f"grid=(256,1,1) block=(256,1,1) lds={LDS_TOTAL}"]))
    g(kstart(KN))
    g("s_cmp_ge_u32 s2, 224\ns_cbranch_scc1 L_spare")
    if stamps: start_rt(g)
    gemm_path(g, stamps=stamps)
    if stamps: dump_stamps(g)
    g("s_endpgm")
    g("L_spare:")
    g("s_cmp_ge_u32 s2, 256\ns_cbranch_scc1 L_end")
    if stamps: start_rt(g)
    spare(g, flags=True, stamps=stamps)
    if stamps: dump_stamps(g)
    g("L_end:\ns_endpgm")
    g(kdesc(KN, vgpr=512, sgpr=102, accum=256))
    return g.a.text()
def gen_full_stamps(): return gen_full(stamps=True)
def gen_kst0():
    global KSTAMP, stamp
    KSTAMP = 0
    return gen_kstx()
def gen_kst14():
    global KSTAMP
    KSTAMP = 14
    return gen_kstx()
def gen_est():
    return gen_kstx()
def gen_gst():
    global GSTAMP
    GSTAMP = int(os.environ["GK"])
    return gen_kstx()
def gen_kstx():
    g = G()
    g(header([f"grid=(256,1,1) block=(256,1,1) lds={LDS_TOTAL}"]))
    g(kstart(KN))
    g("s_cmp_ge_u32 s2, 224\ns_cbranch_scc1 L_spare")
    stamp(g, 0)
    gemm_path(g, stamps=False)
    dump_stamps(g)
    g("s_endpgm")
    g("L_spare:")
    g("s_cmp_ge_u32 s2, 256\ns_cbranch_scc1 L_end")
    spare(g, flags=True, stamps=False)
    g("L_end:\ns_endpgm")
    g(kdesc(KN, vgpr=512, sgpr=102, accum=256))
    return g.a.text()

if __name__ == "__main__":
    import runner
    which = sys.argv[1]
    txt = globals()["gen_"+which]()
    open(f"dev/{which}.s", "w").write(txt)
    runner.build(f"dev/{which}.s", KN, 13)
    from runner import cl
    print("ok", len(txt), cl.address_register_problem(f"dev/{which}.co", KN))
```

```python
import math, struct, sys
from dsl import *

S, D, F = 2048, 448, 1792
KN = "recurrent_scan__ssm_conv_h3__geglu_ffn__prompt_kernel"
def f2u(x): return struct.unpack('<I', struct.pack('<f', x))[0]
def fh(x): return hex(f2u(x))

import os
WSB = int(os.environ.get("WSB", "0"), 0)
WS_EPOCH = WSB + 0
WS_FA = WSB + 0x1000
WS_FK = WSB + 0x10000
WS_FH = WSB + 0x20000
WS_FZ = WSB + 0x30000
WS_STATS = WSB + 0x40000
WS_CS    = WS_STATS + 2048*8
WS_KVT   = WSB + 0x50000
WS_ZP    = WS_KVT + D*S*2
WS_H     = WS_ZP + D*S*2
WS_END   = WS_H + 64*112*1024
WS_STAMPS = 40<<20

KA = dict(q=0,k=8,v=16,shk=24,ssmk=32,ssmD=40,bx=48,wg=56,wu=64,wd=72,out=80,dbg=88,ws=96)
C1 = -2*math.sqrt(2/math.pi)*math.log2(math.e)
C2 = C1*0.044715
LDS_TOTAL = 163840

class G:
    def __init__(self):
        self.a = Asm()
        self.vmops = []
        self.ldops = []
        self.stags = set(["hst"])
    def __call__(self, s): self.a(s)
    def vm(self, s, tag=None):
        self.a(s); self.vmops.append(tag)
        if "store" in s: self.stags.add(tag)
    def vwait(self, tag):
        idx = max(i for i, t in enumerate(self.vmops) if t == tag)
        st = tag in self.stags
        n = len(self.vmops) - 1 - idx
        assert n <= 63, n
        self.a(f"s_waitcnt vmcnt({n})")
    def vreset(self): self.vmops = []
    def ld(self, s, tag=None):
        self.a(s); self.ldops.append(tag)
    def lwait(self, tag):
        idx = max(i for i, t in enumerate(self.ldops) if t == tag)
        n = min(15, len(self.ldops) - 1 - idx)
        self.a(f"s_waitcnt lgkmcnt({n})")
    def emit(self, s, tag=None):
        if "\n" in s:
            for x in s.split("\n"): self.emit(x, tag)
        elif s == "VWAIT": self.vwait(tag)
        elif s == "LWAIT": self.lwait(tag)
        elif s.startswith("buffer_"): self.vm(s, tag)
        elif s.startswith("ds_"): self.ld(s, tag)
        else: self.a(s)
    def lab(self, n): self.a.label(n)

def srd_load(g, r, name):
    g(f"s_load_dwordx2 s[{r}:{r+1}], s[0:1], {KA[name]}")
def srd_fix(g, r, size):
    g(f"s_and_b32 s{r+1}, s{r+1}, 0xffff\ns_mov_b32 s{r+2}, {size}\ns_mov_b32 s{r+3}, 0x20000")

sX, sWG, sWU, sWS, sWD, sSK, sOUT, sDD = 4, 8, 12, 16, 20, 24, 28, 32
s_w, s_mi, s_fi, s_mf, s_ns = 36, 37, 38, 39, 40
s_xoff, s_woff, s_m0x, s_m0w = 41, 42, 43, 44
s_t0, s_t1, s_t2, s_t3 = 45, 46, 47, 48
s_hoff = 49
s_tag = 50
s_spin = 51
STAMP0 = 66
NSTAMP = 15
def stamp(g, i, on=True):
    if on: g(f"s_memtime s[{STAMP0+2*i}:{STAMP0+2*i+1}]")
def start_rt(g):
    g("s_memrealtime s[98:99]\ns_waitcnt lgkmcnt(0)\nv_mov_b32 v20, s98\nv_accvgpr_write_b32 a254, v20")
def dump_stamps(g, n=NSTAMP):
    g(f"""s_waitcnt lgkmcnt(0) vmcnt(0)
    s_memrealtime s[{STAMP0+2*n}:{STAMP0+2*n+1}]
    s_waitcnt lgkmcnt(0)
    s_mov_b32 s{sWS+2}, 0x7fffffff
    s_lshl_b32 s{s_t0}, s2, 9
    s_lshl_b32 s{s_t1}, s{s_w}, 7
    s_add_u32 s{s_t0}, s{s_t0}, s{s_t1}
    s_add_u32 s{s_t0}, s{s_t0}, {WS_STAMPS}
    v_mov_b32 v2, 0""")
    for i in range(n+1):
        g(f"v_mov_b32 v3, s{STAMP0+2*i}\nbuffer_store_dword v3, v2, s[{sWS}:{sWS+3}], s{s_t0} offen offset:{4*i}")
    g(f"v_accvgpr_read_b32 v3, a254\nbuffer_store_dword v3, v2, s[{sWS}:{sWS+3}], s{s_t0} offen offset:{4*(n+1)}")
    g("s_waitcnt vmcnt(0)")

def load_tag(g):
    g(f"s_mov_b32 s{s_spin}, {WS_EPOCH}\ns_load_dword s{s_tag}, s[{sWS}:{sWS+1}], s{s_spin}")
def make_tag(g):
    g(f"s_mul_i32 s{s_tag}, s{s_tag}, 0x9E3779B1\ns_add_u32 s{s_tag}, s{s_tag}, 0x7F4A7C15")

def rnd_bf16(g, r, tmp=None):
    g(f"v_cvt_pk_bf16_f32 v{r}, v{r}, v{r}\nv_lshlrev_b32 v{r}, 16, v{r}")

def publish_flag(g, off_expr_sgpr, lab):
    g("s_waitcnt vmcnt(0)\ns_barrier")
    g(f"""s_cmp_lg_u32 s{s_w}, 0
    s_cbranch_scc1 {lab}
    v_mov_b32 v2, 0
    v_mov_b32 v3, s{s_tag}
    s_mov_b64 exec, 1
    buffer_store_dword v3, v2, s[{sWS}:{sWS+3}], s{off_expr_sgpr} offen sc1
    s_mov_b64 exec, -1
    {lab}:""")

def flag_store(g, off_sgpr, lab, vt=14):
    g(f"""s_cmp_lg_u32 s{s_w}, 0
    s_cbranch_scc1 {lab}
    v_mov_b32 v{vt}, 0
    v_mov_b32 v{vt+1}, s{s_tag}
    s_mov_b64 exec, 1
    buffer_store_dword v{vt+1}, v{vt}, s[{sWS}:{sWS+3}], s{off_sgpr} offen sc1
    s_mov_b64 exec, -1
    {lab}:""")

def spare(g, flags=True, stamps=False):
    sWC = 32
    s_j = 37
    vl = 1
    LC = 0
    srd_load(g, sX, 'q'); srd_load(g, sWG, 'wg'); srd_load(g, sWU, 'wu'); srd_load(g, sWS, 'ws')
    g(f"""
    v_and_b32 v{vl}, 63, v0
    v_lshrrev_b32 v2, 6, v0
    s_sub_u32 s{s_j}, s2, 224
    v_readfirstlane_b32 s{s_w}, v2
    v_and_b32 v3, 15, v{vl}              ; n / p
    v_lshrrev_b32 v4, 4, v{vl}           ; q / rgl
    s_lshl_b32 s{s_t0}, s{s_w}, 4
    v_add_u32 v5, s{s_t0}, v3            ; 16w + n
    v_mul_u32_u24 v5, 896, v5
    v_lshl_add_u32 v5, v4, 4, v5         ; R voffset
    s_and_b32 s{s_t0}, s{s_j}, 7              ; xcd
    s_lshr_b32 s{s_t1}, s{s_j}, 3             ; q
    s_lshr_b32 s{s_t2}, s{s_t0}, 1            ; xcd>>1
    s_and_b32 s{s_t0}, s{s_t0}, 1             ; p
    s_lshl_b32 s52, s{s_t2}, 3
    s_lshl_b32 s53, s{s_t0}, 2
    s_add_u32 s52, s52, s53
    s_add_u32 s52, s52, s{s_t1}               ; s52 = rb = 8*(x>>1) + 4p + q
    s_lshl_b32 s53, s{s_t2}, 2
    s_add_u32 s53, s53, s{s_t1}               ; s53 = i = 4*(x>>1) + q
    s_mul_i32 s54, s{s_t0}, 7                 ; 7p
    s_mul_i32 s{s_xoff}, s52, {64*896}
    s_lshl_b32 s{s_t0}, s{s_w}, 2
    v_add_u32 v6, s{s_t0}, v4
    v_mul_u32_u24 v6, 3584, v6
    v_lshl_add_u32 v6, v3, 4, v6         ; C voffset
    s_cmp_ge_u32 s53, 7
    s_cselect_b32 s{s_t1}, 7, 0
    s_sub_u32 s{s_fi}, s53, s{s_t1}
    s_add_u32 s{s_fi}, s{s_fi}, s54      ; fb
    s_lshl_b32 s{s_woff}, s{s_fi}, 8
    s_waitcnt lgkmcnt(0)
    """)
    load_tag(g)
    g(f"""s_cmp_ge_u32 s53, 7
    s_cselect_b32 s{sWC}, s{sWU}, s{sWG}
    s_cselect_b32 s{sWC+1}, s{sWU+1}, s{sWG+1}""")
    srd_fix(g, sX, S*D*2); srd_fix(g, sWC, D*F*2); srd_fix(g, sWS, WS_END)
    stamp(g, 0, stamps)
    RB = 16
    CB = 72
    CA = 200
    LR = 16384
    g(f"v_lshlrev_b32 v7, 4, v{vl}")
    g(f"s_cmp_ge_u32 s53, 14\ns_cbranch_scc1 SP_noC1")
    g(f"s_mov_b32 s{s_t3}, s{s_woff}")
    for i in range(28):
        g(f"buffer_load_dwordx4 v[{CB+4*i}:{CB+4*i+3}], v6, s[{sWC}:{sWC+3}], s{s_t3} offen")
        if i < 27: g(f"s_add_u32 s{s_t3}, s{s_t3}, {16*3584}")
    g.lab("SP_noC1")
    g(f"s_mul_i32 s{s_t0}, s{s_w}, 14336\ns_add_u32 s{s_t1}, s{s_xoff}, s{s_t0}\ns_add_u32 m0, s{s_t0}, {LR}")
    for i in range(14):
        if i and i % 4 == 0: g(f"s_add_u32 s{s_t1}, s{s_t1}, 4096\ns_add_u32 m0, m0, 4096")
        g(f"buffer_load_dwordx4 v7, s[{sX}:{sX+3}], s{s_t1} offen offset:{1024*(i%4)} lds")
    stamp(g, 1, stamps)
    g(f"s_cmp_ge_u32 s53, 14\ns_cbranch_scc1 SP_noC1b")
    g(f"s_mov_b32 s90, 0x00003f80\ns_mov_b32 s91, 0x3f800000")
    for c in range(8): g(f"v_mov_b32 v{CA+c}, 0")
    for i in range(28):
        if i % 2 == 0: g(f"s_waitcnt vmcnt({28 - (i+2) + 14})")
        for q in range(4):
            g(f"v_dot2_f32_bf16 v{CA+2*q}, v{CB+4*i+q}, s90, v{CA+2*q}")
            g(f"v_dot2_f32_bf16 v{CA+2*q+1}, v{CB+4*i+q}, s91, v{CA+2*q+1}")
    g(f"""
    s_lshl_b32 s{s_t0}, s{s_w}, 2
    v_add_u32 v13, s{s_t0}, v4            ; rg
    v_lshlrev_b32 v13, 9, v13
    v_lshl_add_u32 v13, v3, 5, v13
    s_nop 2
    ds_write_b128 v13, v[{CA}:{CA+3}]
    ds_write_b128 v13, v[{CA+4}:{CA+7}] offset:16
    SP_noC1b:
    """)
    g(f"""
    s_mul_i32 s{s_t0}, s{s_w}, 14336
    s_add_u32 s{s_t0}, s{s_t0}, {LR}
    v_mul_u32_u24 v5, 896, v3
    v_lshl_add_u32 v5, v4, 4, v5
    v_add_u32 v5, s{s_t0}, v5
    s_waitcnt vmcnt(0)
    """)
    for ks in range(14): g(f"ds_read_b128 v[{RB+4*ks}:{RB+4*ks+3}], v5 offset:{64*ks}")
    g("v_mov_b32 v8, 0x3f803f80\nv_mov_b32 v9, 0x3f803f80\nv_mov_b32 v10, 0x3f803f80\nv_mov_b32 v11, 0x3f803f80\ns_waitcnt lgkmcnt(0)\ns_barrier")
    D1, D2 = 184, 188
    for ks in range(14):
        A = f"v[{RB+4*ks}:{RB+4*ks+3}]"
        c1 = "0" if ks == 0 else f"v[{D1}:{D1+3}]"
        c2 = "0" if ks == 0 else f"v[{D2}:{D2+3}]"
        g(f"v_mfma_f32_16x16x32_bf16 v[{D1}:{D1+3}], {A}, v[8:11], {c1}")
        g(f"v_mfma_f32_16x16x32_bf16 v[{D2}:{D2+3}], {A}, {A}, {c2}")
    g(f"""
    v_and_b32 v12, 3, v{vl}
    v_cmp_eq_u32 s[90:91], 1, v12
    v_cmp_eq_u32 s[92:93], 2, v12
    v_cmp_eq_u32 s[94:95], 3, v12
    v_lshrrev_b32 v13, 2, v3              ; n>>2
    v_cmp_eq_u32 s[96:97], v13, v4        ; q == n>>2
    s_nop 7
    v_cndmask_b32 v{D1}, v{D1}, v{D1+1}, s[90:91]
    v_cndmask_b32 v{D2}, v{D2}, v{D2+1}, s[90:91]
    v_cndmask_b32 v{D1}, v{D1}, v{D1+2}, s[92:93]
    v_cndmask_b32 v{D2}, v{D2}, v{D2+2}, s[92:93]
    v_cndmask_b32 v{D1}, v{D1}, v{D1+3}, s[94:95]
    v_cndmask_b32 v{D2}, v{D2}, v{D2+3}, s[94:95]
    v_mul_f32 v{D1}, {fh(1.0/448)}, v{D1}            ; mean
    v_mul_f32 v{D2}, {fh(1.0/448)}, v{D2}            ; E[x^2]
    v_fma_f32 v{D2}, -v{D1}, v{D1}, v{D2}            ; var
    v_max_f32 v{D2}, 0, v{D2}
    """)
    rnd_bf16(g, D1); rnd_bf16(g, D2)
    g(f"v_add_f32 v{D2}, {fh(1e-5)}, v{D2}"); rnd_bf16(g, D2)
    g(f"v_sqrt_f32 v{D2}, v{D2}\ns_nop 0"); rnd_bf16(g, D2)
    g(f"""
    v_mov_b32 v{D1+1}, v{D2}
    s_lshl_b32 s{s_t0}, s52, 9
    s_lshl_b32 s{s_t1}, s{s_w}, 7
    s_add_u32 s{s_t0}, s{s_t0}, s{s_t1}
    s_add_u32 s{s_t0}, s{s_t0}, {WS_STATS}
    v_lshlrev_b32 v13, 3, v3
    s_mov_b64 exec, s[96:97]
    buffer_store_dwordx2 v[{D1}:{D1+1}], v13, s[{sWS}:{sWS+3}], s{s_t0} offen sc1
    s_mov_b64 exec, -1
    """)
    stamp(g, 2, stamps)
    g(f"""s_cmp_ge_u32 s53, 14
    s_cbranch_scc1 SP_noC2
    s_cmp_ge_u32 s{s_w}, 2
    s_cbranch_scc1 SP_noC2
    v_lshlrev_b32 v13, 2, v0
    v_mov_b32 v14, v13
    """)
    for r in range(16): g(f"ds_read_b32 v{CB+r}, v14 offset:{512*r}")
    g("s_waitcnt lgkmcnt(0)")
    for r in range(8): g(f"v_add_f32 v{CB+r}, v{CB+r}, v{CB+r+8}")
    for r in range(4): g(f"v_add_f32 v{CB+r}, v{CB+r}, v{CB+r+4}")
    g(f"v_add_f32 v{CB}, v{CB}, v{CB+2}\nv_add_f32 v{CB+1}, v{CB+1}, v{CB+3}\nv_add_f32 v{CB}, v{CB}, v{CB+1}")
    g(f"""
    s_cmp_ge_u32 s53, 7
    s_cselect_b32 s{s_t0}, 7168, 0
    s_lshl_b32 s{s_t1}, s{s_fi}, 9
    s_add_u32 s{s_t0}, s{s_t0}, s{s_t1}
    s_add_u32 s{s_t0}, s{s_t0}, {WS_CS}
    buffer_store_dword v{CB}, v13, s[{sWS}:{sWS+3}], s{s_t0} offen sc1
    SP_noC2:
    """)
    stamp(g, 3, stamps)
    g("s_waitcnt vmcnt(0) lgkmcnt(0)")
    make_tag(g)
    g("s_barrier")
    if flags:
        g(f"s_lshl_b32 s{s_t0}, s{s_j}, 6\ns_add_u32 s{s_t0}, s{s_t0}, {WS_FA}")
        flag_store(g, s_t0, "SP_nf1")
    stamp(g, 4, stamps)


def lines(txt):
    out = []
    for l in txt.strip().split("\n"):
        l = l.split(";")[0].strip()
        if l: out.append(l)
    return out
def emit_mixed(g, L, tag):
    for x in L: g.emit(x, tag)
def T(L, tag=None):
    L = lines(L) if isinstance(L, str) else list(L)
    out = []; cur = None
    for x in L:
        if "\n" in x:
            out.append((x, tag))
        elif x.startswith("s_mov_b64 exec,") and not x.endswith("-1"):
            cur = [x]
        elif cur is not None:
            cur.append(x)
            if x == "s_mov_b64 exec, -1":
                out.append(("\n".join(cur), tag)); cur = None
        else:
            out.append((x, tag))
    assert cur is None
    return out

LX = 0; LW = 49152
LKT = 147968; LVT = LKT + 4352; LKO = LKT + 8448
LST = 18432
RING = 20480
LCV = 114688; CVCOPY = 4160; CVCH = 4*CVCOPY
LU = 152576; CVUS = 5120
E1B = 81920; E2B = 16384

sKK, sVV, sSH = 20, 24, 28
sWD2, sSK2, sOUT2 = 56, 60, 8
s_kv, s_kk, s_kt, s_ko = 32, 33, 34, 35
s_hi, s_ct = 52, 53
s_zoff = 54
s_pb = 55
s_t4 = 3

v_lane = 1
v_xd = 2
v_wd = 6
v_xa = 10
v_wa = 14
v_l16 = 18
v_fr = 20
v_poll = 126
v_hv = 70
v_tch = 71
v_acc = 128
def accg(ft, nt): return v_acc + (ft*2+nt)*16
def accu(ft, nt): return v_acc + 64 + (ft*2+nt)*16
kB1, kB2, kvA, kvV, kvOW, kvOR, kvG, kvD0, kvD1 = 72, 76, 80, 81, 82, 83, 84, 85, 86
kA, kV, kD, kU, kO = 88, 104, 108, 116, 124

def poll_check(g, name, issued_tag):
    vt = v_poll
    if issued_tag is not None:
        g.vwait(issued_tag)
        g(f"v_cmp_ne_u32 vcc, s{s_tag}, v{vt+1}\ns_cbranch_vccz {name}_done")
    g(f"""
    s_mov_b32 s{s_spin}, 0x8000
    {name}_loop:
    buffer_load_dword v{vt+1}, v{vt}, s[{sWS}:{sWS+3}], s{s_pb} offen sc1
    s_waitcnt vmcnt(0)
    v_cmp_ne_u32 vcc, s{s_tag}, v{vt+1}
    s_cbranch_vccz {name}_done
    s_sleep 1
    s_sub_u32 s{s_spin}, s{s_spin}, 1
    s_cmp_lg_u32 s{s_spin}, 0
    s_cbranch_scc1 {name}_loop
    {name}_done:
    """)
def poll_issue(tag): return [(f"buffer_load_dword v{v_poll+1}, v{v_poll}, s[{sWS}:{sWS+3}], s{s_pb} offen sc1", tag)]
def wave_flag(g, off_sgpr):
    g(f"""v_mov_b32 v{v_hv}, 0
    v_mov_b32 v{v_tch}, s{s_tag}
    s_mov_b64 exec, 1""")
    g.vm(f"buffer_store_dword v{v_tch}, v{v_hv}, s[{sWS}:{sWS+3}], s{off_sgpr} offen sc1", "flag")
    g("s_mov_b64 exec, -1")

def g1_prologue(g):
    srd_load(g, sX, 'q'); srd_load(g, sWG, 'wg'); srd_load(g, sWU, 'wu')
    srd_load(g, sKK, 'k'); srd_load(g, sVV, 'v'); srd_load(g, sSH, 'shk'); srd_load(g, sWS, 'ws')
    srd_load(g, sWD2, 'wd'); srd_load(g, sSK2, 'ssmk'); srd_load(g, 64, 'out'); srd_load(g, 96, 'ssmD')
    g(f"""
    v_and_b32 v{v_lane}, 63, v0
    v_lshrrev_b32 v20, 6, v0
    s_lshr_b32 s{s_t0}, s2, 3
    s_and_b32 s{s_t1}, s2, 7
    v_readfirstlane_b32 s{s_w}, v20
    s_mul_i32 s{s_t2}, s{s_t0}, 37
    s_lshr_b32 s{s_t2}, s{s_t2}, 8
    s_mul_i32 s{s_t3}, s{s_t2}, 7
    s_sub_u32 s{s_ct}, s{s_t0}, s{s_t3}
    s_lshr_b32 s{s_mi}, s{s_t1}, 1
    s_lshl_b32 s{s_mi}, s{s_mi}, 2
    s_add_u32 s{s_mi}, s{s_mi}, s{s_t2}
    s_and_b32 s{s_hi}, s{s_t1}, 1
    s_mul_i32 s{s_t1}, s{s_hi}, 7
    s_add_u32 s{s_fi}, s{s_ct}, s{s_t1}
    v_lshrrev_b32 v20, 3, v{v_lane}
    v_lshrrev_b32 v21, 4, v{v_lane}
    v_and_b32 v22, 7, v{v_lane}
    v_mul_u32_u24 v20, 896, v20
    v_xor_b32 v23, v22, v21
    v_xor_b32 v28, 4, v23
    v_lshl_add_u32 v{v_xd}, v23, 4, v20
    v_lshl_add_u32 v28, v28, 4, v20
    v_add_u32 v{v_xd+1}, {8*896-1024}, v28
    v_add_u32 v{v_xd+2}, {2*(8*896-1024)}, v{v_xd}
    v_add_u32 v{v_xd+3}, {3*(8*896-1024)}, v28
    v_and_b32 v22, 15, v{v_lane}
    v_lshlrev_b32 v23, 2, v21
    v_sub_u32 v22, v22, v23
    v_and_b32 v22, 15, v22
    v_mul_u32_u24 v23, 3584, v21
    v_lshl_add_u32 v{v_wd}, v22, 4, v23
    v_add_u32 v{v_wd+1}, {4*3584-1024}, v{v_wd}
    v_add_u32 v{v_wd+2}, {2*(4*3584-1024)}, v{v_wd}
    v_add_u32 v{v_wd+3}, {3*(4*3584-1024)}, v{v_wd}
    s_lshl_b32 s{s_t0}, s{s_mi}, 7
    s_lshl_b32 s{s_t1}, s{s_w}, 5
    s_add_u32 s{s_t0}, s{s_t0}, s{s_t1}
    s_mul_i32 s{s_xoff}, s{s_t0}, 896
    s_mul_i32 s{s_woff}, s{s_w}, {16*3584}
    s_lshl_b32 s{s_t0}, s{s_fi}, 8
    s_add_u32 s{s_woff}, s{s_woff}, s{s_t0}
    s_lshl_b32 s{s_m0x}, s{s_w}, 12
    s_add_u32 s{s_m0w}, s{s_m0x}, {LW}
    s_and_b32 s{s_mf}, s{s_w}, 1
    s_lshr_b32 s{s_ns}, s{s_w}, 1
    s_lshl_b32 s{s_t4}, s{s_w}, 11
    v_lshlrev_b32 v{v_l16}, 4, v{v_lane}
    s_waitcnt lgkmcnt(0)
    """)
    srd_fix(g, sX, S*D*2); srd_fix(g, sWG, D*F*2); srd_fix(g, sWU, D*F*2)

def g1_dma_x(c):
    sl = c % 3
    L = [f"s_add_u32 m0, s{s_m0x}, {LX + sl*16384}", f"s_add_u32 s{s_t3}, s{s_xoff}, {128*c}"]
    for ii in range(4):
        L.append(f"buffer_load_dwordx4 v{v_xd+ii}, s[{sX}:{sX+3}], s{s_t3} offen offset:{1024*ii} lds")
    return L
def g1_dma_w(c, mat):
    sl = c % 3
    sr = sWG if mat == 0 else sWU
    L = [f"s_add_u32 m0, s{s_m0w}, {sl*32768 + mat*16384}", f"s_add_u32 s{s_t3}, s{s_woff}, {64*c*3584}"]
    for ii in range(4):
        L.append(f"buffer_load_dwordx4 v{v_wd+ii}, s[{sr}:{sr+3}], s{s_t3} offen offset:{1024*ii} lds")
    return L
def g1_groups(c): return [g1_dma_x(c), g1_dma_w(c,0), g1_dma_w(c,1)]

def kp_setup_dma():
    return lines(f"""
    v_lshrrev_b32 v104, 2, v{v_lane}
    v_and_b32 v105, 3, v{v_lane}
    v_mul_u32_u24 v104, 896, v104
    v_lshl_add_u32 v{kvD1}, v105, 4, v104
    s_lshl_b32 s{s_t0}, s{s_mi}, 7
    s_lshl_b32 s{s_t2}, s{s_fi}, 6
    s_add_u32 s{s_t1}, s{s_t0}, 61
    s_mul_i32 s{s_kt}, s{s_t1}, 896
    s_add_u32 s{s_kt}, s{s_kt}, s{s_t2}
    s_lshl_b32 s{s_t1}, s{s_w}, 4
    s_add_u32 s{s_t0}, s{s_t0}, s{s_t1}
    s_mul_i32 s{s_kv}, s{s_t0}, 896
    s_add_u32 s{s_kv}, s{s_kv}, s{s_t2}
    s_cmp_eq_u32 s{s_t0}, 0
    s_cselect_b32 s{s_t1}, 0, 2688
    s_cselect_b32 s{s_t2}, 2688, 0
    s_sub_u32 s{s_kk}, s{s_kv}, s{s_t1}
    v_subrev_u32 v{kvD0}, s{s_t2}, v{kvD1}
    """)
def kp_dma(h):
    NL = "\n"
    if h == 0:
        return [NL.join([f"s_lshr_b32 s{s_t0}, s{s_t4}, 1", f"s_add_u32 m0, s{s_t0}, {LKT}", "s_nop 0",
                         f"buffer_load_dwordx4 v{kvD0}, s[{sKK}:{sKK+3}], s{s_kk} offen lds"]),
                NL.join([f"s_lshr_b32 s{s_t0}, s{s_t4}, 1", f"s_add_u32 m0, s{s_t0}, {LVT}", "s_nop 0",
                         f"buffer_load_dwordx4 v{kvD1}, s[{sVV}:{sVV+3}], s{s_kv} offen lds"]),
                NL.join([f"s_mov_b32 m0, {LKT+4096}", "s_mov_b64 exec, 0xfff",
                         f"buffer_load_dwordx4 v{kvD1}, s[{sKK}:{sKK+3}], s{s_kt} offen lds", "s_mov_b64 exec, -1"])]
    return [NL.join([f"s_lshr_b32 s{s_t0}, s{s_t4}, 1", f"s_add_u32 m0, s{s_t0}, {LKT}", f"s_add_u32 s{s_t1}, s{s_kv}, {57344-2688}",
                     f"buffer_load_dwordx4 v{kvD1}, s[{sKK}:{sKK+3}], s{s_t1} offen lds"]),
            NL.join([f"s_lshr_b32 s{s_t0}, s{s_t4}, 1", f"s_add_u32 m0, s{s_t0}, {LVT}", f"s_add_u32 s{s_t1}, s{s_kv}, 57344",
                     f"buffer_load_dwordx4 v{kvD1}, s[{sVV}:{sVV+3}], s{s_t1} offen lds"]),
            NL.join([f"s_mov_b32 m0, {LKT+4096}", f"s_add_u32 s{s_t1}, s{s_kt}, 57344", "s_mov_b64 exec, 0xfff",
                     f"buffer_load_dwordx4 v{kvD1}, s[{sKK}:{sKK+3}], s{s_t1} offen lds", "s_mov_b64 exec, -1"])]
def kp_shk_load():
    return lines(f"""
    v_and_b32 v{kA+2}, 15, v{v_lane}
    s_lshl_b32 s{s_t0}, s{s_fi}, 5
    s_lshl_b32 s{s_t1}, s{s_mf}, 4
    s_add_u32 s{s_t0}, s{s_t0}, s{s_t1}
    s_lshl_b32 s{s_t1}, s{s_t0}, 3
    v_lshlrev_b32 v{kA+3}, 3, v{kA+2}
    buffer_load_dwordx2 v[{kA}:{kA+1}], v{kA+3}, s[{sSH}:{sSH+3}], s{s_t1} offen
    """)
def kp_setup_addr():
    n, kq, t0, t1 = 104, 105, 106, 107
    return lines(f"""
    v_and_b32 v{n}, 15, v{v_lane}
    v_lshrrev_b32 v{kq}, 4, v{v_lane}
    v_lshrrev_b32 v{t0}, 2, v{n}
    v_and_b32 v{t1}, 3, v{n}
    v_lshl_add_u32 v{t0}, v{t0}, 3, v{t1}
    v_lshrrev_b32 v{t1}, 1, v{kq}
    v_sub_u32 v{t0}, v{t0}, v{t1}
    v_add_u32 v{t0}, 1, v{t0}
    s_lshl_b32 s{s_t0}, s{s_ns}, 5
    v_add_u32 v{t0}, s{s_t0}, v{t0}
    v_lshlrev_b32 v{t0}, 6, v{t0}
    v_and_b32 v{t1}, 1, v{kq}
    v_lshl_add_u32 v{t0}, v{t1}, 4, v{t0}
    s_lshl_b32 s{s_t1}, s{s_mf}, 5
    s_add_u32 s{s_t2}, s{s_t1}, {LKT}
    v_add_u32 v{kvA}, s{s_t2}, v{t0}
    v_lshrrev_b32 v{t0}, 2, v{n}
    v_lshl_add_u32 v{t0}, v{kq}, 3, v{t0}
    v_add_u32 v{t0}, s{s_t0}, v{t0}
    v_lshlrev_b32 v{t0}, 6, v{t0}
    v_and_b32 v{t1}, 3, v{n}
    v_lshl_add_u32 v{t0}, v{t1}, 3, v{t0}
    s_add_u32 s{s_t2}, s{s_t1}, {LVT}
    v_add_u32 v{kvV}, s{s_t2}, v{t0}
    s_lshr_b32 s{s_t0}, s{s_t4}, 1
    s_add_u32 s{s_t0}, s{s_t0}, {LKO}
    v_sub_u32 v{t0}, 3, v{kq}
    v_lshlrev_b32 v{t0}, 4, v{t0}
    v_lshl_add_u32 v{t0}, v{n}, 6, v{t0}
    v_add_u32 v{kvOW}, s{s_t0}, v{t0}
    v_add_u32 v{kvOR}, s{s_t0}, v{v_l16}
    v_lshrrev_b32 v{t0}, 2, v{v_lane}
    v_lshlrev_b32 v{t0}, 12, v{t0}
    v_and_b32 v{t1}, 3, v{v_lane}
    v_lshl_add_u32 v{kvG}, v{t1}, 4, v{t0}
    s_lshl_b32 s{s_t0}, s{s_fi}, 5
    s_lshl_b32 s{s_t1}, s{s_mf}, 4
    s_add_u32 s{s_t0}, s{s_t0}, s{s_t1}
    s_lshl_b32 s{s_t0}, s{s_t0}, 12
    s_lshl_b32 s{s_t1}, s{s_mi}, 8
    s_sub_u32 s{s_t0}, s{s_t0}, s{s_t1}
    s_lshl_b32 s{s_t1}, s{s_ns}, 6
    s_sub_u32 s{s_t0}, s{s_t0}, s{s_t1}
    s_add_u32 s{s_ko}, s{s_t0}, {WS_KVT + 4032}
    """)
def kp_build_B():
    n, kq, a, b, c, d = 108, 109, 110, 111, 112, 113
    L = lines(f"""
    v_and_b32 v{n}, 15, v{v_lane}
    v_lshrrev_b32 v{kq}, 4, v{v_lane}
    v_lshrrev_b32 v{a}, 1, v{kq}
    v_lshlrev_b32 v{a}, 4, v{a}
    v_lshrrev_b32 v{b}, v{a}, v{kA}
    v_lshrrev_b32 v{c}, v{a}, v{kA+1}
    v_and_b32 v{b}, 0xffff, v{b}
    v_and_b32 v{c}, 0xffff, v{c}
    v_and_b32 v{a}, 1, v{n}
    v_lshlrev_b32 v{a}, 4, v{a}
    v_lshlrev_b32 v{b}, v{a}, v{b}
    v_lshlrev_b32 v{c}, v{a}, v{c}
    v_lshrrev_b32 v{a}, 3, v{n}
    v_and_b32 v{d}, 1, v{kq}
    v_cmp_eq_u32 vcc, v{a}, v{d}
    v_bfe_u32 v{a}, v{n}, 1, 2
    s_nop 0
    v_cndmask_b32 v{b}, 0, v{b}, vcc
    v_cndmask_b32 v{c}, 0, v{c}, vcc
    """)
    for i in range(4):
        L += [f"v_cmp_eq_u32 vcc, {i}, v{a}", "s_nop 1", f"v_cndmask_b32 v{kB1+i}, 0, v{b}, vcc", f"v_cndmask_b32 v{kB2+i}, 0, v{c}, vcc"]
    return L
def kp_reads():
    L = []
    for t in range(2):
        L.append(f"ds_read_b128 v[{kA+8*t}:{kA+8*t+3}], v{kvA} offset:{256*t+128}")
        L.append(f"ds_read_b128 v[{kA+8*t+4}:{kA+8*t+7}], v{kvA} offset:{256*t}")
        L.append(f"ds_read_b64_tr_b16 v[{kV+2*t}:{kV+2*t+1}], v{kvV} offset:{256*t}")
    return L
def kp_mfma():
    L = []
    for t in range(2): L.append(f"v_mfma_f32_16x16x32_bf16 v[{kD+4*t}:{kD+4*t+3}], v[{kA+8*t}:{kA+8*t+3}], v[{kB1}:{kB1+3}], 0")
    for t in range(2): L.append(f"v_mfma_f32_16x16x32_bf16 v[{kD+4*t}:{kD+4*t+3}], v[{kA+8*t+4}:{kA+8*t+7}], v[{kB2}:{kB2+3}], v[{kD+4*t}:{kD+4*t+3}]")
    for t in range(2):
        for h in range(2):
            L += [f"v_lshlrev_b32 v{kU+4*t+2*h}, 16, v{kV+2*t+h}", f"v_and_b32 v{kU+4*t+2*h+1}, 0xffff0000, v{kV+2*t+h}"]
    return L
def kp_finish():
    L = []
    for t in range(2):
        for h in range(2):
            L.append(f"v_pk_mul_f32 v[{kD+4*t+2*h}:{kD+4*t+2*h+1}], v[{kD+4*t+2*h}:{kD+4*t+2*h+1}], v[{kU+4*t+2*h}:{kU+4*t+2*h+1}]")
    for e in range(4):
        t = 1 - (e >> 1); r = 3 - 2*(e & 1)
        L.append(f"v_cvt_pk_bf16_f32 v{kO+e}, v{kD+4*t+r}, v{kD+4*t+r-1}")
    L.append(f"ds_write_b128 v{kvOW}, v[{kO}:{kO+3}]")
    return L
def kp_readback(): return [f"ds_read_b128 v[{kO}:{kO+3}], v{kvOR}"]
def kp_store(h):
    if h == 0: return [f"buffer_store_dwordx4 v[{kO}:{kO+3}], v{kvG}, s[{sWS}:{sWS+3}], s{s_ko} offen sc1"]
    return [f"s_sub_u32 s{s_t0}, s{s_ko}, 128", f"buffer_store_dwordx4 v[{kO}:{kO+3}], v{kvG}, s[{sWS}:{sWS+3}], s{s_t0} offen sc1"]


LKT2 = 147456; LVT2 = 155648; LKO2 = 147456
def kps_dma_setup():
    return lines(f"""
    v_lshrrev_b32 v106, 2, v{v_lane}
    v_and_b32 v107, 3, v{v_lane}
    v_mul_u32_u24 v106, 896, v106
    v_lshl_add_u32 v104, v107, 4, v106
    v_add_u32 v105, {16*896-1024}, v104
    s_lshl_b32 s{s_t0}, s{s_mi}, 7
    s_lshl_b32 s{s_t1}, s{s_w}, 5
    s_add_u32 s{s_t0}, s{s_t0}, s{s_t1}
    s_mul_i32 s34, s{s_t0}, 896
    s_lshl_b32 s{s_t2}, s{s_fi}, 6
    s_add_u32 s34, s34, s{s_t2}
    v_and_b32 v106, 15, v{v_lane}
    v_lshrrev_b32 v107, 2, v106
    v_and_b32 v106, 3, v106
    v_lshl_add_u32 v106, v107, 4, v106
    v_lshrrev_b32 v107, 5, v{v_lane}
    v_sub_u32 v106, v106, v107
    v_add_u32 v106, 1, v106
    v_mul_u32_u24 v106, 896, v106
    v_bfe_u32 v107, v{v_lane}, 4, 1
    v_lshl_add_u32 v106, v107, 4, v106
    s_lshl_b32 s{s_t0}, s{s_mi}, 7
    s_lshl_b32 s{s_t1}, s{s_ns}, 6
    s_add_u32 s{s_t0}, s{s_t0}, s{s_t1}
    s_mul_i32 s35, s{s_t0}, 896
    s_add_u32 s35, s35, s{s_t2}
    s_lshl_b32 s{s_t1}, s{s_mf}, 5
    s_add_u32 s35, s35, s{s_t1}
    s_cmp_eq_u32 s{s_t0}, 0
    s_cselect_b32 s{s_t1}, 0, 2688
    s_cselect_b32 s{s_t2}, 2688, 0
    s_sub_u32 s35, s35, s{s_t1}
    v_subrev_u32 v106, s{s_t2}, v106
    v_add_u32 v107, 1792, v106
    """)
def kps_dma_L():
    NL = "\n"
    return [NL.join([f"s_add_u32 m0, s{s_t4}, {LKT2}", "s_nop 0", f"buffer_load_dwordx4 v104, s[{sKK}:{sKK+3}], s34 offen lds"]),
            NL.join([f"s_add_u32 m0, s{s_t4}, {LKT2}", "s_nop 0", f"buffer_load_dwordx4 v105, s[{sKK}:{sKK+3}], s34 offen offset:1024 lds"]),
            NL.join([f"s_add_u32 m0, s{s_t4}, {LVT2}", "s_nop 0", f"buffer_load_dwordx4 v104, s[{sVV}:{sVV+3}], s34 offen lds"]),
            NL.join([f"s_add_u32 m0, s{s_t4}, {LVT2}", "s_nop 0", f"buffer_load_dwordx4 v105, s[{sVV}:{sVV+3}], s34 offen offset:1024 lds"])]
kT0 = 88
def kps_t0_L():
    return [f"buffer_load_dwordx4 v[{kT0}:{kT0+3}], v107, s[{sKK}:{sKK+3}], s35 offen",
            f"buffer_load_dwordx4 v[{kT0+4}:{kT0+7}], v106, s[{sKK}:{sKK+3}], s35 offen"]
def kps_setup(g, LKT2=LKT2, LVT2=LVT2, LKO2=LKO2, radd=2):
    g(f"""
    v_and_b32 v108, 15, v{v_lane}
    v_lshrrev_b32 v109, 4, v{v_lane}
    v_lshrrev_b32 v110, 2, v108
    v_and_b32 v111, 3, v108
    v_lshl_add_u32 v110, v110, 4, v111
    v_lshrrev_b32 v111, 1, v109
    v_sub_u32 v110, v110, v111
    v_add_u32 v110, {radd}, v110
    s_lshl_b32 s{s_t0}, s{s_ns}, 6
    v_add_u32 v110, s{s_t0}, v110
    v_lshlrev_b32 v110, 6, v110
    v_and_b32 v111, 1, v109
    v_lshl_add_u32 v110, v111, 4, v110
    s_lshl_b32 s{s_t1}, s{s_mf}, 5
    s_add_u32 s{s_t2}, s{s_t1}, {LKT2}
    v_add_u32 v80, s{s_t2}, v110
    v_lshrrev_b32 v110, 2, v108
    v_lshl_add_u32 v110, v109, 4, v110
    v_add_u32 v110, s{s_t0}, v110
    v_lshlrev_b32 v110, 6, v110
    v_and_b32 v111, 3, v108
    v_lshl_add_u32 v110, v111, 3, v110
    s_add_u32 s{s_t2}, s{s_t1}, {LVT2}
    v_add_u32 v81, s{s_t2}, v110
    v_lshlrev_b32 v110, 1, v109
    v_sub_u32 v110, 6, v110
    v_and_b32 v111, 7, v108
    v_xor_b32 v110, v110, v111
    v_xor_b32 v111, 1, v110
    v_lshlrev_b32 v83, 7, v108
    s_add_u32 s{s_t1}, s{s_t4}, {LKO2}
    v_add_u32 v83, s{s_t1}, v83
    v_lshl_add_u32 v82, v110, 4, v83
    v_lshl_add_u32 v83, v111, 4, v83
    v_lshrrev_b32 v110, 3, v{v_lane}
    v_and_b32 v111, 7, v{v_lane}
    v_xor_b32 v84, v111, v110
    v_lshlrev_b32 v85, 7, v110
    v_lshl_add_u32 v84, v84, 4, v85
    v_add_u32 v84, s{s_t1}, v84
    v_lshlrev_b32 v85, 12, v110
    v_lshl_add_u32 v85, v111, 4, v85
    s_lshl_b32 s{s_t0}, s{s_fi}, 5
    s_lshl_b32 s{s_t1}, s{s_mf}, 4
    s_add_u32 s{s_t0}, s{s_t0}, s{s_t1}
    s_lshl_b32 s{s_t0}, s{s_t0}, 12
    s_lshl_b32 s{s_t1}, s{s_mi}, 8
    s_lshl_b32 s{s_t2}, s{s_ns}, 7
    s_add_u32 s{s_t1}, s{s_t1}, s{s_t2}
    s_sub_u32 s{s_t0}, s{s_t0}, s{s_t1}
    s_add_u32 s94, s{s_t0}, {WS_KVT + 1984*2}
    s_add_u32 s95, s94, {8*4096}
    """)
kpA, kpV, kpU, kpO = 96, 120, 100, 116
kpD = [68, 88, 92, 96]
def kps_stage1():
    L = []
    for t in range(1, 4):
        L.append(f"ds_read_b128 v[{kpA+8*(t-1)}:{kpA+8*(t-1)+3}], v80 offset:{256*(t-1)+128}")
        L.append(f"ds_read_b128 v[{kpA+8*(t-1)+4}:{kpA+8*(t-1)+7}], v80 offset:{256*(t-1)}")
    for t in range(4):
        L.append(f"ds_read_b64_tr_b16 v[{kpV+2*t}:{kpV+2*t+1}], v81 offset:{256*t}")
    return L
def kps_stage2():
    L = []
    for t in range(4):
        a = kT0 if t == 0 else kpA+8*(t-1)
        L.append(f"v_mfma_f32_16x16x32_bf16 v[{kpD[t]}:{kpD[t]+3}], v[{a}:{a+3}], v[{kB1}:{kB1+3}], 0")
        L.append(f"v_mfma_f32_16x16x32_bf16 v[{kpD[t]}:{kpD[t]+3}], v[{a+4}:{a+7}], v[{kB2}:{kB2+3}], v[{kpD[t]}:{kpD[t]+3}]")
    return L
def kps_stage3():
    L = []
    for t in range(4):
        for h in range(2):
            L += [f"v_lshlrev_b32 v{kpU+4*t+2*h}, 16, v{kpV+2*t+h}", f"v_and_b32 v{kpU+4*t+2*h+1}, 0xffff0000, v{kpV+2*t+h}"]
    return L
def kps_stage4():
    L = []
    for t in range(4):
        for r in range(4): L.append(f"v_mul_f32 v{kpD[t]+r}, v{kpD[t]+r}, v{kpU+4*t+r}")
    for e in range(8):
        t = 3 - (e >> 1); r = 3 - 2*(e & 1)
        L.append(f"v_cvt_pk_bf16_f32 v{kpO+e}, v{kpD[t]+r}, v{kpD[t]+r-1}")
    return L
def kps_stage5():
    O = kpO
    return [(f"ds_write_b128 v82, v[{O}:{O+3}]", None), (f"ds_write_b128 v83, v[{O+4}:{O+7}]", None),
            (f"ds_read_b128 v[{O}:{O+3}], v84", None), (f"ds_read_b128 v[{O+4}:{O+7}], v84 offset:1024", "kprb")]
def kps_store_L():
    O = 116
    return [f"buffer_store_dwordx4 v[{O}:{O+3}], v85, s[{sWS}:{sWS+3}], s94 offen sc1",
            f"buffer_store_dwordx4 v[{O+4}:{O+7}], v85, s[{sWS}:{sWS+3}], s95 offen sc1"]


AKT = 114688; AVT = AKT + 9216; AKO = AVT + 8192
def kpa_dma(g):
    g(f"""
    v_lshrrev_b32 v100, 2, v{v_lane}
    v_and_b32 v101, 3, v{v_lane}
    v_mul_u32_u24 v100, 896, v100
    v_lshl_add_u32 v104, v101, 4, v100
    v_add_u32 v105, {16*896-1024}, v104
    s_lshl_b32 s{s_t0}, s{s_mi}, 7
    s_lshl_b32 s{s_t1}, s{s_w}, 5
    s_add_u32 s{s_t0}, s{s_t0}, s{s_t1}
    s_mul_i32 s34, s{s_t0}, 896
    s_lshl_b32 s{s_t2}, s{s_fi}, 6
    s_add_u32 s34, s34, s{s_t2}
    s_cmp_eq_u32 s{s_t0}, 0
    s_cselect_b32 s{s_t1}, 0, 2688
    s_cselect_b32 s{s_t2}, 2688, 0
    s_sub_u32 s35, s34, s{s_t1}
    v_subrev_u32 v106, s{s_t2}, v104
    v_subrev_u32 v107, s{s_t2}, v105
    s_add_u32 m0, s{s_t4}, {AKT}
    s_nop 0
    """)
    g.vm(f"buffer_load_dwordx4 v106, s[{sKK}:{sKK+3}], s35 offen lds", "kp")
    g.vm(f"buffer_load_dwordx4 v107, s[{sKK}:{sKK+3}], s35 offen offset:1024 lds", "kp")
    g(f"s_add_u32 m0, s{s_t4}, {AVT}\ns_nop 0")
    g.vm(f"buffer_load_dwordx4 v104, s[{sVV}:{sVV+3}], s34 offen lds", "kp")
    g.vm(f"buffer_load_dwordx4 v105, s[{sVV}:{sVV+3}], s34 offen offset:1024 lds", "kp")
    g(f"""s_lshl_b32 s{s_t0}, s{s_mi}, 7
    s_add_u32 s{s_t0}, s{s_t0}, 125
    s_mul_i32 s{s_t0}, s{s_t0}, 896
    s_lshl_b32 s{s_t1}, s{s_fi}, 6
    s_add_u32 s{s_t0}, s{s_t0}, s{s_t1}
    s_mov_b32 m0, {AKT + 8192}
    s_mov_b64 exec, 0xfff""")
    g.vm(f"buffer_load_dwordx4 v104, s[{sKK}:{sKK+3}], s{s_t0} offen lds", "kp")
    g("s_mov_b64 exec, -1")
def kpa_compute(g):
    A, V, Dd, U, O = 20, 52, 96, 112, 60
    for t in range(4):
        g(f"ds_read_b128 v[{A+8*t}:{A+8*t+3}], v80 offset:{256*t+128}")
        g(f"ds_read_b128 v[{A+8*t+4}:{A+8*t+7}], v80 offset:{256*t}")
    for t in range(4):
        g(f"ds_read_b64_tr_b16 v[{V+2*t}:{V+2*t+1}], v81 offset:{256*t}")
    for t in range(4):
        g(f"s_waitcnt lgkmcnt({10-2*t})")
        g(f"v_mfma_f32_16x16x32_bf16 v[{Dd+4*t}:{Dd+4*t+3}], v[{A+8*t}:{A+8*t+3}], v[{kB1}:{kB1+3}], 0")
        g(f"v_mfma_f32_16x16x32_bf16 v[{Dd+4*t}:{Dd+4*t+3}], v[{A+8*t+4}:{A+8*t+7}], v[{kB2}:{kB2+3}], v[{Dd+4*t}:{Dd+4*t+3}]")
    g("s_waitcnt lgkmcnt(0)")
    for t in range(4):
        for h in range(2):
            g(f"v_lshlrev_b32 v{U+4*t+2*h}, 16, v{V+2*t+h}\nv_and_b32 v{U+4*t+2*h+1}, 0xffff0000, v{V+2*t+h}")
    for t in range(4):
        for h in range(2):
            g(f"v_pk_mul_f32 v[{Dd+4*t+2*h}:{Dd+4*t+2*h+1}], v[{Dd+4*t+2*h}:{Dd+4*t+2*h+1}], v[{U+4*t+2*h}:{U+4*t+2*h+1}]")
    for e in range(8):
        t = 3 - (e >> 1); r = 3 - 2*(e & 1)
        g(f"v_cvt_pk_bf16_f32 v{O+e}, v{Dd+4*t+r}, v{Dd+4*t+r-1}")
    g(f"""ds_write_b128 v82, v[{O}:{O+3}]
    ds_write_b128 v83, v[{O+4}:{O+7}]
    ds_read_b128 v[{U}:{U+3}], v84
    ds_read_b128 v[{U+4}:{U+7}], v84 offset:1024
    s_waitcnt lgkmcnt(0)""")
    g.vm(f"buffer_store_dwordx4 v[{U}:{U+3}], v85, s[{sWS}:{sWS+3}], s94 offen sc1", "kvst")
    g.vm(f"buffer_store_dwordx4 v[{U+4}:{U+7}], v85, s[{sWS}:{sWS+3}], s95 offen sc1", "kvst")

def g1_addr():
    L = lines(f"""
    v_and_b32 v20, 31, v{v_lane}
    v_lshrrev_b32 v21, 5, v{v_lane}
    v_bfe_u32 v22, v{v_lane}, 1, 3
    v_xor_b32 v22, v22, v21
    s_lshl_b32 s{s_t0}, s{s_ns}, 13
    v_lshl_add_u32 v20, v20, 7, s{s_t0}
    """)
    for ks in range(4):
        L += [f"v_xor_b32 v23, {2*ks}, v22", f"v_lshl_add_u32 v{v_xa+ks}, v23, 4, v20"]
    L += lines(f"""
    v_bfe_u32 v20, v{v_lane}, 2, 2
    v_bfe_u32 v22, v{v_lane}, 4, 1
    v_bfe_u32 v23, v{v_lane}, 1, 1
    v_and_b32 v24, 1, v{v_lane}
    v_lshl_add_u32 v22, v22, 1, v23
    v_lshlrev_b32 v25, 11, v21
    v_lshl_add_u32 v25, v20, 8, v25
    v_lshl_add_u32 v25, v24, 3, v25
    v_lshl_add_u32 v25, v22, 4, v25
    v_add_u32 v25, {LW}, v25
    s_lshl_b32 s{s_t0}, s{s_mf}, 1
    """)
    for ft in range(2):
        L += lines(f"""
        v_add_u32 v26, s{s_t0}, v20
        v_add_u32 v26, {ft}, v26
        v_and_b32 v26, 3, v26
        v_lshl_add_u32 v{v_wa+ft}, v26, 6, v25
        v_add_u32 v{v_wa+2+ft}, 65536, v{v_wa+ft}
        """)
    return L

def g1_frag_reads(kstep):
    c, ks = divmod(kstep, 4)
    sl = c % 3
    b = v_fr + (kstep & 1)*24
    L = []
    for nt in range(2):
        L.append(f"ds_read_b128 v[{b+4*nt}:{b+4*nt+3}], v{v_xa+ks} offset:{sl*16384 + nt*4096}")
    for mat in range(2):
        for ft in range(2):
            r = b + 8 + mat*8 + ft*4
            base = v_wa + ft + (2 if sl == 2 else 0)
            off = (sl*32768 if sl < 2 else 0) + mat*16384 + ks*4096
            L.append(f"ds_read_b64_tr_b16 v[{r}:{r+1}], v{base} offset:{off}")
            L.append(f"ds_read_b64_tr_b16 v[{r+2}:{r+3}], v{base} offset:{off+1024}")
    return L

def g1_mfmas(kstep):
    b = v_fr + (kstep & 1)*24
    L = []
    for ft in range(2):
        for nt in range(2):
            for mat in range(2):
                acc = accg(ft, nt) if mat == 0 else accu(ft, nt)
                A = b + 8 + mat*8 + ft*4
                B = b + 4*nt
                cin = "0" if kstep == 0 else f"v[{acc}:{acc+15}]"
                L.append(f"v_mfma_f32_32x32x16_bf16 v[{acc}:{acc+15}], v[{A}:{A+3}], v[{B}:{B+3}], {cin}")
    return L

def spread(per, items, lo, hi):
    n = len(items)
    for i, x in enumerate(items):
        per[min(hi, lo + (i*(hi-lo+1))//n)].append(x)

KPA = os.environ.get("KPA", "0") == "1"
KSTAMP = None
EST = os.environ.get('EST') == '1'
CST = os.environ.get('CST') == '1'
GSTAMP = None
def g1_chunk_stream(c):
    out = []
    for grp in g1_groups(c):
        for i in range(4):
            out.append((grp[:2] if i == 0 else [], grp[2+i], grp[0]))
    return out
def g1_main(g, pre, post, stamps=None):
    g.ldops = []
    for s_ in g1_frag_reads(0): g.ld(s_, "fr0")
    sched = {k: [] for k in range(28)}
    st2 = g1_chunk_stream(2)
    for i, x in enumerate(st2): sched[i // 4].append((x, "c2"))
    for c in range(0, 4):
        stc = g1_chunk_stream(c+3)
        for i, x in enumerate(stc): sched[4*c + 3 + i // 3].append((x, f"c{c+3}"))
    cur_m0 = [None]
    for k in range(28):
        c, ks = divmod(k, 4)
        g.lwait(f"fr{k}")
        if KSTAMP is not None and KSTAMP <= k < KSTAMP + 14: stamp(g, k - KSTAMP + 1)
        if ks == 3 and c < 6:
            g.vwait(f"c{c+1}")
            for tg in pre(k): g.vwait(tg)
            g("s_barrier")
            if stamps and c in stamps: stamp(g, stamps[c])
        per = [[] for _ in range(8)]
        if k+1 < 28: spread(per, T(g1_frag_reads(k+1), f"fr{k+1}"), 0, 4)
        items = sched[k]
        early, late, vx = post(k)
        dm = [[] for _ in range(8)]
        if len(items) == 4: sg, xg = [1, 3, 5, 7], [2, 6]
        elif len(items) == 3: sg, xg = ([1, 5, 7], [3, 6]) if vx else ([1, 4, 7], [])
        else: sg, xg = [], [1, 3, 5, 7, 2, 6, 4, 0]
        for it_, gp in zip(items, sg): dm[gp].append(it_)
        assert len(vx) <= len(xg), (k, len(vx))
        xs = sorted(xg[:len(vx)])
        if early: spread(per, early, 0, 7)
        for grp_, gp in zip(vx, xs): per[gp] += grp_
        if late: spread(per, late, 4, 7)
        m = g1_mfmas(k)
        for i in range(8):
            if GSTAMP is not None and k == GSTAMP: stamp(g, i + 1)
            if GSTAMP is not None and k == GSTAMP + 1 and i < 5: stamp(g, i + 9)
            g(m[i])
            for s_, tag in per[i]:
                if s_ == "CALL": tag()
                else:
                    g.emit(s_, tag)
                    if "m0" in s_ and not s_.startswith("buffer_") : m0_dirty[0] = True
                    if "m0," in s_: m0_dirty[0] = True
            for (salu, load, m0i), tag in dm[i]:
                if salu:
                    for x in salu: g(x)
                    m0_dirty[0] = False
                elif m0_dirty[0]:
                    g(m0i); g("s_nop 0"); m0_dirty[0] = False
                g.vm(load, tag)
m0_dirty = [False]
TCHK = eval(os.environ.get('TCHK', '(12,13,14,17,18,19,19,19,21,21,22,23,23,23)'))
KPK = int(os.environ.get('KPK', '11'))

v_cs = 72
v_rc = 100
v_t = 108
v_csa = v_t + 1
def epi_pre_reads():
    return lines(f"""
    v_and_b32 v{v_t}, 31, v{v_lane}
    s_lshl_b32 s{s_t1}, s{s_ns}, 9
    s_add_u32 s{s_t1}, s{s_t1}, {LST}
    v_lshl_add_u32 v{v_t}, v{v_t}, 3, s{s_t1}
    v_lshrrev_b32 v{v_csa}, 5, v{v_lane}
    s_lshl_b32 s{s_t1}, s{s_mf}, 8
    s_add_u32 s{s_t1}, s{s_t1}, {LST+1024}
    v_lshl_add_u32 v{v_csa}, v{v_csa}, 4, s{s_t1}
    ds_read_b64 v[{v_t+2}:{v_t+3}], v{v_t}
    ds_read_b64 v[{v_t+4}:{v_t+5}], v{v_t} offset:256
    """) + epi_cs_reads()
def epi_cs_reads():
    return [f"ds_read_b128 v[{v_cs}:{v_cs+3}], v{v_csa}", f"ds_read_b128 v[{v_cs+4}:{v_cs+7}], v{v_csa} offset:32",
            f"ds_read_b128 v[{v_cs+8}:{v_cs+11}], v{v_csa} offset:512", f"ds_read_b128 v[{v_cs+12}:{v_cs+15}], v{v_csa} offset:544",
            f"v_add_u32 v{v_csa}, 64, v{v_csa}"]
def epi_hoff():
    return lines(f"""
    s_lshl_b32 s{s_t0}, s{s_mi}, 2
    s_lshl_b32 s{s_t1}, s{s_ns}, 1
    s_add_u32 s{s_t0}, s{s_t0}, s{s_t1}
    s_mul_i32 s{s_t0}, s{s_t0}, 112
    s_lshl_b32 s{s_t1}, s{s_fi}, 3
    s_add_u32 s{s_t0}, s{s_t0}, s{s_t1}
    s_lshl_b32 s{s_t1}, s{s_mf}, 2
    s_add_u32 s{s_t0}, s{s_t0}, s{s_t1}
    s_lshl_b32 s{s_hoff}, s{s_t0}, 10
    s_add_u32 s{s_hoff}, s{s_hoff}, {WS_H}
    """)
HST = os.environ.get('HST', 'sc1')
vW0, vW1, vW2, vW3 = 120, 121, 122, 123
def g1_epilogue(g, aux):
    for nt in range(2):
        m, sd = v_t+2+2*nt, v_t+3+2*nt
        rc = v_rc + 4*nt
        g(f"""
        v_rcp_f32 v{v_t+6}, v{sd}
        v_sub_f32 v{rc}, 0, v{m}
        v_mul_f32 v{rc+1}, v{sd}, v{sd}
        v_mul_f32 v{rc+2}, {fh(C1)}, v{v_t+6}
        v_mul_f32 v{v_t+7}, v{v_t+6}, v{v_t+6}
        v_mul_f32 v{v_t+7}, v{v_t+7}, v{v_t+6}
        v_mul_f32 v{rc+3}, {fh(C2)}, v{v_t+7}
        """)
    P = 88
    Z = 20
    def pr(x): return f"v[{x}:{x+1}]"
    for it in range(4):
        ft, hq = it >> 1, it & 1
        if EST: stamp(g, 2 + it)
        main = []
        main.append(("LWAIT", "cs"))
        for nt in range(2):
            rc = v_rc + 4*nt; nm = f"v[{rc}:{rc+1}]"
            for pp in range(4):
                r = 8*hq + 2*pp
                tg = accg(ft, nt) + r; tu = accu(ft, nt) + r
                main.append((f"v_pk_fma_f32 {pr(tg)}, {pr(v_cs+2*pp)}, {nm}, {pr(tg)} op_sel_hi:[1,0,1]", None))
                main.append((f"v_pk_fma_f32 {pr(tu)}, {pr(v_cs+8+2*pp)}, {nm}, {pr(tu)} op_sel_hi:[1,0,1]", None))
        if it < 3: main += T(epi_cs_reads(), "cs")
        for nt in range(2):
            rc = v_rc + 4*nt; nm = f"v[{rc}:{rc+1}]"; cc = f"v[{rc+2}:{rc+3}]"
            steps = [
              lambda tg,tu,z: [f"v_pk_mul_f32 {pr(z)}, {pr(tg)}, {pr(tg)}"],
              lambda tg,tu,z: [f"v_pk_fma_f32 {pr(z)}, {pr(z)}, {cc}, {cc} op_sel:[0,1,0] op_sel_hi:[1,1,0]"],
              lambda tg,tu,z: [f"v_pk_mul_f32 {pr(z)}, {pr(z)}, {pr(tg)}"],
              lambda tg,tu,z: [f"v_exp_f32 v{z}, v{z}", f"v_exp_f32 v{z+1}, v{z+1}"],
              lambda tg,tu,z: [f"v_pk_mul_f32 {pr(tu)}, {pr(tu)}, {pr(tg)}"],
              lambda tg,tu,z: [f"v_pk_fma_f32 {pr(z)}, {pr(z)}, {nm}, {nm} op_sel:[0,1,1] op_sel_hi:[1,1,1]"],
              lambda tg,tu,z: [f"v_rcp_f32 v{z}, v{z}", f"v_rcp_f32 v{z+1}, v{z+1}"],
              lambda tg,tu,z: [f"v_pk_mul_f32 {pr(tu)}, {pr(tu)}, {pr(z)}"],
            ]
            for st in steps:
                for pp in range(4):
                    r = 8*hq + 2*pp
                    main += T(st(accg(ft, nt) + r, accu(ft, nt) + r, Z + 8*nt + 2*pp))
            for pp in range(4):
                r = 8*hq + 2*pp
                main.append((f"v_cvt_pk_bf16_f32 v{P+4*nt+pp}, v{accu(ft, nt)+r}, v{accu(ft, nt)+r+1}", None))
            off = (nt*112 + 2*ft + hq) * 1024
            main.append((f"s_add_u32 s{s_t2}, s{s_hoff}, {off}\nbuffer_store_dwordx4 v[{P+4*nt}:{P+4*nt+3}], v{v_l16}, s[{sWS}:{sWS+3}], s{s_t2} offen {HST}", "hst"))
        a = aux[it]
        if os.environ.get("XAUX") == "front":
            for x2, t2 in a:
                if x2 == "CALL": t2()
                else: g.emit(x2, t2)
            a = []
            if EST: stamp(g, 6 + it)
        n, k = len(main), 0
        for i, (x, tg_) in enumerate(main):
            g.emit(x, tg_)
            while k < len(a) and k < ((i+1)*len(a))//n:
                x2, t2 = a[k]
                if x2 == "CALL": t2()
                else: g.emit(x2, t2)
                k += 1

def g1_epilogue_loop(g, blocks):
    for nt in range(2):
        m, sd = v_t+2+2*nt, v_t+3+2*nt
        rc = v_rc + 4*nt
        g(f"""
        v_rcp_f32 v{v_t+6}, v{sd}
        v_sub_f32 v{rc}, 0, v{m}
        v_mul_f32 v{rc+1}, v{sd}, v{sd}
        v_mul_f32 v{rc+2}, {fh(C1)}, v{v_t+6}
        v_mul_f32 v{v_t+7}, v{v_t+6}, v{v_t+6}
        v_mul_f32 v{v_t+7}, v{v_t+7}, v{v_t+6}
        v_mul_f32 v{rc+3}, {fh(C2)}, v{v_t+7}
        """)
    TG = 20
    P = 88
    g(f"s_mov_b32 s{s_t0}, 0\ns_mov_b32 s{s_t1}, s{s_hoff}\ns_mov_b32 s96, s{s_m0x}")
    def wd_dyn():
        if os.environ.get("XNOWD"): return
        g(f"s_mov_b32 m0, s96\ns_add_u32 s96, s96, 2048")
        for x in ptr_next(28, 29, s_woff, 14336): g(x)
        g(f"buffer_load_dwordx4 v{vW0}, s[{sWD2}:{sWD2+3}], s{s_t3} offen lds")
        g(f"buffer_load_dwordx4 v{vW1}, s[{sWD2}:{sWD2+3}], s{s_t3} offen offset:1024 lds")
    wd_dyn()
    g.lab("E1_loop")
    g(f"s_set_gpr_idx_on s{s_t0}, gpr_idx(SRC2)")
    for nt in range(2):
        rc = v_rc + 4*nt; nm = f"v[{rc}:{rc+1}]"
        b = TG + 24*nt
        for pp in range(4):
            r = 2*pp
            g(f"v_pk_fma_f32 v[{b+r}:{b+r+1}], v[{v_cs+r}:{v_cs+r+1}], {nm}, v[{accg(0,nt)+r}:{accg(0,nt)+r+1}] op_sel_hi:[1,0,1]")
            g(f"v_pk_fma_f32 v[{b+8+r}:{b+8+r+1}], v[{v_cs+8+r}:{v_cs+8+r+1}], {nm}, v[{accu(0,nt)+r}:{accu(0,nt)+r+1}] op_sel_hi:[1,0,1]")
    g("s_set_gpr_idx_off")
    for x in epi_cs_reads(): g(x)
    for nt in range(2):
        wd_dyn()
        rc = v_rc + 4*nt; nm = f"v[{rc}:{rc+1}]"; cc = f"v[{rc+2}:{rc+3}]"
        b = TG + 24*nt
        def pr(x): return f"v[{x}:{x+1}]"
        steps = [
          lambda tg,tu,z: [f"v_pk_mul_f32 {pr(z)}, {pr(tg)}, {pr(tg)}"],
          lambda tg,tu,z: [f"v_pk_fma_f32 {pr(z)}, {pr(z)}, {cc}, {cc} op_sel:[0,1,0] op_sel_hi:[1,1,0]"],
          lambda tg,tu,z: [f"v_pk_mul_f32 {pr(z)}, {pr(z)}, {pr(tg)}"],
          lambda tg,tu,z: [f"v_exp_f32 v{z}, v{z}", f"v_exp_f32 v{z+1}, v{z+1}"],
          lambda tg,tu,z: [f"v_pk_mul_f32 {pr(tu)}, {pr(tu)}, {pr(tg)}"],
          lambda tg,tu,z: [f"v_pk_fma_f32 {pr(z)}, {pr(z)}, {nm}, {nm} op_sel:[0,1,1] op_sel_hi:[1,1,1]"],
          lambda tg,tu,z: [f"v_rcp_f32 v{z}, v{z}", f"v_rcp_f32 v{z+1}, v{z+1}"],
          lambda tg,tu,z: [f"v_pk_mul_f32 {pr(tu)}, {pr(tu)}, {pr(z)}"],
        ]
        for st in steps:
            for pp in range(4):
                for x in st(b+2*pp, b+8+2*pp, b+16+2*pp): g(x)
        for pp in range(4):
            g(f"v_cvt_pk_bf16_f32 v{P+4*nt+pp}, v{b+8+2*pp}, v{b+8+2*pp+1}")
        if os.environ.get("XNOST"): pass
        elif nt == 0: g(f"buffer_store_dwordx4 v[{P}:{P+3}], v{v_l16}, s[{sWS}:{sWS+3}], s{s_t1} offen {HST}")
        else: g(f"s_add_u32 s{s_t2}, s{s_t1}, {112*1024}\nbuffer_store_dwordx4 v[{P+4}:{P+7}], v{v_l16}, s[{sWS}:{sWS+3}], s{s_t2} offen {HST}")
    g(f"s_cmp_eq_u32 s{s_t0}, 0\ns_cbranch_scc1 E1_b0\ns_cmp_eq_u32 s{s_t0}, 8\ns_cbranch_scc1 E1_b1\ns_cmp_eq_u32 s{s_t0}, 32\ns_cbranch_scc1 E1_b2\ns_branch E1_b3")
    base_vm = list(g.vmops)
    seq = ["wd", "wd"]
    g.vmops = base_vm + seq
    for it in range(4):
        g.vmops += [f"wd{9+2*it}", f"wd{9+2*it}", "hst", f"wd{10+2*it}", f"wd{10+2*it}", "hst"]
        g.lab(f"E1_b{it}")
        g.ldops = []
        if EST: stamp(g, 2 + 2*it)
        blocks[it]()
        if EST: stamp(g, 3 + 2*it)
        if it < 3: g("s_branch E1_next")
    g.lab("E1_next")
    g(f"""
    s_add_u32 s{s_t1}, s{s_t1}, 1024
    s_add_u32 s{s_t0}, s{s_t0}, 8
    s_bitcmp1_b32 s{s_t0}, 4
    s_cselect_b32 s{s_t2}, 16, 0
    s_add_u32 s{s_t0}, s{s_t0}, s{s_t2}
    s_cmp_lt_u32 s{s_t0}, 64
    s_waitcnt lgkmcnt(0)
    s_cbranch_scc1 E1_loop
    """)

a_h = 224
def conv_h_loads():
    L = [f"v_lshlrev_b32 v{v_hv}, 4, v0", f"s_lshl_b32 s{s_zoff}, s2, 13"]
    for ch in range(2):
        r = a_h + ch*8
        L.append(f"buffer_load_dwordx4 a[{r}:{r+3}], v{v_hv}, s[{sSK2}:{sSK2+3}], s{s_zoff} offen")
        L.append(f"buffer_load_dwordx2 a[{r+4}:{r+5}], v{v_hv}, s[{sSK2}:{sSK2+3}], s{s_zoff} offen offset:16")
        if ch == 0: L.append(f"s_add_u32 s{s_zoff}, s{s_zoff}, 4096")
    return L

def conv_build_L(ch):
    W, C1, C3, AD = 2, 8, 12, 16
    L = [f"v_lshlrev_b32 v{AD}, 4, v0", f"v_add_u32 v{AD}, {LCV+32+ch*CVCH}, v{AD}"]
    for i in range(6): L.append(f"v_accvgpr_read_b32 v{W+i}, a{a_h+8*ch+i}")
    for i in range(4): L.append(f"v_alignbit_b32 v{C1+i}, v{W+i+1}, v{W+i}, 16")
    for i in range(3): L.append(f"v_mov_b32 v{C3+i}, v{C1+i+1}")
    L.append(f"v_alignbit_b32 v{C3+3}, v{W+5}, v{W+4}, 16")
    L.append(f"ds_write_b128 v{AD}, v[{C1}:{C1+3}] offset:{CVCOPY}")
    L.append(f"ds_write_b128 v{AD}, v[{C3}:{C3+3}] offset:{3*CVCOPY}")
    return L
def conv_copy_dma(i):
    return ["\n".join([f"s_add_u32 m0, s90, {i*1024}", f"s_add_u32 s{s_t1}, s91, {i*1024}",
                        f"buffer_load_dwordx4 v{v_l16}, s[{sSK2}:{sSK2+3}], s{s_t1} offen lds"])]
def conv_copy_setup():
    return lines(f"""
    s_mul_i32 s90, s{s_ns}, {CVCH}
    s_mul_i32 s91, s{s_mf}, {2*CVCOPY}
    s_add_u32 s90, s90, s91
    s_add_u32 s90, s90, {LCV+32}
    s_lshl_b32 s91, s2, 13
    s_lshl_b32 s{s_t1}, s{s_ns}, 12
    s_add_u32 s91, s91, s{s_t1}
    s_lshl_b32 s{s_t1}, s{s_mf}, 2
    s_add_u32 s91, s91, s{s_t1}
    """)
def conv_pads(g):
    pass
def conv_pads_L():
    return None

def conv_u_dma():
    return lines(f"""
    s_lshl_b32 s98, s2, 13
    s_add_u32 s98, s98, s{s_t4}
    s_add_u32 s98, s98, {WS_KVT}
    s_mul_i32 s{s_t2}, s{s_ns}, {CVUS}
    s_lshl_b32 s99, s{s_mf}, 11
    s_add_u32 s{s_t2}, s{s_t2}, s99
    s_add_u32 m0, s{s_t2}, {LU}
    s_nop 0
    buffer_load_dwordx4 v{v_l16}, s[{sWS}:{sWS+3}], s98 offen sc1 lds
    buffer_load_dwordx4 v{v_l16}, s[{sWS}:{sWS+3}], s98 offen offset:1024 sc1 lds
    """)

def conv_pad_code(g):
    g(f"""
    s_cmp_eq_u32 s{s_w}, 0
    s_cbranch_scc0 CB_w1
    v_mov_b32 v8, 0
    v_mov_b32 v9, 0
    v_mov_b32 v10, 0
    v_mov_b32 v11, 0
    """)
    for ch in range(2):
        g(f"""
        v_accvgpr_read_b32 v12, a{a_h+8*ch}
        v_accvgpr_read_b32 v13, a{a_h+8*ch+1}
        s_nop 0
        v_readlane_b32 s34, v12, 0
        v_readlane_b32 s35, v13, 0
        s_nop 3
        s_lshl_b32 s98, s34, 16
        s_lshr_b32 s99, s34, 16
        s_lshl_b32 s35, s35, 16
        s_or_b32 s99, s99, s35
        v_writelane_b32 v11, s98, {8*ch+3}
        v_writelane_b32 v11, s34, {8*ch+5}
        v_writelane_b32 v11, s99, {8*ch+7}
        v_writelane_b32 v10, s98, {8*ch+7}
        """)
    g(f"""
    v_lshrrev_b32 v12, 3, v{v_lane}
    v_mul_u32_u24 v12, {CVCH}, v12
    v_bfe_u32 v13, v{v_lane}, 1, 2
    v_mul_u32_u24 v13, {CVCOPY}, v13
    v_add_u32 v12, v12, v13
    v_and_b32 v13, 1, v{v_lane}
    v_lshl_add_u32 v12, v13, 4, v12
    v_add_u32 v12, {LCV}, v12
    s_mov_b64 exec, 0xffff
    ds_write_b128 v12, v[8:11]
    s_mov_b64 exec, -1
    s_branch CB_done
    CB_w1:
    s_cmp_eq_u32 s{s_w}, 1
    s_cbranch_scc0 CB_done
    v_mov_b32 v8, 0
    v_mov_b32 v9, 0
    v_mov_b32 v10, 0
    v_mov_b32 v11, 0
    v_add_u32 v12, {LU+4096}, v{v_l16}
    ds_write_b128 v12, v[8:11]
    ds_write_b128 v12, v[8:11] offset:{CVUS}
    CB_done:
    """)

cv_D = 128
cv_A = [160, 64]; cv_B = [192, 92]
cv_A = [160, 20]; cv_B = [192, 56]
v_la, v_lb = 124, 125
def conv_addr():
    return lines(f"""
    v_and_b32 v96, 15, v{v_lane}
    v_lshrrev_b32 v97, 4, v{v_lane}
    v_add_u32 v98, 1, v96
    v_and_b32 v99, 3, v98
    v_mul_u32_u24 v99, {CVCOPY}, v99
    v_lshrrev_b32 v98, 2, v98
    v_lshl_add_u32 v99, v98, 3, v99
    v_lshl_add_u32 v99, v97, 4, v99
    s_mul_i32 s98, s{s_ns}, {CVCH}
    s_add_u32 s98, s98, {LCV}
    v_add_u32 v{v_la}, s98, v99
    v_lshlrev_b32 v98, 5, v96
    v_lshlrev_b32 v99, 4, v97
    v_sub_u32 v99, v99, v98
    s_mul_i32 s98, s{s_ns}, {CVUS}
    s_lshl_b32 s99, s{s_mf}, 9
    s_sub_u32 s98, s98, s99
    s_add_u32 s98, s98, {LU + 4064 - 3072}
    v_add_u32 v{v_lb}, s98, v99
    """)
def conv_reads(cl):
    A, B = cv_A[cl & 1], cv_B[cl & 1]
    L = []
    for i in range(8):
        L.append(f"ds_read_b64 v[{A+4*i}:{A+4*i+1}], v{v_la} offset:{64*cl+512*i}")
        L.append(f"ds_read_b64 v[{A+4*i+2}:{A+4*i+3}], v{v_la} offset:{64*cl+512*i+8}")
        L.append(f"ds_read_b128 v[{B+4*i}:{B+4*i+3}], v{v_lb} offset:{64*cl+512*(7-i)}")
    return L
def conv_mfmas(cl):
    A, B = cv_A[cl & 1], cv_B[cl & 1]
    L = []
    pairs = sorted([(a, ib) for a in range(8) for ib in range(8) if (a + ib - 1) in (0, 2, 4, 6)], key=lambda p: (max(p), p))
    first = set()
    for a, ib in pairs:
        tau = (a + ib - 1) // 2
        d = cv_D + 4*tau
        cin = "0" if (cl == 0 and tau not in first) else f"v[{d}:{d+3}]"
        first.add(tau)
        L.append(f"v_mfma_f32_16x16x32_bf16 v[{d}:{d+3}], v[{A+4*a}:{A+4*a+3}], v[{B+4*ib}:{B+4*ib+3}], {cin}")
    assert len(L) == 20
    return L

def wd_setup_v():
    a, b, c, d, e, f = 112, 113, 114, 115, 116, 117
    return lines(f"""
    v_lshrrev_b32 v{a}, 3, v{v_lane}
    v_and_b32 v{b}, 7, v{v_lane}
    v_bfe_u32 v{c}, v{a}, 1, 1
    v_lshlrev_b32 v{c}, 2, v{c}
    v_xor_b32 v{b}, v{b}, v{c}
    v_mul_u32_u24 v{a}, 896, v{a}
    v_lshl_add_u32 v{e}, v{b}, 4, v{a}
    v_add_u32 v{f}, {8*896-1024}, v{e}
    v_accvgpr_write_b32 a248, v{e}
    v_accvgpr_write_b32 a249, v{f}
    v_lshrrev_b32 v{a}, 5, v{v_lane}
    v_bfe_u32 v{b}, v{v_lane}, 2, 2
    v_lshl_add_u32 v{a}, v{a}, 2, v{b}
    v_lshlrev_b32 v{a}, 7, v{a}
    v_bfe_u32 v{c}, v{v_lane}, 4, 1
    v_bfe_u32 v{d}, v{v_lane}, 1, 1
    v_lshl_add_u32 v{c}, v{c}, 1, v{d}
    v_lshl_add_u32 v{a}, v{c}, 4, v{a}
    v_and_b32 v{c}, 1, v{v_lane}
    v_lshl_add_u32 v{a}, v{c}, 3, v{a}
    v_bfe_u32 v{b}, v{v_lane}, 3, 1
    v_xor_b32 v{b}, s{s_ns}, v{b}
    v_lshl_add_u32 v{e}, v{b}, 6, v{a}
    v_xor_b32 v{b}, 1, v{b}
    v_lshl_add_u32 v{f}, v{b}, 6, v{a}
    s_mul_i32 s{s_t0}, s{s_w}, {RING}
    v_add_u32 v{a}, s{s_t0}, v{e}
    v_add_u32 v{b}, s{s_t0}, v{f}
    v_accvgpr_write_b32 a250, v{a}
    v_accvgpr_write_b32 a251, v{b}
    s_lshl_b32 s{s_t0}, s{s_w}, 13
    s_add_u32 s{s_t0}, s{s_t0}, {E1B}
    v_add_u32 v{a}, s{s_t0}, v{e}
    v_add_u32 v{b}, s{s_t0}, v{f}
    v_accvgpr_write_b32 a252, v{a}
    v_accvgpr_write_b32 a253, v{b}
    """)
def wd_setup_s():
    return lines(f"""
    s_mul_i32 s{s_woff}, s{s_w}, {448*896}
    s_lshl_b32 s{s_t0}, s{s_ct}, 7
    s_add_u32 s{s_woff}, s{s_woff}, s{s_t0}
    s_mul_i32 s{s_m0x}, s{s_w}, {RING}
    s_lshl_b32 s{s_eb}, s{s_w}, 13
    s_add_u32 s{s_eb}, s{s_eb}, {E1B}
    v_accvgpr_read_b32 v{vW0}, a248
    v_accvgpr_read_b32 v{vW1}, a249
    v_accvgpr_read_b32 v{vW2}, a250
    v_accvgpr_read_b32 v{vW3}, a251
    v_accvgpr_read_b32 v{vW4}, a252
    v_accvgpr_read_b32 v{vW5}, a253
    """) + rot_setup(28, 29, s_woff, 14336) + lines(f"""
    v_subrev_u32 v{vW6}, {E1B-E2B}, v{vW4}
    v_subrev_u32 v{vW7}, {E1B-E2B}, v{vW5}
    """)
NSLOT = 10
ROT = os.environ.get("ROT", "0") == "1"
def ptr_next(p, pend, pbase, stride):
    return ["\n".join([f"s_mov_b32 s{s_t3}, s{p}", f"s_add_u32 s{p}, s{p}, {stride}", f"s_cmp_eq_u32 s{p}, s{pend}", f"s_cselect_b32 s{p}, s{pbase}, s{p}"])]
def rot_setup(p, pend, pbase, stride):
    L = [f"s_add_u32 s{pend}, s{pbase}, {28*stride}"]
    if not ROT: return L + [f"s_mov_b32 s{p}, s{pbase}"]
    return L + [f"s_and_b32 s{p}, s{s_mi}, 3", f"s_mul_i32 s{p}, s{p}, 7", f"s_lshl_b32 s{s_t2}, s{s_ct}, 2", f"s_add_u32 s{p}, s{p}, s{s_t2}",
                f"s_cmp_ge_u32 s{p}, 28\ns_cselect_b32 s{s_t2}, 28, 0\ns_sub_u32 s{p}, s{p}, s{s_t2}",
                f"s_mul_i32 s{p}, s{p}, {stride}", f"s_add_u32 s{p}, s{p}, s{pbase}"]
s_eb = 33
vW4, vW5 = 118, 119
vW6, vW7 = 116, 117
def wd_dma_e(j, e):
    m0 = f"s_add_u32 m0, s{s_eb}, {e*2048}" if e < 4 else f"s_sub_u32 m0, s{s_eb}, {E1B-E2B-(e-4)*2048}"
    return ["\n".join([m0] + ptr_next(28, 29, s_woff, 14336) + [
            f"buffer_load_dwordx4 v{vW0}, s[{sWD2}:{sWD2+3}], s{s_t3} offen lds"]),
            "\n".join([m0, "s_nop 0", f"buffer_load_dwordx4 v{vW1}, s[{sWD2}:{sWD2+3}], s{s_t3} offen offset:1024 lds"])]
def wd_tr_e(j, e):
    L = []
    b = vW4 if e < 4 else vW6
    off = (e & 3)*2048
    for sm in range(2):
        r = 8*j + 4*sm
        L.append(f"ds_read_b64_tr_b16 a[{r}:{r+1}], v{b+sm} offset:{off}")
        L.append(f"ds_read_b64_tr_b16 a[{r+2}:{r+3}], v{b+sm} offset:{off+1024}")
    return L
def wd_dma(j, sl=None):
    if sl is None: sl = j % NSLOT
    return [f"s_add_u32 m0, s{s_m0x}, {sl*2048}"] + ptr_next(28, 29, s_woff, 14336) + [
            f"buffer_load_dwordx4 v{vW0}, s[{sWD2}:{sWD2+3}], s{s_t3} offen lds",
            f"buffer_load_dwordx4 v{vW1}, s[{sWD2}:{sWD2+3}], s{s_t3} offen offset:1024 lds"]
def wd_tr(j, sl=None):
    if sl is None: sl = j % NSLOT
    L = []
    for sm in range(2):
        r = 8*j + 4*sm
        L.append(f"ds_read_b64_tr_b16 a[{r}:{r+1}], v{vW2+sm} offset:{sl*2048}")
        L.append(f"ds_read_b64_tr_b16 a[{r+2}:{r+3}], v{vW2+sm} offset:{sl*2048+1024}")
    return L

vH0, vH1, vH2 = 2, 3, 4
def g2_setup():
    return lines(f"""
    s_lshl_b32 s{s_t0}, s{s_mi}, 2
    s_lshl_b32 s{s_t1}, s{s_hi}, 1
    s_add_u32 s{s_t0}, s{s_t0}, s{s_t1}
    s_mul_i32 s{s_t0}, s{s_t0}, 112
    s_mul_i32 s{s_t1}, s{s_w}, 28
    s_add_u32 s{s_t0}, s{s_t0}, s{s_t1}
    s_lshl_b32 s{s_xoff}, s{s_t0}, 10
    s_add_u32 s{s_xoff}, s{s_xoff}, {WS_H}
    s_mul_i32 s{s_t0}, s{s_mf}, {112*1024}
    v_add_u32 v{vH0}, s{s_t0}, v{v_l16}
    s_sub_u32 s{s_t0}, {112*1024 - 1024}, s{s_t0}
    v_add_u32 v{vH1}, s{s_t0}, v{v_l16}
    v_add_u32 v{vH2}, s{s_m0x}, v{v_l16}
    """) + rot_setup(30, 31, s_xoff, 1024)
HSC = os.environ.get('HSC', 'sc1')
def h_dma(j):
    sl = j % NSLOT
    m0 = f"s_add_u32 m0, s{s_m0x}, {sl*2048}"
    return ["\n".join([m0] + ptr_next(30, 31, s_xoff, 1024) + [f"buffer_load_dwordx4 v{vH0}, s[{sWS}:{sWS+3}], s{s_t3} offen {HSC} lds"]),
            "\n".join([m0, "s_nop 0", f"buffer_load_dwordx4 v{vH1}, s[{sWS}:{sWS+3}], s{s_t3} offen offset:1024 {HSC} lds"])]
def h_reads(j):
    sl = j % NSLOT
    b = g2_fr + (j % 4)*8
    return [f"ds_read_b128 v[{b}:{b+3}], v{vH2} offset:{sl*2048}", f"ds_read_b128 v[{b+4}:{b+7}], v{vH2} offset:{sl*2048+1024}"]
def hflag_offsets():
    return lines(f"""
    v_min_u32 v{v_poll}, 27, v{v_lane}
    v_lshrrev_b32 v{v_poll+1}, 1, v{v_poll}
    v_and_b32 v{v_poll}, 1, v{v_poll}
    v_lshl_add_u32 v{v_poll}, v{v_poll+1}, 2, v{v_poll}
    v_lshlrev_b32 v{v_poll}, 6, v{v_poll}
    s_lshl_b32 s{s_pb}, s{s_mi}, 12
    s_lshl_b32 s{s_t0}, s{s_hi}, 7
    s_add_u32 s{s_pb}, s{s_pb}, s{s_t0}
    s_add_u32 s{s_pb}, s{s_pb}, {WS_FH}
    """)

HFG = int(os.environ.get('HFG', '12'))
def conv_main(g, hflag):
    CL = 20; NG = 8*CL
    per = [[] for _ in range(NG + 8)]
    m = []
    for cl in range(8):
        m += conv_mfmas(cl)
        if cl < 7:
            rd = conv_reads(cl+1)
            for i, x in enumerate(rd): per[CL*cl + (i*16)//24].append((x, f"cv{cl+1}"))
    per[0].append(("VWAIT", "wd16"))
    trg = {}
    for n_, j in enumerate(range(8, 21)):
        gp = 6*n_
        trg[j] = gp
        if j == 17: per[gp].append(("VWAIT", "wd20"))
        tl = T(wd_tr(j, j-8) if j < 17 else wd_tr_e(j, j-17), f"tr{j}")
        for q, x in enumerate(tl): per[gp + q].append(x)
    for i, j in enumerate(range(21, 28)):
        g2 = trg[8+i] + 8
        per[g2].append(("LWAIT", f"tr{8+i}"))
        dl = T(wd_dma(j, j-21), f"wd{j}")
        per[g2] += dl[:2]
        per[g2+1] += dl[2:]
    per[HFG].append(("CALL", hflag))
    for i, j in enumerate(range(21, 28)):
        gp = 80 + 3*i
        per[gp].append(("VWAIT", f"wd{j}"))
        tl = T(wd_tr(j, j-21), f"tr{j}")
        per[gp] += tl[:2]; per[gp+1] += tl[2:]
    spread(per, T(hflag_offsets()), 66, 71)
    spread(per, T(g2_setup()), 72, 79)
    HCG = int(os.environ.get("HCG", "104"))
    per[HCG - 14] += poll_issue("ph")
    per[HCG].append(("HCHECK", None))
    per[HCG].append(("LWAIT", "tr27"))
    nh = min(10, (NG - 2 - HCG) // 5)
    for s_ in range(nh):
        gp = HCG + 1 + 5*s_
        hl_ = T(h_dma(s_), f"h{s_}")
        per[gp] += hl_[:1]; per[gp+2] += hl_[1:]
    global NH0
    NH0 = nh
    spread(per, T(conv_epi_pre()), 139, 150)
    for i in range(NG):
        if EST and i in (0, 40, 80, 120): stamp(g, 11 + i//40)
        if CST and i % 13 == 0: stamp(g, 1 + i//13)
        if i % CL == 0: g.lwait(f"cv{i//CL}")
        g(m[i])
        for x, tag in per[i]:
            if x == "CALL": tag()
            elif x == "HCHECK": poll_check(g, "G_p2", "ph")
            else: g.emit(x, tag)

def conv_epi_pre():
    L = lines(f"""
    v_and_b32 v54, 15, v{v_lane}
    v_lshrrev_b32 v55, 4, v{v_lane}
    v_lshlrev_b32 v54, 5, v54
    v_lshl_add_u32 v53, v55, 3, v54
    s_mul_i32 s98, s{s_ns}, {CVUS}
    s_lshl_b32 s99, s{s_mf}, 9
    s_sub_u32 s98, s98, s99
    s_add_u32 s98, s98, {LU + 4088 - 3072}
    v_sub_u32 v52, s98, v53
    s_lshl_b32 s98, s2, 13
    s_lshl_b32 s34, s{s_ns}, 12
    s_add_u32 s98, s98, s34
    s_add_u32 s98, s98, s99
    s_add_u32 s98, s98, {WS_ZP}
    """)
    L += [f"s_cmp_eq_u32 s{s_ns}, 0\ns_cselect_b32 s99, s100, s101"]
    for tau in range(4):
        L.append(f"ds_read_b64 v[{88+2*tau}:{89+2*tau}], v52 offset:{1024*(3-tau)}")
    return L
def conv_epilogue(g):
    KV, U, O = 88, 96, 112
    g("s_waitcnt lgkmcnt(0)")
    for tau in range(4):
        k = KV + 2*tau; u = U + 4*tau
        g(f"v_and_b32 v{u}, 0xffff0000, v{k+1}\nv_lshlrev_b32 v{u+1}, 16, v{k+1}\nv_and_b32 v{u+2}, 0xffff0000, v{k}\nv_lshlrev_b32 v{u+3}, 16, v{k}")
    for tau in range(4):
        for r in range(4): g(f"v_fmac_f32 v{cv_D+4*tau+r}, s99, v{U+4*tau+r}")
    for tau in range(4):
        g(f"v_cvt_pk_bf16_f32 v{O+2*tau}, v{cv_D+4*tau}, v{cv_D+4*tau+1}\nv_cvt_pk_bf16_f32 v{O+2*tau+1}, v{cv_D+4*tau+2}, v{cv_D+4*tau+3}")
    for tau in range(4):
        g.vm(f"buffer_store_dwordx2 v[{O+2*tau}:{O+2*tau+1}], v53, s[{sWS}:{sWS+3}], s98 offen offset:{1024*tau} sc1", "zst")

g2_acc = 192
g2_fr = 160
G2ST = os.environ.get('G2ST') == '1'
NH0 = int(os.environ.get('NH0', '4'))
def g2_mfma(j, sm, sn):
    b = g2_fr + (j % 4)*8
    acc = g2_acc + (sm*2+sn)*16
    cin = "0" if j == 0 else f"v[{acc}:{acc+15}]"
    return f"v_mfma_f32_32x32x16_bf16 v[{acc}:{acc+15}], a[{8*j+4*sm}:{8*j+4*sm+3}], v[{b+4*sn}:{b+4*sn+3}], {cin}"
def g2_main(g, extra):
    nd = NH0
    g.ldops = []
    g.vwait("h1")
    for x in h_reads(0): g.ld(x, "hr0")
    for x in h_reads(1): g.ld(x, "hr1")
    JT = 24
    for j in range(JT):
        if G2ST and j % 2 == 0: stamp(g, 1 + j//2)
        g.lwait(f"hr{j}")
        fill = []
        cnt = 0
        while nd < 28 and nd <= j + 9 and cnt < 2:
            fill += T(h_dma(nd), f"h{nd}"); nd += 1; cnt += 1
        m = [g2_mfma(j, sm, sn) for sm in range(2) for sn in range(2)]
        per = [[] for _ in range(4)]
        if fill: spread(per, fill, 0, 3)
        ex = extra(j)
        if ex: spread(per, ex, 0, 3)
        per[3].append(("VWAIT", f"h{j+2}"))
        per[3] += T(h_reads(j+2), f"hr{j+2}")
        for i in range(4):
            g(m[i])
            for x, tag in per[i]:
                if x == "CALL": tag()
                else: g.emit(x, tag)
    g.vwait("h27")
    for j in (26, 27):
        for x in h_reads(j): g.ld(x, f"hr{j}")
    g(f"v_add_u32 v22, s{s_m0x}, v{v_l16}")
    for x in range(1, 4):
        g(f"s_xor_b32 s{s_t0}, s{s_w}, {x}\ns_mul_i32 s{s_t0}, s{s_t0}, {RING}\nv_add_u32 v{22+x}, s{s_t0}, v{v_l16}")
    g.lwait("hr27")
    order = [1, 2, 3, 0]
    pend = []
    ex = extra(24) + extra(25) + extra(26)
    for sl in order:
        sm, sn = sl >> 1, sl & 1
        for j in range(JT, 28):
            g(g2_mfma(j, sm, sn))
            if pend:
                g(pend.pop(0))
            elif ex:
                x, tag = ex.pop(0)
                if x == "CALL": tag()
                else: g.emit(x, tag)
        if sl != 0:
            pend += ["s_nop 4", "s_nop 4"] + [f"ds_write_b128 v22, v[{g2_acc + sl*16 + 4*q}:{g2_acc + sl*16 + 4*q + 3}] offset:{sl*4096 + q*1024}" for q in range(4)]
    for x, tag in ex:
        if x == "CALL": tag()
        else: g.emit(x, tag)
    g("s_nop 7")
    for x in pend: g(x)

def g2_reduce2(g):
    g.vwait("x")
    g("s_waitcnt lgkmcnt(0)\ns_barrier")
    for x in final_x_reads(): g(x)
    for x in range(1, 4):
        for q in range(4):
            r = g2_acc + x*16 + 4*q
            g(f"ds_read_b128 v[{r}:{r+3}], v{22+x} offset:{x*4096 + q*1024}")
    for x in range(1, 4):
        g(f"s_waitcnt lgkmcnt({4*(3-x)})")
        for q in range(8):
            a = g2_acc + 2*q; b = g2_acc + x*16 + 2*q
            g(f"v_pk_add_f32 v[{a}:{a+1}], v[{a}:{a+1}], v[{b}:{b+1}]")

fx = 32
LXF = 114688
def final_loads_x():
    L = [f"v_lshrrev_b32 v26, 3, v{v_lane}", f"v_and_b32 v27, 7, v{v_lane}", f"v_lshrrev_b32 v24, 4, v{v_lane}",
         f"v_xor_b32 v25, v27, v24", f"v_mul_u32_u24 v26, 896, v26", f"v_lshl_add_u32 v25, v25, 4, v26",
         f"v_xor_b32 v27, 4, v27", f"v_xor_b32 v27, v27, v24", f"v_lshl_add_u32 v26, v27, 4, v26", f"v_add_u32 v26, {8*896-1024}, v26",
         f"s_lshl_b32 s{s_t0}, s{s_mi}, 7", f"s_lshl_b32 s{s_t1}, s{s_hi}, 6", f"s_add_u32 s{s_t0}, s{s_t0}, s{s_t1}",
         f"s_lshl_b32 s{s_t1}, s{s_w}, 4", f"s_add_u32 s{s_t1}, s{s_t1}, s{s_t0}", f"s_mul_i32 s{s_t1}, s{s_t1}, 896",
         f"s_lshl_b32 s{s_t2}, s{s_ct}, 7", f"s_add_u32 s{s_t1}, s{s_t1}, s{s_t2}"]
    L.append("\n".join([f"s_add_u32 m0, s{s_t4}, {LXF}", "s_nop 0",
             f"buffer_load_dwordx4 v25, s[{sX}:{sX+3}], s{s_t1} offen lds",
             f"buffer_load_dwordx4 v26, s[{sX}:{sX+3}], s{s_t1} offen offset:1024 lds"]))
    L += [f"s_lshl_b32 s{s_t1}, s{s_mf}, 5", f"s_add_u32 s{s_t0}, s{s_t0}, s{s_t1}", f"s_mul_i32 s{s_zoff}, s{s_t0}, 896",
          f"s_add_u32 s{s_zoff}, s{s_zoff}, s{s_t2}", f"s_lshl_b32 s{s_t1}, s{s_ns}, 6", f"s_add_u32 s{s_zoff}, s{s_zoff}, s{s_t1}"]
    return L
def final_x_reads():
    L = [f"v_and_b32 v56, 31, v{v_lane}", f"v_bfe_u32 v57, v{v_lane}, 1, 3", f"s_lshl_b32 s{s_t0}, s{s_ns}, 2", f"v_xor_b32 v57, s{s_t0}, v57",
         f"s_lshl_b32 s{s_t1}, s{s_mf}, 12", f"s_add_u32 s{s_t1}, s{s_t1}, {LXF}", f"v_lshl_add_u32 v56, v56, 7, s{s_t1}",
         f"v_lshrrev_b32 v58, 5, v{v_lane}", f"v_lshl_add_u32 v56, v58, 3, v56"]
    for q in range(4):
        L += [f"v_xor_b32 v58, {q}, v57", f"v_lshl_add_u32 v58, v58, 4, v56", f"ds_read_b64 v[{fx+2*q}:{fx+2*q+1}], v58"]
    return L
s_zp = 49
def final_z_setup():
    return lines(f"""
    v_and_b32 v28, 31, v{v_lane}
    v_lshlrev_b32 v28, 1, v28
    v_lshrrev_b32 v27, 5, v{v_lane}
    v_lshl_add_u32 v28, v27, 14, v28
    s_lshl_b32 s{s_t0}, s{s_ct}, 5
    s_lshl_b32 s{s_t1}, s{s_ns}, 4
    s_add_u32 s{s_t0}, s{s_t0}, s{s_t1}
    s_lshl_b32 s{s_pb}, s{s_t0}, 8
    s_lshl_b32 s{s_t0}, s{s_t0}, 13
    s_lshl_b32 s{s_t1}, s{s_mi}, 7
    s_lshl_b32 s{s_t2}, s{s_hi}, 6
    s_add_u32 s{s_t1}, s{s_t1}, s{s_t2}
    s_lshl_b32 s{s_t2}, s{s_mf}, 5
    s_add_u32 s{s_t1}, s{s_t1}, s{s_t2}
    s_lshl_b32 s{s_t1}, s{s_t1}, 1
    s_add_u32 s{s_t0}, s{s_t0}, s{s_t1}
    s_add_u32 s{s_zp}, s{s_t0}, {WS_ZP}
    s_bfe_u32 s{s_t1}, s{s_mi}, 0x10001
    s_lshl_b32 s{s_t1}, s{s_t1}, 6
    s_add_u32 s{s_pb}, s{s_pb}, s{s_t1}
    s_add_u32 s{s_pb}, s{s_pb}, {WS_FZ}
    v_min_u32 v{v_poll}, 31, v{v_lane}
    v_lshrrev_b32 v{v_poll+1}, 1, v{v_poll}
    v_and_b32 v{v_poll}, 1, v{v_poll}
    v_lshlrev_b32 v{v_poll}, 7, v{v_poll}
    v_lshl_add_u32 v{v_poll}, v{v_poll+1}, 8, v{v_poll}
    """)
fz = 64
def final_loads_z(g):
    for q in range(4):
        for i in range(4):
            g(f"s_add_u32 s{s_t3}, s{s_zp}, {(8*q+i)*4096}")
            g.vm(f"buffer_load_ushort v{fz+4*q+i}, v28, s[{sWS}:{sWS+3}], s{s_t3} offen sc1", "z")
def final_pre():
    return lines(f"""
    v_and_b32 v22, 31, v{v_lane}
    v_lshlrev_b32 v22, 3, v22
    s_lshl_b32 s{s_t0}, s{s_mi}, 10
    s_lshl_b32 s{s_t1}, s{s_hi}, 9
    s_add_u32 s{s_t0}, s{s_t0}, s{s_t1}
    s_lshl_b32 s{s_t1}, s{s_mf}, 8
    s_add_u32 s{s_t0}, s{s_t0}, s{s_t1}
    s_add_u32 s{s_t0}, s{s_t0}, {WS_STATS}
    buffer_load_dwordx2 v[30:31], v22, s[{sWS}:{sWS+3}], s{s_t0} offen sc1
    v_and_b32 v29, 31, v{v_lane}
    v_mul_u32_u24 v29, 896, v29
    v_lshrrev_b32 v27, 5, v{v_lane}
    v_lshl_add_u32 v29, v27, 4, v29
    """)
def final(g):
    g(f"""
    s_waitcnt vmcnt(0)
    v_rcp_f32 v31, v31
    v_mov_b32 v20, {fh(-math.log2(math.e))}
    v_mov_b32 v21, 1.0
    v_mul_f32 v30, v30, v31
    v_sub_f32 v30, 0, v30
    """)
    O = g2_acc
    X = 48; Zz = 64; Tt = 80; XN = 96
    def pr(x): return f"v[{x}:{x+1}]"
    steps = [
      lambda i: [f"v_pk_mul_f32 {pr(Tt+2*i)}, {pr(O+2*i)}, v[20:21] op_sel_hi:[1,0]"],
      lambda i: [f"v_exp_f32 v{Tt+2*i}, v{Tt+2*i}", f"v_exp_f32 v{Tt+2*i+1}, v{Tt+2*i+1}"],
      lambda i: [f"v_lshlrev_b32 v{X+2*i}, 16, v{fx+i}", f"v_and_b32 v{X+2*i+1}, 0xffff0000, v{fx+i}"],
      lambda i: [f"v_pk_add_f32 {pr(Tt+2*i)}, {pr(Tt+2*i)}, v[20:21] op_sel:[0,1] op_sel_hi:[1,1]"],
      lambda i: [f"v_lshlrev_b32 v{Zz+2*i}, 16, v{fz+2*i}", f"v_lshlrev_b32 v{Zz+2*i+1}, 16, v{fz+2*i+1}"],
      lambda i: [f"v_rcp_f32 v{Tt+2*i}, v{Tt+2*i}", f"v_rcp_f32 v{Tt+2*i+1}, v{Tt+2*i+1}"],
      lambda i: [f"v_pk_fma_f32 {pr(XN+2*i)}, {pr(X+2*i)}, v[30:31], v[30:31] op_sel:[0,1,0] op_sel_hi:[1,1,0]"],
      lambda i: [f"v_pk_mul_f32 {pr(Tt+2*i)}, {pr(Tt+2*i)}, {pr(O+2*i)}"],
      lambda i: [f"v_pk_mul_f32 {pr(Zz+2*i)}, {pr(Zz+2*i)}, {pr(XN+2*i)}"],
      lambda i: [f"v_pk_fma_f32 {pr(Tt+2*i)}, {pr(Tt+2*i)}, {pr(Zz+2*i)}, {pr(X+2*i)}"],
    ]
    for st in steps:
        for i in range(8):
            for x in st(i): g(x)
    P = 112
    for i in range(8): g(f"v_cvt_pk_bf16_f32 v{P+i}, v{Tt+2*i}, v{Tt+2*i+1}")
    g("s_nop 1")
    for qq in (0, 2):
        g(f"v_permlane32_swap_b32 v{P+2*qq}, v{P+2*qq+2}\nv_permlane32_swap_b32 v{P+2*qq+1}, v{P+2*qq+3}")
    for qq in (0, 2):
        g(f"buffer_store_dwordx4 v[{P+2*qq}:{P+2*qq+3}], v29, s[{sOUT2}:{sOUT2+3}], s{s_zoff} offen offset:{16*qq}")

def kflag_offsets():
    return lines(f"""
    v_min_u32 v{v_poll}, 31, v{v_lane}
    v_lshrrev_b32 v{v_poll+1}, 1, v{v_poll}
    v_and_b32 v{v_poll}, 1, v{v_poll}
    v_lshlrev_b32 v{v_poll}, 7, v{v_poll}
    v_lshl_add_u32 v{v_poll}, v{v_poll+1}, 12, v{v_poll}
    s_lshr_b32 s{s_pb}, s2, 4
    s_lshl_b32 s{s_pb}, s{s_pb}, 8
    s_bfe_u32 s{s_t0}, s2, 0x10003
    s_lshl_b32 s{s_t0}, s{s_t0}, 6
    s_add_u32 s{s_pb}, s{s_pb}, s{s_t0}
    s_add_u32 s{s_pb}, s{s_pb}, {WS_FK}
    """)
s_fo = 32
def flag_off(base):
    return lines(f"""s_lshl_b32 s{s_fo}, s{s_mi}, 4
    s_add_u32 s{s_fo}, s{s_fo}, s{s_fi}
    s_lshl_b32 s{s_fo}, s{s_fo}, 2
    s_add_u32 s{s_fo}, s{s_fo}, s{s_w}
    s_lshl_b32 s{s_fo}, s{s_fo}, 6
    s_add_u32 s{s_fo}, s{s_fo}, {base}""")
def wave_flag_L(vt, so=s_fo):
    return [f"v_mov_b32 v{vt}, 0", f"v_mov_b32 v{vt+1}, s{s_tag}", "s_mov_b64 exec, 1",
            f"buffer_store_dword v{vt+1}, v{vt}, s[{sWS}:{sWS+3}], s{so} offen sc1", "s_mov_b64 exec, -1"]

sTC = 28
def touch_setup():
    a, b = 104, 105
    return lines(f"""
    s_mov_b32 s{sTC}, s{sWD2}
    s_mov_b32 s{sTC+1}, s{sWD2+1}
    s_mov_b32 s{sTC+2}, {D*F*2}
    s_mov_b32 s{sTC+3}, 0x20000
    s_lshr_b32 s96, s2, 3
    s_mul_i32 s96, s96, 57344
    s_sub_u32 s96, s96, {32*128}
    s_movk_i32 s97, {32*128}
    s_mul_i32 s{s_t0}, s{s_w}, 8
    v_add_u32 v{a}, s{s_t0}, v{v_lane}
    v_lshlrev_b32 v{a}, 7, v{a}
    v_mov_b32 v{b}, 0x7ffffff0
    v_cmp_gt_u32 vcc, 8, v{v_lane}
    s_nop 1
    v_cndmask_b32 v19, v{b}, v{a}, vcc
    """)
sTG = 84
def g1touch_setup(first_chunk=1):
    a, b = 104, 105
    return lines(f"""
    s_and_b32 s{s_t0}, s{s_mi}, 1
    s_cmp_eq_u32 s{s_t0}, 1
    s_cselect_b32 s{sTG}, s{sWU}, s{sWG}
    s_cselect_b32 s{sTG+1}, s{sWU+1}, s{sWG+1}
    s_mov_b32 s{sTG+2}, {D*F*2}
    s_mov_b32 s92, {first_chunk*64*3584}
    s_mov_b32 s93, {64*3584}
    s_cmp_ge_u32 s{s_w}, 2
    s_cselect_b32 s{sTG}, s{sX}, s{sTG}
    s_cselect_b32 s{sTG+1}, s{sX+1}, s{sTG+1}
    s_cselect_b32 s{sTG+2}, {S*D*2}, s{sTG+2}
    s_cselect_b32 s92, {128*first_chunk}, s92
    s_cselect_b32 s93, 128, s93
    s_mov_b32 s{sTG+3}, 0x20000
    s_bfe_u32 s{s_t0}, s{s_mi}, 0x10001
    s_lshl_b32 s{s_t0}, s{s_t0}, 5
    s_lshl_b32 s{s_t1}, s{s_mf}, 4
    s_add_u32 s{s_t0}, s{s_t0}, s{s_t1}
    v_lshrrev_b32 v{a}, 1, v{v_lane}
    v_add_u32 v{a}, s{s_t0}, v{a}
    v_mul_u32_u24 v{a}, 3584, v{a}
    v_and_b32 v{b}, 1, v{v_lane}
    v_lshl_add_u32 v{a}, v{b}, 7, v{a}
    s_lshl_b32 s{s_t0}, s{s_fi}, 8
    v_add_u32 v{a}, s{s_t0}, v{a}
    v_cmp_gt_u32 vcc, 32, v{v_lane}
    v_mov_b32 v{b}, 0x7ffffff0
    s_mul_i32 s{s_t0}, s{s_ct}, 19
    s_mul_i32 s{s_t2}, s{s_mf}, 10
    s_add_u32 s{s_t0}, s{s_t0}, s{s_t2}
    s_lshl_b32 s{s_t1}, s{s_mi}, 7
    v_cndmask_b32 v87, v{b}, v{a}, vcc
    v_add_u32 v{a}, s{s_t0}, v{v_lane}
    s_movk_i32 s{s_t2}, 128
    v_cmp_gt_u32 vcc, 10, v{v_lane}
    v_cmp_gt_u32 s[94:95], s{s_t2}, v{a}
    v_add_u32 v{a}, s{s_t1}, v{a}
    v_mul_u32_u24 v{a}, 896, v{a}
    s_and_b64 vcc, vcc, s[94:95]
    s_nop 1
    v_cndmask_b32 v{a}, v{b}, v{a}, vcc
    s_cmp_ge_u32 s{s_w}, 2
    s_cselect_b64 vcc, -1, 0
    s_nop 1
    v_cndmask_b32 v87, v87, v{a}, vcc
    """)
def g1pref_setup():
    return lines(f"""
    s_and_b32 s{s_t0}, s{s_mi}, 1
    s_cmp_eq_u32 s{s_t0}, 1
    s_cselect_b32 s{sTG}, s{sWU}, s{sWG}
    s_cselect_b32 s{sTG+1}, s{sWU+1}, s{sWG+1}
    s_mov_b32 s{sTG+2}, {D*F*2}
    s_mov_b32 s{sTG+3}, 0x20000
    s_lshl_b32 s{s_t0}, s{s_mi}, 7
    s_mul_i32 s{s_t1}, s{s_ct}, 19
    s_add_u32 s{s_t0}, s{s_t0}, s{s_t1}
    s_mul_i32 s{s_t0}, s{s_t0}, 896
    s_mul_i32 s{s_t1}, s{s_w}, 4352
    s_add_u32 s92, s{s_t0}, s{s_t1}
    s_bfe_u32 s{s_t0}, s{s_mi}, 0x10001
    s_lshl_b32 s{s_t0}, s{s_t0}, 5
    s_lshl_b32 s{s_t1}, s{s_w}, 3
    s_add_u32 s{s_t0}, s{s_t0}, s{s_t1}
    s_mul_i32 s93, s{s_t0}, 3584
    s_lshl_b32 s{s_t0}, s{s_fi}, 8
    s_add_u32 s93, s93, s{s_t0}
    v_lshrrev_b32 v104, 4, v{v_lane}
    v_mul_u32_u24 v104, 3584, v104
    v_and_b32 v105, 15, v{v_lane}
    v_lshl_add_u32 v87, v105, 4, v104
    """)
def g1pref_w(c, h):
    return ["\n".join([f"s_add_u32 s91, s93, {(64*c+4*h)*3584}", f"buffer_load_dwordx4 a[244:247], v87, s[{sTG}:{sTG+3}], s91 offen"])]
def g1pref_x(i):
    return ["\n".join([f"s_add_u32 s91, s92, {1024*i}", f"buffer_load_dwordx4 a[244:247], v{v_l16}, s[{sX}:{sX+3}], s91 offen"])]
def g1touch_L():
    return [f"buffer_load_dword a255, v87, s[{sTG}:{sTG+3}], s92 offen", "s_add_u32 s92, s92, s93"]
def wdpref(i):
    return ["\n".join([f"s_add_u32 s91, s96, {1024*i}", f"buffer_load_dwordx4 a[244:247], v{v_l16}, s[{sWD2}:{sWD2+3}], s91 offen"])]
def wdpref_setup():
    return [f"s_lshr_b32 s96, s2, 3", f"s_mul_i32 s96, s96, 57344", f"s_mul_i32 s97, s{s_w}, {14*1024}", "s_add_u32 s96, s96, s97"]
def touch_L():
    return ["s_add_u32 s96, s96, s97", f"buffer_load_dword a255, v19, s[{sTC}:{sTC+3}], s96 offen"]
TOUCH = os.environ.get("TOUCH", "none")
def gemm_path(g, stamps=False):
    S_ = lambda i: stamp(g, i, stamps)
    g.vreset()
    S_(0)
    g1_prologue(g)
    TG1 = os.environ.get("TG1", "none")
    NPF = int(os.environ.get("NPF", "4"))
    pf = []
    if TG1 == "c":
        for x in g1pref_setup(): g(x)
        pf = g1pref_w(0, 0) + g1pref_w(0, 1) + [g1pref_x(i)[0] for i in range(5)]
        for c in range(1, NPF): pf += g1pref_w(c, 0) + g1pref_w(c, 1)
    else:
        for grp in g1_groups(0): emit_mixed(g, grp, "c0")
    g(f"s_mov_b32 s{s_spin}, {WS_EPOCH}\ns_load_dword s{s_tag}, s[{sWS}:{sWS+1}], s{s_spin}\ns_lshl_b32 s98, s2, 2\ns_load_dword s99, s[96:97], s98")
    if KPA:
        for r, sz in ((sKK, S*D*2), (sVV, S*D*2), (sSH, D*8)): srd_fix(g, r, sz)
        emit_mixed(g, kp_shk_load(), "shk")
        kpa_dma(g)
        for x in g1_addr(): g(x)
        for grp in g1_groups(1): emit_mixed(g, grp, "c1")
        for r, sz in ((sWS, WS_END), (sWD2, D*F*2), (sSK2, D*S*2)): srd_fix(g, r, sz)
        kps_setup(g, AKT, AVT, AKO, 1)
        g.vwait("shk")
        for x in kp_build_B(): g(x)
        S_(1)
        g.vwait("kp")
        g("s_barrier")
        kpa_compute(g)
    else:
        for x in g1_addr(): g(x)
        for grp in g1_groups(1): emit_mixed(g, grp, "c1")
        for r, sz in ((sKK, S*D*2), (sVV, S*D*2), (sSH, D*8), (sWS, WS_END), (sWD2, D*F*2), (sSK2, D*S*2)): srd_fix(g, r, sz)
        emit_mixed(g, kp_shk_load(), "shk")
        for x in kps_dma_setup(): g(x)
        S_(1)
    g("s_waitcnt lgkmcnt(0)")
    make_tag(g)
    g(f"s_lshl_b32 s100, s99, 16\ns_and_b32 s101, s99, 0xffff0000")
    g.vwait("c0")
    g("s_barrier")
    S_(2)
    def pre(k):
        if KPA: return ["kvst"] if k == 7 else []
        return ["kp"] if k == KPK else []
    class _C:
        def __init__(self): self.L = []
        def __call__(self, t): self.L += lines(t)
    _c = _C(); kps_setup(_c); ksu = _c.L
    bB = kp_build_B()
    wsv = wd_setup_v(); eh = epi_hoff()
    def p1check(): poll_check(g, "G_p1", "p1")
    def post(k):
        E, L, X = [], [], []
        hl = conv_h_loads()
        if k == 19: E += T(wd_setup_s())
        if k == 21: E += T(conv_addr())
        kdl = kps_dma_L()
        if not KPA:
            if k == 0: E += T(ksu[:24])
            if k == 1: E += T(ksu[24:48])
            if k == 2: E += T(ksu[48:])
            if k == 4: E += [("VWAIT", "shk")] + T(bB[:19])
            if k == 5: E += T(bB[19:])
        else:
            if k == 6: E += T(flag_off(WS_FK))
            if k == 7: X.append(T(wave_flag_L(86), "kflag"))
        if k == 8: E += T(wsv[:20])
        if k == 9: E += T(wsv[20:])
        if k == 10: E += T(eh)
        if TOUCH == "roll":
            for _ in range(list(TCHK).count(k)): X.append(T(touch_L(), "t2"))
        if TOUCH == "wide":
            WK0 = int(os.environ.get("WK0", "19"))
            plan = {}
            kk = WK0; i = 0
            while i < 14:
                n = 1 if kk <= 18 else int(os.environ.get('WN', '3'))
                plan[kk] = list(range(i, min(14, i+n))); i += n; kk += 1
            for i in plan.get(k, []): X.append(T(wdpref(i), "t2"))
        if TG1 == "c":
            later = [(c, h) for c in range(NPF, 7) for h in range(2)]
            if k < len(later): X.append(T(g1pref_w(*later[k]), "tg2"))
        if KPA:
            kskip = True
        elif os.environ.get("XNOKP"):
            if k == 3: X.append(T(kdl[0:1], "kp"))
            if k == KPK + 6: X.append(T(kps_store_L()[:1], "kvst"))
            if k == KPK + 10: E += T(flag_off(WS_FK))
            if k == KPK + 11: X.append([("VWAIT", "kvst")] + T(wave_flag_L(86), "kflag"))
            kskip = True
        else: kskip = False
        if not kskip and k in (3, 4, 5, 6): X.append(T(kdl[k-3:k-2], "kp"))
        if not kskip and k in (7, 8): X.append(T(kps_t0_L()[k-7:k-6], "kp"))
        if not kskip and k == KPK + 1: L += T(kps_stage1(), "kp1r")
        if not kskip and k == KPK + 2: E += [("LWAIT", "kp1r")] + T(kps_stage2()) + T(kps_stage3())
        if not kskip and k == KPK + 3: E += T(kps_stage4())
        if not kskip and k == KPK + 5: E += kps_stage5()
        if not kskip:
            if k == KPK + 6: X.append([("LWAIT", "kprb")] + T(kps_store_L()[:1], "kvst"))
            if k == KPK + 7: X.append(T(kps_store_L()[1:], "kvst"))
            if k == KPK + 10: E += T(flag_off(WS_FK))
            if k == KPK + 11: X.append([("VWAIT", "kvst")] + T(wave_flag_L(86), "kflag"))
        if k == 22: L += T(hl[:4], "h")
        if k == 23: L += T(hl[4:], "h")
        if k == 20:
            L += T(f"""v_min_u32 v{v_poll}, 31, v{v_lane}
            v_lshlrev_b32 v{v_poll}, 6, v{v_poll}
            s_mov_b32 s{s_pb}, {WS_FA}""")
        if k == 20: E += T(wd_dma_e(0, 0), "wd0") + T(wd_dma_e(1, 1), "wd1")
        if k == 21: E += T(wd_dma_e(2, 2), "wd2") + T(wd_dma_e(3, 3), "wd3"); L += poll_issue("p1")
        if k == 22:
            E += T(f"""v_lshrrev_b32 v{v_tch}, 5, v{v_lane}
            v_mul_u32_u24 v{v_tch}, {7168-512}, v{v_tch}
            v_add_u32 v{v_tch}, v{v_tch}, v{v_l16}
            s_mov_b32 s{sOUT2}, s64
            s_and_b32 s{sOUT2+1}, s65, 0xffff
            s_mov_b32 s{sOUT2+2}, {S*D*2}
            s_mov_b32 s{sOUT2+3}, 0x20000""")
        if k == 24:
            E += [("CALL", p1check)] + [("\n".join(lines(f"""s_mov_b32 m0, {LST}
            s_lshl_b32 s{s_t1}, s{s_mi}, 10
            s_add_u32 s{s_t1}, s{s_t1}, {WS_STATS}
            buffer_load_dwordx4 v{v_l16}, s[{sWS}:{sWS+3}], s{s_t1} offen sc1 lds""")), "st"), ("\n".join(lines(f"""s_mov_b32 m0, {LST+1024}
            s_lshl_b32 s{s_t1}, s{s_fi}, 9
            s_add_u32 s{s_t1}, s{s_t1}, {WS_CS}
            buffer_load_dwordx4 v{v_tch}, s[{sWS}:{sWS+3}], s{s_t1} offen sc1 lds""")), "st")]
            L += [("VWAIT", "wd1")] + T(wd_tr_e(0, 0), "tr0") + T(wd_tr_e(1, 1), "tr1")
        if k == 25:
            E += T(kflag_offsets()) + poll_issue("pk")
            L += [("VWAIT", "wd3")] + T(wd_tr_e(2, 2), "tr2") + T(wd_tr_e(3, 3), "tr3")
        if k == 23: E += T(conv_copy_setup())
        if k in (24, 25): X += [T(conv_copy_dma(2*(k-24)), "cc"), T(conv_copy_dma(2*(k-24)+1), "cc")]
        if k == 26:
            E += [("LWAIT", "tr1")] + T(wd_dma_e(4, 0), "wd4") + T(wd_dma_e(5, 1), "wd5")
        if k == 27:
            E += [("LWAIT", "tr3")] + T(wd_dma_e(6, 2), "wd6") + T(wd_dma_e(7, 3), "wd7")
            L += [("VWAIT", "st")] + T(epi_pre_reads(), "cs")
        return E, L, X
    g1_main(g, pre, post, stamps={0: 3, 5: 4} if stamps else None)
    S_(5)
    g("s_waitcnt lgkmcnt(0)\ns_barrier")
    def pkc(): poll_check(g, "G_pk", "pk")
    def padc(): conv_pad_code(g)
    def wdring(j): return T(wd_dma(j, j-8), f"wd{j}")
    aux0 = wdring(8) + wdring(9) + [("CALL", pkc)] + [("\n".join(conv_u_dma()), "u")] + wdring(10) + [("VWAIT", "h")] + T(conv_build_L(0))
    aux1 = wdring(11) + wdring(12) + T(conv_build_L(1)) + [("VWAIT", "wd7")]
    for j in range(4, 8): aux1 += T(wd_tr_e(j, j-4), f"tr{j}")
    aux2 = wdring(13) + wdring(14) + [("CALL", padc)] + wdring(15) + wdring(16)
    aux3 = [("LWAIT", "tr7")]
    for j in range(17, 21): aux3 += T(wd_dma_e(j, j-17), f"wd{j}")
    aux3 += T(conv_addr())
    if EST: stamp(g, 1)
    if os.environ.get("ELOOP", "1") == "1":
        def mk(L):
            def f():
                for x2, t2 in L:
                    if x2 == "CALL": t2()
                    else: g.emit(x2, t2)
            return f
        b0 = [("CALL", pkc)] + [("\n".join(conv_u_dma()), "u")] + [("VWAIT", "h")] + T(conv_build_L(0))
        b1 = T(conv_build_L(1)) + [("VWAIT", "wd7")]
        for j in range(4, 8): b1 += T(wd_tr_e(j, j-4), f"tr{j}")
        b2 = [("CALL", padc)]
        b3 = []
        for j in range(17, 21): b3 += T(wd_dma_e(j, j-17), f"wd{j}")
        g1_epilogue_loop(g, [mk(b0), mk(b1), mk(b2), mk(b3)])
    else:
        g1_epilogue(g, [aux0, aux1, aux2, aux3])
    if EST: stamp(g, 10)
    S_(6)
    g.vwait("u")
    g("s_waitcnt lgkmcnt(0)\ns_barrier")
    g.ldops = []
    for x in conv_reads(0): g.ld(x, "cv0")
    S_(7)
    def hflag():
        g.vwait("hst")
        for x in flag_off(WS_FH) + wave_flag_L(52): g.emit(x, "hflag")
    S_(8)
    conv_main(g, hflag)
    if CST: stamp(g, 13)
    S_(9)
    conv_epilogue(g)
    S_(10)
    def zflag():
        g.vwait("zst")
        g(f"s_lshl_b32 s{s_fo}, s2, 2\ns_add_u32 s{s_fo}, s{s_fo}, s{s_w}\ns_lshl_b32 s{s_fo}, s{s_fo}, 6\ns_add_u32 s{s_fo}, s{s_fo}, {WS_FZ}")
        for x in wave_flag_L(52): g.emit(x, "zflag")
    ZFJ = int(os.environ.get('ZFJ', '8'))
    def zcheck(): poll_check(g, "G_p3", "pz")
    zl = []
    for q in range(4):
        for i in range(4):
            zl.append((f"s_add_u32 s{s_t2}, s{s_zp}, {(8*q+i)*4096}\nbuffer_load_ushort v{fz+4*q+i}, v28, s[{sWS}:{sWS+3}], s{s_t2} offen sc1", "z"))
    zl = zl
    def extra(j):
        L = []
        if j == 14: L += T(final_loads_x(), "x")
        if j == ZFJ: L += [("CALL", zflag)]
        if j == 17: L += T(final_z_setup())
        if j == 23: L += poll_issue("pz")
        if j == 20: L += T(final_pre())
        return L
    g2_main(g, extra)
    S_(11)
    zcheck()
    for x, tg in zl: g.emit(x, tg)
    g2_reduce2(g)
    S_(12)
    final(g)
    S_(13)
    g("s_waitcnt vmcnt(0)")
    S_(14)
    g(f"""s_cmp_lg_u32 s2, 0
    s_cbranch_scc1 G_noep
    s_cmp_lg_u32 s{s_w}, 0
    s_cbranch_scc1 G_noep""")
    for part in range(4):
        g(f"""v_add_u32 v{v_poll}, {part*64}, v{v_lane}
        v_min_u32 v{v_poll}, 223, v{v_poll}
        v_lshlrev_b32 v{v_poll}, 8, v{v_poll}
        s_mov_b32 s{s_pb}, {WS_FZ}""")
        poll_check(g, f"G_pe{part}", None)
    g(f"""v_min_u32 v{v_poll}, 31, v{v_lane}
    v_lshlrev_b32 v{v_poll}, 6, v{v_poll}
    s_mov_b32 s{s_pb}, {WS_FA}""")
    poll_check(g, "G_pe4", None)
    g(f"""v_mov_b32 v2, {WS_EPOCH}
    v_mov_b32 v3, s{s_tag}
    s_mov_b64 exec, 1
    buffer_store_dword v3, v2, s[{sWS}:{sWS+3}], 0 offen sc1
    s_mov_b64 exec, -1
    s_waitcnt vmcnt(0)
    G_noep:""")

def gen_full(stamps=False):
    g = G()
    g(header([f"grid=(256,1,1) block=(256,1,1) lds={LDS_TOTAL}"]))
    g(kstart(KN))
    g("s_cmp_ge_u32 s2, 224\ns_cbranch_scc1 L_spare")
    if stamps: start_rt(g)
    gemm_path(g, stamps=stamps)
    if stamps: dump_stamps(g)
    g("s_endpgm")
    g("L_spare:")
    g("s_cmp_ge_u32 s2, 256\ns_cbranch_scc1 L_end")
    if stamps: start_rt(g)
    spare(g, flags=True, stamps=stamps)
    if stamps: dump_stamps(g)
    g("L_end:\ns_endpgm")
    g(kdesc(KN, vgpr=512, sgpr=102, accum=256))
    return g.a.text()
def gen_full_stamps(): return gen_full(stamps=True)
def gen_kst0():
    global KSTAMP, stamp
    KSTAMP = 0
    return gen_kstx()
def gen_kst14():
    global KSTAMP
    KSTAMP = 14
    return gen_kstx()
def gen_est():
    return gen_kstx()
def gen_gst():
    global GSTAMP
    GSTAMP = int(os.environ["GK"])
    return gen_kstx()
def gen_kstx():
    g = G()
    g(header([f"grid=(256,1,1) block=(256,1,1) lds={LDS_TOTAL}"]))
    g(kstart(KN))
    g("s_cmp_ge_u32 s2, 224\ns_cbranch_scc1 L_spare")
    stamp(g, 0)
    gemm_path(g, stamps=False)
    dump_stamps(g)
    g("s_endpgm")
    g("L_spare:")
    g("s_cmp_ge_u32 s2, 256\ns_cbranch_scc1 L_end")
    spare(g, flags=True, stamps=False)
    g("L_end:\ns_endpgm")
    g(kdesc(KN, vgpr=512, sgpr=102, accum=256))
    return g.a.text()

if __name__ == "__main__":
    import runner
    which = sys.argv[1]
    txt = globals()["gen_"+which]()
    open(f"dev/{which}.s", "w").write(txt)
    runner.build(f"dev/{which}.s", KN, 13)
    from runner import cl
    print("ok", len(txt), cl.address_register_problem(f"dev/{which}.co", KN))
```

```python
import math, struct, sys
from dsl import *

S, D, F = 2048, 448, 1792
KN = "recurrent_scan__ssm_conv_h3__geglu_ffn__prompt_kernel"
def f2u(x): return struct.unpack('<I', struct.pack('<f', x))[0]
def fh(x): return hex(f2u(x))

import os
WSB = int(os.environ.get("WSB", "0"), 0)
WS_EPOCH = WSB + 0
WS_FA = WSB + 0x1000
WS_FK = WSB + 0x10000
WS_FH = WSB + 0x20000
WS_FZ = WSB + 0x30000
WS_STATS = WSB + 0x40000
WS_CS    = WS_STATS + 2048*8
WS_KVT   = WSB + 0x50000
WS_ZP    = WS_KVT + D*S*2
WS_H     = WS_ZP + D*S*2
WS_END   = WS_H + 64*112*1024
WS_STAMPS = 40<<20

KA = dict(q=0,k=8,v=16,shk=24,ssmk=32,ssmD=40,bx=48,wg=56,wu=64,wd=72,out=80,dbg=88,ws=96)
C1 = -2*math.sqrt(2/math.pi)*math.log2(math.e)
C2 = C1*0.044715
LDS_TOTAL = 163840

SPK = os.environ.get('SPK', '0') == '1'
class G:
    def __init__(self):
        self.a = Asm()
        self.vmops = []
        self.ldops = []
        self.stags = set(["hst"])
    def __call__(self, s): self.a(s)
    def vm(self, s, tag=None):
        self.a(s); self.vmops.append(tag)
        if "store" in s: self.stags.add(tag)
    def vwait(self, tag):
        idx = max(i for i, t in enumerate(self.vmops) if t == tag)
        st = tag in self.stags
        n = len(self.vmops) - 1 - idx
        assert n <= 63, n
        self.a(f"s_waitcnt vmcnt({n})")
    def vreset(self): self.vmops = []
    def ld(self, s, tag=None):
        self.a(s); self.ldops.append(tag)
    def lwait(self, tag):
        idx = max(i for i, t in enumerate(self.ldops) if t == tag)
        n = min(15, len(self.ldops) - 1 - idx)
        self.a(f"s_waitcnt lgkmcnt({n})")
    def emit(self, s, tag=None):
        if "\n" in s:
            for x in s.split("\n"): self.emit(x, tag)
        elif s == "VWAIT": self.vwait(tag)
        elif s == "LWAIT": self.lwait(tag)
        elif s.startswith("buffer_"): self.vm(s, tag)
        elif s.startswith("ds_"): self.ld(s, tag)
        else: self.a(s)
    def lab(self, n): self.a.label(n)

def srd_load(g, r, name):
    g(f"s_load_dwordx2 s[{r}:{r+1}], s[0:1], {KA[name]}")
def srd_fix(g, r, size):
    g(f"s_and_b32 s{r+1}, s{r+1}, 0xffff\ns_mov_b32 s{r+2}, {size}\ns_mov_b32 s{r+3}, 0x20000")

sX, sWG, sWU, sWS, sWD, sSK, sOUT, sDD = 4, 8, 12, 16, 20, 24, 28, 32
s_w, s_mi, s_fi, s_mf, s_ns = 36, 37, 38, 39, 40
s_xoff, s_woff, s_m0x, s_m0w = 41, 42, 43, 44
s_t0, s_t1, s_t2, s_t3 = 45, 46, 47, 48
s_hoff = 49
s_tag = 50
s_spin = 51
STAMP0 = 66
NSTAMP = 15
def stamp(g, i, on=True):
    if on: g(f"s_memtime s[{STAMP0+2*i}:{STAMP0+2*i+1}]")
def start_rt(g):
    g("s_memrealtime s[98:99]\ns_waitcnt lgkmcnt(0)\nv_mov_b32 v20, s98\nv_accvgpr_write_b32 a254, v20")
def dump_stamps(g, n=NSTAMP):
    g(f"""s_waitcnt lgkmcnt(0) vmcnt(0)
    s_memrealtime s[{STAMP0+2*n}:{STAMP0+2*n+1}]
    s_waitcnt lgkmcnt(0)
    s_mov_b32 s{sWS+2}, 0x7fffffff
    s_lshl_b32 s{s_t0}, s2, 9
    s_lshl_b32 s{s_t1}, s{s_w}, 7
    s_add_u32 s{s_t0}, s{s_t0}, s{s_t1}
    s_add_u32 s{s_t0}, s{s_t0}, {WS_STAMPS}
    v_mov_b32 v2, 0""")
    for i in range(n+1):
        g(f"v_mov_b32 v3, s{STAMP0+2*i}\nbuffer_store_dword v3, v2, s[{sWS}:{sWS+3}], s{s_t0} offen offset:{4*i}")
    g(f"v_accvgpr_read_b32 v3, a254\nbuffer_store_dword v3, v2, s[{sWS}:{sWS+3}], s{s_t0} offen offset:{4*(n+1)}")
    g("s_waitcnt vmcnt(0)")

def load_tag(g):
    g(f"s_mov_b32 s{s_spin}, {WS_EPOCH}\ns_load_dword s{s_tag}, s[{sWS}:{sWS+1}], s{s_spin}")
def make_tag(g):
    g(f"s_mul_i32 s{s_tag}, s{s_tag}, 0x9E3779B1\ns_add_u32 s{s_tag}, s{s_tag}, 0x7F4A7C15")

def rnd_bf16(g, r, tmp=None):
    g(f"v_cvt_pk_bf16_f32 v{r}, v{r}, v{r}\nv_lshlrev_b32 v{r}, 16, v{r}")

def publish_flag(g, off_expr_sgpr, lab):
    g("s_waitcnt vmcnt(0)\ns_barrier")
    g(f"""s_cmp_lg_u32 s{s_w}, 0
    s_cbranch_scc1 {lab}
    v_mov_b32 v2, 0
    v_mov_b32 v3, s{s_tag}
    s_mov_b64 exec, 1
    buffer_store_dword v3, v2, s[{sWS}:{sWS+3}], s{off_expr_sgpr} offen sc1
    s_mov_b64 exec, -1
    {lab}:""")

def flag_store(g, off_sgpr, lab, vt=14):
    g(f"""s_cmp_lg_u32 s{s_w}, 0
    s_cbranch_scc1 {lab}
    v_mov_b32 v{vt}, 0
    v_mov_b32 v{vt+1}, s{s_tag}
    s_mov_b64 exec, 1
    buffer_store_dword v{vt+1}, v{vt}, s[{sWS}:{sWS+3}], s{off_sgpr} offen sc1
    s_mov_b64 exec, -1
    {lab}:""")


def spare_k(g, sK, sV, sSH):
    LK, LV, LO = SLK, SLV, SLO
    vl = 1
    kB1, kB2 = 72, 76
    A, V, Dd, U, O = 20, 52, 96, 112, 60
    g(f"""
    v_lshrrev_b32 v8, 2, v3
    v_and_b32 v9, 3, v3
    v_lshl_add_u32 v8, v8, 4, v9              ; 16(m>>2) + (m&3)
    v_lshrrev_b32 v9, 1, v4
    v_sub_u32 v8, v8, v9
    v_add_u32 v8, 1, v8
    v_mul_u32_u24 v8, 896, v8
    v_and_b32 v9, 1, v4
    v_lshl_add_u32 v8, v9, 4, v8
    s_lshl_b32 s{s_t0}, s{s_w}, 5
    s_add_u32 s{s_t1}, s{s_t0}, {LK}
    v_add_u32 v80, s{s_t1}, v8
    v_lshrrev_b32 v8, 2, v3
    v_lshl_add_u32 v8, v4, 4, v8              ; 16q + (i>>2)
    v_mul_u32_u24 v8, 896, v8
    v_and_b32 v9, 3, v3
    v_lshl_add_u32 v8, v9, 3, v8
    s_add_u32 s{s_t1}, s{s_t0}, {LV}
    v_add_u32 v81, s{s_t1}, v8                ; V addr
    v_lshlrev_b32 v8, 1, v4
    v_sub_u32 v8, 6, v8
    v_and_b32 v9, 7, v3
    v_xor_b32 v8, v8, v9
    v_xor_b32 v9, 1, v8
    v_lshlrev_b32 v83, 7, v3
    s_lshl_b32 s{s_t1}, s{s_w}, 11
    s_add_u32 s{s_t1}, s{s_t1}, {LO}
    v_add_u32 v83, s{s_t1}, v83
    v_lshl_add_u32 v82, v8, 4, v83
    v_lshl_add_u32 v83, v9, 4, v83
    v_lshrrev_b32 v8, 3, v{vl}
    v_and_b32 v9, 7, v{vl}
    v_xor_b32 v84, v9, v8
    v_lshlrev_b32 v85, 7, v8
    v_lshl_add_u32 v84, v84, 4, v85
    v_add_u32 v84, s{s_t1}, v84
    v_lshlrev_b32 v85, 12, v8
    v_lshl_add_u32 v85, v9, 4, v85
    s_lshl_b32 s{s_t0}, s{s_w}, 16            ; 16w channels * 4096
    s_lshl_b32 s{s_t1}, s52, 7                ; 64rb*2
    s_sub_u32 s60, s{s_t0}, s{s_t1}
    s_add_u32 s60, s60, {WS_KVT + 1984*2}     ; store soffset ; += 64*4096 per iteration
    v_lshlrev_b32 v86, 3, v3
    s_lshl_b32 s61, s{s_w}, 7
    v_lshrrev_b32 v87, 1, v4
    v_lshlrev_b32 v87, 4, v87                 ; 16*(kq>>1)
    v_and_b32 v88, 1, v3
    v_lshlrev_b32 v88, 4, v88                 ; 16*(n&1)
    v_lshrrev_b32 v89, 3, v3
    v_and_b32 v90, 1, v4
    v_cmp_eq_u32 s[62:63], v89, v90
    v_bfe_u32 v89, v3, 1, 2                   ; (n&7)>>1
    v_cmp_eq_u32 s[64:65], 0, v89
    v_cmp_eq_u32 s[66:67], 1, v89
    v_cmp_eq_u32 s[68:69], 2, v89
    v_cmp_eq_u32 s[70:71], 3, v89
    s_mov_b32 s72, 0
    buffer_load_dwordx2 v[92:93], v86, s[{sSH}:{sSH+3}], s61 offen
    s_waitcnt vmcnt(0)
    s_barrier
    """)
    g.lab("SPK_loop")
    for t in range(4):
        g(f"ds_read_b128 v[{A+8*t}:{A+8*t+3}], v80 offset:{4*896*t+2*896}")
        g(f"ds_read_b128 v[{A+8*t+4}:{A+8*t+7}], v80 offset:{4*896*t}")
    for t in range(4):
        g(f"ds_read_b64_tr_b16 v[{V+2*t}:{V+2*t+1}], v81 offset:{4*896*t}")
    g(f"""
    s_waitcnt vmcnt(2)
    v_lshrrev_b32 v94, v87, v92
    v_lshrrev_b32 v95, v87, v93
    v_and_b32 v94, 0xffff, v94
    v_and_b32 v95, 0xffff, v95
    v_lshlrev_b32 v94, v88, v94
    v_lshlrev_b32 v95, v88, v95
    v_cndmask_b32 v94, 0, v94, s[62:63]
    v_cndmask_b32 v95, 0, v95, s[62:63]
    s_add_u32 s61, s61, 512
    buffer_load_dwordx2 v[92:93], v86, s[{sSH}:{sSH+3}], s61 offen
    """)
    for i in range(4):
        g(f"v_cndmask_b32 v{kB1+i}, 0, v94, s[{64+2*i}:{65+2*i}]\nv_cndmask_b32 v{kB2+i}, 0, v95, s[{64+2*i}:{65+2*i}]")
    g("v_add_u32 v80, 128, v80\nv_add_u32 v81, 128, v81")
    for t in range(4):
        g(f"s_waitcnt lgkmcnt({10-2*t})")
        g(f"v_mfma_f32_16x16x32_bf16 v[{Dd+4*t}:{Dd+4*t+3}], v[{A+8*t}:{A+8*t+3}], v[{kB1}:{kB1+3}], 0")
        g(f"v_mfma_f32_16x16x32_bf16 v[{Dd+4*t}:{Dd+4*t+3}], v[{A+8*t+4}:{A+8*t+7}], v[{kB2}:{kB2+3}], v[{Dd+4*t}:{Dd+4*t+3}]")
    g("s_waitcnt lgkmcnt(0)")
    for t in range(4):
        for h_ in range(2):
            g(f"v_lshlrev_b32 v{U+4*t+2*h_}, 16, v{V+2*t+h_}\nv_and_b32 v{U+4*t+2*h_+1}, 0xffff0000, v{V+2*t+h_}")
    for t in range(4):
        for h_ in range(2):
            g(f"v_pk_mul_f32 v[{Dd+4*t+2*h_}:{Dd+4*t+2*h_+1}], v[{Dd+4*t+2*h_}:{Dd+4*t+2*h_+1}], v[{U+4*t+2*h_}:{U+4*t+2*h_+1}]")
    for e in range(8):
        t = 3 - (e >> 1); r = 3 - 2*(e & 1)
        g(f"v_cvt_pk_bf16_f32 v{O+e}, v{Dd+4*t+r}, v{Dd+4*t+r-1}")
    g(f"""ds_write_b128 v82, v[{O}:{O+3}]
    ds_write_b128 v83, v[{O+4}:{O+7}]
    ds_read_b128 v[{U}:{U+3}], v84
    ds_read_b128 v[{U+4}:{U+7}], v84 offset:1024
    s_add_u32 s73, s60, {8*4096}
    s_waitcnt lgkmcnt(0)
    buffer_store_dwordx4 v[{U}:{U+3}], v85, s[{sWS}:{sWS+3}], s60 offen sc1
    buffer_store_dwordx4 v[{U+4}:{U+7}], v85, s[{sWS}:{sWS+3}], s73 offen sc1
    s_add_u32 s60, s60, {64*4096}
    s_add_u32 s72, s72, 1
    s_cmp_lt_u32 s72, 7
    s_cbranch_scc1 SPK_loop
    """)
SLK = 73728
SLV = 16384
SLO = 135168

def spare(g, flags=True, stamps=False):
    sWC = 32
    s_j = 37
    vl = 1
    LC = 0
    sK, sV, sSH = 20, 24, 28
    srd_load(g, sX, 'q'); srd_load(g, sWG, 'wg'); srd_load(g, sWU, 'wu'); srd_load(g, sWS, 'ws')
    srd_load(g, sK, 'k'); srd_load(g, sV, 'v'); srd_load(g, sSH, 'shk')
    g(f"""
    v_and_b32 v{vl}, 63, v0
    v_lshrrev_b32 v2, 6, v0
    s_sub_u32 s{s_j}, s2, 224
    v_readfirstlane_b32 s{s_w}, v2
    v_and_b32 v3, 15, v{vl}              ; n / p
    v_lshrrev_b32 v4, 4, v{vl}           ; q / rgl
    s_lshl_b32 s{s_t0}, s{s_w}, 4
    v_add_u32 v5, s{s_t0}, v3            ; 16w + n
    v_mul_u32_u24 v5, 896, v5
    v_lshl_add_u32 v5, v4, 4, v5         ; R voffset
    s_and_b32 s{s_t0}, s{s_j}, 7              ; xcd
    s_lshr_b32 s{s_t1}, s{s_j}, 3             ; q
    s_lshr_b32 s{s_t2}, s{s_t0}, 1            ; xcd>>1
    s_and_b32 s{s_t0}, s{s_t0}, 1             ; p
    s_lshl_b32 s52, s{s_t2}, 3
    s_lshl_b32 s53, s{s_t0}, 2
    s_add_u32 s52, s52, s53
    s_add_u32 s52, s52, s{s_t1}               ; s52 = rb = 8*(x>>1) + 4p + q
    s_lshl_b32 s53, s{s_t2}, 2
    s_add_u32 s53, s53, s{s_t1}               ; s53 = i = 4*(x>>1) + q
    s_mul_i32 s54, s{s_t0}, 7                 ; 7p
    s_mul_i32 s{s_xoff}, s52, {64*896}
    s_lshl_b32 s{s_t0}, s{s_w}, 2
    v_add_u32 v6, s{s_t0}, v4
    v_mul_u32_u24 v6, 3584, v6
    v_lshl_add_u32 v6, v3, 4, v6         ; C voffset
    s_cmp_ge_u32 s53, 7
    s_cselect_b32 s{s_t1}, 7, 0
    s_sub_u32 s{s_fi}, s53, s{s_t1}
    s_add_u32 s{s_fi}, s{s_fi}, s54      ; fb
    s_lshl_b32 s{s_woff}, s{s_fi}, 8
    s_waitcnt lgkmcnt(0)
    """)
    load_tag(g)
    g(f"""s_cmp_ge_u32 s53, 7
    s_cselect_b32 s{sWC}, s{sWU}, s{sWG}
    s_cselect_b32 s{sWC+1}, s{sWU+1}, s{sWG+1}""")
    srd_fix(g, sX, S*D*2); srd_fix(g, sWC, D*F*2); srd_fix(g, sWS, WS_END)
    srd_fix(g, sK, S*D*2); srd_fix(g, sV, S*D*2); srd_fix(g, sSH, D*8)
    stamp(g, 0, stamps)
    RB = 16
    CB = 72
    CA = 200
    LR = 16384
    g(f"v_lshlrev_b32 v7, 4, v{vl}")
    g(f"s_cmp_ge_u32 s53, 14\ns_cbranch_scc1 SP_noC1")
    g(f"s_mov_b32 s{s_t3}, s{s_woff}")
    for i in range(28):
        g(f"buffer_load_dwordx4 v[{CB+4*i}:{CB+4*i+3}], v6, s[{sWC}:{sWC+3}], s{s_t3} offen")
        if i < 27: g(f"s_add_u32 s{s_t3}, s{s_t3}, {16*3584}")
    g.lab("SP_noC1")
    g(f"s_mul_i32 s{s_t0}, s{s_w}, 14336\ns_add_u32 m0, s{s_t0}, {LR}\ns_add_u32 s{s_t1}, s{s_xoff}, s{s_t0}")
    for i in range(14):
        if i and i % 4 == 0: g(f"s_add_u32 m0, m0, 4096\ns_add_u32 s{s_t1}, s{s_t1}, 4096")
        g(f"buffer_load_dwordx4 v7, s[{sX}:{sX+3}], s{s_t1} offen offset:{1024*(i%4)} lds")
    def dma14(sr, ldsbase):
        g(f"s_mul_i32 s{s_t0}, s{s_w}, 14336\ns_add_u32 m0, s{s_t0}, {ldsbase}\ns_add_u32 s{s_t1}, s{s_xoff}, s{s_t0}")
        for i in range(14):
            if i and i % 4 == 0: g(f"s_add_u32 m0, m0, 4096\ns_add_u32 s{s_t1}, s{s_t1}, 4096")
            g(f"buffer_load_dwordx4 v7, s[{sK if sr == 'k' else sV}:{(sK if sr == 'k' else sV)+3}], s{s_t1} offen offset:{1024*(i%4)} lds")
    if SPK:
        dma14('k', SLK + 2688)
        g(f"""s_cmp_lg_u32 s{s_w}, 3
    s_cbranch_scc1 SP_halo_done
    s_cmp_eq_u32 s52, 0
    s_cbranch_scc1 SP_halo_zero
    s_sub_u32 s{s_t1}, s{s_xoff}, 2688
    s_mov_b32 m0, {SLK}
    s_nop 0
    buffer_load_dwordx4 v7, s[{sK}:{sK+3}], s{s_t1} offen lds
    buffer_load_dwordx4 v7, s[{sK}:{sK+3}], s{s_t1} offen offset:1024 lds
    s_mov_b32 exec_hi, 0xff
    buffer_load_dwordx4 v7, s[{sK}:{sK+3}], s{s_t1} offen offset:2048 lds
    s_mov_b32 exec_hi, -1
    s_branch SP_halo_done
    SP_halo_zero:
    v_mov_b32 v12, 0
    v_mov_b32 v13, 0
    v_mov_b32 v14, 0
    v_mov_b32 v15, 0
    v_add_u32 v2, {SLK}, v7
    ds_write_b128 v2, v[12:15]
    ds_write_b128 v2, v[12:15] offset:1024
    s_mov_b32 exec_hi, 0xff
    ds_write_b128 v2, v[12:15] offset:2048
    s_mov_b32 exec_hi, -1
    SP_halo_done:
        """)
    stamp(g, 1, stamps)
    g(f"s_cmp_ge_u32 s53, 14\ns_cbranch_scc1 SP_noC1b")
    g(f"s_mov_b32 s90, 0x00003f80\ns_mov_b32 s91, 0x3f800000")
    for c in range(8): g(f"v_mov_b32 v{CA+c}, 0")
    g(f"s_waitcnt vmcnt({35 if SPK else 21})\ns_mov_b32 s{s_t0}, 0")
    g.lab("SP_Cloop")
    g(f"s_set_gpr_idx_on s{s_t0}, gpr_idx(SRC0)")
    for i in range(7):
        for q in range(4):
            g(f"v_dot2_f32_bf16 v{CA+2*q}, v{CB+4*i+q}, s90, v{CA+2*q}")
            g(f"v_dot2_f32_bf16 v{CA+2*q+1}, v{CB+4*i+q}, s91, v{CA+2*q+1}")
    g(f"""s_set_gpr_idx_off
    s_add_u32 s{s_t0}, s{s_t0}, 28
    s_waitcnt vmcnt({28 if SPK else 14})
    s_cmp_lt_u32 s{s_t0}, 112
    s_cbranch_scc1 SP_Cloop""")
    g(f"""
    s_lshl_b32 s{s_t0}, s{s_w}, 2
    v_add_u32 v13, s{s_t0}, v4            ; rg
    v_lshlrev_b32 v13, 9, v13
    v_lshl_add_u32 v13, v3, 5, v13
    s_nop 2
    ds_write_b128 v13, v[{CA}:{CA+3}]
    ds_write_b128 v13, v[{CA+4}:{CA+7}] offset:16
    SP_noC1b:
    """)
    g(f"""
    s_mul_i32 s{s_t0}, s{s_w}, 14336
    s_add_u32 s{s_t0}, s{s_t0}, {LR}
    v_mul_u32_u24 v5, 896, v3
    v_lshl_add_u32 v5, v4, 4, v5
    v_add_u32 v5, s{s_t0}, v5
    s_waitcnt vmcnt({14 if SPK else 0})
    """)
    for ks in range(14): g(f"ds_read_b128 v[{RB+4*ks}:{RB+4*ks+3}], v5 offset:{64*ks}")
    g("v_mov_b32 v8, 0x3f803f80\nv_mov_b32 v9, 0x3f803f80\nv_mov_b32 v10, 0x3f803f80\nv_mov_b32 v11, 0x3f803f80\ns_waitcnt lgkmcnt(0)\ns_barrier")
    D1, D2 = 184, 188
    for ks in range(14):
        A = f"v[{RB+4*ks}:{RB+4*ks+3}]"
        c1 = "0" if ks == 0 else f"v[{D1}:{D1+3}]"
        c2 = "0" if ks == 0 else f"v[{D2}:{D2+3}]"
        g(f"v_mfma_f32_16x16x32_bf16 v[{D1}:{D1+3}], {A}, v[8:11], {c1}")
        g(f"v_mfma_f32_16x16x32_bf16 v[{D2}:{D2+3}], {A}, {A}, {c2}")
    g(f"""
    v_and_b32 v12, 3, v{vl}
    v_cmp_eq_u32 s[90:91], 1, v12
    v_cmp_eq_u32 s[92:93], 2, v12
    v_cmp_eq_u32 s[94:95], 3, v12
    v_lshrrev_b32 v13, 2, v3              ; n>>2
    v_cmp_eq_u32 s[96:97], v13, v4        ; q == n>>2
    s_nop 7
    v_cndmask_b32 v{D1}, v{D1}, v{D1+1}, s[90:91]
    v_cndmask_b32 v{D2}, v{D2}, v{D2+1}, s[90:91]
    v_cndmask_b32 v{D1}, v{D1}, v{D1+2}, s[92:93]
    v_cndmask_b32 v{D2}, v{D2}, v{D2+2}, s[92:93]
    v_cndmask_b32 v{D1}, v{D1}, v{D1+3}, s[94:95]
    v_cndmask_b32 v{D2}, v{D2}, v{D2+3}, s[94:95]
    v_mul_f32 v{D1}, {fh(1.0/448)}, v{D1}            ; mean
    v_mul_f32 v{D2}, {fh(1.0/448)}, v{D2}            ; E[x^2]
    v_fma_f32 v{D2}, -v{D1}, v{D1}, v{D2}            ; var
    v_max_f32 v{D2}, 0, v{D2}
    """)
    rnd_bf16(g, D1); rnd_bf16(g, D2)
    g(f"v_add_f32 v{D2}, {fh(1e-5)}, v{D2}"); rnd_bf16(g, D2)
    g(f"v_sqrt_f32 v{D2}, v{D2}\ns_nop 0"); rnd_bf16(g, D2)
    g(f"""
    v_mov_b32 v{D1+1}, v{D2}
    s_lshl_b32 s{s_t0}, s52, 9
    s_lshl_b32 s{s_t1}, s{s_w}, 7
    s_add_u32 s{s_t0}, s{s_t0}, s{s_t1}
    s_add_u32 s{s_t0}, s{s_t0}, {WS_STATS}
    v_lshlrev_b32 v13, 3, v3
    s_mov_b64 exec, s[96:97]
    buffer_store_dwordx2 v[{D1}:{D1+1}], v13, s[{sWS}:{sWS+3}], s{s_t0} offen sc1
    s_mov_b64 exec, -1
    """)
    stamp(g, 2, stamps)
    g(f"""s_cmp_ge_u32 s53, 14
    s_cbranch_scc1 SP_noC2
    s_cmp_ge_u32 s{s_w}, 2
    s_cbranch_scc1 SP_noC2
    v_lshlrev_b32 v13, 2, v0
    v_mov_b32 v14, v13
    """)
    for r in range(16): g(f"ds_read_b32 v{CB+r}, v14 offset:{512*r}")
    g("s_waitcnt lgkmcnt(0)")
    for r in range(8): g(f"v_add_f32 v{CB+r}, v{CB+r}, v{CB+r+8}")
    for r in range(4): g(f"v_add_f32 v{CB+r}, v{CB+r}, v{CB+r+4}")
    g(f"v_add_f32 v{CB}, v{CB}, v{CB+2}\nv_add_f32 v{CB+1}, v{CB+1}, v{CB+3}\nv_add_f32 v{CB}, v{CB}, v{CB+1}")
    g(f"""
    s_cmp_ge_u32 s53, 7
    s_cselect_b32 s{s_t0}, 7168, 0
    s_lshl_b32 s{s_t1}, s{s_fi}, 9
    s_add_u32 s{s_t0}, s{s_t0}, s{s_t1}
    s_add_u32 s{s_t0}, s{s_t0}, {WS_CS}
    buffer_store_dword v{CB}, v13, s[{sWS}:{sWS+3}], s{s_t0} offen sc1
    SP_noC2:
    """)
    stamp(g, 3, stamps)
    g("s_waitcnt vmcnt(0) lgkmcnt(0)")
    make_tag(g)
    g("s_barrier")
    if flags:
        g(f"s_lshl_b32 s{s_t0}, s{s_j}, 6\ns_add_u32 s{s_t0}, s{s_t0}, {WS_FA}")
        flag_store(g, s_t0, "SP_nf1")
    stamp(g, 4, stamps)
    if SPK:
        dma14('v', SLV)
        spare_k(g, sK, sV, sSH)
        g("s_waitcnt vmcnt(0)\ns_barrier")
        g(f"s_lshl_b32 s{s_t0}, s{s_j}, 6\ns_add_u32 s{s_t0}, s{s_t0}, {WS_FK}")
        flag_store(g, s_t0, "SP_nf2")
        stamp(g, 5, stamps)


def lines(txt):
    out = []
    for l in txt.strip().split("\n"):
        l = l.split(";")[0].strip()
        if l: out.append(l)
    return out
def emit_mixed(g, L, tag):
    for x in L: g.emit(x, tag)
def T(L, tag=None):
    L = lines(L) if isinstance(L, str) else list(L)
    out = []; cur = None
    for x in L:
        if "\n" in x:
            out.append((x, tag))
        elif x.startswith("s_mov_b64 exec,") and not x.endswith("-1"):
            cur = [x]
        elif cur is not None:
            cur.append(x)
            if x == "s_mov_b64 exec, -1":
                out.append(("\n".join(cur), tag)); cur = None
        else:
            out.append((x, tag))
    assert cur is None
    return out

LX = 0; LW = 49152
LKT = 147968; LVT = LKT + 4352; LKO = LKT + 8448
LST = 18432
RING = 20480
LCV = 114688; CVCOPY = 4160; CVCH = 4*CVCOPY
LU = 152576; CVUS = 5120
E1B = 81920; E2B = 16384

sKK, sVV, sSH = 20, 24, 28
sWD2, sSK2, sOUT2 = 56, 60, 8
s_kv, s_kk, s_kt, s_ko = 32, 33, 34, 35
s_hi, s_ct = 52, 53
s_zoff = 54
s_pb = 55
s_t4 = 3

v_lane = 1
v_xd = 2
v_wd = 6
v_xa = 10
v_wa = 14
v_l16 = 18
v_fr = 20
v_poll = 126
v_hv = 70
v_tch = 71
v_acc = 128
def accg(ft, nt): return v_acc + (ft*2+nt)*16
def accu(ft, nt): return v_acc + 64 + (ft*2+nt)*16
kB1, kB2, kvA, kvV, kvOW, kvOR, kvG, kvD0, kvD1 = 72, 76, 80, 81, 82, 83, 84, 85, 86
kA, kV, kD, kU, kO = 88, 104, 108, 116, 124

def poll_check(g, name, issued_tag):
    vt = v_poll
    if issued_tag is not None:
        g.vwait(issued_tag)
        g(f"v_cmp_ne_u32 vcc, s{s_tag}, v{vt+1}\ns_cbranch_vccz {name}_done")
    g(f"""
    s_mov_b32 s{s_spin}, 0x8000
    {name}_loop:
    buffer_load_dword v{vt+1}, v{vt}, s[{sWS}:{sWS+3}], s{s_pb} offen sc1
    s_waitcnt vmcnt(0)
    v_cmp_ne_u32 vcc, s{s_tag}, v{vt+1}
    s_cbranch_vccz {name}_done
    s_sleep 1
    s_sub_u32 s{s_spin}, s{s_spin}, 1
    s_cmp_lg_u32 s{s_spin}, 0
    s_cbranch_scc1 {name}_loop
    {name}_done:
    """)
def poll_issue(tag): return [(f"buffer_load_dword v{v_poll+1}, v{v_poll}, s[{sWS}:{sWS+3}], s{s_pb} offen sc1", tag)]
def wave_flag(g, off_sgpr):
    g(f"""v_mov_b32 v{v_hv}, 0
    v_mov_b32 v{v_tch}, s{s_tag}
    s_mov_b64 exec, 1""")
    g.vm(f"buffer_store_dword v{v_tch}, v{v_hv}, s[{sWS}:{sWS+3}], s{off_sgpr} offen sc1", "flag")
    g("s_mov_b64 exec, -1")

def g1_prologue(g):
    srd_load(g, sX, 'q'); srd_load(g, sWG, 'wg'); srd_load(g, sWU, 'wu')
    srd_load(g, sKK, 'k'); srd_load(g, sVV, 'v'); srd_load(g, sSH, 'shk'); srd_load(g, sWS, 'ws')
    srd_load(g, sWD2, 'wd'); srd_load(g, sSK2, 'ssmk'); srd_load(g, 64, 'out'); srd_load(g, 96, 'ssmD')
    g(f"""
    v_and_b32 v{v_lane}, 63, v0
    v_lshrrev_b32 v20, 6, v0
    s_lshr_b32 s{s_t0}, s2, 3
    s_and_b32 s{s_t1}, s2, 7
    v_readfirstlane_b32 s{s_w}, v20
    s_mul_i32 s{s_t2}, s{s_t0}, 37
    s_lshr_b32 s{s_t2}, s{s_t2}, 8
    s_mul_i32 s{s_t3}, s{s_t2}, 7
    s_sub_u32 s{s_ct}, s{s_t0}, s{s_t3}
    s_lshr_b32 s{s_mi}, s{s_t1}, 1
    s_lshl_b32 s{s_mi}, s{s_mi}, 2
    s_add_u32 s{s_mi}, s{s_mi}, s{s_t2}
    s_and_b32 s{s_hi}, s{s_t1}, 1
    s_mul_i32 s{s_t1}, s{s_hi}, 7
    s_add_u32 s{s_fi}, s{s_ct}, s{s_t1}
    v_lshrrev_b32 v20, 3, v{v_lane}
    v_lshrrev_b32 v21, 4, v{v_lane}
    v_and_b32 v22, 7, v{v_lane}
    v_mul_u32_u24 v20, 896, v20
    v_xor_b32 v23, v22, v21
    v_xor_b32 v28, 4, v23
    v_lshl_add_u32 v{v_xd}, v23, 4, v20
    v_lshl_add_u32 v28, v28, 4, v20
    v_add_u32 v{v_xd+1}, {8*896-1024}, v28
    v_add_u32 v{v_xd+2}, {2*(8*896-1024)}, v{v_xd}
    v_add_u32 v{v_xd+3}, {3*(8*896-1024)}, v28
    v_and_b32 v22, 15, v{v_lane}
    v_lshlrev_b32 v23, 2, v21
    v_sub_u32 v22, v22, v23
    v_and_b32 v22, 15, v22
    v_mul_u32_u24 v23, 3584, v21
    v_lshl_add_u32 v{v_wd}, v22, 4, v23
    v_add_u32 v{v_wd+1}, {4*3584-1024}, v{v_wd}
    v_add_u32 v{v_wd+2}, {2*(4*3584-1024)}, v{v_wd}
    v_add_u32 v{v_wd+3}, {3*(4*3584-1024)}, v{v_wd}
    s_lshl_b32 s{s_t0}, s{s_mi}, 7
    s_lshl_b32 s{s_t1}, s{s_w}, 5
    s_add_u32 s{s_t0}, s{s_t0}, s{s_t1}
    s_mul_i32 s{s_xoff}, s{s_t0}, 896
    s_mul_i32 s{s_woff}, s{s_w}, {16*3584}
    s_lshl_b32 s{s_t0}, s{s_fi}, 8
    s_add_u32 s{s_woff}, s{s_woff}, s{s_t0}
    s_lshl_b32 s{s_m0x}, s{s_w}, 12
    s_add_u32 s{s_m0w}, s{s_m0x}, {LW}
    s_and_b32 s{s_mf}, s{s_w}, 1
    s_lshr_b32 s{s_ns}, s{s_w}, 1
    s_lshl_b32 s{s_t4}, s{s_w}, 11
    v_lshlrev_b32 v{v_l16}, 4, v{v_lane}
    s_waitcnt lgkmcnt(0)
    """)
    srd_fix(g, sX, S*D*2); srd_fix(g, sWG, D*F*2); srd_fix(g, sWU, D*F*2)

def g1_dma_x(c):
    sl = c % 3
    L = [f"s_add_u32 m0, s{s_m0x}, {LX + sl*16384}", f"s_add_u32 s{s_t3}, s{s_xoff}, {128*c}"]
    for ii in range(4):
        L.append(f"buffer_load_dwordx4 v{v_xd+ii}, s[{sX}:{sX+3}], s{s_t3} offen offset:{1024*ii} lds")
    return L
def g1_dma_w(c, mat):
    sl = c % 3
    sr = sWG if mat == 0 else sWU
    L = [f"s_add_u32 m0, s{s_m0w}, {sl*32768 + mat*16384}", f"s_add_u32 s{s_t3}, s{s_woff}, {64*c*3584}"]
    for ii in range(4):
        L.append(f"buffer_load_dwordx4 v{v_wd+ii}, s[{sr}:{sr+3}], s{s_t3} offen offset:{1024*ii} lds")
    return L
def g1_groups(c): return [g1_dma_x(c), g1_dma_w(c,0), g1_dma_w(c,1)]

def kp_setup_dma():
    return lines(f"""
    v_lshrrev_b32 v104, 2, v{v_lane}
    v_and_b32 v105, 3, v{v_lane}
    v_mul_u32_u24 v104, 896, v104
    v_lshl_add_u32 v{kvD1}, v105, 4, v104
    s_lshl_b32 s{s_t0}, s{s_mi}, 7
    s_lshl_b32 s{s_t2}, s{s_fi}, 6
    s_add_u32 s{s_t1}, s{s_t0}, 61
    s_mul_i32 s{s_kt}, s{s_t1}, 896
    s_add_u32 s{s_kt}, s{s_kt}, s{s_t2}
    s_lshl_b32 s{s_t1}, s{s_w}, 4
    s_add_u32 s{s_t0}, s{s_t0}, s{s_t1}
    s_mul_i32 s{s_kv}, s{s_t0}, 896
    s_add_u32 s{s_kv}, s{s_kv}, s{s_t2}
    s_cmp_eq_u32 s{s_t0}, 0
    s_cselect_b32 s{s_t1}, 0, 2688
    s_cselect_b32 s{s_t2}, 2688, 0
    s_sub_u32 s{s_kk}, s{s_kv}, s{s_t1}
    v_subrev_u32 v{kvD0}, s{s_t2}, v{kvD1}
    """)
def kp_dma(h):
    NL = "\n"
    if h == 0:
        return [NL.join([f"s_lshr_b32 s{s_t0}, s{s_t4}, 1", f"s_add_u32 m0, s{s_t0}, {LKT}", "s_nop 0",
                         f"buffer_load_dwordx4 v{kvD0}, s[{sKK}:{sKK+3}], s{s_kk} offen lds"]),
                NL.join([f"s_lshr_b32 s{s_t0}, s{s_t4}, 1", f"s_add_u32 m0, s{s_t0}, {LVT}", "s_nop 0",
                         f"buffer_load_dwordx4 v{kvD1}, s[{sVV}:{sVV+3}], s{s_kv} offen lds"]),
                NL.join([f"s_mov_b32 m0, {LKT+4096}", "s_mov_b64 exec, 0xfff",
                         f"buffer_load_dwordx4 v{kvD1}, s[{sKK}:{sKK+3}], s{s_kt} offen lds", "s_mov_b64 exec, -1"])]
    return [NL.join([f"s_lshr_b32 s{s_t0}, s{s_t4}, 1", f"s_add_u32 m0, s{s_t0}, {LKT}", f"s_add_u32 s{s_t1}, s{s_kv}, {57344-2688}",
                     f"buffer_load_dwordx4 v{kvD1}, s[{sKK}:{sKK+3}], s{s_t1} offen lds"]),
            NL.join([f"s_lshr_b32 s{s_t0}, s{s_t4}, 1", f"s_add_u32 m0, s{s_t0}, {LVT}", f"s_add_u32 s{s_t1}, s{s_kv}, 57344",
                     f"buffer_load_dwordx4 v{kvD1}, s[{sVV}:{sVV+3}], s{s_t1} offen lds"]),
            NL.join([f"s_mov_b32 m0, {LKT+4096}", f"s_add_u32 s{s_t1}, s{s_kt}, 57344", "s_mov_b64 exec, 0xfff",
                     f"buffer_load_dwordx4 v{kvD1}, s[{sKK}:{sKK+3}], s{s_t1} offen lds", "s_mov_b64 exec, -1"])]
def kp_shk_load():
    return lines(f"""
    v_and_b32 v{kA+2}, 15, v{v_lane}
    s_lshl_b32 s{s_t0}, s{s_fi}, 5
    s_lshl_b32 s{s_t1}, s{s_mf}, 4
    s_add_u32 s{s_t0}, s{s_t0}, s{s_t1}
    s_lshl_b32 s{s_t1}, s{s_t0}, 3
    v_lshlrev_b32 v{kA+3}, 3, v{kA+2}
    buffer_load_dwordx2 v[{kA}:{kA+1}], v{kA+3}, s[{sSH}:{sSH+3}], s{s_t1} offen
    """)
def kp_setup_addr():
    n, kq, t0, t1 = 104, 105, 106, 107
    return lines(f"""
    v_and_b32 v{n}, 15, v{v_lane}
    v_lshrrev_b32 v{kq}, 4, v{v_lane}
    v_lshrrev_b32 v{t0}, 2, v{n}
    v_and_b32 v{t1}, 3, v{n}
    v_lshl_add_u32 v{t0}, v{t0}, 3, v{t1}
    v_lshrrev_b32 v{t1}, 1, v{kq}
    v_sub_u32 v{t0}, v{t0}, v{t1}
    v_add_u32 v{t0}, 1, v{t0}
    s_lshl_b32 s{s_t0}, s{s_ns}, 5
    v_add_u32 v{t0}, s{s_t0}, v{t0}
    v_lshlrev_b32 v{t0}, 6, v{t0}
    v_and_b32 v{t1}, 1, v{kq}
    v_lshl_add_u32 v{t0}, v{t1}, 4, v{t0}
    s_lshl_b32 s{s_t1}, s{s_mf}, 5
    s_add_u32 s{s_t2}, s{s_t1}, {LKT}
    v_add_u32 v{kvA}, s{s_t2}, v{t0}
    v_lshrrev_b32 v{t0}, 2, v{n}
    v_lshl_add_u32 v{t0}, v{kq}, 3, v{t0}
    v_add_u32 v{t0}, s{s_t0}, v{t0}
    v_lshlrev_b32 v{t0}, 6, v{t0}
    v_and_b32 v{t1}, 3, v{n}
    v_lshl_add_u32 v{t0}, v{t1}, 3, v{t0}
    s_add_u32 s{s_t2}, s{s_t1}, {LVT}
    v_add_u32 v{kvV}, s{s_t2}, v{t0}
    s_lshr_b32 s{s_t0}, s{s_t4}, 1
    s_add_u32 s{s_t0}, s{s_t0}, {LKO}
    v_sub_u32 v{t0}, 3, v{kq}
    v_lshlrev_b32 v{t0}, 4, v{t0}
    v_lshl_add_u32 v{t0}, v{n}, 6, v{t0}
    v_add_u32 v{kvOW}, s{s_t0}, v{t0}
    v_add_u32 v{kvOR}, s{s_t0}, v{v_l16}
    v_lshrrev_b32 v{t0}, 2, v{v_lane}
    v_lshlrev_b32 v{t0}, 12, v{t0}
    v_and_b32 v{t1}, 3, v{v_lane}
    v_lshl_add_u32 v{kvG}, v{t1}, 4, v{t0}
    s_lshl_b32 s{s_t0}, s{s_fi}, 5
    s_lshl_b32 s{s_t1}, s{s_mf}, 4
    s_add_u32 s{s_t0}, s{s_t0}, s{s_t1}
    s_lshl_b32 s{s_t0}, s{s_t0}, 12
    s_lshl_b32 s{s_t1}, s{s_mi}, 8
    s_sub_u32 s{s_t0}, s{s_t0}, s{s_t1}
    s_lshl_b32 s{s_t1}, s{s_ns}, 6
    s_sub_u32 s{s_t0}, s{s_t0}, s{s_t1}
    s_add_u32 s{s_ko}, s{s_t0}, {WS_KVT + 4032}
    """)
def kp_build_B():
    n, kq, a, b, c, d = 108, 109, 110, 111, 112, 113
    L = lines(f"""
    v_and_b32 v{n}, 15, v{v_lane}
    v_lshrrev_b32 v{kq}, 4, v{v_lane}
    v_lshrrev_b32 v{a}, 1, v{kq}
    v_lshlrev_b32 v{a}, 4, v{a}
    v_lshrrev_b32 v{b}, v{a}, v{kA}
    v_lshrrev_b32 v{c}, v{a}, v{kA+1}
    v_and_b32 v{b}, 0xffff, v{b}
    v_and_b32 v{c}, 0xffff, v{c}
    v_and_b32 v{a}, 1, v{n}
    v_lshlrev_b32 v{a}, 4, v{a}
    v_lshlrev_b32 v{b}, v{a}, v{b}
    v_lshlrev_b32 v{c}, v{a}, v{c}
    v_lshrrev_b32 v{a}, 3, v{n}
    v_and_b32 v{d}, 1, v{kq}
    v_cmp_eq_u32 vcc, v{a}, v{d}
    v_bfe_u32 v{a}, v{n}, 1, 2
    s_nop 0
    v_cndmask_b32 v{b}, 0, v{b}, vcc
    v_cndmask_b32 v{c}, 0, v{c}, vcc
    """)
    for i in range(4):
        L += [f"v_cmp_eq_u32 vcc, {i}, v{a}", "s_nop 1", f"v_cndmask_b32 v{kB1+i}, 0, v{b}, vcc", f"v_cndmask_b32 v{kB2+i}, 0, v{c}, vcc"]
    return L
def kp_reads():
    L = []
    for t in range(2):
        L.append(f"ds_read_b128 v[{kA+8*t}:{kA+8*t+3}], v{kvA} offset:{256*t+128}")
        L.append(f"ds_read_b128 v[{kA+8*t+4}:{kA+8*t+7}], v{kvA} offset:{256*t}")
        L.append(f"ds_read_b64_tr_b16 v[{kV+2*t}:{kV+2*t+1}], v{kvV} offset:{256*t}")
    return L
def kp_mfma():
    L = []
    for t in range(2): L.append(f"v_mfma_f32_16x16x32_bf16 v[{kD+4*t}:{kD+4*t+3}], v[{kA+8*t}:{kA+8*t+3}], v[{kB1}:{kB1+3}], 0")
    for t in range(2): L.append(f"v_mfma_f32_16x16x32_bf16 v[{kD+4*t}:{kD+4*t+3}], v[{kA+8*t+4}:{kA+8*t+7}], v[{kB2}:{kB2+3}], v[{kD+4*t}:{kD+4*t+3}]")
    for t in range(2):
        for h in range(2):
            L += [f"v_lshlrev_b32 v{kU+4*t+2*h}, 16, v{kV+2*t+h}", f"v_and_b32 v{kU+4*t+2*h+1}, 0xffff0000, v{kV+2*t+h}"]
    return L
def kp_finish():
    L = []
    for t in range(2):
        for h in range(2):
            L.append(f"v_pk_mul_f32 v[{kD+4*t+2*h}:{kD+4*t+2*h+1}], v[{kD+4*t+2*h}:{kD+4*t+2*h+1}], v[{kU+4*t+2*h}:{kU+4*t+2*h+1}]")
    for e in range(4):
        t = 1 - (e >> 1); r = 3 - 2*(e & 1)
        L.append(f"v_cvt_pk_bf16_f32 v{kO+e}, v{kD+4*t+r}, v{kD+4*t+r-1}")
    L.append(f"ds_write_b128 v{kvOW}, v[{kO}:{kO+3}]")
    return L
def kp_readback(): return [f"ds_read_b128 v[{kO}:{kO+3}], v{kvOR}"]
def kp_store(h):
    if h == 0: return [f"buffer_store_dwordx4 v[{kO}:{kO+3}], v{kvG}, s[{sWS}:{sWS+3}], s{s_ko} offen sc1"]
    return [f"s_sub_u32 s{s_t0}, s{s_ko}, 128", f"buffer_store_dwordx4 v[{kO}:{kO+3}], v{kvG}, s[{sWS}:{sWS+3}], s{s_t0} offen sc1"]


LKT2 = 147456; LVT2 = 155648; LKO2 = 147456
def kps_dma_setup():
    return lines(f"""
    v_lshrrev_b32 v106, 2, v{v_lane}
    v_and_b32 v107, 3, v{v_lane}
    v_mul_u32_u24 v106, 896, v106
    v_lshl_add_u32 v104, v107, 4, v106
    v_add_u32 v105, {16*896-1024}, v104
    s_lshl_b32 s{s_t0}, s{s_mi}, 7
    s_lshl_b32 s{s_t1}, s{s_w}, 5
    s_add_u32 s{s_t0}, s{s_t0}, s{s_t1}
    s_mul_i32 s34, s{s_t0}, 896
    s_lshl_b32 s{s_t2}, s{s_fi}, 6
    s_add_u32 s34, s34, s{s_t2}
    v_and_b32 v106, 15, v{v_lane}
    v_lshrrev_b32 v107, 2, v106
    v_and_b32 v106, 3, v106
    v_lshl_add_u32 v106, v107, 4, v106
    v_lshrrev_b32 v107, 5, v{v_lane}
    v_sub_u32 v106, v106, v107
    v_add_u32 v106, 1, v106
    v_mul_u32_u24 v106, 896, v106
    v_bfe_u32 v107, v{v_lane}, 4, 1
    v_lshl_add_u32 v106, v107, 4, v106
    s_lshl_b32 s{s_t0}, s{s_mi}, 7
    s_lshl_b32 s{s_t1}, s{s_ns}, 6
    s_add_u32 s{s_t0}, s{s_t0}, s{s_t1}
    s_mul_i32 s35, s{s_t0}, 896
    s_add_u32 s35, s35, s{s_t2}
    s_lshl_b32 s{s_t1}, s{s_mf}, 5
    s_add_u32 s35, s35, s{s_t1}
    s_cmp_eq_u32 s{s_t0}, 0
    s_cselect_b32 s{s_t1}, 0, 2688
    s_cselect_b32 s{s_t2}, 2688, 0
    s_sub_u32 s35, s35, s{s_t1}
    v_subrev_u32 v106, s{s_t2}, v106
    v_add_u32 v107, 1792, v106
    """)
def kps_dma_L():
    NL = "\n"
    return [NL.join([f"s_add_u32 m0, s{s_t4}, {LKT2}", "s_nop 0", f"buffer_load_dwordx4 v104, s[{sKK}:{sKK+3}], s34 offen lds"]),
            NL.join([f"s_add_u32 m0, s{s_t4}, {LKT2}", "s_nop 0", f"buffer_load_dwordx4 v105, s[{sKK}:{sKK+3}], s34 offen offset:1024 lds"]),
            NL.join([f"s_add_u32 m0, s{s_t4}, {LVT2}", "s_nop 0", f"buffer_load_dwordx4 v104, s[{sVV}:{sVV+3}], s34 offen lds"]),
            NL.join([f"s_add_u32 m0, s{s_t4}, {LVT2}", "s_nop 0", f"buffer_load_dwordx4 v105, s[{sVV}:{sVV+3}], s34 offen offset:1024 lds"])]
kT0 = 88
def kps_t0_L():
    return [f"buffer_load_dwordx4 v[{kT0}:{kT0+3}], v107, s[{sKK}:{sKK+3}], s35 offen",
            f"buffer_load_dwordx4 v[{kT0+4}:{kT0+7}], v106, s[{sKK}:{sKK+3}], s35 offen"]
def kps_setup(g, LKT2=LKT2, LVT2=LVT2, LKO2=LKO2, radd=2):
    g(f"""
    v_and_b32 v108, 15, v{v_lane}
    v_lshrrev_b32 v109, 4, v{v_lane}
    v_lshrrev_b32 v110, 2, v108
    v_and_b32 v111, 3, v108
    v_lshl_add_u32 v110, v110, 4, v111
    v_lshrrev_b32 v111, 1, v109
    v_sub_u32 v110, v110, v111
    v_add_u32 v110, {radd}, v110
    s_lshl_b32 s{s_t0}, s{s_ns}, 6
    v_add_u32 v110, s{s_t0}, v110
    v_lshlrev_b32 v110, 6, v110
    v_and_b32 v111, 1, v109
    v_lshl_add_u32 v110, v111, 4, v110
    s_lshl_b32 s{s_t1}, s{s_mf}, 5
    s_add_u32 s{s_t2}, s{s_t1}, {LKT2}
    v_add_u32 v80, s{s_t2}, v110
    v_lshrrev_b32 v110, 2, v108
    v_lshl_add_u32 v110, v109, 4, v110
    v_add_u32 v110, s{s_t0}, v110
    v_lshlrev_b32 v110, 6, v110
    v_and_b32 v111, 3, v108
    v_lshl_add_u32 v110, v111, 3, v110
    s_add_u32 s{s_t2}, s{s_t1}, {LVT2}
    v_add_u32 v81, s{s_t2}, v110
    v_lshlrev_b32 v110, 1, v109
    v_sub_u32 v110, 6, v110
    v_and_b32 v111, 7, v108
    v_xor_b32 v110, v110, v111
    v_xor_b32 v111, 1, v110
    v_lshlrev_b32 v83, 7, v108
    s_add_u32 s{s_t1}, s{s_t4}, {LKO2}
    v_add_u32 v83, s{s_t1}, v83
    v_lshl_add_u32 v82, v110, 4, v83
    v_lshl_add_u32 v83, v111, 4, v83
    v_lshrrev_b32 v110, 3, v{v_lane}
    v_and_b32 v111, 7, v{v_lane}
    v_xor_b32 v84, v111, v110
    v_lshlrev_b32 v85, 7, v110
    v_lshl_add_u32 v84, v84, 4, v85
    v_add_u32 v84, s{s_t1}, v84
    v_lshlrev_b32 v85, 12, v110
    v_lshl_add_u32 v85, v111, 4, v85
    s_lshl_b32 s{s_t0}, s{s_fi}, 5
    s_lshl_b32 s{s_t1}, s{s_mf}, 4
    s_add_u32 s{s_t0}, s{s_t0}, s{s_t1}
    s_lshl_b32 s{s_t0}, s{s_t0}, 12
    s_lshl_b32 s{s_t1}, s{s_mi}, 8
    s_lshl_b32 s{s_t2}, s{s_ns}, 7
    s_add_u32 s{s_t1}, s{s_t1}, s{s_t2}
    s_sub_u32 s{s_t0}, s{s_t0}, s{s_t1}
    s_add_u32 s94, s{s_t0}, {WS_KVT + 1984*2}
    s_add_u32 s95, s94, {8*4096}
    """)
kpA, kpV, kpU, kpO = 96, 120, 100, 116
kpD = [68, 88, 92, 96]
def kps_stage1():
    L = []
    for t in range(1, 4):
        L.append(f"ds_read_b128 v[{kpA+8*(t-1)}:{kpA+8*(t-1)+3}], v80 offset:{256*(t-1)+128}")
        L.append(f"ds_read_b128 v[{kpA+8*(t-1)+4}:{kpA+8*(t-1)+7}], v80 offset:{256*(t-1)}")
    for t in range(4):
        L.append(f"ds_read_b64_tr_b16 v[{kpV+2*t}:{kpV+2*t+1}], v81 offset:{256*t}")
    return L
def kps_stage2():
    L = []
    for t in range(4):
        a = kT0 if t == 0 else kpA+8*(t-1)
        L.append(f"v_mfma_f32_16x16x32_bf16 v[{kpD[t]}:{kpD[t]+3}], v[{a}:{a+3}], v[{kB1}:{kB1+3}], 0")
        L.append(f"v_mfma_f32_16x16x32_bf16 v[{kpD[t]}:{kpD[t]+3}], v[{a+4}:{a+7}], v[{kB2}:{kB2+3}], v[{kpD[t]}:{kpD[t]+3}]")
    return L
def kps_stage3():
    L = []
    for t in range(4):
        for h in range(2):
            L += [f"v_lshlrev_b32 v{kpU+4*t+2*h}, 16, v{kpV+2*t+h}", f"v_and_b32 v{kpU+4*t+2*h+1}, 0xffff0000, v{kpV+2*t+h}"]
    return L
def kps_stage4():
    L = []
    for t in range(4):
        for r in range(4): L.append(f"v_mul_f32 v{kpD[t]+r}, v{kpD[t]+r}, v{kpU+4*t+r}")
    for e in range(8):
        t = 3 - (e >> 1); r = 3 - 2*(e & 1)
        L.append(f"v_cvt_pk_bf16_f32 v{kpO+e}, v{kpD[t]+r}, v{kpD[t]+r-1}")
    return L
def kps_stage5():
    O = kpO
    return [(f"ds_write_b128 v82, v[{O}:{O+3}]", None), (f"ds_write_b128 v83, v[{O+4}:{O+7}]", None),
            (f"ds_read_b128 v[{O}:{O+3}], v84", None), (f"ds_read_b128 v[{O+4}:{O+7}], v84 offset:1024", "kprb")]
def kps_store_L():
    O = 116
    return [f"buffer_store_dwordx4 v[{O}:{O+3}], v85, s[{sWS}:{sWS+3}], s94 offen sc1",
            f"buffer_store_dwordx4 v[{O+4}:{O+7}], v85, s[{sWS}:{sWS+3}], s95 offen sc1"]


AKT = 114688; AVT = AKT + 9216; AKO = AVT + 8192
def kpa_dma(g):
    g(f"""
    v_lshrrev_b32 v100, 2, v{v_lane}
    v_and_b32 v101, 3, v{v_lane}
    v_mul_u32_u24 v100, 896, v100
    v_lshl_add_u32 v104, v101, 4, v100
    v_add_u32 v105, {16*896-1024}, v104
    s_lshl_b32 s{s_t0}, s{s_mi}, 7
    s_lshl_b32 s{s_t1}, s{s_w}, 5
    s_add_u32 s{s_t0}, s{s_t0}, s{s_t1}
    s_mul_i32 s34, s{s_t0}, 896
    s_lshl_b32 s{s_t2}, s{s_fi}, 6
    s_add_u32 s34, s34, s{s_t2}
    s_cmp_eq_u32 s{s_t0}, 0
    s_cselect_b32 s{s_t1}, 0, 2688
    s_cselect_b32 s{s_t2}, 2688, 0
    s_sub_u32 s35, s34, s{s_t1}
    v_subrev_u32 v106, s{s_t2}, v104
    v_subrev_u32 v107, s{s_t2}, v105
    s_add_u32 m0, s{s_t4}, {AKT}
    s_nop 0
    """)
    g.vm(f"buffer_load_dwordx4 v106, s[{sKK}:{sKK+3}], s35 offen lds", "kp")
    g.vm(f"buffer_load_dwordx4 v107, s[{sKK}:{sKK+3}], s35 offen offset:1024 lds", "kp")
    g(f"s_add_u32 m0, s{s_t4}, {AVT}\ns_nop 0")
    g.vm(f"buffer_load_dwordx4 v104, s[{sVV}:{sVV+3}], s34 offen lds", "kp")
    g.vm(f"buffer_load_dwordx4 v105, s[{sVV}:{sVV+3}], s34 offen offset:1024 lds", "kp")
    g(f"""s_lshl_b32 s{s_t0}, s{s_mi}, 7
    s_add_u32 s{s_t0}, s{s_t0}, 125
    s_mul_i32 s{s_t0}, s{s_t0}, 896
    s_lshl_b32 s{s_t1}, s{s_fi}, 6
    s_add_u32 s{s_t0}, s{s_t0}, s{s_t1}
    s_mov_b32 m0, {AKT + 8192}
    s_mov_b64 exec, 0xfff""")
    g.vm(f"buffer_load_dwordx4 v104, s[{sKK}:{sKK+3}], s{s_t0} offen lds", "kp")
    g("s_mov_b64 exec, -1")
def kpa_compute(g):
    A, V, Dd, U, O = 20, 52, 96, 112, 60
    for t in range(4):
        g(f"ds_read_b128 v[{A+8*t}:{A+8*t+3}], v80 offset:{256*t+128}")
        g(f"ds_read_b128 v[{A+8*t+4}:{A+8*t+7}], v80 offset:{256*t}")
    for t in range(4):
        g(f"ds_read_b64_tr_b16 v[{V+2*t}:{V+2*t+1}], v81 offset:{256*t}")
    for t in range(4):
        g(f"s_waitcnt lgkmcnt({10-2*t})")
        g(f"v_mfma_f32_16x16x32_bf16 v[{Dd+4*t}:{Dd+4*t+3}], v[{A+8*t}:{A+8*t+3}], v[{kB1}:{kB1+3}], 0")
        g(f"v_mfma_f32_16x16x32_bf16 v[{Dd+4*t}:{Dd+4*t+3}], v[{A+8*t+4}:{A+8*t+7}], v[{kB2}:{kB2+3}], v[{Dd+4*t}:{Dd+4*t+3}]")
    g("s_waitcnt lgkmcnt(0)")
    for t in range(4):
        for h in range(2):
            g(f"v_lshlrev_b32 v{U+4*t+2*h}, 16, v{V+2*t+h}\nv_and_b32 v{U+4*t+2*h+1}, 0xffff0000, v{V+2*t+h}")
    for t in range(4):
        for h in range(2):
            g(f"v_pk_mul_f32 v[{Dd+4*t+2*h}:{Dd+4*t+2*h+1}], v[{Dd+4*t+2*h}:{Dd+4*t+2*h+1}], v[{U+4*t+2*h}:{U+4*t+2*h+1}]")
    for e in range(8):
        t = 3 - (e >> 1); r = 3 - 2*(e & 1)
        g(f"v_cvt_pk_bf16_f32 v{O+e}, v{Dd+4*t+r}, v{Dd+4*t+r-1}")
    g(f"""ds_write_b128 v82, v[{O}:{O+3}]
    ds_write_b128 v83, v[{O+4}:{O+7}]
    ds_read_b128 v[{U}:{U+3}], v84
    ds_read_b128 v[{U+4}:{U+7}], v84 offset:1024
    s_waitcnt lgkmcnt(0)""")
    g.vm(f"buffer_store_dwordx4 v[{U}:{U+3}], v85, s[{sWS}:{sWS+3}], s94 offen sc1", "kvst")
    g.vm(f"buffer_store_dwordx4 v[{U+4}:{U+7}], v85, s[{sWS}:{sWS+3}], s95 offen sc1", "kvst")


def kpe_compute(g):
    A, V, Dd, U, O = 20, 52, 96, 2, 60
    for t in range(1, 4):
        g(f"ds_read_b128 v[{A+8*(t-1)}:{A+8*(t-1)+3}], v80 offset:{256*(t-1)+128}")
        g(f"ds_read_b128 v[{A+8*(t-1)+4}:{A+8*(t-1)+7}], v80 offset:{256*(t-1)}")
    for t in range(4):
        g(f"ds_read_b64_tr_b16 v[{V+2*t}:{V+2*t+1}], v81 offset:{256*t}")
    for t in range(4):
        a = kT0 if t == 0 else A+8*(t-1)
        if t: g(f"s_waitcnt lgkmcnt({10-2*t})")
        g(f"v_mfma_f32_16x16x32_bf16 v[{Dd+4*t}:{Dd+4*t+3}], v[{a}:{a+3}], v[{kB1}:{kB1+3}], 0")
        g(f"v_mfma_f32_16x16x32_bf16 v[{Dd+4*t}:{Dd+4*t+3}], v[{a+4}:{a+7}], v[{kB2}:{kB2+3}], v[{Dd+4*t}:{Dd+4*t+3}]")
    g("s_waitcnt lgkmcnt(0)")
    for t in range(4):
        for h in range(2):
            g(f"v_lshlrev_b32 v{U+4*t+2*h}, 16, v{V+2*t+h}\nv_and_b32 v{U+4*t+2*h+1}, 0xffff0000, v{V+2*t+h}")
    for t in range(4):
        for h in range(2):
            g(f"v_pk_mul_f32 v[{Dd+4*t+2*h}:{Dd+4*t+2*h+1}], v[{Dd+4*t+2*h}:{Dd+4*t+2*h+1}], v[{U+4*t+2*h}:{U+4*t+2*h+1}]")
    for e in range(8):
        t = 3 - (e >> 1); r = 3 - 2*(e & 1)
        g(f"v_cvt_pk_bf16_f32 v{O+e}, v{Dd+4*t+r}, v{Dd+4*t+r-1}")
    g(f"""ds_write_b128 v82, v[{O}:{O+3}]
    ds_write_b128 v83, v[{O+4}:{O+7}]
    ds_read_b128 v[{O}:{O+3}], v84
    ds_read_b128 v[{O+4}:{O+7}], v84 offset:1024
    s_waitcnt lgkmcnt(0)""")
    g.vm(f"buffer_store_dwordx4 v[{O}:{O+3}], v85, s[{sWS}:{sWS+3}], s94 offen sc1", "kvst")
    g.vm(f"buffer_store_dwordx4 v[{O+4}:{O+7}], v85, s[{sWS}:{sWS+3}], s95 offen sc1", "kvst")

def g1_addr():
    L = lines(f"""
    v_and_b32 v20, 31, v{v_lane}
    v_lshrrev_b32 v21, 5, v{v_lane}
    v_bfe_u32 v22, v{v_lane}, 1, 3
    v_xor_b32 v22, v22, v21
    s_lshl_b32 s{s_t0}, s{s_ns}, 13
    v_lshl_add_u32 v20, v20, 7, s{s_t0}
    """)
    for ks in range(4):
        L += [f"v_xor_b32 v23, {2*ks}, v22", f"v_lshl_add_u32 v{v_xa+ks}, v23, 4, v20"]
    L += lines(f"""
    v_bfe_u32 v20, v{v_lane}, 2, 2
    v_bfe_u32 v22, v{v_lane}, 4, 1
    v_bfe_u32 v23, v{v_lane}, 1, 1
    v_and_b32 v24, 1, v{v_lane}
    v_lshl_add_u32 v22, v22, 1, v23
    v_lshlrev_b32 v25, 11, v21
    v_lshl_add_u32 v25, v20, 8, v25
    v_lshl_add_u32 v25, v24, 3, v25
    v_lshl_add_u32 v25, v22, 4, v25
    v_add_u32 v25, {LW}, v25
    s_lshl_b32 s{s_t0}, s{s_mf}, 1
    """)
    for ft in range(2):
        L += lines(f"""
        v_add_u32 v26, s{s_t0}, v20
        v_add_u32 v26, {ft}, v26
        v_and_b32 v26, 3, v26
        v_lshl_add_u32 v{v_wa+ft}, v26, 6, v25
        v_add_u32 v{v_wa+2+ft}, 65536, v{v_wa+ft}
        """)
    return L

def g1_frag_reads(kstep):
    c, ks = divmod(kstep, 4)
    sl = c % 3
    b = v_fr + (kstep & 1)*24
    L = []
    for nt in range(2):
        L.append(f"ds_read_b128 v[{b+4*nt}:{b+4*nt+3}], v{v_xa+ks} offset:{sl*16384 + nt*4096}")
    for mat in range(2):
        for ft in range(2):
            r = b + 8 + mat*8 + ft*4
            base = v_wa + ft + (2 if sl == 2 else 0)
            off = (sl*32768 if sl < 2 else 0) + mat*16384 + ks*4096
            L.append(f"ds_read_b64_tr_b16 v[{r}:{r+1}], v{base} offset:{off}")
            L.append(f"ds_read_b64_tr_b16 v[{r+2}:{r+3}], v{base} offset:{off+1024}")
    return L

def g1_mfmas(kstep):
    b = v_fr + (kstep & 1)*24
    L = []
    for ft in range(2):
        for nt in range(2):
            for mat in range(2):
                acc = accg(ft, nt) if mat == 0 else accu(ft, nt)
                A = b + 8 + mat*8 + ft*4
                B = b + 4*nt
                cin = "0" if kstep == 0 else f"v[{acc}:{acc+15}]"
                if os.environ.get("MF16"):
                    c1 = "0" if kstep == 0 else f"v[{acc}:{acc+3}]"; c2 = "0" if kstep == 0 else f"v[{acc+4}:{acc+7}]"
                    L.append(f"v_mfma_f32_16x16x32_bf16 v[{acc}:{acc+3}], v[{A}:{A+3}], v[{B}:{B+3}], {c1}\nv_mfma_f32_16x16x32_bf16 v[{acc+4}:{acc+7}], v[{B}:{B+3}], v[{A}:{A+3}], {c2}")
                else:
                    L.append(f"v_mfma_f32_32x32x16_bf16 v[{acc}:{acc+15}], v[{A}:{A+3}], v[{B}:{B+3}], {cin}")
    return L

def spread(per, items, lo, hi):
    n = len(items)
    for i, x in enumerate(items):
        per[min(hi, lo + (i*(hi-lo+1))//n)].append(x)

KPA = os.environ.get("KPA", "0") == "1"
KPE = os.environ.get("KPE", "0") == "1"
MVG1 = os.environ.get("MVG1", "0") == "1"
KSTAMP = None
EST = os.environ.get('EST') == '1'
CST = os.environ.get('CST') == '1'
GSTAMP = None
def g1_chunk_stream(c):
    out = []
    for grp in g1_groups(c):
        for i in range(4):
            out.append((grp[:2] if i == 0 else [], grp[2+i], grp[0]))
    return out
def g1_main(g, pre, post, stamps=None):
    g.ldops = []
    for s_ in g1_frag_reads(0): g.ld(s_, "fr0")
    sched = {k: [] for k in range(28)}
    st2 = g1_chunk_stream(2)
    for i, x in enumerate(st2): sched[i // 4].append((x, "c2"))
    for c in range(0, 4):
        stc = g1_chunk_stream(c+3)
        for i, x in enumerate(stc): sched[4*c + 3 + i // 3].append((x, f"c{c+3}"))
    cur_m0 = [None]
    for k in range(28):
        c, ks = divmod(k, 4)
        g.lwait(f"fr{k}")
        if KSTAMP is not None and KSTAMP <= k < KSTAMP + 14: stamp(g, k - KSTAMP + 1)
        if ks == 3 and c < 6:
            g.vwait(f"c{c+1}")
            for tg in pre(k): g.vwait(tg)
            g("s_barrier")
            if stamps and c in stamps: stamp(g, stamps[c])
        per = [[] for _ in range(8)]
        if k+1 < 28: spread(per, T(g1_frag_reads(k+1), f"fr{k+1}"), 0, 4)
        items = sched[k]
        early, late, vx = post(k)
        dm = [[] for _ in range(8)]
        if len(items) == 4: sg, xg = [1, 3, 5, 7], [2, 6]
        elif len(items) == 3: sg, xg = ([1, 5, 7], [3, 6]) if vx else ([1, 4, 7], [])
        else: sg, xg = [], [1, 3, 5, 7, 2, 6, 4, 0]
        for it_, gp in zip(items, sg): dm[gp].append(it_)
        assert len(vx) <= len(xg), (k, len(vx))
        xs = sorted(xg[:len(vx)])
        if early: spread(per, early, 0, 7)
        for grp_, gp in zip(vx, xs): per[gp] += grp_
        if late: spread(per, late, 4, 7)
        m = g1_mfmas(k)
        for i in range(8):
            if GSTAMP is not None and k == GSTAMP: stamp(g, i + 1)
            if GSTAMP is not None and k == GSTAMP + 1 and i < 5: stamp(g, i + 9)
            g(m[i])
            for s_, tag in per[i]:
                if s_ == "CALL": tag()
                else:
                    g.emit(s_, tag)
                    if "m0" in s_ and not s_.startswith("buffer_") : m0_dirty[0] = True
                    if "m0," in s_: m0_dirty[0] = True
            for (salu, load, m0i), tag in dm[i]:
                if salu:
                    for x in salu: g(x)
                    m0_dirty[0] = False
                elif m0_dirty[0]:
                    g(m0i); g("s_nop 0"); m0_dirty[0] = False
                g.vm(load, tag)
m0_dirty = [False]
TCHK = eval(os.environ.get('TCHK', '(12,13,14,17,18,19,19,19,21,21,22,23,23,23)'))
KPK = int(os.environ.get('KPK', '11'))

v_cs = 72
v_rc = 100
v_t = 108
v_csa = v_t + 1
def epi_pre_reads():
    return lines(f"""
    v_and_b32 v{v_t}, 31, v{v_lane}
    s_lshl_b32 s{s_t1}, s{s_ns}, 9
    s_add_u32 s{s_t1}, s{s_t1}, {LST}
    v_lshl_add_u32 v{v_t}, v{v_t}, 3, s{s_t1}
    v_lshrrev_b32 v{v_csa}, 5, v{v_lane}
    s_lshl_b32 s{s_t1}, s{s_mf}, 8
    s_add_u32 s{s_t1}, s{s_t1}, {LST+1024}
    v_lshl_add_u32 v{v_csa}, v{v_csa}, 4, s{s_t1}
    ds_read_b64 v[{v_t+2}:{v_t+3}], v{v_t}
    ds_read_b64 v[{v_t+4}:{v_t+5}], v{v_t} offset:256
    """) + epi_cs_reads()
def epi_cs_reads():
    return [f"ds_read_b128 v[{v_cs}:{v_cs+3}], v{v_csa}", f"ds_read_b128 v[{v_cs+4}:{v_cs+7}], v{v_csa} offset:32",
            f"ds_read_b128 v[{v_cs+8}:{v_cs+11}], v{v_csa} offset:512", f"ds_read_b128 v[{v_cs+12}:{v_cs+15}], v{v_csa} offset:544",
            f"v_add_u32 v{v_csa}, 64, v{v_csa}"]
def epi_hoff():
    return lines(f"""
    s_lshl_b32 s{s_t0}, s{s_mi}, 2
    s_lshl_b32 s{s_t1}, s{s_ns}, 1
    s_add_u32 s{s_t0}, s{s_t0}, s{s_t1}
    s_mul_i32 s{s_t0}, s{s_t0}, 112
    s_lshl_b32 s{s_t1}, s{s_fi}, 3
    s_add_u32 s{s_t0}, s{s_t0}, s{s_t1}
    s_lshl_b32 s{s_t1}, s{s_mf}, 2
    s_add_u32 s{s_t0}, s{s_t0}, s{s_t1}
    s_lshl_b32 s{s_hoff}, s{s_t0}, 10
    s_add_u32 s{s_hoff}, s{s_hoff}, {WS_H}
    """)
HST = os.environ.get('HST', 'sc1')
vW0, vW1, vW2, vW3 = 120, 121, 122, 123
def g1_epilogue(g, aux):
    for nt in range(2):
        m, sd = v_t+2+2*nt, v_t+3+2*nt
        rc = v_rc + 4*nt
        g(f"""
        v_rcp_f32 v{v_t+6}, v{sd}
        v_sub_f32 v{rc}, 0, v{m}
        v_mul_f32 v{rc+1}, v{sd}, v{sd}
        v_mul_f32 v{rc+2}, {fh(C1)}, v{v_t+6}
        v_mul_f32 v{v_t+7}, v{v_t+6}, v{v_t+6}
        v_mul_f32 v{v_t+7}, v{v_t+7}, v{v_t+6}
        v_mul_f32 v{rc+3}, {fh(C2)}, v{v_t+7}
        """)
    P = 88
    Z = 20
    def pr(x): return f"v[{x}:{x+1}]"
    for it in range(4):
        ft, hq = it >> 1, it & 1
        if EST: stamp(g, 2 + it)
        main = []
        main.append(("LWAIT", "cs"))
        for nt in range(2):
            rc = v_rc + 4*nt; nm = f"v[{rc}:{rc+1}]"
            for pp in range(4):
                r = 8*hq + 2*pp
                tg = accg(ft, nt) + r; tu = accu(ft, nt) + r
                main.append((f"v_pk_fma_f32 {pr(tg)}, {pr(v_cs+2*pp)}, {nm}, {pr(tg)} op_sel_hi:[1,0,1]", None))
                main.append((f"v_pk_fma_f32 {pr(tu)}, {pr(v_cs+8+2*pp)}, {nm}, {pr(tu)} op_sel_hi:[1,0,1]", None))
        if it < 3: main += T(epi_cs_reads(), "cs")
        for nt in range(2):
            rc = v_rc + 4*nt; nm = f"v[{rc}:{rc+1}]"; cc = f"v[{rc+2}:{rc+3}]"
            steps = [
              lambda tg,tu,z: [f"v_pk_mul_f32 {pr(z)}, {pr(tg)}, {pr(tg)}"],
              lambda tg,tu,z: [f"v_pk_fma_f32 {pr(z)}, {pr(z)}, {cc}, {cc} op_sel:[0,1,0] op_sel_hi:[1,1,0]"],
              lambda tg,tu,z: [f"v_pk_mul_f32 {pr(z)}, {pr(z)}, {pr(tg)}"],
              lambda tg,tu,z: [f"v_exp_f32 v{z}, v{z}", f"v_exp_f32 v{z+1}, v{z+1}"],
              lambda tg,tu,z: [f"v_pk_mul_f32 {pr(tu)}, {pr(tu)}, {pr(tg)}"],
              lambda tg,tu,z: [f"v_pk_fma_f32 {pr(z)}, {pr(z)}, {nm}, {nm} op_sel:[0,1,1] op_sel_hi:[1,1,1]"],
              lambda tg,tu,z: [f"v_rcp_f32 v{z}, v{z}", f"v_rcp_f32 v{z+1}, v{z+1}"],
              lambda tg,tu,z: [f"v_pk_mul_f32 {pr(tu)}, {pr(tu)}, {pr(z)}"],
            ]
            for st in steps:
                for pp in range(4):
                    r = 8*hq + 2*pp
                    main += T(st(accg(ft, nt) + r, accu(ft, nt) + r, Z + 8*nt + 2*pp))
            for pp in range(4):
                r = 8*hq + 2*pp
                main.append((f"v_cvt_pk_bf16_f32 v{P+4*nt+pp}, v{accu(ft, nt)+r}, v{accu(ft, nt)+r+1}", None))
            off = (nt*112 + 2*ft + hq) * 1024
            main.append((f"s_add_u32 s{s_t2}, s{s_hoff}, {off}\nbuffer_store_dwordx4 v[{P+4*nt}:{P+4*nt+3}], v{v_l16}, s[{sWS}:{sWS+3}], s{s_t2} offen {HST}", "hst"))
        a = aux[it]
        if os.environ.get("XAUX") == "front":
            for x2, t2 in a:
                if x2 == "CALL": t2()
                else: g.emit(x2, t2)
            a = []
            if EST: stamp(g, 6 + it)
        n, k = len(main), 0
        for i, (x, tg_) in enumerate(main):
            g.emit(x, tg_)
            while k < len(a) and k < ((i+1)*len(a))//n:
                x2, t2 = a[k]
                if x2 == "CALL": t2()
                else: g.emit(x2, t2)
                k += 1

def g1_epilogue_loop(g, blocks):
    for nt in range(2):
        m, sd = v_t+2+2*nt, v_t+3+2*nt
        rc = v_rc + 4*nt
        g(f"""
        v_rcp_f32 v{v_t+6}, v{sd}
        v_sub_f32 v{rc}, 0, v{m}
        v_mul_f32 v{rc+1}, v{sd}, v{sd}
        v_mul_f32 v{rc+2}, {fh(C1)}, v{v_t+6}
        v_mul_f32 v{v_t+7}, v{v_t+6}, v{v_t+6}
        v_mul_f32 v{v_t+7}, v{v_t+7}, v{v_t+6}
        v_mul_f32 v{rc+3}, {fh(C2)}, v{v_t+7}
        """)
    TG = 20
    P = 88
    g(f"s_mov_b32 s{s_t0}, 0\ns_mov_b32 s{s_t1}, s{s_hoff}\ns_mov_b32 s96, s{s_m0x}")
    def wd_dyn():
        if os.environ.get("XNOWD"): return
        g(f"s_mov_b32 m0, s96\ns_add_u32 s96, s96, 2048")
        for x in ptr_next(28, 29, s_woff, 14336): g(x)
        g(f"buffer_load_dwordx4 v{vW0}, s[{sWD2}:{sWD2+3}], s{s_t3} offen lds")
        g(f"buffer_load_dwordx4 v{vW1}, s[{sWD2}:{sWD2+3}], s{s_t3} offen offset:1024 lds")
    wd_dyn()
    g.lab("E1_loop")
    g(f"s_set_gpr_idx_on s{s_t0}, gpr_idx(SRC2)")
    for nt in range(2):
        rc = v_rc + 4*nt; nm = f"v[{rc}:{rc+1}]"
        b = TG + 24*nt
        for pp in range(4):
            r = 2*pp
            g(f"v_pk_fma_f32 v[{b+r}:{b+r+1}], v[{v_cs+r}:{v_cs+r+1}], {nm}, v[{accg(0,nt)+r}:{accg(0,nt)+r+1}] op_sel_hi:[1,0,1]")
            g(f"v_pk_fma_f32 v[{b+8+r}:{b+8+r+1}], v[{v_cs+8+r}:{v_cs+8+r+1}], {nm}, v[{accu(0,nt)+r}:{accu(0,nt)+r+1}] op_sel_hi:[1,0,1]")
    g("s_set_gpr_idx_off")
    for x in epi_cs_reads(): g(x)
    for nt in range(2):
        wd_dyn()
        rc = v_rc + 4*nt; nm = f"v[{rc}:{rc+1}]"; cc = f"v[{rc+2}:{rc+3}]"
        b = TG + 24*nt
        def pr(x): return f"v[{x}:{x+1}]"
        steps = [
          lambda tg,tu,z: [f"v_pk_mul_f32 {pr(z)}, {pr(tg)}, {pr(tg)}"],
          lambda tg,tu,z: [f"v_pk_fma_f32 {pr(z)}, {pr(z)}, {cc}, {cc} op_sel:[0,1,0] op_sel_hi:[1,1,0]"],
          lambda tg,tu,z: [f"v_pk_mul_f32 {pr(z)}, {pr(z)}, {pr(tg)}"],
          lambda tg,tu,z: [f"v_exp_f32 v{z}, v{z}", f"v_exp_f32 v{z+1}, v{z+1}"],
          lambda tg,tu,z: [f"v_pk_mul_f32 {pr(tu)}, {pr(tu)}, {pr(tg)}"],
          lambda tg,tu,z: [f"v_pk_fma_f32 {pr(z)}, {pr(z)}, {nm}, {nm} op_sel:[0,1,1] op_sel_hi:[1,1,1]"],
          lambda tg,tu,z: [f"v_rcp_f32 v{z}, v{z}", f"v_rcp_f32 v{z+1}, v{z+1}"],
          lambda tg,tu,z: [f"v_pk_mul_f32 {pr(tu)}, {pr(tu)}, {pr(z)}"],
        ]
        for st in steps:
            for pp in range(4):
                for x in st(b+2*pp, b+8+2*pp, b+16+2*pp): g(x)
        for pp in range(4):
            g(f"v_cvt_pk_bf16_f32 v{P+4*nt+pp}, v{b+8+2*pp}, v{b+8+2*pp+1}")
        if os.environ.get("XNOST"): pass
        elif nt == 0: g(f"buffer_store_dwordx4 v[{P}:{P+3}], v{v_l16}, s[{sWS}:{sWS+3}], s{s_t1} offen {HST}")
        else: g(f"s_add_u32 s{s_t2}, s{s_t1}, {112*1024}\nbuffer_store_dwordx4 v[{P+4}:{P+7}], v{v_l16}, s[{sWS}:{sWS+3}], s{s_t2} offen {HST}")
    g(f"s_cmp_eq_u32 s{s_t0}, 0\ns_cbranch_scc1 E1_b0\ns_cmp_eq_u32 s{s_t0}, 8\ns_cbranch_scc1 E1_b1\ns_cmp_eq_u32 s{s_t0}, 32\ns_cbranch_scc1 E1_b2\ns_branch E1_b3")
    base_vm = list(g.vmops)
    seq = ["wd", "wd"]
    g.vmops = base_vm + seq
    for it in range(4):
        g.vmops += [f"wd{9+2*it}", f"wd{9+2*it}", "hst", f"wd{10+2*it}", f"wd{10+2*it}", "hst"]
        g.lab(f"E1_b{it}")
        g.ldops = []
        if EST: stamp(g, 2 + 2*it)
        blocks[it]()
        if EST: stamp(g, 3 + 2*it)
        if it < 3: g("s_branch E1_next")
    g.lab("E1_next")
    g(f"""
    s_add_u32 s{s_t1}, s{s_t1}, 1024
    s_add_u32 s{s_t0}, s{s_t0}, 8
    s_bitcmp1_b32 s{s_t0}, 4
    s_cselect_b32 s{s_t2}, 16, 0
    s_add_u32 s{s_t0}, s{s_t0}, s{s_t2}
    s_cmp_lt_u32 s{s_t0}, 64
    s_waitcnt lgkmcnt(0)
    s_cbranch_scc1 E1_loop
    """)

a_h = 224
def conv_h_loads():
    L = [f"v_lshlrev_b32 v{v_hv}, 4, v0", f"s_lshl_b32 s{s_zoff}, s2, 13"]
    for ch in range(2):
        r = a_h + ch*8
        L.append(f"buffer_load_dwordx4 a[{r}:{r+3}], v{v_hv}, s[{sSK2}:{sSK2+3}], s{s_zoff} offen")
        L.append(f"buffer_load_dwordx2 a[{r+4}:{r+5}], v{v_hv}, s[{sSK2}:{sSK2+3}], s{s_zoff} offen offset:16")
        if ch == 0: L.append(f"s_add_u32 s{s_zoff}, s{s_zoff}, 4096")
    return L

def conv_build_L(ch, W=2, C1=8, C3=12, AD=16):
    L = [f"v_lshlrev_b32 v{AD}, 4, v0", f"v_add_u32 v{AD}, {LCV+32+ch*CVCH}, v{AD}"]
    for i in range(6): L.append(f"v_accvgpr_read_b32 v{W+i}, a{a_h+8*ch+i}")
    for i in range(4): L.append(f"v_alignbit_b32 v{C1+i}, v{W+i+1}, v{W+i}, 16")
    for i in range(3): L.append(f"v_mov_b32 v{C3+i}, v{C1+i+1}")
    L.append(f"v_alignbit_b32 v{C3+3}, v{W+5}, v{W+4}, 16")
    L.append(f"ds_write_b128 v{AD}, v[{C1}:{C1+3}] offset:{CVCOPY}")
    L.append(f"ds_write_b128 v{AD}, v[{C3}:{C3+3}] offset:{3*CVCOPY}")
    return L
def conv_copy_dma(i):
    return ["\n".join([f"s_add_u32 m0, s90, {i*1024}", f"s_add_u32 s{s_t1}, s91, {i*1024}",
                        f"buffer_load_dwordx4 v{v_l16}, s[{sSK2}:{sSK2+3}], s{s_t1} offen lds"])]
def conv_copy_setup():
    return lines(f"""
    s_mul_i32 s90, s{s_ns}, {CVCH}
    s_mul_i32 s91, s{s_mf}, {2*CVCOPY}
    s_add_u32 s90, s90, s91
    s_add_u32 s90, s90, {LCV+32}
    s_lshl_b32 s91, s2, 13
    s_lshl_b32 s{s_t1}, s{s_ns}, 12
    s_add_u32 s91, s91, s{s_t1}
    s_lshl_b32 s{s_t1}, s{s_mf}, 2
    s_add_u32 s91, s91, s{s_t1}
    """)
def conv_pads(g):
    pass
def conv_pads_L():
    return None

def conv_u_dma():
    return lines(f"""
    s_lshl_b32 s98, s2, 13
    s_add_u32 s98, s98, s{s_t4}
    s_add_u32 s98, s98, {WS_KVT}
    s_mul_i32 s{s_t2}, s{s_ns}, {CVUS}
    s_lshl_b32 s99, s{s_mf}, 11
    s_add_u32 s{s_t2}, s{s_t2}, s99
    s_add_u32 m0, s{s_t2}, {LU}
    s_nop 0
    buffer_load_dwordx4 v{v_l16}, s[{sWS}:{sWS+3}], s98 offen sc1 lds
    buffer_load_dwordx4 v{v_l16}, s[{sWS}:{sWS+3}], s98 offen offset:1024 sc1 lds
    """)

def conv_pad_code(g):
    g(f"""
    s_cmp_eq_u32 s{s_w}, 0
    s_cbranch_scc0 CB_w1
    v_mov_b32 v8, 0
    v_mov_b32 v9, 0
    v_mov_b32 v10, 0
    v_mov_b32 v11, 0
    """)
    for ch in range(2):
        g(f"""
        v_accvgpr_read_b32 v12, a{a_h+8*ch}
        v_accvgpr_read_b32 v13, a{a_h+8*ch+1}
        s_nop 0
        v_readlane_b32 s34, v12, 0
        v_readlane_b32 s35, v13, 0
        s_nop 3
        s_lshl_b32 s98, s34, 16
        s_lshr_b32 s99, s34, 16
        s_lshl_b32 s35, s35, 16
        s_or_b32 s99, s99, s35
        v_writelane_b32 v11, s98, {8*ch+3}
        v_writelane_b32 v11, s34, {8*ch+5}
        v_writelane_b32 v11, s99, {8*ch+7}
        v_writelane_b32 v10, s98, {8*ch+7}
        """)
    g(f"""
    v_lshrrev_b32 v12, 3, v{v_lane}
    v_mul_u32_u24 v12, {CVCH}, v12
    v_bfe_u32 v13, v{v_lane}, 1, 2
    v_mul_u32_u24 v13, {CVCOPY}, v13
    v_add_u32 v12, v12, v13
    v_and_b32 v13, 1, v{v_lane}
    v_lshl_add_u32 v12, v13, 4, v12
    v_add_u32 v12, {LCV}, v12
    s_mov_b64 exec, 0xffff
    ds_write_b128 v12, v[8:11]
    s_mov_b64 exec, -1
    s_branch CB_done
    CB_w1:
    s_cmp_eq_u32 s{s_w}, 1
    s_cbranch_scc0 CB_done
    v_mov_b32 v8, 0
    v_mov_b32 v9, 0
    v_mov_b32 v10, 0
    v_mov_b32 v11, 0
    v_add_u32 v12, {LU+4096}, v{v_l16}
    ds_write_b128 v12, v[8:11]
    ds_write_b128 v12, v[8:11] offset:{CVUS}
    CB_done:
    """)

cv_D = 128
cv_A = [160, 64]; cv_B = [192, 92]
cv_A = [160, 20]; cv_B = [192, 56]
v_la, v_lb = 124, 125
def conv_addr():
    return lines(f"""
    v_and_b32 v96, 15, v{v_lane}
    v_lshrrev_b32 v97, 4, v{v_lane}
    v_add_u32 v98, 1, v96
    v_and_b32 v99, 3, v98
    v_mul_u32_u24 v99, {CVCOPY}, v99
    v_lshrrev_b32 v98, 2, v98
    v_lshl_add_u32 v99, v98, 3, v99
    v_lshl_add_u32 v99, v97, 4, v99
    s_mul_i32 s98, s{s_ns}, {CVCH}
    s_add_u32 s98, s98, {LCV}
    v_add_u32 v{v_la}, s98, v99
    v_lshlrev_b32 v98, 5, v96
    v_lshlrev_b32 v99, 4, v97
    v_sub_u32 v99, v99, v98
    s_mul_i32 s98, s{s_ns}, {CVUS}
    s_lshl_b32 s99, s{s_mf}, 9
    s_sub_u32 s98, s98, s99
    s_add_u32 s98, s98, {LU + 4064 - 3072}
    v_add_u32 v{v_lb}, s98, v99
    """)
def conv_reads(cl):
    A, B = cv_A[cl & 1], cv_B[cl & 1]
    L = []
    for i in range(8):
        L.append(f"ds_read_b64 v[{A+4*i}:{A+4*i+1}], v{v_la} offset:{64*cl+512*i}")
        L.append(f"ds_read_b64 v[{A+4*i+2}:{A+4*i+3}], v{v_la} offset:{64*cl+512*i+8}")
        L.append(f"ds_read_b128 v[{B+4*i}:{B+4*i+3}], v{v_lb} offset:{64*cl+512*(7-i)}")
    return L
def conv_mfmas(cl):
    A, B = cv_A[cl & 1], cv_B[cl & 1]
    L = []
    pairs = sorted([(a, ib) for a in range(8) for ib in range(8) if (a + ib - 1) in (0, 2, 4, 6)], key=lambda p: (max(p), p))
    first = set()
    for a, ib in pairs:
        tau = (a + ib - 1) // 2
        d = cv_D + 4*tau
        cin = "0" if (cl == 0 and tau not in first) else f"v[{d}:{d+3}]"
        first.add(tau)
        L.append(f"v_mfma_f32_16x16x32_bf16 v[{d}:{d+3}], v[{A+4*a}:{A+4*a+3}], v[{B+4*ib}:{B+4*ib+3}], {cin}")
    assert len(L) == 20
    return L

def wd_setup_v():
    a, b, c, d, e, f = 112, 113, 114, 115, 116, 117
    return lines(f"""
    v_lshrrev_b32 v{a}, 3, v{v_lane}
    v_and_b32 v{b}, 7, v{v_lane}
    v_bfe_u32 v{c}, v{a}, 1, 1
    v_lshlrev_b32 v{c}, 2, v{c}
    v_xor_b32 v{b}, v{b}, v{c}
    v_mul_u32_u24 v{a}, 896, v{a}
    v_lshl_add_u32 v{e}, v{b}, 4, v{a}
    v_add_u32 v{f}, {8*896-1024}, v{e}
    v_accvgpr_write_b32 a248, v{e}
    v_accvgpr_write_b32 a249, v{f}
    v_lshrrev_b32 v{a}, 5, v{v_lane}
    v_bfe_u32 v{b}, v{v_lane}, 2, 2
    v_lshl_add_u32 v{a}, v{a}, 2, v{b}
    v_lshlrev_b32 v{a}, 7, v{a}
    v_bfe_u32 v{c}, v{v_lane}, 4, 1
    v_bfe_u32 v{d}, v{v_lane}, 1, 1
    v_lshl_add_u32 v{c}, v{c}, 1, v{d}
    v_lshl_add_u32 v{a}, v{c}, 4, v{a}
    v_and_b32 v{c}, 1, v{v_lane}
    v_lshl_add_u32 v{a}, v{c}, 3, v{a}
    v_bfe_u32 v{b}, v{v_lane}, 3, 1
    v_xor_b32 v{b}, s{s_ns}, v{b}
    v_lshl_add_u32 v{e}, v{b}, 6, v{a}
    v_xor_b32 v{b}, 1, v{b}
    v_lshl_add_u32 v{f}, v{b}, 6, v{a}
    s_mul_i32 s{s_t0}, s{s_w}, {RING}
    v_add_u32 v{a}, s{s_t0}, v{e}
    v_add_u32 v{b}, s{s_t0}, v{f}
    v_accvgpr_write_b32 a250, v{a}
    v_accvgpr_write_b32 a251, v{b}
    s_lshl_b32 s{s_t0}, s{s_w}, 13
    s_add_u32 s{s_t0}, s{s_t0}, {E1B}
    v_add_u32 v{a}, s{s_t0}, v{e}
    v_add_u32 v{b}, s{s_t0}, v{f}
    v_accvgpr_write_b32 a252, v{a}
    v_accvgpr_write_b32 a253, v{b}
    """)
def wd_setup_s():
    return lines(f"""
    s_mul_i32 s{s_woff}, s{s_w}, {448*896}
    s_lshl_b32 s{s_t0}, s{s_ct}, 7
    s_add_u32 s{s_woff}, s{s_woff}, s{s_t0}
    s_mul_i32 s{s_m0x}, s{s_w}, {RING}
    s_lshl_b32 s{s_eb}, s{s_w}, 13
    s_add_u32 s{s_eb}, s{s_eb}, {E1B}
    v_accvgpr_read_b32 v{vW0}, a248
    v_accvgpr_read_b32 v{vW1}, a249
    v_accvgpr_read_b32 v{vW2}, a250
    v_accvgpr_read_b32 v{vW3}, a251
    v_accvgpr_read_b32 v{vW4}, a252
    v_accvgpr_read_b32 v{vW5}, a253
    """) + rot_setup(28, 29, s_woff, 14336) + lines(f"""
    v_subrev_u32 v{vW6}, {E1B-E2B}, v{vW4}
    v_subrev_u32 v{vW7}, {E1B-E2B}, v{vW5}
    """)
NSLOT = 10
ROT = os.environ.get("ROT", "0") == "1"
def ptr_next(p, pend, pbase, stride):
    return ["\n".join([f"s_mov_b32 s{s_t3}, s{p}", f"s_add_u32 s{p}, s{p}, {stride}", f"s_cmp_eq_u32 s{p}, s{pend}", f"s_cselect_b32 s{p}, s{pbase}, s{p}"])]
def rot_setup(p, pend, pbase, stride):
    L = [f"s_add_u32 s{pend}, s{pbase}, {28*stride}"]
    if not ROT: return L + [f"s_mov_b32 s{p}, s{pbase}"]
    return L + [f"s_and_b32 s{p}, s{s_mi}, 3", f"s_mul_i32 s{p}, s{p}, 7", f"s_lshl_b32 s{s_t2}, s{s_ct}, 2", f"s_add_u32 s{p}, s{p}, s{s_t2}",
                f"s_cmp_ge_u32 s{p}, 28\ns_cselect_b32 s{s_t2}, 28, 0\ns_sub_u32 s{p}, s{p}, s{s_t2}",
                f"s_mul_i32 s{p}, s{p}, {stride}", f"s_add_u32 s{p}, s{p}, s{pbase}"]
s_eb = 33
vW4, vW5 = 118, 119
vW6, vW7 = 116, 117
def wd_dma_e(j, e):
    m0 = f"s_add_u32 m0, s{s_eb}, {e*2048}" if e < 4 else f"s_sub_u32 m0, s{s_eb}, {E1B-E2B-(e-4)*2048}"
    return ["\n".join([m0] + ptr_next(28, 29, s_woff, 14336) + [
            f"buffer_load_dwordx4 v{vW0}, s[{sWD2}:{sWD2+3}], s{s_t3} offen lds"]),
            "\n".join([m0, "s_nop 0", f"buffer_load_dwordx4 v{vW1}, s[{sWD2}:{sWD2+3}], s{s_t3} offen offset:1024 lds"])]
def wd_tr_e(j, e):
    L = []
    b = vW4 if e < 4 else vW6
    off = (e & 3)*2048
    for sm in range(2):
        r = 8*j + 4*sm
        L.append(f"ds_read_b64_tr_b16 a[{r}:{r+1}], v{b+sm} offset:{off}")
        L.append(f"ds_read_b64_tr_b16 a[{r+2}:{r+3}], v{b+sm} offset:{off+1024}")
    return L
def wd_dma(j, sl=None):
    if sl is None: sl = j % NSLOT
    return [f"s_add_u32 m0, s{s_m0x}, {sl*2048}"] + ptr_next(28, 29, s_woff, 14336) + [
            f"buffer_load_dwordx4 v{vW0}, s[{sWD2}:{sWD2+3}], s{s_t3} offen lds",
            f"buffer_load_dwordx4 v{vW1}, s[{sWD2}:{sWD2+3}], s{s_t3} offen offset:1024 lds"]
def wd_tr(j, sl=None):
    if sl is None: sl = j % NSLOT
    L = []
    for sm in range(2):
        r = 8*j + 4*sm
        L.append(f"ds_read_b64_tr_b16 a[{r}:{r+1}], v{vW2+sm} offset:{sl*2048}")
        L.append(f"ds_read_b64_tr_b16 a[{r+2}:{r+3}], v{vW2+sm} offset:{sl*2048+1024}")
    return L

vH0, vH1, vH2 = 2, 3, 4
def g2_setup():
    return lines(f"""
    s_lshl_b32 s{s_t0}, s{s_mi}, 2
    s_lshl_b32 s{s_t1}, s{s_hi}, 1
    s_add_u32 s{s_t0}, s{s_t0}, s{s_t1}
    s_mul_i32 s{s_t0}, s{s_t0}, 112
    s_mul_i32 s{s_t1}, s{s_w}, 28
    s_add_u32 s{s_t0}, s{s_t0}, s{s_t1}
    s_lshl_b32 s{s_xoff}, s{s_t0}, 10
    s_add_u32 s{s_xoff}, s{s_xoff}, {WS_H}
    s_mul_i32 s{s_t0}, s{s_mf}, {112*1024}
    v_add_u32 v{vH0}, s{s_t0}, v{v_l16}
    s_sub_u32 s{s_t0}, {112*1024 - 1024}, s{s_t0}
    v_add_u32 v{vH1}, s{s_t0}, v{v_l16}
    v_add_u32 v{vH2}, s{s_m0x}, v{v_l16}
    """) + rot_setup(30, 31, s_xoff, 1024)
HSC = os.environ.get('HSC', 'sc1')
def h_dma(j):
    sl = j % NSLOT
    m0 = f"s_add_u32 m0, s{s_m0x}, {sl*2048}"
    return ["\n".join([m0] + ptr_next(30, 31, s_xoff, 1024) + [f"buffer_load_dwordx4 v{vH0}, s[{sWS}:{sWS+3}], s{s_t3} offen {HSC} lds"]),
            "\n".join([m0, "s_nop 0", f"buffer_load_dwordx4 v{vH1}, s[{sWS}:{sWS+3}], s{s_t3} offen offset:1024 {HSC} lds"])]
def h_reads(j):
    sl = j % NSLOT
    b = g2_fr + (j % 4)*8
    return [f"ds_read_b128 v[{b}:{b+3}], v{vH2} offset:{sl*2048}", f"ds_read_b128 v[{b+4}:{b+7}], v{vH2} offset:{sl*2048+1024}"]
def hflag_offsets():
    return lines(f"""
    v_min_u32 v{v_poll}, 27, v{v_lane}
    v_lshrrev_b32 v{v_poll+1}, 1, v{v_poll}
    v_and_b32 v{v_poll}, 1, v{v_poll}
    v_lshl_add_u32 v{v_poll}, v{v_poll+1}, 2, v{v_poll}
    v_lshlrev_b32 v{v_poll}, 6, v{v_poll}
    s_lshl_b32 s{s_pb}, s{s_mi}, 12
    s_lshl_b32 s{s_t0}, s{s_hi}, 7
    s_add_u32 s{s_pb}, s{s_pb}, s{s_t0}
    s_add_u32 s{s_pb}, s{s_pb}, {WS_FH}
    """)

HFG = int(os.environ.get('HFG', '12'))
def conv_main(g, hflag):
    CL = 20; NG = 8*CL
    per = [[] for _ in range(NG + 8)]
    m = []
    for cl in range(8):
        m += conv_mfmas(cl)
        if cl < 7:
            rd = conv_reads(cl+1)
            for i, x in enumerate(rd): per[CL*cl + (i*16)//24].append((x, f"cv{cl+1}"))
    per[0].append(("VWAIT", "wd16"))
    trg = {}
    for n_, j in enumerate(range(8, 21)):
        gp = 6*n_
        trg[j] = gp
        if j == 17: per[gp].append(("VWAIT", "wd20"))
        tl = T(wd_tr(j, j-8) if j < 17 else wd_tr_e(j, j-17), f"tr{j}")
        for q, x in enumerate(tl): per[gp + q].append(x)
    for i, j in enumerate(range(21, 28)):
        g2 = trg[8+i] + 8
        per[g2].append(("LWAIT", f"tr{8+i}"))
        dl = T(wd_dma(j, j-21), f"wd{j}")
        per[g2] += dl[:2]
        per[g2+1] += dl[2:]
    per[HFG].append(("CALL", hflag))
    for i, j in enumerate(range(21, 28)):
        gp = 80 + 3*i
        per[gp].append(("VWAIT", f"wd{j}"))
        tl = T(wd_tr(j, j-21), f"tr{j}")
        per[gp] += tl[:2]; per[gp+1] += tl[2:]
    spread(per, T(hflag_offsets()), 66, 71)
    spread(per, T(g2_setup()), 72, 79)
    HCG = int(os.environ.get("HCG", "104"))
    per[HCG - 14] += poll_issue("ph")
    per[HCG].append(("HCHECK", None))
    per[HCG].append(("LWAIT", "tr27"))
    nh = min(10, (NG - 2 - HCG) // 5)
    for s_ in range(nh):
        gp = HCG + 1 + 5*s_
        hl_ = T(h_dma(s_), f"h{s_}")
        per[gp] += hl_[:1]; per[gp+2] += hl_[1:]
    global NH0
    NH0 = nh
    spread(per, T(conv_epi_pre()), 139, 150)
    for i in range(NG):
        if EST and i in (0, 40, 80, 120): stamp(g, 11 + i//40)
        if CST and i % 13 == 0: stamp(g, 1 + i//13)
        if i % CL == 0: g.lwait(f"cv{i//CL}")
        g(m[i])
        for x, tag in per[i]:
            if x == "CALL": tag()
            elif x == "HCHECK": poll_check(g, "G_p2", "ph")
            else: g.emit(x, tag)

def conv_epi_pre():
    L = lines(f"""
    v_and_b32 v54, 15, v{v_lane}
    v_lshrrev_b32 v55, 4, v{v_lane}
    v_lshlrev_b32 v54, 5, v54
    v_lshl_add_u32 v53, v55, 3, v54
    s_mul_i32 s98, s{s_ns}, {CVUS}
    s_lshl_b32 s99, s{s_mf}, 9
    s_sub_u32 s98, s98, s99
    s_add_u32 s98, s98, {LU + 4088 - 3072}
    v_sub_u32 v52, s98, v53
    s_lshl_b32 s98, s2, 13
    s_lshl_b32 s34, s{s_ns}, 12
    s_add_u32 s98, s98, s34
    s_add_u32 s98, s98, s99
    s_add_u32 s98, s98, {WS_ZP}
    """)
    L += [f"s_cmp_eq_u32 s{s_ns}, 0\ns_cselect_b32 s99, s100, s101"]
    for tau in range(4):
        L.append(f"ds_read_b64 v[{88+2*tau}:{89+2*tau}], v52 offset:{1024*(3-tau)}")
    return L
def conv_epilogue(g):
    KV, U, O = 88, 96, 112
    g("s_waitcnt lgkmcnt(0)")
    for tau in range(4):
        k = KV + 2*tau; u = U + 4*tau
        g(f"v_and_b32 v{u}, 0xffff0000, v{k+1}\nv_lshlrev_b32 v{u+1}, 16, v{k+1}\nv_and_b32 v{u+2}, 0xffff0000, v{k}\nv_lshlrev_b32 v{u+3}, 16, v{k}")
    for tau in range(4):
        for r in range(4): g(f"v_fmac_f32 v{cv_D+4*tau+r}, s99, v{U+4*tau+r}")
    for tau in range(4):
        g(f"v_cvt_pk_bf16_f32 v{O+2*tau}, v{cv_D+4*tau}, v{cv_D+4*tau+1}\nv_cvt_pk_bf16_f32 v{O+2*tau+1}, v{cv_D+4*tau+2}, v{cv_D+4*tau+3}")
    for tau in range(4):
        g.vm(f"buffer_store_dwordx2 v[{O+2*tau}:{O+2*tau+1}], v53, s[{sWS}:{sWS+3}], s98 offen offset:{1024*tau} sc1", "zst")

g2_acc = 192
g2_fr = 160
G2ST = os.environ.get('G2ST') == '1'
NH0 = int(os.environ.get('NH0', '4'))
def g2_mfma(j, sm, sn):
    b = g2_fr + (j % 4)*8
    acc = g2_acc + (sm*2+sn)*16
    cin = "0" if j == 0 else f"v[{acc}:{acc+15}]"
    return f"v_mfma_f32_32x32x16_bf16 v[{acc}:{acc+15}], a[{8*j+4*sm}:{8*j+4*sm+3}], v[{b+4*sn}:{b+4*sn+3}], {cin}"
def g2_main(g, extra):
    nd = NH0
    g.ldops = []
    g.vwait("h1")
    for x in h_reads(0): g.ld(x, "hr0")
    for x in h_reads(1): g.ld(x, "hr1")
    JT = 24
    for j in range(JT):
        if G2ST and j % 2 == 0: stamp(g, 1 + j//2)
        g.lwait(f"hr{j}")
        fill = []
        cnt = 0
        while nd < 28 and nd <= j + 9 and cnt < 2:
            fill += T(h_dma(nd), f"h{nd}"); nd += 1; cnt += 1
        m = [g2_mfma(j, sm, sn) for sm in range(2) for sn in range(2)]
        per = [[] for _ in range(4)]
        if fill: spread(per, fill, 0, 3)
        ex = extra(j)
        if ex: spread(per, ex, 0, 3)
        per[3].append(("VWAIT", f"h{j+2}"))
        per[3] += T(h_reads(j+2), f"hr{j+2}")
        for i in range(4):
            g(m[i])
            for x, tag in per[i]:
                if x == "CALL": tag()
                else: g.emit(x, tag)
    g.vwait("h27")
    for j in (26, 27):
        for x in h_reads(j): g.ld(x, f"hr{j}")
    g(f"v_add_u32 v22, s{s_m0x}, v{v_l16}")
    for x in range(1, 4):
        g(f"s_xor_b32 s{s_t0}, s{s_w}, {x}\ns_mul_i32 s{s_t0}, s{s_t0}, {RING}\nv_add_u32 v{22+x}, s{s_t0}, v{v_l16}")
    g.lwait("hr27")
    order = [1, 2, 3, 0]
    pend = []
    ex = extra(24) + extra(25) + extra(26)
    for sl in order:
        sm, sn = sl >> 1, sl & 1
        for j in range(JT, 28):
            g(g2_mfma(j, sm, sn))
            if pend:
                g(pend.pop(0))
            elif ex:
                x, tag = ex.pop(0)
                if x == "CALL": tag()
                else: g.emit(x, tag)
        if sl != 0:
            pend += ["s_nop 4", "s_nop 4"] + [f"ds_write_b128 v22, v[{g2_acc + sl*16 + 4*q}:{g2_acc + sl*16 + 4*q + 3}] offset:{sl*4096 + q*1024}" for q in range(4)]
    for x, tag in ex:
        if x == "CALL": tag()
        else: g.emit(x, tag)
    g("s_nop 7")
    for x in pend: g(x)

def g2_reduce2(g):
    g.vwait("x")
    g("s_waitcnt lgkmcnt(0)\ns_barrier")
    for x in final_x_reads(): g(x)
    for x in range(1, 4):
        for q in range(4):
            r = g2_acc + x*16 + 4*q
            g(f"ds_read_b128 v[{r}:{r+3}], v{22+x} offset:{x*4096 + q*1024}")
    for x in range(1, 4):
        g(f"s_waitcnt lgkmcnt({4*(3-x)})")
        for q in range(8):
            a = g2_acc + 2*q; b = g2_acc + x*16 + 2*q
            g(f"v_pk_add_f32 v[{a}:{a+1}], v[{a}:{a+1}], v[{b}:{b+1}]")

fx = 32
LXF = 114688
def final_loads_x():
    L = [f"v_lshrrev_b32 v26, 3, v{v_lane}", f"v_and_b32 v27, 7, v{v_lane}", f"v_lshrrev_b32 v24, 4, v{v_lane}",
         f"v_xor_b32 v25, v27, v24", f"v_mul_u32_u24 v26, 896, v26", f"v_lshl_add_u32 v25, v25, 4, v26",
         f"v_xor_b32 v27, 4, v27", f"v_xor_b32 v27, v27, v24", f"v_lshl_add_u32 v26, v27, 4, v26", f"v_add_u32 v26, {8*896-1024}, v26",
         f"s_lshl_b32 s{s_t0}, s{s_mi}, 7", f"s_lshl_b32 s{s_t1}, s{s_hi}, 6", f"s_add_u32 s{s_t0}, s{s_t0}, s{s_t1}",
         f"s_lshl_b32 s{s_t1}, s{s_w}, 4", f"s_add_u32 s{s_t1}, s{s_t1}, s{s_t0}", f"s_mul_i32 s{s_t1}, s{s_t1}, 896",
         f"s_lshl_b32 s{s_t2}, s{s_ct}, 7", f"s_add_u32 s{s_t1}, s{s_t1}, s{s_t2}"]
    L.append("\n".join([f"s_add_u32 m0, s{s_t4}, {LXF}", "s_nop 0",
             f"buffer_load_dwordx4 v25, s[{sX}:{sX+3}], s{s_t1} offen lds",
             f"buffer_load_dwordx4 v26, s[{sX}:{sX+3}], s{s_t1} offen offset:1024 lds"]))
    L += [f"s_lshl_b32 s{s_t1}, s{s_mf}, 5", f"s_add_u32 s{s_t0}, s{s_t0}, s{s_t1}", f"s_mul_i32 s{s_zoff}, s{s_t0}, 896",
          f"s_add_u32 s{s_zoff}, s{s_zoff}, s{s_t2}", f"s_lshl_b32 s{s_t1}, s{s_ns}, 6", f"s_add_u32 s{s_zoff}, s{s_zoff}, s{s_t1}"]
    return L
def final_x_reads():
    L = [f"v_and_b32 v56, 31, v{v_lane}", f"v_bfe_u32 v57, v{v_lane}, 1, 3", f"s_lshl_b32 s{s_t0}, s{s_ns}, 2", f"v_xor_b32 v57, s{s_t0}, v57",
         f"s_lshl_b32 s{s_t1}, s{s_mf}, 12", f"s_add_u32 s{s_t1}, s{s_t1}, {LXF}", f"v_lshl_add_u32 v56, v56, 7, s{s_t1}",
         f"v_lshrrev_b32 v58, 5, v{v_lane}", f"v_lshl_add_u32 v56, v58, 3, v56"]
    for q in range(4):
        L += [f"v_xor_b32 v58, {q}, v57", f"v_lshl_add_u32 v58, v58, 4, v56", f"ds_read_b64 v[{fx+2*q}:{fx+2*q+1}], v58"]
    return L
s_zp = 49
def final_z_setup():
    return lines(f"""
    v_and_b32 v28, 31, v{v_lane}
    v_lshlrev_b32 v28, 1, v28
    v_lshrrev_b32 v27, 5, v{v_lane}
    v_lshl_add_u32 v28, v27, 14, v28
    s_lshl_b32 s{s_t0}, s{s_ct}, 5
    s_lshl_b32 s{s_t1}, s{s_ns}, 4
    s_add_u32 s{s_t0}, s{s_t0}, s{s_t1}
    s_lshl_b32 s{s_pb}, s{s_t0}, 8
    s_lshl_b32 s{s_t0}, s{s_t0}, 13
    s_lshl_b32 s{s_t1}, s{s_mi}, 7
    s_lshl_b32 s{s_t2}, s{s_hi}, 6
    s_add_u32 s{s_t1}, s{s_t1}, s{s_t2}
    s_lshl_b32 s{s_t2}, s{s_mf}, 5
    s_add_u32 s{s_t1}, s{s_t1}, s{s_t2}
    s_lshl_b32 s{s_t1}, s{s_t1}, 1
    s_add_u32 s{s_t0}, s{s_t0}, s{s_t1}
    s_add_u32 s{s_zp}, s{s_t0}, {WS_ZP}
    s_bfe_u32 s{s_t1}, s{s_mi}, 0x10001
    s_lshl_b32 s{s_t1}, s{s_t1}, 6
    s_add_u32 s{s_pb}, s{s_pb}, s{s_t1}
    s_add_u32 s{s_pb}, s{s_pb}, {WS_FZ}
    v_min_u32 v{v_poll}, 31, v{v_lane}
    v_lshrrev_b32 v{v_poll+1}, 1, v{v_poll}
    v_and_b32 v{v_poll}, 1, v{v_poll}
    v_lshlrev_b32 v{v_poll}, 7, v{v_poll}
    v_lshl_add_u32 v{v_poll}, v{v_poll+1}, 8, v{v_poll}
    """)
fz = 64
def final_loads_z(g):
    for q in range(4):
        for i in range(4):
            g(f"s_add_u32 s{s_t3}, s{s_zp}, {(8*q+i)*4096}")
            g.vm(f"buffer_load_ushort v{fz+4*q+i}, v28, s[{sWS}:{sWS+3}], s{s_t3} offen sc1", "z")
def final_pre():
    return lines(f"""
    v_and_b32 v22, 31, v{v_lane}
    v_lshlrev_b32 v22, 3, v22
    s_lshl_b32 s{s_t0}, s{s_mi}, 10
    s_lshl_b32 s{s_t1}, s{s_hi}, 9
    s_add_u32 s{s_t0}, s{s_t0}, s{s_t1}
    s_lshl_b32 s{s_t1}, s{s_mf}, 8
    s_add_u32 s{s_t0}, s{s_t0}, s{s_t1}
    s_add_u32 s{s_t0}, s{s_t0}, {WS_STATS}
    buffer_load_dwordx2 v[30:31], v22, s[{sWS}:{sWS+3}], s{s_t0} offen sc1
    v_and_b32 v29, 31, v{v_lane}
    v_mul_u32_u24 v29, 896, v29
    v_lshrrev_b32 v27, 5, v{v_lane}
    v_lshl_add_u32 v29, v27, 4, v29
    """)
def final(g):
    g(f"""
    s_waitcnt vmcnt(0)
    v_rcp_f32 v31, v31
    v_mov_b32 v20, {fh(-math.log2(math.e))}
    v_mov_b32 v21, 1.0
    v_mul_f32 v30, v30, v31
    v_sub_f32 v30, 0, v30
    """)
    O = g2_acc
    X = 48; Zz = 64; Tt = 80; XN = 96
    def pr(x): return f"v[{x}:{x+1}]"
    steps = [
      lambda i: [f"v_pk_mul_f32 {pr(Tt+2*i)}, {pr(O+2*i)}, v[20:21] op_sel_hi:[1,0]"],
      lambda i: [f"v_exp_f32 v{Tt+2*i}, v{Tt+2*i}", f"v_exp_f32 v{Tt+2*i+1}, v{Tt+2*i+1}"],
      lambda i: [f"v_lshlrev_b32 v{X+2*i}, 16, v{fx+i}", f"v_and_b32 v{X+2*i+1}, 0xffff0000, v{fx+i}"],
      lambda i: [f"v_pk_add_f32 {pr(Tt+2*i)}, {pr(Tt+2*i)}, v[20:21] op_sel:[0,1] op_sel_hi:[1,1]"],
      lambda i: [f"v_lshlrev_b32 v{Zz+2*i}, 16, v{fz+2*i}", f"v_lshlrev_b32 v{Zz+2*i+1}, 16, v{fz+2*i+1}"],
      lambda i: [f"v_rcp_f32 v{Tt+2*i}, v{Tt+2*i}", f"v_rcp_f32 v{Tt+2*i+1}, v{Tt+2*i+1}"],
      lambda i: [f"v_pk_fma_f32 {pr(XN+2*i)}, {pr(X+2*i)}, v[30:31], v[30:31] op_sel:[0,1,0] op_sel_hi:[1,1,0]"],
      lambda i: [f"v_pk_mul_f32 {pr(Tt+2*i)}, {pr(Tt+2*i)}, {pr(O+2*i)}"],
      lambda i: [f"v_pk_mul_f32 {pr(Zz+2*i)}, {pr(Zz+2*i)}, {pr(XN+2*i)}"],
      lambda i: [f"v_pk_fma_f32 {pr(Tt+2*i)}, {pr(Tt+2*i)}, {pr(Zz+2*i)}, {pr(X+2*i)}"],
    ]
    for st in steps:
        for i in range(8):
            for x in st(i): g(x)
    P = 112
    for i in range(8): g(f"v_cvt_pk_bf16_f32 v{P+i}, v{Tt+2*i}, v{Tt+2*i+1}")
    g("s_nop 1")
    for qq in (0, 2):
        g(f"v_permlane32_swap_b32 v{P+2*qq}, v{P+2*qq+2}\nv_permlane32_swap_b32 v{P+2*qq+1}, v{P+2*qq+3}")
    for qq in (0, 2):
        g(f"buffer_store_dwordx4 v[{P+2*qq}:{P+2*qq+3}], v29, s[{sOUT2}:{sOUT2+3}], s{s_zoff} offen offset:{16*qq} {os.environ.get('OUTF','')}")

def kflag_offsets():
    if SPK:
        return lines(f"""v_min_u32 v{v_poll}, 31, v{v_lane}
        v_lshlrev_b32 v{v_poll}, 6, v{v_poll}
        s_mov_b32 s{s_pb}, {WS_FK}""")
    return lines(f"""
    v_min_u32 v{v_poll}, 31, v{v_lane}
    v_lshrrev_b32 v{v_poll+1}, 1, v{v_poll}
    v_and_b32 v{v_poll}, 1, v{v_poll}
    v_lshlrev_b32 v{v_poll}, 7, v{v_poll}
    v_lshl_add_u32 v{v_poll}, v{v_poll+1}, 12, v{v_poll}
    s_lshr_b32 s{s_pb}, s2, 4
    s_lshl_b32 s{s_pb}, s{s_pb}, 8
    s_bfe_u32 s{s_t0}, s2, 0x10003
    s_lshl_b32 s{s_t0}, s{s_t0}, 6
    s_add_u32 s{s_pb}, s{s_pb}, s{s_t0}
    s_add_u32 s{s_pb}, s{s_pb}, {WS_FK}
    """)
s_fo = 32
def flag_off(base):
    return lines(f"""s_lshl_b32 s{s_fo}, s{s_mi}, 4
    s_add_u32 s{s_fo}, s{s_fo}, s{s_fi}
    s_lshl_b32 s{s_fo}, s{s_fo}, 2
    s_add_u32 s{s_fo}, s{s_fo}, s{s_w}
    s_lshl_b32 s{s_fo}, s{s_fo}, 6
    s_add_u32 s{s_fo}, s{s_fo}, {base}""")
def wave_flag_L(vt, so=s_fo):
    return [f"v_mov_b32 v{vt}, 0", f"v_mov_b32 v{vt+1}, s{s_tag}", "s_mov_b64 exec, 1",
            f"buffer_store_dword v{vt+1}, v{vt}, s[{sWS}:{sWS+3}], s{so} offen sc1", "s_mov_b64 exec, -1"]

sTC = 28
def touch_setup():
    a, b = 104, 105
    return lines(f"""
    s_mov_b32 s{sTC}, s{sWD2}
    s_mov_b32 s{sTC+1}, s{sWD2+1}
    s_mov_b32 s{sTC+2}, {D*F*2}
    s_mov_b32 s{sTC+3}, 0x20000
    s_lshr_b32 s96, s2, 3
    s_mul_i32 s96, s96, 57344
    s_sub_u32 s96, s96, {32*128}
    s_movk_i32 s97, {32*128}
    s_mul_i32 s{s_t0}, s{s_w}, 8
    v_add_u32 v{a}, s{s_t0}, v{v_lane}
    v_lshlrev_b32 v{a}, 7, v{a}
    v_mov_b32 v{b}, 0x7ffffff0
    v_cmp_gt_u32 vcc, 8, v{v_lane}
    s_nop 1
    v_cndmask_b32 v19, v{b}, v{a}, vcc
    """)
sTG = 84
def g1touch_setup(first_chunk=1):
    a, b = 104, 105
    return lines(f"""
    s_and_b32 s{s_t0}, s{s_mi}, 1
    s_cmp_eq_u32 s{s_t0}, 1
    s_cselect_b32 s{sTG}, s{sWU}, s{sWG}
    s_cselect_b32 s{sTG+1}, s{sWU+1}, s{sWG+1}
    s_mov_b32 s{sTG+2}, {D*F*2}
    s_mov_b32 s92, {first_chunk*64*3584}
    s_mov_b32 s93, {64*3584}
    s_cmp_ge_u32 s{s_w}, 2
    s_cselect_b32 s{sTG}, s{sX}, s{sTG}
    s_cselect_b32 s{sTG+1}, s{sX+1}, s{sTG+1}
    s_cselect_b32 s{sTG+2}, {S*D*2}, s{sTG+2}
    s_cselect_b32 s92, {128*first_chunk}, s92
    s_cselect_b32 s93, 128, s93
    s_mov_b32 s{sTG+3}, 0x20000
    s_bfe_u32 s{s_t0}, s{s_mi}, 0x10001
    s_lshl_b32 s{s_t0}, s{s_t0}, 5
    s_lshl_b32 s{s_t1}, s{s_mf}, 4
    s_add_u32 s{s_t0}, s{s_t0}, s{s_t1}
    v_lshrrev_b32 v{a}, 1, v{v_lane}
    v_add_u32 v{a}, s{s_t0}, v{a}
    v_mul_u32_u24 v{a}, 3584, v{a}
    v_and_b32 v{b}, 1, v{v_lane}
    v_lshl_add_u32 v{a}, v{b}, 7, v{a}
    s_lshl_b32 s{s_t0}, s{s_fi}, 8
    v_add_u32 v{a}, s{s_t0}, v{a}
    v_cmp_gt_u32 vcc, 32, v{v_lane}
    v_mov_b32 v{b}, 0x7ffffff0
    s_mul_i32 s{s_t0}, s{s_ct}, 19
    s_mul_i32 s{s_t2}, s{s_mf}, 10
    s_add_u32 s{s_t0}, s{s_t0}, s{s_t2}
    s_lshl_b32 s{s_t1}, s{s_mi}, 7
    v_cndmask_b32 v87, v{b}, v{a}, vcc
    v_add_u32 v{a}, s{s_t0}, v{v_lane}
    s_movk_i32 s{s_t2}, 128
    v_cmp_gt_u32 vcc, 10, v{v_lane}
    v_cmp_gt_u32 s[94:95], s{s_t2}, v{a}
    v_add_u32 v{a}, s{s_t1}, v{a}
    v_mul_u32_u24 v{a}, 896, v{a}
    s_and_b64 vcc, vcc, s[94:95]
    s_nop 1
    v_cndmask_b32 v{a}, v{b}, v{a}, vcc
    s_cmp_ge_u32 s{s_w}, 2
    s_cselect_b64 vcc, -1, 0
    s_nop 1
    v_cndmask_b32 v87, v87, v{a}, vcc
    """)
def g1pref_setup():
    return lines(f"""
    s_and_b32 s{s_t0}, s{s_mi}, 1
    s_cmp_eq_u32 s{s_t0}, 1
    s_cselect_b32 s{sTG}, s{sWU}, s{sWG}
    s_cselect_b32 s{sTG+1}, s{sWU+1}, s{sWG+1}
    s_mov_b32 s{sTG+2}, {D*F*2}
    s_mov_b32 s{sTG+3}, 0x20000
    s_lshl_b32 s{s_t0}, s{s_mi}, 7
    s_mul_i32 s{s_t1}, s{s_ct}, 19
    s_add_u32 s{s_t0}, s{s_t0}, s{s_t1}
    s_mul_i32 s{s_t0}, s{s_t0}, 896
    s_mul_i32 s{s_t1}, s{s_w}, 4352
    s_add_u32 s92, s{s_t0}, s{s_t1}
    s_bfe_u32 s{s_t0}, s{s_mi}, 0x10001
    s_lshl_b32 s{s_t0}, s{s_t0}, 5
    s_lshl_b32 s{s_t1}, s{s_w}, 3
    s_add_u32 s{s_t0}, s{s_t0}, s{s_t1}
    s_mul_i32 s93, s{s_t0}, 3584
    s_lshl_b32 s{s_t0}, s{s_fi}, 8
    s_add_u32 s93, s93, s{s_t0}
    v_lshrrev_b32 v104, 4, v{v_lane}
    v_mul_u32_u24 v104, 3584, v104
    v_and_b32 v105, 15, v{v_lane}
    v_lshl_add_u32 v87, v105, 4, v104
    """)
def g1pref_w(c, h):
    return ["\n".join([f"s_add_u32 s91, s93, {(64*c+4*h)*3584}", f"buffer_load_dwordx4 a[244:247], v87, s[{sTG}:{sTG+3}], s91 offen"])]
def g1pref_x(i):
    return ["\n".join([f"s_add_u32 s91, s92, {1024*i}", f"buffer_load_dwordx4 a[244:247], v{v_l16}, s[{sX}:{sX+3}], s91 offen"])]
def g1touch_L():
    return [f"buffer_load_dword a255, v87, s[{sTG}:{sTG+3}], s92 offen", "s_add_u32 s92, s92, s93"]
def wdpref(i):
    return ["\n".join([f"s_add_u32 s91, s96, {1024*i}", f"buffer_load_dwordx4 a[244:247], v{v_l16}, s[{sWD2}:{sWD2+3}], s91 offen"])]
def wdpref_setup():
    return [f"s_lshr_b32 s96, s2, 3", f"s_mul_i32 s96, s96, 57344", f"s_mul_i32 s97, s{s_w}, {14*1024}", "s_add_u32 s96, s96, s97"]
def touch_L():
    return ["s_add_u32 s96, s96, s97", f"buffer_load_dword a255, v19, s[{sTC}:{sTC+3}], s96 offen"]
TOUCH = os.environ.get("TOUCH", "none")
def gemm_path(g, stamps=False):
    RTS = os.environ.get("RTS") == "1"
    rmap = {0: 0, 2: 1, 5: 2, 6: 3, 9: 4, 11: 5, 14: 6}
    def S_(i):
        if RTS:
            if i in rmap:
                stamp(g, rmap[i], True)
                g(f"s_memrealtime s[{STAMP0+2*(7+rmap[i])}:{STAMP0+2*(7+rmap[i])+1}]")
        else: stamp(g, i, stamps)
    g.vreset()
    S_(0)
    g1_prologue(g)
    TG1 = os.environ.get("TG1", "none")
    NPF = int(os.environ.get("NPF", "4"))
    pf = []
    if TG1 == "c":
        for x in g1pref_setup(): g(x)
        pf = g1pref_w(0, 0) + g1pref_w(0, 1) + [g1pref_x(i)[0] for i in range(5)]
        for c in range(1, NPF): pf += g1pref_w(c, 0) + g1pref_w(c, 1)
    else:
        for grp in g1_groups(0): emit_mixed(g, grp, "c0")
    g(f"s_mov_b32 s{s_spin}, {WS_EPOCH}\ns_load_dword s{s_tag}, s[{sWS}:{sWS+1}], s{s_spin}\ns_lshl_b32 s98, s2, 2\ns_load_dword s99, s[96:97], s98")
    if KPA:
        for r, sz in ((sKK, S*D*2), (sVV, S*D*2), (sSH, D*8)): srd_fix(g, r, sz)
        emit_mixed(g, kp_shk_load(), "shk")
        kpa_dma(g)
        for x in g1_addr(): g(x)
        for grp in g1_groups(1): emit_mixed(g, grp, "c1")
        for r, sz in ((sWS, WS_END), (sWD2, D*F*2), (sSK2, D*S*2)): srd_fix(g, r, sz)
        kps_setup(g, AKT, AVT, AKO, 1)
        g.vwait("shk")
        for x in kp_build_B(): g(x)
        S_(1)
        g.vwait("kp")
        g("s_barrier")
        kpa_compute(g)
    else:
        for x in g1_addr(): g(x)
        for grp in g1_groups(1): emit_mixed(g, grp, "c1")
        for r, sz in ((sKK, S*D*2), (sVV, S*D*2), (sSH, D*8), (sWS, WS_END), (sWD2, D*F*2), (sSK2, D*S*2)): srd_fix(g, r, sz)
        if not SPK:
            emit_mixed(g, kp_shk_load(), "shk")
            for x in kps_dma_setup(): g(x)
        S_(1)
    g("s_waitcnt lgkmcnt(0)")
    make_tag(g)
    g(f"s_lshl_b32 s100, s99, 16\ns_and_b32 s101, s99, 0xffff0000")
    g.vwait("c0")
    g("s_barrier")
    S_(2)
    def pre(k):
        if SPK or KPE: return []
        if KPA: return ["kvst"] if k == 7 else []
        return ["kp"] if k == KPK else []
    class _C:
        def __init__(self): self.L = []
        def __call__(self, t): self.L += lines(t)
    _c = _C()
    if KPE: kps_setup(_c, LKT2, LVT2, 24576, 2)
    else: kps_setup(_c)
    ksu = _c.L
    bB = kp_build_B()
    wsv = wd_setup_v(); eh = epi_hoff()
    def p1check(): poll_check(g, "G_p1", "p1")
    def post(k):
        E, L, X = [], [], []
        hl = conv_h_loads()
        if k == 19: E += T(wd_setup_s())
        if k == 21: E += T(conv_addr())
        kdl = kps_dma_L()
        if SPK: pass
        elif not KPA:
            if k == 0: E += T(ksu[:24])
            if k == 1: E += T(ksu[24:48])
            if k == 2: E += T(ksu[48:])
            if k == 4: E += [("VWAIT", "shk")] + T(bB[:19])
            if k == 5: E += T(bB[19:])
        else:
            if k == 6: E += T(flag_off(WS_FK))
            if k == 7: X.append(T(wave_flag_L(86), "kflag"))
        if k == 8: E += T(wsv[:20])
        if k == 9: E += T(wsv[20:])
        if k == 10: E += T(eh)
        if TOUCH == "roll":
            for _ in range(list(TCHK).count(k)): X.append(T(touch_L(), "t2"))
        if TOUCH == "wide":
            WK0 = int(os.environ.get("WK0", "19"))
            plan = {}
            kk = WK0; i = 0
            while i < 14:
                n = 1 if kk <= 18 else int(os.environ.get('WN', '3'))
                plan[kk] = list(range(i, min(14, i+n))); i += n; kk += 1
            for i in plan.get(k, []): X.append(T(wdpref(i), "t2"))
        if TG1 == "c":
            later = [(c, h) for c in range(NPF, 7) for h in range(2)]
            if k < len(later): X.append(T(g1pref_w(*later[k]), "tg2"))
        if KPE:
            kskip = True
            if k in (19, 20, 21, 22): X.append(T(kdl[k-19:k-18], "kp"))
            if k in (22, 23): X.append(T(kps_t0_L()[k-22:k-21], "kp"))
        elif KPA or SPK:
            kskip = True
        elif os.environ.get("XNOKP"):
            if k == 3: X.append(T(kdl[0:1], "kp"))
            if k == KPK + 6: X.append(T(kps_store_L()[:1], "kvst"))
            if k == KPK + 10: E += T(flag_off(WS_FK))
            if k == KPK + 11: X.append([("VWAIT", "kvst")] + T(wave_flag_L(86), "kflag"))
            kskip = True
        else: kskip = False
        if not kskip and k in (3, 4, 5, 6): X.append(T(kdl[k-3:k-2], "kp"))
        if not kskip and k in (7, 8): X.append(T(kps_t0_L()[k-7:k-6], "kp"))
        if not kskip and k == KPK + 1: L += T(kps_stage1(), "kp1r")
        if not kskip and k == KPK + 2: E += [("LWAIT", "kp1r")] + T(kps_stage2()) + T(kps_stage3())
        if not kskip and k == KPK + 3: E += T(kps_stage4())
        if not kskip and k == KPK + 5: E += kps_stage5()
        if not kskip:
            if k == KPK + 6: X.append([("LWAIT", "kprb")] + T(kps_store_L()[:1], "kvst"))
            if k == KPK + 7: X.append(T(kps_store_L()[1:], "kvst"))
            if k == KPK + 10: E += T(flag_off(WS_FK))
            if k == KPK + 11: X.append([("VWAIT", "kvst")] + T(wave_flag_L(86), "kflag"))
        if MVG1:
            if k == 16: X.append(T(hl[:4], "h"))
            if k == 17: X.append(T(hl[4:], "h"))
            cb0 = conv_build_L(0, 2, 88, 92, 8); cb1 = conv_build_L(1, 2, 88, 92, 8)
            if k == 24: L += [("VWAIT", "h")] + T(cb0[:10])
            if k == 25: E += T(cb0[10:])
            if k == 26: E += T(cb1)
            if k == 27: E += [("CALL", lambda: conv_pad_code(g))]
        else:
            if k == 22: L += T(hl[:4], "h")
            if k == 23: L += T(hl[4:], "h")
        if k == 20:
            L += T(f"""v_min_u32 v{v_poll}, 31, v{v_lane}
            v_lshlrev_b32 v{v_poll}, 6, v{v_poll}
            s_mov_b32 s{s_pb}, {WS_FA}""")
        if k == 20: E += T(wd_dma_e(0, 0), "wd0") + T(wd_dma_e(1, 1), "wd1")
        if k == 21: E += T(wd_dma_e(2, 2), "wd2") + T(wd_dma_e(3, 3), "wd3"); L += poll_issue("p1")
        if k == 22:
            E += T(f"""v_lshrrev_b32 v{v_tch}, 5, v{v_lane}
            v_mul_u32_u24 v{v_tch}, {7168-512}, v{v_tch}
            v_add_u32 v{v_tch}, v{v_tch}, v{v_l16}
            s_mov_b32 s{sOUT2}, s64
            s_and_b32 s{sOUT2+1}, s65, 0xffff
            s_mov_b32 s{sOUT2+2}, {S*D*2}
            s_mov_b32 s{sOUT2+3}, 0x20000""")
        if k == 24:
            E += [("CALL", p1check)] + [("\n".join(lines(f"""s_mov_b32 m0, {LST}
            s_lshl_b32 s{s_t1}, s{s_mi}, 10
            s_add_u32 s{s_t1}, s{s_t1}, {WS_STATS}
            buffer_load_dwordx4 v{v_l16}, s[{sWS}:{sWS+3}], s{s_t1} offen sc1 lds""")), "st"), ("\n".join(lines(f"""s_mov_b32 m0, {LST+1024}
            s_lshl_b32 s{s_t1}, s{s_fi}, 9
            s_add_u32 s{s_t1}, s{s_t1}, {WS_CS}
            buffer_load_dwordx4 v{v_tch}, s[{sWS}:{sWS+3}], s{s_t1} offen sc1 lds""")), "st")]
            if not MVG1: L += [("VWAIT", "wd1")] + T(wd_tr_e(0, 0), "tr0") + T(wd_tr_e(1, 1), "tr1")
        if k == 25:
            E += T(kflag_offsets()) + ([] if (SPK or KPE) else poll_issue("pk"))
            if not MVG1: L += [("VWAIT", "wd3")] + T(wd_tr_e(2, 2), "tr2") + T(wd_tr_e(3, 3), "tr3")
        if k == 23: E += T(conv_copy_setup())
        if k in (24, 25): X += [T(conv_copy_dma(2*(k-24)), "cc"), T(conv_copy_dma(2*(k-24)+1), "cc")]
        if MVG1:
            if k == 22: L += [("VWAIT", "wd1")] + T(wd_tr_e(0, 0), "tr0") + T(wd_tr_e(1, 1), "tr1")
            if k == 23: L += [("VWAIT", "wd3")] + T(wd_tr_e(2, 2), "tr2") + T(wd_tr_e(3, 3), "tr3")
            if k == 24: X += [[("LWAIT", "tr1")] + T(wd_dma_e(4, 0), "wd4")]
            if k == 25: X += [[("LWAIT", "tr3")] + T(wd_dma_e(5, 1), "wd5"), T(wd_dma_e(6, 2), "wd6")]
            if k == 26: X += [T(wd_dma_e(7, 3), "wd7")]
            if k == 27:
                L += [("VWAIT", "st")] + T(epi_pre_reads(), "cs") + [("VWAIT", "wd7")]
                for j in range(4, 8): L += T(wd_tr_e(j, j-4), f"tr{j}")
        else:
            if k == 26:
                E += [("LWAIT", "tr1")] + T(wd_dma_e(4, 0), "wd4") + T(wd_dma_e(5, 1), "wd5")
            if k == 27:
                E += [("LWAIT", "tr3")] + T(wd_dma_e(6, 2), "wd6") + T(wd_dma_e(7, 3), "wd7")
                L += [("VWAIT", "st")] + ([] if KPE else T(epi_pre_reads(), "cs"))
        return E, L, X
    g1_main(g, pre, post, stamps={0: 3, 5: 4} if stamps else None)
    S_(5)
    if KPE:
        g.vwait("kp")
    g("s_waitcnt lgkmcnt(0)\ns_barrier")
    if KPE:
        kpe_compute(g)
        for x in epi_pre_reads(): g(x)
        g("s_waitcnt lgkmcnt(0)\ns_barrier")
    def pkc(): poll_check(g, "G_pk", "pk")
    def padc(): conv_pad_code(g)
    def wdring(j): return T(wd_dma(j, j-8), f"wd{j}")
    aux0 = wdring(8) + wdring(9) + [("CALL", pkc)] + [("\n".join(conv_u_dma()), "u")] + wdring(10) + [("VWAIT", "h")] + T(conv_build_L(0))
    aux1 = wdring(11) + wdring(12) + T(conv_build_L(1)) + [("VWAIT", "wd7")]
    for j in range(4, 8): aux1 += T(wd_tr_e(j, j-4), f"tr{j}")
    aux2 = wdring(13) + wdring(14) + [("CALL", padc)] + wdring(15) + wdring(16)
    aux3 = [("LWAIT", "tr7")]
    for j in range(17, 21): aux3 += T(wd_dma_e(j, j-17), f"wd{j}")
    aux3 += T(conv_addr())
    if EST: stamp(g, 1)
    if os.environ.get("ELOOP", "1") == "1":
        def mk(L):
            def f():
                for x2, t2 in L:
                    if x2 == "CALL": t2()
                    else: g.emit(x2, t2)
            return f
        ku = [("CALL", pkc)] + [("\n".join(conv_u_dma()), "u")]
        late = SPK or KPE
        b0 = ([] if late else ku) + ([] if MVG1 else [("VWAIT", "h")] + T(conv_build_L(0)))
        b1 = []
        if KPE:
            b0 += [("VWAIT", "kvst")] + T(flag_off(WS_FK)) + T(wave_flag_L(2), "kflag")
        if not MVG1:
            b1 += T(conv_build_L(1)) + [("VWAIT", "wd7")]
            for j in range(4, 8): b1 += T(wd_tr_e(j, j-4), f"tr{j}")
        b2 = ([] if MVG1 else [("CALL", padc)]) + (poll_issue("pk") if late else [])
        b3 = list(ku) if late else []
        for j in range(17, 21): b3 += T(wd_dma_e(j, j-17), f"wd{j}")
        g1_epilogue_loop(g, [mk(b0), mk(b1), mk(b2), mk(b3)])
    else:
        g1_epilogue(g, [aux0, aux1, aux2, aux3])
    if EST: stamp(g, 10)
    S_(6)
    g.vwait("u")
    g("s_waitcnt lgkmcnt(0)\ns_barrier")
    g.ldops = []
    for x in conv_reads(0): g.ld(x, "cv0")
    S_(7)
    def hflag():
        g.vwait("hst")
        for x in flag_off(WS_FH) + wave_flag_L(52): g.emit(x, "hflag")
    S_(8)
    conv_main(g, hflag)
    if CST: stamp(g, 13)
    S_(9)
    conv_epilogue(g)
    S_(10)
    def zflag():
        g.vwait("zst")
        g(f"s_lshl_b32 s{s_fo}, s2, 2\ns_add_u32 s{s_fo}, s{s_fo}, s{s_w}\ns_lshl_b32 s{s_fo}, s{s_fo}, 6\ns_add_u32 s{s_fo}, s{s_fo}, {WS_FZ}")
        for x in wave_flag_L(52): g.emit(x, "zflag")
    ZFJ = int(os.environ.get('ZFJ', '8'))
    def zcheck(): poll_check(g, "G_p3", "pz")
    zl = []
    for q in range(4):
        for i in range(4):
            zl.append((f"s_add_u32 s{s_t2}, s{s_zp}, {(8*q+i)*4096}\nbuffer_load_ushort v{fz+4*q+i}, v28, s[{sWS}:{sWS+3}], s{s_t2} offen sc1", "z"))
    zl = zl
    def extra(j):
        L = []
        if j == 14: L += T(final_loads_x(), "x")
        if j == ZFJ: L += [("CALL", zflag)]
        if j == 17: L += T(final_z_setup())
        if j == 23: L += poll_issue("pz")
        if j == 20: L += T(final_pre())
        return L
    g2_main(g, extra)
    S_(11)
    zcheck()
    for x, tg in zl: g.emit(x, tg)
    g2_reduce2(g)
    S_(12)
    final(g)
    S_(13)
    if stamps: g("s_waitcnt vmcnt(0)")
    S_(14)

def epoch_update(g):
    g(f"""s_cmp_lg_u32 s2, 224
    s_cbranch_scc1 G_noep
    s_cmp_lg_u32 s{s_w}, 0
    s_cbranch_scc1 G_noep
    v_and_b32 v2, 63, v0
    s_mov_b32 s{s_spin}, 0x8000""")
    for part in range(4):
        g(f"""v_add_u32 v{4+part}, {part*64}, v2
        v_min_u32 v{4+part}, 223, v{4+part}
        v_lshlrev_b32 v{4+part}, 8, v{4+part}
        v_add_u32 v{4+part}, {WS_FZ}, v{4+part}""")
    g(f"""v_min_u32 v8, 31, v2
    v_lshlrev_b32 v8, 6, v8
    v_add_u32 v8, {WS_FA}, v8
    G_ep_loop:""")
    for part in range(5):
        g(f"buffer_load_dword v{10+part}, v{4+part}, s[{sWS}:{sWS+3}], 0 offen sc1")
    g("s_waitcnt vmcnt(0)")
    for part in range(5): g(f"v_xor_b32 v{10+part}, s{s_tag}, v{10+part}")
    g("v_or3_b32 v10, v10, v11, v12\nv_or3_b32 v10, v10, v13, v14\nv_cmp_ne_u32 vcc, 0, v10")
    g(f"""s_cbranch_vccz G_ep_done
    s_sleep 8
    s_sub_u32 s{s_spin}, s{s_spin}, 1
    s_cmp_lg_u32 s{s_spin}, 0
    s_cbranch_scc1 G_ep_loop
    G_ep_done:
    v_mov_b32 v2, {WS_EPOCH}
    v_mov_b32 v3, s{s_tag}
    s_mov_b64 exec, 1
    buffer_store_dword v3, v2, s[{sWS}:{sWS+3}], 0 offen sc1
    s_mov_b64 exec, -1
    s_waitcnt vmcnt(0)
    G_noep:""")

def gen_full(stamps=False):
    g = G()
    g(header([f"grid=(256,1,1) block=(256,1,1) lds={LDS_TOTAL}"]))
    g(kstart(KN))
    g("s_cmp_ge_u32 s2, 224\ns_cbranch_scc1 L_spare")
    if stamps: start_rt(g)
    gemm_path(g, stamps=stamps)
    if stamps: dump_stamps(g)
    g("s_endpgm")
    g("L_spare:")
    g("s_cmp_ge_u32 s2, 256\ns_cbranch_scc1 L_end")
    if stamps: start_rt(g)
    spare(g, flags=True, stamps=stamps)
    epoch_update(g)
    if stamps: dump_stamps(g)
    g("L_end:\ns_endpgm")
    g(kdesc(KN, vgpr=512, sgpr=102, accum=256))
    return g.a.text()
def gen_full_stamps(): return gen_full(stamps=True)
def gen_kst0():
    global KSTAMP, stamp
    KSTAMP = 0
    return gen_kstx()
def gen_kst14():
    global KSTAMP
    KSTAMP = 14
    return gen_kstx()
def gen_est():
    return gen_kstx()
def gen_gst():
    global GSTAMP
    GSTAMP = int(os.environ["GK"])
    return gen_kstx()
def gen_kstx():
    g = G()
    g(header([f"grid=(256,1,1) block=(256,1,1) lds={LDS_TOTAL}"]))
    g(kstart(KN))
    g("s_cmp_ge_u32 s2, 224\ns_cbranch_scc1 L_spare")
    stamp(g, 0)
    gemm_path(g, stamps=False)
    dump_stamps(g)
    g("s_endpgm")
    g("L_spare:")
    g("s_cmp_ge_u32 s2, 256\ns_cbranch_scc1 L_end")
    spare(g, flags=True, stamps=False)
    epoch_update(g)
    g("L_end:\ns_endpgm")
    g(kdesc(KN, vgpr=512, sgpr=102, accum=256))
    return g.a.text()

if __name__ == "__main__":
    import runner
    which = sys.argv[1]
    txt = globals()["gen_"+which]()
    open(f"dev/{which}.s", "w").write(txt)
    runner.build(f"dev/{which}.s", KN, 13)
    from runner import cl
    print("ok", len(txt), cl.address_register_problem(f"dev/{which}.co", KN))
```

```python
import math, struct, sys
from dsl import *

S, D, F = 2048, 448, 1792
KN = "recurrent_scan__ssm_conv_h3__geglu_ffn__prompt_kernel"
def f2u(x): return struct.unpack('<I', struct.pack('<f', x))[0]
def fh(x): return hex(f2u(x))

import os
WSB = int(os.environ.get("WSB", "0"), 0)
WS_EPOCH = WSB + 0
WS_FA = WSB + 0x1000
WS_FK = WSB + 0x10000
WS_FH = WSB + 0x20000
WS_FZ = WSB + 0x30000
WS_STATS = WSB + 0x40000
WS_CS    = WS_STATS + 2048*8
WS_KVT   = WSB + 0x50000
WS_ZP    = WS_KVT + D*S*2
WS_H     = WS_ZP + D*S*2
WS_END   = WS_H + 64*112*1024
WS_STAMPS = 40<<20

KA = dict(q=0,k=8,v=16,shk=24,ssmk=32,ssmD=40,bx=48,wg=56,wu=64,wd=72,out=80,dbg=88,ws=96)
C1 = -2*math.sqrt(2/math.pi)*math.log2(math.e)
C2 = C1*0.044715
LDS_TOTAL = 163840

SPK = os.environ.get('SPK', '0') == '1'
class G:
    def __init__(self):
        self.a = Asm()
        self.vmops = []
        self.ldops = []
        self.stags = set(["hst"])
    def __call__(self, s): self.a(s)
    def vm(self, s, tag=None):
        self.a(s); self.vmops.append(tag)
        if "store" in s: self.stags.add(tag)
    def vwait(self, tag):
        idx = max(i for i, t in enumerate(self.vmops) if t == tag)
        st = tag in self.stags
        n = len(self.vmops) - 1 - idx
        assert n <= 63, n
        self.a(f"s_waitcnt vmcnt({n})")
    def vreset(self): self.vmops = []
    def ld(self, s, tag=None):
        self.a(s); self.ldops.append(tag)
    def lwait(self, tag):
        idx = max(i for i, t in enumerate(self.ldops) if t == tag)
        n = min(15, len(self.ldops) - 1 - idx)
        self.a(f"s_waitcnt lgkmcnt({n})")
    def emit(self, s, tag=None):
        if "\n" in s:
            for x in s.split("\n"): self.emit(x, tag)
        elif s == "VWAIT": self.vwait(tag)
        elif s == "LWAIT": self.lwait(tag)
        elif s.startswith("buffer_"): self.vm(s, tag)
        elif s.startswith("ds_"): self.ld(s, tag)
        else: self.a(s)
    def lab(self, n): self.a.label(n)

def srd_load(g, r, name):
    g(f"s_load_dwordx2 s[{r}:{r+1}], s[0:1], {KA[name]}")
def srd_fix(g, r, size):
    g(f"s_and_b32 s{r+1}, s{r+1}, 0xffff\ns_mov_b32 s{r+2}, {size}\ns_mov_b32 s{r+3}, 0x20000")

sX, sWG, sWU, sWS, sWD, sSK, sOUT, sDD = 4, 8, 12, 16, 20, 24, 28, 32
s_w, s_mi, s_fi, s_mf, s_ns = 36, 37, 38, 39, 40
s_xoff, s_woff, s_m0x, s_m0w = 41, 42, 43, 44
s_t0, s_t1, s_t2, s_t3 = 45, 46, 47, 48
s_hoff = 49
s_tag = 50
s_spin = 51
STAMP0 = 66
NSTAMP = 15
def stamp(g, i, on=True):
    if on: g(f"s_memtime s[{STAMP0+2*i}:{STAMP0+2*i+1}]")
def start_rt(g):
    g("s_memrealtime s[98:99]\ns_waitcnt lgkmcnt(0)\nv_mov_b32 v20, s98\nv_accvgpr_write_b32 a254, v20")
def dump_stamps(g, n=NSTAMP):
    g(f"""s_waitcnt lgkmcnt(0) vmcnt(0)
    s_memrealtime s[{STAMP0+2*n}:{STAMP0+2*n+1}]
    s_waitcnt lgkmcnt(0)
    s_mov_b32 s{sWS+2}, 0x7fffffff
    s_lshl_b32 s{s_t0}, s2, 9
    s_lshl_b32 s{s_t1}, s{s_w}, 7
    s_add_u32 s{s_t0}, s{s_t0}, s{s_t1}
    s_add_u32 s{s_t0}, s{s_t0}, {WS_STAMPS}
    v_mov_b32 v2, 0""")
    for i in range(n+1):
        g(f"v_mov_b32 v3, s{STAMP0+2*i}\nbuffer_store_dword v3, v2, s[{sWS}:{sWS+3}], s{s_t0} offen offset:{4*i}")
    g(f"v_accvgpr_read_b32 v3, a254\nbuffer_store_dword v3, v2, s[{sWS}:{sWS+3}], s{s_t0} offen offset:{4*(n+1)}")
    g("s_waitcnt vmcnt(0)")

def load_tag(g):
    g(f"s_mov_b32 s{s_spin}, {WS_EPOCH}\ns_load_dword s{s_tag}, s[{sWS}:{sWS+1}], s{s_spin}")
def make_tag(g):
    g(f"s_mul_i32 s{s_tag}, s{s_tag}, 0x9E3779B1\ns_add_u32 s{s_tag}, s{s_tag}, 0x7F4A7C15")

def rnd_bf16(g, r, tmp=None):
    g(f"v_cvt_pk_bf16_f32 v{r}, v{r}, v{r}\nv_lshlrev_b32 v{r}, 16, v{r}")

def publish_flag(g, off_expr_sgpr, lab):
    g("s_waitcnt vmcnt(0)\ns_barrier")
    g(f"""s_cmp_lg_u32 s{s_w}, 0
    s_cbranch_scc1 {lab}
    v_mov_b32 v2, 0
    v_mov_b32 v3, s{s_tag}
    s_mov_b64 exec, 1
    buffer_store_dword v3, v2, s[{sWS}:{sWS+3}], s{off_expr_sgpr} offen sc1
    s_mov_b64 exec, -1
    {lab}:""")

def flag_store(g, off_sgpr, lab, vt=14):
    g(f"""s_cmp_lg_u32 s{s_w}, 0
    s_cbranch_scc1 {lab}
    v_mov_b32 v{vt}, 0
    v_mov_b32 v{vt+1}, s{s_tag}
    s_mov_b64 exec, 1
    buffer_store_dword v{vt+1}, v{vt}, s[{sWS}:{sWS+3}], s{off_sgpr} offen sc1
    s_mov_b64 exec, -1
    {lab}:""")


def spare_k(g, sK, sV, sSH):
    LK, LV, LO = SLK, SLV, SLO
    vl = 1
    kB1, kB2 = 72, 76
    A, V, Dd, U, O = 20, 52, 96, 112, 60
    g(f"""
    v_lshrrev_b32 v8, 2, v3
    v_and_b32 v9, 3, v3
    v_lshl_add_u32 v8, v8, 4, v9              ; 16(m>>2) + (m&3)
    v_lshrrev_b32 v9, 1, v4
    v_sub_u32 v8, v8, v9
    v_add_u32 v8, 1, v8
    v_mul_u32_u24 v8, 896, v8
    v_and_b32 v9, 1, v4
    v_lshl_add_u32 v8, v9, 4, v8
    s_lshl_b32 s{s_t0}, s{s_w}, 5
    s_add_u32 s{s_t1}, s{s_t0}, {LK}
    v_add_u32 v80, s{s_t1}, v8
    v_lshrrev_b32 v8, 2, v3
    v_lshl_add_u32 v8, v4, 4, v8              ; 16q + (i>>2)
    v_mul_u32_u24 v8, 896, v8
    v_and_b32 v9, 3, v3
    v_lshl_add_u32 v8, v9, 3, v8
    s_add_u32 s{s_t1}, s{s_t0}, {LV}
    v_add_u32 v81, s{s_t1}, v8                ; V addr
    v_lshlrev_b32 v8, 1, v4
    v_sub_u32 v8, 6, v8
    v_and_b32 v9, 7, v3
    v_xor_b32 v8, v8, v9
    v_xor_b32 v9, 1, v8
    v_lshlrev_b32 v83, 7, v3
    s_lshl_b32 s{s_t1}, s{s_w}, 11
    s_add_u32 s{s_t1}, s{s_t1}, {LO}
    v_add_u32 v83, s{s_t1}, v83
    v_lshl_add_u32 v82, v8, 4, v83
    v_lshl_add_u32 v83, v9, 4, v83
    v_lshrrev_b32 v8, 3, v{vl}
    v_and_b32 v9, 7, v{vl}
    v_xor_b32 v84, v9, v8
    v_lshlrev_b32 v85, 7, v8
    v_lshl_add_u32 v84, v84, 4, v85
    v_add_u32 v84, s{s_t1}, v84
    v_lshlrev_b32 v85, 12, v8
    v_lshl_add_u32 v85, v9, 4, v85
    s_lshl_b32 s{s_t0}, s{s_w}, 16            ; 16w channels * 4096
    s_lshl_b32 s{s_t1}, s52, 7                ; 64rb*2
    s_sub_u32 s60, s{s_t0}, s{s_t1}
    s_add_u32 s60, s60, {WS_KVT + 1984*2}     ; store soffset ; += 64*4096 per iteration
    v_lshlrev_b32 v86, 3, v3
    s_lshl_b32 s61, s{s_w}, 7
    v_lshrrev_b32 v87, 1, v4
    v_lshlrev_b32 v87, 4, v87                 ; 16*(kq>>1)
    v_and_b32 v88, 1, v3
    v_lshlrev_b32 v88, 4, v88                 ; 16*(n&1)
    v_lshrrev_b32 v89, 3, v3
    v_and_b32 v90, 1, v4
    v_cmp_eq_u32 s[62:63], v89, v90
    v_bfe_u32 v89, v3, 1, 2                   ; (n&7)>>1
    v_cmp_eq_u32 s[64:65], 0, v89
    v_cmp_eq_u32 s[66:67], 1, v89
    v_cmp_eq_u32 s[68:69], 2, v89
    v_cmp_eq_u32 s[70:71], 3, v89
    s_mov_b32 s72, 0
    buffer_load_dwordx2 v[92:93], v86, s[{sSH}:{sSH+3}], s61 offen
    s_waitcnt vmcnt(0)
    s_barrier
    """)
    g.lab("SPK_loop")
    for t in range(4):
        g(f"ds_read_b128 v[{A+8*t}:{A+8*t+3}], v80 offset:{4*896*t+2*896}")
        g(f"ds_read_b128 v[{A+8*t+4}:{A+8*t+7}], v80 offset:{4*896*t}")
    for t in range(4):
        g(f"ds_read_b64_tr_b16 v[{V+2*t}:{V+2*t+1}], v81 offset:{4*896*t}")
    g(f"""
    s_waitcnt vmcnt(2)
    v_lshrrev_b32 v94, v87, v92
    v_lshrrev_b32 v95, v87, v93
    v_and_b32 v94, 0xffff, v94
    v_and_b32 v95, 0xffff, v95
    v_lshlrev_b32 v94, v88, v94
    v_lshlrev_b32 v95, v88, v95
    v_cndmask_b32 v94, 0, v94, s[62:63]
    v_cndmask_b32 v95, 0, v95, s[62:63]
    s_add_u32 s61, s61, 512
    buffer_load_dwordx2 v[92:93], v86, s[{sSH}:{sSH+3}], s61 offen
    """)
    for i in range(4):
        g(f"v_cndmask_b32 v{kB1+i}, 0, v94, s[{64+2*i}:{65+2*i}]\nv_cndmask_b32 v{kB2+i}, 0, v95, s[{64+2*i}:{65+2*i}]")
    g("v_add_u32 v80, 128, v80\nv_add_u32 v81, 128, v81")
    for t in range(4):
        g(f"s_waitcnt lgkmcnt({10-2*t})")
        g(f"v_mfma_f32_16x16x32_bf16 v[{Dd+4*t}:{Dd+4*t+3}], v[{A+8*t}:{A+8*t+3}], v[{kB1}:{kB1+3}], 0")
        g(f"v_mfma_f32_16x16x32_bf16 v[{Dd+4*t}:{Dd+4*t+3}], v[{A+8*t+4}:{A+8*t+7}], v[{kB2}:{kB2+3}], v[{Dd+4*t}:{Dd+4*t+3}]")
    g("s_waitcnt lgkmcnt(0)")
    for t in range(4):
        for h_ in range(2):
            g(f"v_lshlrev_b32 v{U+4*t+2*h_}, 16, v{V+2*t+h_}\nv_and_b32 v{U+4*t+2*h_+1}, 0xffff0000, v{V+2*t+h_}")
    for t in range(4):
        for h_ in range(2):
            g(f"v_pk_mul_f32 v[{Dd+4*t+2*h_}:{Dd+4*t+2*h_+1}], v[{Dd+4*t+2*h_}:{Dd+4*t+2*h_+1}], v[{U+4*t+2*h_}:{U+4*t+2*h_+1}]")
    for e in range(8):
        t = 3 - (e >> 1); r = 3 - 2*(e & 1)
        g(f"v_cvt_pk_bf16_f32 v{O+e}, v{Dd+4*t+r}, v{Dd+4*t+r-1}")
    g(f"""ds_write_b128 v82, v[{O}:{O+3}]
    ds_write_b128 v83, v[{O+4}:{O+7}]
    ds_read_b128 v[{U}:{U+3}], v84
    ds_read_b128 v[{U+4}:{U+7}], v84 offset:1024
    s_add_u32 s73, s60, {8*4096}
    s_waitcnt lgkmcnt(0)
    buffer_store_dwordx4 v[{U}:{U+3}], v85, s[{sWS}:{sWS+3}], s60 offen sc1
    buffer_store_dwordx4 v[{U+4}:{U+7}], v85, s[{sWS}:{sWS+3}], s73 offen sc1
    s_add_u32 s60, s60, {64*4096}
    s_add_u32 s72, s72, 1
    s_cmp_lt_u32 s72, 7
    s_cbranch_scc1 SPK_loop
    """)
SLK = 73728
SLV = 16384
SLO = 135168

def spare(g, flags=True, stamps=False):
    sWC = 32
    s_j = 37
    vl = 1
    LC = 0
    sK, sV, sSH = 20, 24, 28
    srd_load(g, sX, 'q'); srd_load(g, sWG, 'wg'); srd_load(g, sWU, 'wu'); srd_load(g, sWS, 'ws')
    srd_load(g, sK, 'k'); srd_load(g, sV, 'v'); srd_load(g, sSH, 'shk')
    g(f"""
    v_and_b32 v{vl}, 63, v0
    v_lshrrev_b32 v2, 6, v0
    s_sub_u32 s{s_j}, s2, 224
    v_readfirstlane_b32 s{s_w}, v2
    v_and_b32 v3, 15, v{vl}              ; n / p
    v_lshrrev_b32 v4, 4, v{vl}           ; q / rgl
    s_lshl_b32 s{s_t0}, s{s_w}, 4
    v_add_u32 v5, s{s_t0}, v3            ; 16w + n
    v_mul_u32_u24 v5, 896, v5
    v_lshl_add_u32 v5, v4, 4, v5         ; R voffset
    s_and_b32 s{s_t0}, s{s_j}, 7              ; xcd
    s_lshr_b32 s{s_t1}, s{s_j}, 3             ; q
    s_lshr_b32 s{s_t2}, s{s_t0}, 1            ; xcd>>1
    s_and_b32 s{s_t0}, s{s_t0}, 1             ; p
    s_lshl_b32 s52, s{s_t2}, 3
    s_lshl_b32 s53, s{s_t0}, 2
    s_add_u32 s52, s52, s53
    s_add_u32 s52, s52, s{s_t1}               ; s52 = rb = 8*(x>>1) + 4p + q
    s_lshl_b32 s53, s{s_t2}, 2
    s_add_u32 s53, s53, s{s_t1}               ; s53 = i = 4*(x>>1) + q
    s_mul_i32 s54, s{s_t0}, 7                 ; 7p
    s_mul_i32 s{s_xoff}, s52, {64*896}
    s_lshl_b32 s{s_t0}, s{s_w}, 2
    v_add_u32 v6, s{s_t0}, v4
    v_mul_u32_u24 v6, 3584, v6
    v_lshl_add_u32 v6, v3, 4, v6         ; C voffset
    s_cmp_ge_u32 s53, 7
    s_cselect_b32 s{s_t1}, 7, 0
    s_sub_u32 s{s_fi}, s53, s{s_t1}
    s_add_u32 s{s_fi}, s{s_fi}, s54      ; fb
    s_lshl_b32 s{s_woff}, s{s_fi}, 8
    s_waitcnt lgkmcnt(0)
    """)
    load_tag(g)
    g(f"""s_cmp_ge_u32 s53, 7
    s_cselect_b32 s{sWC}, s{sWU}, s{sWG}
    s_cselect_b32 s{sWC+1}, s{sWU+1}, s{sWG+1}""")
    srd_fix(g, sX, S*D*2); srd_fix(g, sWC, D*F*2); srd_fix(g, sWS, WS_END)
    srd_fix(g, sK, S*D*2); srd_fix(g, sV, S*D*2); srd_fix(g, sSH, D*8)
    stamp(g, 0, stamps)
    RB = 16
    CB = 72
    CA = 200
    LR = 16384
    g(f"v_lshlrev_b32 v7, 4, v{vl}")
    g(f"s_cmp_ge_u32 s53, 14\ns_cbranch_scc1 SP_noC1")
    g(f"s_mov_b32 s{s_t3}, s{s_woff}")
    for i in range(28):
        g(f"buffer_load_dwordx4 v[{CB+4*i}:{CB+4*i+3}], v6, s[{sWC}:{sWC+3}], s{s_t3} offen")
        if i < 27: g(f"s_add_u32 s{s_t3}, s{s_t3}, {16*3584}")
    g.lab("SP_noC1")
    g(f"s_mul_i32 s{s_t0}, s{s_w}, 14336\ns_add_u32 m0, s{s_t0}, {LR}\ns_add_u32 s{s_t1}, s{s_xoff}, s{s_t0}")
    for i in range(14):
        if i and i % 4 == 0: g(f"s_add_u32 m0, m0, 4096\ns_add_u32 s{s_t1}, s{s_t1}, 4096")
        g(f"buffer_load_dwordx4 v7, s[{sX}:{sX+3}], s{s_t1} offen offset:{1024*(i%4)} lds")
    def dma14(sr, ldsbase):
        g(f"s_mul_i32 s{s_t0}, s{s_w}, 14336\ns_add_u32 m0, s{s_t0}, {ldsbase}\ns_add_u32 s{s_t1}, s{s_xoff}, s{s_t0}")
        for i in range(14):
            if i and i % 4 == 0: g(f"s_add_u32 m0, m0, 4096\ns_add_u32 s{s_t1}, s{s_t1}, 4096")
            g(f"buffer_load_dwordx4 v7, s[{sK if sr == 'k' else sV}:{(sK if sr == 'k' else sV)+3}], s{s_t1} offen offset:{1024*(i%4)} lds")
    if SPK:
        dma14('k', SLK + 2688)
        g(f"""s_cmp_lg_u32 s{s_w}, 3
    s_cbranch_scc1 SP_halo_done
    s_cmp_eq_u32 s52, 0
    s_cbranch_scc1 SP_halo_zero
    s_sub_u32 s{s_t1}, s{s_xoff}, 2688
    s_mov_b32 m0, {SLK}
    s_nop 0
    buffer_load_dwordx4 v7, s[{sK}:{sK+3}], s{s_t1} offen lds
    buffer_load_dwordx4 v7, s[{sK}:{sK+3}], s{s_t1} offen offset:1024 lds
    s_mov_b32 exec_hi, 0xff
    buffer_load_dwordx4 v7, s[{sK}:{sK+3}], s{s_t1} offen offset:2048 lds
    s_mov_b32 exec_hi, -1
    s_branch SP_halo_done
    SP_halo_zero:
    v_mov_b32 v12, 0
    v_mov_b32 v13, 0
    v_mov_b32 v14, 0
    v_mov_b32 v15, 0
    v_add_u32 v2, {SLK}, v7
    ds_write_b128 v2, v[12:15]
    ds_write_b128 v2, v[12:15] offset:1024
    s_mov_b32 exec_hi, 0xff
    ds_write_b128 v2, v[12:15] offset:2048
    s_mov_b32 exec_hi, -1
    SP_halo_done:
        """)
    stamp(g, 1, stamps)
    g(f"s_cmp_ge_u32 s53, 14\ns_cbranch_scc1 SP_noC1b")
    g(f"s_mov_b32 s90, 0x00003f80\ns_mov_b32 s91, 0x3f800000")
    for c in range(8): g(f"v_mov_b32 v{CA+c}, 0")
    g(f"s_waitcnt vmcnt({35 if SPK else 21})\ns_mov_b32 s{s_t0}, 0")
    g.lab("SP_Cloop")
    g(f"s_set_gpr_idx_on s{s_t0}, gpr_idx(SRC0)")
    for i in range(7):
        for q in range(4):
            g(f"v_dot2_f32_bf16 v{CA+2*q}, v{CB+4*i+q}, s90, v{CA+2*q}")
            g(f"v_dot2_f32_bf16 v{CA+2*q+1}, v{CB+4*i+q}, s91, v{CA+2*q+1}")
    g(f"""s_set_gpr_idx_off
    s_add_u32 s{s_t0}, s{s_t0}, 28
    s_waitcnt vmcnt({28 if SPK else 14})
    s_cmp_lt_u32 s{s_t0}, 112
    s_cbranch_scc1 SP_Cloop""")
    g(f"""
    s_lshl_b32 s{s_t0}, s{s_w}, 2
    v_add_u32 v13, s{s_t0}, v4            ; rg
    v_lshlrev_b32 v13, 9, v13
    v_lshl_add_u32 v13, v3, 5, v13
    s_nop 2
    ds_write_b128 v13, v[{CA}:{CA+3}]
    ds_write_b128 v13, v[{CA+4}:{CA+7}] offset:16
    SP_noC1b:
    """)
    g(f"""
    s_mul_i32 s{s_t0}, s{s_w}, 14336
    s_add_u32 s{s_t0}, s{s_t0}, {LR}
    v_mul_u32_u24 v5, 896, v3
    v_lshl_add_u32 v5, v4, 4, v5
    v_add_u32 v5, s{s_t0}, v5
    s_waitcnt vmcnt({14 if SPK else 0})
    """)
    for ks in range(14): g(f"ds_read_b128 v[{RB+4*ks}:{RB+4*ks+3}], v5 offset:{64*ks}")
    g("v_mov_b32 v8, 0x3f803f80\nv_mov_b32 v9, 0x3f803f80\nv_mov_b32 v10, 0x3f803f80\nv_mov_b32 v11, 0x3f803f80\ns_waitcnt lgkmcnt(0)\ns_barrier")
    D1, D2 = 184, 188
    for ks in range(14):
        A = f"v[{RB+4*ks}:{RB+4*ks+3}]"
        c1 = "0" if ks == 0 else f"v[{D1}:{D1+3}]"
        c2 = "0" if ks == 0 else f"v[{D2}:{D2+3}]"
        g(f"v_mfma_f32_16x16x32_bf16 v[{D1}:{D1+3}], {A}, v[8:11], {c1}")
        g(f"v_mfma_f32_16x16x32_bf16 v[{D2}:{D2+3}], {A}, {A}, {c2}")
    g(f"""
    v_and_b32 v12, 3, v{vl}
    v_cmp_eq_u32 s[90:91], 1, v12
    v_cmp_eq_u32 s[92:93], 2, v12
    v_cmp_eq_u32 s[94:95], 3, v12
    v_lshrrev_b32 v13, 2, v3              ; n>>2
    v_cmp_eq_u32 s[96:97], v13, v4        ; q == n>>2
    s_nop 7
    v_cndmask_b32 v{D1}, v{D1}, v{D1+1}, s[90:91]
    v_cndmask_b32 v{D2}, v{D2}, v{D2+1}, s[90:91]
    v_cndmask_b32 v{D1}, v{D1}, v{D1+2}, s[92:93]
    v_cndmask_b32 v{D2}, v{D2}, v{D2+2}, s[92:93]
    v_cndmask_b32 v{D1}, v{D1}, v{D1+3}, s[94:95]
    v_cndmask_b32 v{D2}, v{D2}, v{D2+3}, s[94:95]
    v_mul_f32 v{D1}, {fh(1.0/448)}, v{D1}            ; mean
    v_mul_f32 v{D2}, {fh(1.0/448)}, v{D2}            ; E[x^2]
    v_fma_f32 v{D2}, -v{D1}, v{D1}, v{D2}            ; var
    v_max_f32 v{D2}, 0, v{D2}
    """)
    rnd_bf16(g, D1); rnd_bf16(g, D2)
    g(f"v_add_f32 v{D2}, {fh(1e-5)}, v{D2}"); rnd_bf16(g, D2)
    g(f"v_sqrt_f32 v{D2}, v{D2}\ns_nop 0"); rnd_bf16(g, D2)
    g(f"""
    v_mov_b32 v{D1+1}, v{D2}
    s_lshl_b32 s{s_t0}, s52, 9
    s_lshl_b32 s{s_t1}, s{s_w}, 7
    s_add_u32 s{s_t0}, s{s_t0}, s{s_t1}
    s_add_u32 s{s_t0}, s{s_t0}, {WS_STATS}
    v_lshlrev_b32 v13, 3, v3
    s_mov_b64 exec, s[96:97]
    buffer_store_dwordx2 v[{D1}:{D1+1}], v13, s[{sWS}:{sWS+3}], s{s_t0} offen sc1
    s_mov_b64 exec, -1
    """)
    stamp(g, 2, stamps)
    g(f"""s_cmp_ge_u32 s53, 14
    s_cbranch_scc1 SP_noC2
    s_cmp_ge_u32 s{s_w}, 2
    s_cbranch_scc1 SP_noC2
    v_lshlrev_b32 v13, 2, v0
    v_mov_b32 v14, v13
    """)
    for r in range(16): g(f"ds_read_b32 v{CB+r}, v14 offset:{512*r}")
    g("s_waitcnt lgkmcnt(0)")
    for r in range(8): g(f"v_add_f32 v{CB+r}, v{CB+r}, v{CB+r+8}")
    for r in range(4): g(f"v_add_f32 v{CB+r}, v{CB+r}, v{CB+r+4}")
    g(f"v_add_f32 v{CB}, v{CB}, v{CB+2}\nv_add_f32 v{CB+1}, v{CB+1}, v{CB+3}\nv_add_f32 v{CB}, v{CB}, v{CB+1}")
    g(f"""
    s_cmp_ge_u32 s53, 7
    s_cselect_b32 s{s_t0}, 7168, 0
    s_lshl_b32 s{s_t1}, s{s_fi}, 9
    s_add_u32 s{s_t0}, s{s_t0}, s{s_t1}
    s_add_u32 s{s_t0}, s{s_t0}, {WS_CS}
    buffer_store_dword v{CB}, v13, s[{sWS}:{sWS+3}], s{s_t0} offen sc1
    SP_noC2:
    """)
    stamp(g, 3, stamps)
    g("s_waitcnt vmcnt(0) lgkmcnt(0)")
    make_tag(g)
    g("s_barrier")
    if flags:
        g(f"s_lshl_b32 s{s_t0}, s{s_j}, 6\ns_add_u32 s{s_t0}, s{s_t0}, {WS_FA}")
        flag_store(g, s_t0, "SP_nf1")
    stamp(g, 4, stamps)
    if SPK:
        dma14('v', SLV)
        spare_k(g, sK, sV, sSH)
        g("s_waitcnt vmcnt(0)\ns_barrier")
        g(f"s_lshl_b32 s{s_t0}, s{s_j}, 6\ns_add_u32 s{s_t0}, s{s_t0}, {WS_FK}")
        flag_store(g, s_t0, "SP_nf2")
        stamp(g, 5, stamps)


def lines(txt):
    out = []
    for l in txt.strip().split("\n"):
        l = l.split(";")[0].strip()
        if l: out.append(l)
    return out
def emit_mixed(g, L, tag):
    for x in L: g.emit(x, tag)
def T(L, tag=None):
    L = lines(L) if isinstance(L, str) else list(L)
    out = []; cur = None
    for x in L:
        if "\n" in x:
            out.append((x, tag))
        elif x.startswith("s_mov_b64 exec,") and not x.endswith("-1"):
            cur = [x]
        elif cur is not None:
            cur.append(x)
            if x == "s_mov_b64 exec, -1":
                out.append(("\n".join(cur), tag)); cur = None
        else:
            out.append((x, tag))
    assert cur is None
    return out

LX = 0; LW = 49152
LKT = 147968; LVT = LKT + 4352; LKO = LKT + 8448
LST = 18432
RING = 20480
LCV = 114688; CVCOPY = 4160; CVCH = 4*CVCOPY
LU = 152576; CVUS = 5120
E1B = 81920; E2B = 16384

sKK, sVV, sSH = 20, 24, 28
sWD2, sSK2, sOUT2 = 56, 60, 8
s_kv, s_kk, s_kt, s_ko = 32, 33, 34, 35
s_hi, s_ct = 52, 53
s_zoff = 54
s_pb = 55
s_t4 = 3

v_lane = 1
v_xd = 2
v_wd = 6
v_xa = 10
v_wa = 14
v_l16 = 18
v_fr = 20
v_poll = 126
v_hv = 70
v_tch = 71
v_acc = 128
def accg(ft, nt): return v_acc + (ft*2+nt)*16
def accu(ft, nt): return v_acc + 64 + (ft*2+nt)*16
kB1, kB2, kvA, kvV, kvOW, kvOR, kvG, kvD0, kvD1 = 72, 76, 80, 81, 82, 83, 84, 85, 86
kA, kV, kD, kU, kO = 88, 104, 108, 116, 124

def poll_check(g, name, issued_tag):
    vt = v_poll
    if issued_tag is not None:
        g.vwait(issued_tag)
        g(f"v_cmp_ne_u32 vcc, s{s_tag}, v{vt+1}\ns_cbranch_vccz {name}_done")
    g(f"""
    s_mov_b32 s{s_spin}, 0x8000
    {name}_loop:
    buffer_load_dword v{vt+1}, v{vt}, s[{sWS}:{sWS+3}], s{s_pb} offen sc1
    s_waitcnt vmcnt(0)
    v_cmp_ne_u32 vcc, s{s_tag}, v{vt+1}
    s_cbranch_vccz {name}_done
    s_sleep 1
    s_sub_u32 s{s_spin}, s{s_spin}, 1
    s_cmp_lg_u32 s{s_spin}, 0
    s_cbranch_scc1 {name}_loop
    {name}_done:
    """)
def poll_issue(tag): return [(f"buffer_load_dword v{v_poll+1}, v{v_poll}, s[{sWS}:{sWS+3}], s{s_pb} offen sc1", tag)]
def wave_flag(g, off_sgpr):
    g(f"""v_mov_b32 v{v_hv}, 0
    v_mov_b32 v{v_tch}, s{s_tag}
    s_mov_b64 exec, 1""")
    g.vm(f"buffer_store_dword v{v_tch}, v{v_hv}, s[{sWS}:{sWS+3}], s{off_sgpr} offen sc1", "flag")
    g("s_mov_b64 exec, -1")

def g1_prologue(g):
    srd_load(g, sX, 'q'); srd_load(g, sWG, 'wg'); srd_load(g, sWU, 'wu')
    srd_load(g, sKK, 'k'); srd_load(g, sVV, 'v'); srd_load(g, sSH, 'shk'); srd_load(g, sWS, 'ws')
    srd_load(g, sWD2, 'wd'); srd_load(g, sSK2, 'ssmk'); srd_load(g, 64, 'out'); srd_load(g, 96, 'ssmD')
    g(f"""
    v_and_b32 v{v_lane}, 63, v0
    v_lshrrev_b32 v20, 6, v0
    s_lshr_b32 s{s_t0}, s2, 3
    s_and_b32 s{s_t1}, s2, 7
    v_readfirstlane_b32 s{s_w}, v20
    s_mul_i32 s{s_t2}, s{s_t0}, 37
    s_lshr_b32 s{s_t2}, s{s_t2}, 8
    s_mul_i32 s{s_t3}, s{s_t2}, 7
    s_sub_u32 s{s_ct}, s{s_t0}, s{s_t3}
    s_lshr_b32 s{s_mi}, s{s_t1}, 1
    s_lshl_b32 s{s_mi}, s{s_mi}, 2
    s_add_u32 s{s_mi}, s{s_mi}, s{s_t2}
    s_and_b32 s{s_hi}, s{s_t1}, 1
    s_mul_i32 s{s_t1}, s{s_hi}, 7
    s_add_u32 s{s_fi}, s{s_ct}, s{s_t1}
    v_lshrrev_b32 v20, 3, v{v_lane}
    v_lshrrev_b32 v21, 4, v{v_lane}
    v_and_b32 v22, 7, v{v_lane}
    v_mul_u32_u24 v20, 896, v20
    v_xor_b32 v23, v22, v21
    v_xor_b32 v28, 4, v23
    v_lshl_add_u32 v{v_xd}, v23, 4, v20
    v_lshl_add_u32 v28, v28, 4, v20
    v_add_u32 v{v_xd+1}, {8*896-1024}, v28
    v_add_u32 v{v_xd+2}, {2*(8*896-1024)}, v{v_xd}
    v_add_u32 v{v_xd+3}, {3*(8*896-1024)}, v28
    v_and_b32 v22, 15, v{v_lane}
    v_lshlrev_b32 v23, 2, v21
    v_sub_u32 v22, v22, v23
    v_and_b32 v22, 15, v22
    v_mul_u32_u24 v23, 3584, v21
    v_lshl_add_u32 v{v_wd}, v22, 4, v23
    v_add_u32 v{v_wd+1}, {4*3584-1024}, v{v_wd}
    v_add_u32 v{v_wd+2}, {2*(4*3584-1024)}, v{v_wd}
    v_add_u32 v{v_wd+3}, {3*(4*3584-1024)}, v{v_wd}
    s_lshl_b32 s{s_t0}, s{s_mi}, 7
    s_lshl_b32 s{s_t1}, s{s_w}, 5
    s_add_u32 s{s_t0}, s{s_t0}, s{s_t1}
    s_mul_i32 s{s_xoff}, s{s_t0}, 896
    s_mul_i32 s{s_woff}, s{s_w}, {16*3584}
    s_lshl_b32 s{s_t0}, s{s_fi}, 8
    s_add_u32 s{s_woff}, s{s_woff}, s{s_t0}
    s_lshl_b32 s{s_m0x}, s{s_w}, 12
    s_add_u32 s{s_m0w}, s{s_m0x}, {LW}
    s_and_b32 s{s_mf}, s{s_w}, 1
    s_lshr_b32 s{s_ns}, s{s_w}, 1
    s_lshl_b32 s{s_t4}, s{s_w}, 11
    v_lshlrev_b32 v{v_l16}, 4, v{v_lane}
    s_waitcnt lgkmcnt(0)
    """)
    srd_fix(g, sX, S*D*2); srd_fix(g, sWG, D*F*2); srd_fix(g, sWU, D*F*2)

def g1_dma_x(c):
    sl = c % 3
    L = [f"s_add_u32 m0, s{s_m0x}, {LX + sl*16384}", f"s_add_u32 s{s_t3}, s{s_xoff}, {128*c}"]
    for ii in range(4):
        L.append(f"buffer_load_dwordx4 v{v_xd+ii}, s[{sX}:{sX+3}], s{s_t3} offen offset:{1024*ii} lds")
    return L
def g1_dma_w(c, mat):
    sl = c % 3
    sr = sWG if mat == 0 else sWU
    L = [f"s_add_u32 m0, s{s_m0w}, {sl*32768 + mat*16384}", f"s_add_u32 s{s_t3}, s{s_woff}, {64*c*3584}"]
    for ii in range(4):
        L.append(f"buffer_load_dwordx4 v{v_wd+ii}, s[{sr}:{sr+3}], s{s_t3} offen offset:{1024*ii} lds")
    return L
def g1_groups(c): return [g1_dma_x(c), g1_dma_w(c,0), g1_dma_w(c,1)]

def kp_setup_dma():
    return lines(f"""
    v_lshrrev_b32 v104, 2, v{v_lane}
    v_and_b32 v105, 3, v{v_lane}
    v_mul_u32_u24 v104, 896, v104
    v_lshl_add_u32 v{kvD1}, v105, 4, v104
    s_lshl_b32 s{s_t0}, s{s_mi}, 7
    s_lshl_b32 s{s_t2}, s{s_fi}, 6
    s_add_u32 s{s_t1}, s{s_t0}, 61
    s_mul_i32 s{s_kt}, s{s_t1}, 896
    s_add_u32 s{s_kt}, s{s_kt}, s{s_t2}
    s_lshl_b32 s{s_t1}, s{s_w}, 4
    s_add_u32 s{s_t0}, s{s_t0}, s{s_t1}
    s_mul_i32 s{s_kv}, s{s_t0}, 896
    s_add_u32 s{s_kv}, s{s_kv}, s{s_t2}
    s_cmp_eq_u32 s{s_t0}, 0
    s_cselect_b32 s{s_t1}, 0, 2688
    s_cselect_b32 s{s_t2}, 2688, 0
    s_sub_u32 s{s_kk}, s{s_kv}, s{s_t1}
    v_subrev_u32 v{kvD0}, s{s_t2}, v{kvD1}
    """)
def kp_dma(h):
    NL = "\n"
    if h == 0:
        return [NL.join([f"s_lshr_b32 s{s_t0}, s{s_t4}, 1", f"s_add_u32 m0, s{s_t0}, {LKT}", "s_nop 0",
                         f"buffer_load_dwordx4 v{kvD0}, s[{sKK}:{sKK+3}], s{s_kk} offen lds"]),
                NL.join([f"s_lshr_b32 s{s_t0}, s{s_t4}, 1", f"s_add_u32 m0, s{s_t0}, {LVT}", "s_nop 0",
                         f"buffer_load_dwordx4 v{kvD1}, s[{sVV}:{sVV+3}], s{s_kv} offen lds"]),
                NL.join([f"s_mov_b32 m0, {LKT+4096}", "s_mov_b64 exec, 0xfff",
                         f"buffer_load_dwordx4 v{kvD1}, s[{sKK}:{sKK+3}], s{s_kt} offen lds", "s_mov_b64 exec, -1"])]
    return [NL.join([f"s_lshr_b32 s{s_t0}, s{s_t4}, 1", f"s_add_u32 m0, s{s_t0}, {LKT}", f"s_add_u32 s{s_t1}, s{s_kv}, {57344-2688}",
                     f"buffer_load_dwordx4 v{kvD1}, s[{sKK}:{sKK+3}], s{s_t1} offen lds"]),
            NL.join([f"s_lshr_b32 s{s_t0}, s{s_t4}, 1", f"s_add_u32 m0, s{s_t0}, {LVT}", f"s_add_u32 s{s_t1}, s{s_kv}, 57344",
                     f"buffer_load_dwordx4 v{kvD1}, s[{sVV}:{sVV+3}], s{s_t1} offen lds"]),
            NL.join([f"s_mov_b32 m0, {LKT+4096}", f"s_add_u32 s{s_t1}, s{s_kt}, 57344", "s_mov_b64 exec, 0xfff",
                     f"buffer_load_dwordx4 v{kvD1}, s[{sKK}:{sKK+3}], s{s_t1} offen lds", "s_mov_b64 exec, -1"])]
def kp_shk_load():
    return lines(f"""
    v_and_b32 v{kA+2}, 15, v{v_lane}
    s_lshl_b32 s{s_t0}, s{s_fi}, 5
    s_lshl_b32 s{s_t1}, s{s_mf}, 4
    s_add_u32 s{s_t0}, s{s_t0}, s{s_t1}
    s_lshl_b32 s{s_t1}, s{s_t0}, 3
    v_lshlrev_b32 v{kA+3}, 3, v{kA+2}
    buffer_load_dwordx2 v[{kA}:{kA+1}], v{kA+3}, s[{sSH}:{sSH+3}], s{s_t1} offen
    """)
def kp_setup_addr():
    n, kq, t0, t1 = 104, 105, 106, 107
    return lines(f"""
    v_and_b32 v{n}, 15, v{v_lane}
    v_lshrrev_b32 v{kq}, 4, v{v_lane}
    v_lshrrev_b32 v{t0}, 2, v{n}
    v_and_b32 v{t1}, 3, v{n}
    v_lshl_add_u32 v{t0}, v{t0}, 3, v{t1}
    v_lshrrev_b32 v{t1}, 1, v{kq}
    v_sub_u32 v{t0}, v{t0}, v{t1}
    v_add_u32 v{t0}, 1, v{t0}
    s_lshl_b32 s{s_t0}, s{s_ns}, 5
    v_add_u32 v{t0}, s{s_t0}, v{t0}
    v_lshlrev_b32 v{t0}, 6, v{t0}
    v_and_b32 v{t1}, 1, v{kq}
    v_lshl_add_u32 v{t0}, v{t1}, 4, v{t0}
    s_lshl_b32 s{s_t1}, s{s_mf}, 5
    s_add_u32 s{s_t2}, s{s_t1}, {LKT}
    v_add_u32 v{kvA}, s{s_t2}, v{t0}
    v_lshrrev_b32 v{t0}, 2, v{n}
    v_lshl_add_u32 v{t0}, v{kq}, 3, v{t0}
    v_add_u32 v{t0}, s{s_t0}, v{t0}
    v_lshlrev_b32 v{t0}, 6, v{t0}
    v_and_b32 v{t1}, 3, v{n}
    v_lshl_add_u32 v{t0}, v{t1}, 3, v{t0}
    s_add_u32 s{s_t2}, s{s_t1}, {LVT}
    v_add_u32 v{kvV}, s{s_t2}, v{t0}
    s_lshr_b32 s{s_t0}, s{s_t4}, 1
    s_add_u32 s{s_t0}, s{s_t0}, {LKO}
    v_sub_u32 v{t0}, 3, v{kq}
    v_lshlrev_b32 v{t0}, 4, v{t0}
    v_lshl_add_u32 v{t0}, v{n}, 6, v{t0}
    v_add_u32 v{kvOW}, s{s_t0}, v{t0}
    v_add_u32 v{kvOR}, s{s_t0}, v{v_l16}
    v_lshrrev_b32 v{t0}, 2, v{v_lane}
    v_lshlrev_b32 v{t0}, 12, v{t0}
    v_and_b32 v{t1}, 3, v{v_lane}
    v_lshl_add_u32 v{kvG}, v{t1}, 4, v{t0}
    s_lshl_b32 s{s_t0}, s{s_fi}, 5
    s_lshl_b32 s{s_t1}, s{s_mf}, 4
    s_add_u32 s{s_t0}, s{s_t0}, s{s_t1}
    s_lshl_b32 s{s_t0}, s{s_t0}, 12
    s_lshl_b32 s{s_t1}, s{s_mi}, 8
    s_sub_u32 s{s_t0}, s{s_t0}, s{s_t1}
    s_lshl_b32 s{s_t1}, s{s_ns}, 6
    s_sub_u32 s{s_t0}, s{s_t0}, s{s_t1}
    s_add_u32 s{s_ko}, s{s_t0}, {WS_KVT + 4032}
    """)
def kp_build_B():
    n, kq, a, b, c, d = 108, 109, 110, 111, 112, 113
    L = lines(f"""
    v_and_b32 v{n}, 15, v{v_lane}
    v_lshrrev_b32 v{kq}, 4, v{v_lane}
    v_lshrrev_b32 v{a}, 1, v{kq}
    v_lshlrev_b32 v{a}, 4, v{a}
    v_lshrrev_b32 v{b}, v{a}, v{kA}
    v_lshrrev_b32 v{c}, v{a}, v{kA+1}
    v_and_b32 v{b}, 0xffff, v{b}
    v_and_b32 v{c}, 0xffff, v{c}
    v_and_b32 v{a}, 1, v{n}
    v_lshlrev_b32 v{a}, 4, v{a}
    v_lshlrev_b32 v{b}, v{a}, v{b}
    v_lshlrev_b32 v{c}, v{a}, v{c}
    v_lshrrev_b32 v{a}, 3, v{n}
    v_and_b32 v{d}, 1, v{kq}
    v_cmp_eq_u32 vcc, v{a}, v{d}
    v_bfe_u32 v{a}, v{n}, 1, 2
    s_nop 0
    v_cndmask_b32 v{b}, 0, v{b}, vcc
    v_cndmask_b32 v{c}, 0, v{c}, vcc
    """)
    for i in range(4):
        L += [f"v_cmp_eq_u32 vcc, {i}, v{a}", "s_nop 1", f"v_cndmask_b32 v{kB1+i}, 0, v{b}, vcc", f"v_cndmask_b32 v{kB2+i}, 0, v{c}, vcc"]
    return L
def kp_reads():
    L = []
    for t in range(2):
        L.append(f"ds_read_b128 v[{kA+8*t}:{kA+8*t+3}], v{kvA} offset:{256*t+128}")
        L.append(f"ds_read_b128 v[{kA+8*t+4}:{kA+8*t+7}], v{kvA} offset:{256*t}")
        L.append(f"ds_read_b64_tr_b16 v[{kV+2*t}:{kV+2*t+1}], v{kvV} offset:{256*t}")
    return L
def kp_mfma():
    L = []
    for t in range(2): L.append(f"v_mfma_f32_16x16x32_bf16 v[{kD+4*t}:{kD+4*t+3}], v[{kA+8*t}:{kA+8*t+3}], v[{kB1}:{kB1+3}], 0")
    for t in range(2): L.append(f"v_mfma_f32_16x16x32_bf16 v[{kD+4*t}:{kD+4*t+3}], v[{kA+8*t+4}:{kA+8*t+7}], v[{kB2}:{kB2+3}], v[{kD+4*t}:{kD+4*t+3}]")
    for t in range(2):
        for h in range(2):
            L += [f"v_lshlrev_b32 v{kU+4*t+2*h}, 16, v{kV+2*t+h}", f"v_and_b32 v{kU+4*t+2*h+1}, 0xffff0000, v{kV+2*t+h}"]
    return L
def kp_finish():
    L = []
    for t in range(2):
        for h in range(2):
            L.append(f"v_pk_mul_f32 v[{kD+4*t+2*h}:{kD+4*t+2*h+1}], v[{kD+4*t+2*h}:{kD+4*t+2*h+1}], v[{kU+4*t+2*h}:{kU+4*t+2*h+1}]")
    for e in range(4):
        t = 1 - (e >> 1); r = 3 - 2*(e & 1)
        L.append(f"v_cvt_pk_bf16_f32 v{kO+e}, v{kD+4*t+r}, v{kD+4*t+r-1}")
    L.append(f"ds_write_b128 v{kvOW}, v[{kO}:{kO+3}]")
    return L
def kp_readback(): return [f"ds_read_b128 v[{kO}:{kO+3}], v{kvOR}"]
def kp_store(h):
    if h == 0: return [f"buffer_store_dwordx4 v[{kO}:{kO+3}], v{kvG}, s[{sWS}:{sWS+3}], s{s_ko} offen sc1"]
    return [f"s_sub_u32 s{s_t0}, s{s_ko}, 128", f"buffer_store_dwordx4 v[{kO}:{kO+3}], v{kvG}, s[{sWS}:{sWS+3}], s{s_t0} offen sc1"]


LKT2 = 147456; LVT2 = 155648; LKO2 = 147456
def kps_dma_setup():
    return lines(f"""
    v_lshrrev_b32 v106, 2, v{v_lane}
    v_and_b32 v107, 3, v{v_lane}
    v_mul_u32_u24 v106, 896, v106
    v_lshl_add_u32 v104, v107, 4, v106
    v_add_u32 v105, {16*896-1024}, v104
    s_lshl_b32 s{s_t0}, s{s_mi}, 7
    s_lshl_b32 s{s_t1}, s{s_w}, 5
    s_add_u32 s{s_t0}, s{s_t0}, s{s_t1}
    s_mul_i32 s34, s{s_t0}, 896
    s_lshl_b32 s{s_t2}, s{s_fi}, 6
    s_add_u32 s34, s34, s{s_t2}
    v_and_b32 v106, 15, v{v_lane}
    v_lshrrev_b32 v107, 2, v106
    v_and_b32 v106, 3, v106
    v_lshl_add_u32 v106, v107, 4, v106
    v_lshrrev_b32 v107, 5, v{v_lane}
    v_sub_u32 v106, v106, v107
    v_add_u32 v106, 1, v106
    v_mul_u32_u24 v106, 896, v106
    v_bfe_u32 v107, v{v_lane}, 4, 1
    v_lshl_add_u32 v106, v107, 4, v106
    s_lshl_b32 s{s_t0}, s{s_mi}, 7
    s_lshl_b32 s{s_t1}, s{s_ns}, 6
    s_add_u32 s{s_t0}, s{s_t0}, s{s_t1}
    s_mul_i32 s35, s{s_t0}, 896
    s_add_u32 s35, s35, s{s_t2}
    s_lshl_b32 s{s_t1}, s{s_mf}, 5
    s_add_u32 s35, s35, s{s_t1}
    s_cmp_eq_u32 s{s_t0}, 0
    s_cselect_b32 s{s_t1}, 0, 2688
    s_cselect_b32 s{s_t2}, 2688, 0
    s_sub_u32 s35, s35, s{s_t1}
    v_subrev_u32 v106, s{s_t2}, v106
    v_add_u32 v107, 1792, v106
    """)
def kps_dma_L():
    NL = "\n"
    return [NL.join([f"s_add_u32 m0, s{s_t4}, {LKT2}", "s_nop 0", f"buffer_load_dwordx4 v104, s[{sKK}:{sKK+3}], s34 offen lds"]),
            NL.join([f"s_add_u32 m0, s{s_t4}, {LKT2}", "s_nop 0", f"buffer_load_dwordx4 v105, s[{sKK}:{sKK+3}], s34 offen offset:1024 lds"]),
            NL.join([f"s_add_u32 m0, s{s_t4}, {LVT2}", "s_nop 0", f"buffer_load_dwordx4 v104, s[{sVV}:{sVV+3}], s34 offen lds"]),
            NL.join([f"s_add_u32 m0, s{s_t4}, {LVT2}", "s_nop 0", f"buffer_load_dwordx4 v105, s[{sVV}:{sVV+3}], s34 offen offset:1024 lds"])]
kT0 = 88
def kps_t0_L():
    return [f"buffer_load_dwordx4 v[{kT0}:{kT0+3}], v107, s[{sKK}:{sKK+3}], s35 offen",
            f"buffer_load_dwordx4 v[{kT0+4}:{kT0+7}], v106, s[{sKK}:{sKK+3}], s35 offen"]
def kps_setup(g, LKT2=LKT2, LVT2=LVT2, LKO2=LKO2, radd=2):
    g(f"""
    v_and_b32 v108, 15, v{v_lane}
    v_lshrrev_b32 v109, 4, v{v_lane}
    v_lshrrev_b32 v110, 2, v108
    v_and_b32 v111, 3, v108
    v_lshl_add_u32 v110, v110, 4, v111
    v_lshrrev_b32 v111, 1, v109
    v_sub_u32 v110, v110, v111
    v_add_u32 v110, {radd}, v110
    s_lshl_b32 s{s_t0}, s{s_ns}, 6
    v_add_u32 v110, s{s_t0}, v110
    v_lshlrev_b32 v110, 6, v110
    v_and_b32 v111, 1, v109
    v_lshl_add_u32 v110, v111, 4, v110
    s_lshl_b32 s{s_t1}, s{s_mf}, 5
    s_add_u32 s{s_t2}, s{s_t1}, {LKT2}
    v_add_u32 v80, s{s_t2}, v110
    v_lshrrev_b32 v110, 2, v108
    v_lshl_add_u32 v110, v109, 4, v110
    v_add_u32 v110, s{s_t0}, v110
    v_lshlrev_b32 v110, 6, v110
    v_and_b32 v111, 3, v108
    v_lshl_add_u32 v110, v111, 3, v110
    s_add_u32 s{s_t2}, s{s_t1}, {LVT2}
    v_add_u32 v81, s{s_t2}, v110
    v_lshlrev_b32 v110, 1, v109
    v_sub_u32 v110, 6, v110
    v_and_b32 v111, 7, v108
    v_xor_b32 v110, v110, v111
    v_xor_b32 v111, 1, v110
    v_lshlrev_b32 v83, 7, v108
    s_add_u32 s{s_t1}, s{s_t4}, {LKO2}
    v_add_u32 v83, s{s_t1}, v83
    v_lshl_add_u32 v82, v110, 4, v83
    v_lshl_add_u32 v83, v111, 4, v83
    v_lshrrev_b32 v110, 3, v{v_lane}
    v_and_b32 v111, 7, v{v_lane}
    v_xor_b32 v84, v111, v110
    v_lshlrev_b32 v85, 7, v110
    v_lshl_add_u32 v84, v84, 4, v85
    v_add_u32 v84, s{s_t1}, v84
    v_lshlrev_b32 v85, 12, v110
    v_lshl_add_u32 v85, v111, 4, v85
    s_lshl_b32 s{s_t0}, s{s_fi}, 5
    s_lshl_b32 s{s_t1}, s{s_mf}, 4
    s_add_u32 s{s_t0}, s{s_t0}, s{s_t1}
    s_lshl_b32 s{s_t0}, s{s_t0}, 12
    s_lshl_b32 s{s_t1}, s{s_mi}, 8
    s_lshl_b32 s{s_t2}, s{s_ns}, 7
    s_add_u32 s{s_t1}, s{s_t1}, s{s_t2}
    s_sub_u32 s{s_t0}, s{s_t0}, s{s_t1}
    s_add_u32 s94, s{s_t0}, {WS_KVT + 1984*2}
    s_add_u32 s95, s94, {8*4096}
    """)
kpA, kpV, kpU, kpO = 96, 120, 100, 116
kpD = [68, 88, 92, 96]
def kps_stage1():
    L = []
    for t in range(1, 4):
        L.append(f"ds_read_b128 v[{kpA+8*(t-1)}:{kpA+8*(t-1)+3}], v80 offset:{256*(t-1)+128}")
        L.append(f"ds_read_b128 v[{kpA+8*(t-1)+4}:{kpA+8*(t-1)+7}], v80 offset:{256*(t-1)}")
    for t in range(4):
        L.append(f"ds_read_b64_tr_b16 v[{kpV+2*t}:{kpV+2*t+1}], v81 offset:{256*t}")
    return L
def kps_stage2():
    L = []
    for t in range(4):
        a = kT0 if t == 0 else kpA+8*(t-1)
        L.append(f"v_mfma_f32_16x16x32_bf16 v[{kpD[t]}:{kpD[t]+3}], v[{a}:{a+3}], v[{kB1}:{kB1+3}], 0")
        L.append(f"v_mfma_f32_16x16x32_bf16 v[{kpD[t]}:{kpD[t]+3}], v[{a+4}:{a+7}], v[{kB2}:{kB2+3}], v[{kpD[t]}:{kpD[t]+3}]")
    return L
def kps_stage3():
    L = []
    for t in range(4):
        for h in range(2):
            L += [f"v_lshlrev_b32 v{kpU+4*t+2*h}, 16, v{kpV+2*t+h}", f"v_and_b32 v{kpU+4*t+2*h+1}, 0xffff0000, v{kpV+2*t+h}"]
    return L
def kps_stage4():
    L = []
    for t in range(4):
        for r in range(4): L.append(f"v_mul_f32 v{kpD[t]+r}, v{kpD[t]+r}, v{kpU+4*t+r}")
    for e in range(8):
        t = 3 - (e >> 1); r = 3 - 2*(e & 1)
        L.append(f"v_cvt_pk_bf16_f32 v{kpO+e}, v{kpD[t]+r}, v{kpD[t]+r-1}")
    return L
def kps_stage5():
    O = kpO
    return [(f"ds_write_b128 v82, v[{O}:{O+3}]", None), (f"ds_write_b128 v83, v[{O+4}:{O+7}]", None),
            (f"ds_read_b128 v[{O}:{O+3}], v84", None), (f"ds_read_b128 v[{O+4}:{O+7}], v84 offset:1024", "kprb")]
def kps_store_L():
    O = 116
    return [f"buffer_store_dwordx4 v[{O}:{O+3}], v85, s[{sWS}:{sWS+3}], s94 offen sc1",
            f"buffer_store_dwordx4 v[{O+4}:{O+7}], v85, s[{sWS}:{sWS+3}], s95 offen sc1"]


AKT = 114688; AVT = AKT + 9216; AKO = AVT + 8192
def kpa_dma(g):
    g(f"""
    v_lshrrev_b32 v100, 2, v{v_lane}
    v_and_b32 v101, 3, v{v_lane}
    v_mul_u32_u24 v100, 896, v100
    v_lshl_add_u32 v104, v101, 4, v100
    v_add_u32 v105, {16*896-1024}, v104
    s_lshl_b32 s{s_t0}, s{s_mi}, 7
    s_lshl_b32 s{s_t1}, s{s_w}, 5
    s_add_u32 s{s_t0}, s{s_t0}, s{s_t1}
    s_mul_i32 s34, s{s_t0}, 896
    s_lshl_b32 s{s_t2}, s{s_fi}, 6
    s_add_u32 s34, s34, s{s_t2}
    s_cmp_eq_u32 s{s_t0}, 0
    s_cselect_b32 s{s_t1}, 0, 2688
    s_cselect_b32 s{s_t2}, 2688, 0
    s_sub_u32 s35, s34, s{s_t1}
    v_subrev_u32 v106, s{s_t2}, v104
    v_subrev_u32 v107, s{s_t2}, v105
    s_add_u32 m0, s{s_t4}, {AKT}
    s_nop 0
    """)
    g.vm(f"buffer_load_dwordx4 v106, s[{sKK}:{sKK+3}], s35 offen lds", "kp")
    g.vm(f"buffer_load_dwordx4 v107, s[{sKK}:{sKK+3}], s35 offen offset:1024 lds", "kp")
    g(f"s_add_u32 m0, s{s_t4}, {AVT}\ns_nop 0")
    g.vm(f"buffer_load_dwordx4 v104, s[{sVV}:{sVV+3}], s34 offen lds", "kp")
    g.vm(f"buffer_load_dwordx4 v105, s[{sVV}:{sVV+3}], s34 offen offset:1024 lds", "kp")
    g(f"""s_lshl_b32 s{s_t0}, s{s_mi}, 7
    s_add_u32 s{s_t0}, s{s_t0}, 125
    s_mul_i32 s{s_t0}, s{s_t0}, 896
    s_lshl_b32 s{s_t1}, s{s_fi}, 6
    s_add_u32 s{s_t0}, s{s_t0}, s{s_t1}
    s_mov_b32 m0, {AKT + 8192}
    s_mov_b64 exec, 0xfff""")
    g.vm(f"buffer_load_dwordx4 v104, s[{sKK}:{sKK+3}], s{s_t0} offen lds", "kp")
    g("s_mov_b64 exec, -1")
def kpa_compute(g):
    A, V, Dd, U, O = 20, 52, 96, 112, 60
    for t in range(4):
        g(f"ds_read_b128 v[{A+8*t}:{A+8*t+3}], v80 offset:{256*t+128}")
        g(f"ds_read_b128 v[{A+8*t+4}:{A+8*t+7}], v80 offset:{256*t}")
    for t in range(4):
        g(f"ds_read_b64_tr_b16 v[{V+2*t}:{V+2*t+1}], v81 offset:{256*t}")
    for t in range(4):
        g(f"s_waitcnt lgkmcnt({10-2*t})")
        g(f"v_mfma_f32_16x16x32_bf16 v[{Dd+4*t}:{Dd+4*t+3}], v[{A+8*t}:{A+8*t+3}], v[{kB1}:{kB1+3}], 0")
        g(f"v_mfma_f32_16x16x32_bf16 v[{Dd+4*t}:{Dd+4*t+3}], v[{A+8*t+4}:{A+8*t+7}], v[{kB2}:{kB2+3}], v[{Dd+4*t}:{Dd+4*t+3}]")
    g("s_waitcnt lgkmcnt(0)")
    for t in range(4):
        for h in range(2):
            g(f"v_lshlrev_b32 v{U+4*t+2*h}, 16, v{V+2*t+h}\nv_and_b32 v{U+4*t+2*h+1}, 0xffff0000, v{V+2*t+h}")
    for t in range(4):
        for h in range(2):
            g(f"v_pk_mul_f32 v[{Dd+4*t+2*h}:{Dd+4*t+2*h+1}], v[{Dd+4*t+2*h}:{Dd+4*t+2*h+1}], v[{U+4*t+2*h}:{U+4*t+2*h+1}]")
    for e in range(8):
        t = 3 - (e >> 1); r = 3 - 2*(e & 1)
        g(f"v_cvt_pk_bf16_f32 v{O+e}, v{Dd+4*t+r}, v{Dd+4*t+r-1}")
    g(f"""ds_write_b128 v82, v[{O}:{O+3}]
    ds_write_b128 v83, v[{O+4}:{O+7}]
    ds_read_b128 v[{U}:{U+3}], v84
    ds_read_b128 v[{U+4}:{U+7}], v84 offset:1024
    s_waitcnt lgkmcnt(0)""")
    g.vm(f"buffer_store_dwordx4 v[{U}:{U+3}], v85, s[{sWS}:{sWS+3}], s94 offen sc1", "kvst")
    g.vm(f"buffer_store_dwordx4 v[{U+4}:{U+7}], v85, s[{sWS}:{sWS+3}], s95 offen sc1", "kvst")


def kpe_compute(g):
    A, V, Dd, U, O = 20, 52, 96, 2, 60
    for t in range(1, 4):
        g(f"ds_read_b128 v[{A+8*(t-1)}:{A+8*(t-1)+3}], v80 offset:{256*(t-1)+128}")
        g(f"ds_read_b128 v[{A+8*(t-1)+4}:{A+8*(t-1)+7}], v80 offset:{256*(t-1)}")
    for t in range(4):
        g(f"ds_read_b64_tr_b16 v[{V+2*t}:{V+2*t+1}], v81 offset:{256*t}")
    for t in range(4):
        a = kT0 if t == 0 else A+8*(t-1)
        if t: g(f"s_waitcnt lgkmcnt({10-2*t})")
        g(f"v_mfma_f32_16x16x32_bf16 v[{Dd+4*t}:{Dd+4*t+3}], v[{a}:{a+3}], v[{kB1}:{kB1+3}], 0")
        g(f"v_mfma_f32_16x16x32_bf16 v[{Dd+4*t}:{Dd+4*t+3}], v[{a+4}:{a+7}], v[{kB2}:{kB2+3}], v[{Dd+4*t}:{Dd+4*t+3}]")
    g("s_waitcnt lgkmcnt(0)")
    for t in range(4):
        for h in range(2):
            g(f"v_lshlrev_b32 v{U+4*t+2*h}, 16, v{V+2*t+h}\nv_and_b32 v{U+4*t+2*h+1}, 0xffff0000, v{V+2*t+h}")
    for t in range(4):
        for h in range(2):
            g(f"v_pk_mul_f32 v[{Dd+4*t+2*h}:{Dd+4*t+2*h+1}], v[{Dd+4*t+2*h}:{Dd+4*t+2*h+1}], v[{U+4*t+2*h}:{U+4*t+2*h+1}]")
    for e in range(8):
        t = 3 - (e >> 1); r = 3 - 2*(e & 1)
        g(f"v_cvt_pk_bf16_f32 v{O+e}, v{Dd+4*t+r}, v{Dd+4*t+r-1}")
    g(f"""ds_write_b128 v82, v[{O}:{O+3}]
    ds_write_b128 v83, v[{O+4}:{O+7}]
    ds_read_b128 v[{O}:{O+3}], v84
    ds_read_b128 v[{O+4}:{O+7}], v84 offset:1024
    s_waitcnt lgkmcnt(0)""")
    g.vm(f"buffer_store_dwordx4 v[{O}:{O+3}], v85, s[{sWS}:{sWS+3}], s94 offen sc1", "kvst")
    g.vm(f"buffer_store_dwordx4 v[{O+4}:{O+7}], v85, s[{sWS}:{sWS+3}], s95 offen sc1", "kvst")

def g1_addr():
    L = lines(f"""
    v_and_b32 v20, 31, v{v_lane}
    v_lshrrev_b32 v21, 5, v{v_lane}
    v_bfe_u32 v22, v{v_lane}, 1, 3
    v_xor_b32 v22, v22, v21
    s_lshl_b32 s{s_t0}, s{s_ns}, 13
    v_lshl_add_u32 v20, v20, 7, s{s_t0}
    """)
    for ks in range(4):
        L += [f"v_xor_b32 v23, {2*ks}, v22", f"v_lshl_add_u32 v{v_xa+ks}, v23, 4, v20"]
    L += lines(f"""
    v_bfe_u32 v20, v{v_lane}, 2, 2
    v_bfe_u32 v22, v{v_lane}, 4, 1
    v_bfe_u32 v23, v{v_lane}, 1, 1
    v_and_b32 v24, 1, v{v_lane}
    v_lshl_add_u32 v22, v22, 1, v23
    v_lshlrev_b32 v25, 11, v21
    v_lshl_add_u32 v25, v20, 8, v25
    v_lshl_add_u32 v25, v24, 3, v25
    v_lshl_add_u32 v25, v22, 4, v25
    v_add_u32 v25, {LW}, v25
    s_lshl_b32 s{s_t0}, s{s_mf}, 1
    """)
    for ft in range(2):
        L += lines(f"""
        v_add_u32 v26, s{s_t0}, v20
        v_add_u32 v26, {ft}, v26
        v_and_b32 v26, 3, v26
        v_lshl_add_u32 v{v_wa+ft}, v26, 6, v25
        v_add_u32 v{v_wa+2+ft}, 65536, v{v_wa+ft}
        """)
    return L

def g1_frag_reads(kstep):
    c, ks = divmod(kstep, 4)
    sl = c % 3
    b = v_fr + (kstep & 1)*24
    L = []
    for nt in range(2):
        L.append(f"ds_read_b128 v[{b+4*nt}:{b+4*nt+3}], v{v_xa+ks} offset:{sl*16384 + nt*4096}")
    for mat in range(2):
        for ft in range(2):
            r = b + 8 + mat*8 + ft*4
            base = v_wa + ft + (2 if sl == 2 else 0)
            off = (sl*32768 if sl < 2 else 0) + mat*16384 + ks*4096
            L.append(f"ds_read_b64_tr_b16 v[{r}:{r+1}], v{base} offset:{off}")
            L.append(f"ds_read_b64_tr_b16 v[{r+2}:{r+3}], v{base} offset:{off+1024}")
    return L

def g1_mfmas(kstep):
    b = v_fr + (kstep & 1)*24
    L = []
    for ft in range(2):
        for nt in range(2):
            for mat in range(2):
                acc = accg(ft, nt) if mat == 0 else accu(ft, nt)
                A = b + 8 + mat*8 + ft*4
                B = b + 4*nt
                cin = "0" if kstep == 0 else f"v[{acc}:{acc+15}]"
                if os.environ.get("MF16"):
                    c1 = "0" if kstep == 0 else f"v[{acc}:{acc+3}]"; c2 = "0" if kstep == 0 else f"v[{acc+4}:{acc+7}]"
                    L.append(f"v_mfma_f32_16x16x32_bf16 v[{acc}:{acc+3}], v[{A}:{A+3}], v[{B}:{B+3}], {c1}\nv_mfma_f32_16x16x32_bf16 v[{acc+4}:{acc+7}], v[{B}:{B+3}], v[{A}:{A+3}], {c2}")
                else:
                    L.append(f"v_mfma_f32_32x32x16_bf16 v[{acc}:{acc+15}], v[{A}:{A+3}], v[{B}:{B+3}], {cin}")
    return L

def spread(per, items, lo, hi):
    n = len(items)
    for i, x in enumerate(items):
        per[min(hi, lo + (i*(hi-lo+1))//n)].append(x)

KPA = os.environ.get("KPA", "0") == "1"
KPE = os.environ.get("KPE", "0") == "1"
MVG1 = os.environ.get("MVG1", "0") == "1"
KSTAMP = None
EST = os.environ.get('EST') == '1'
CST = os.environ.get('CST') == '1'
GSTAMP = None
def g1_chunk_stream(c):
    out = []
    for grp in g1_groups(c):
        for i in range(4):
            out.append((grp[:2] if i == 0 else [], grp[2+i], grp[0]))
    return out
def g1_main(g, pre, post, stamps=None):
    g.ldops = []
    for s_ in g1_frag_reads(0): g.ld(s_, "fr0")
    sched = {k: [] for k in range(28)}
    st2 = g1_chunk_stream(2)
    for i, x in enumerate(st2): sched[i // 4].append((x, "c2"))
    for c in range(0, 4):
        stc = g1_chunk_stream(c+3)
        for i, x in enumerate(stc): sched[4*c + 3 + i // 3].append((x, f"c{c+3}"))
    cur_m0 = [None]
    for k in range(28):
        c, ks = divmod(k, 4)
        g.lwait(f"fr{k}")
        if KSTAMP is not None and KSTAMP <= k < KSTAMP + 14: stamp(g, k - KSTAMP + 1)
        if ks == 3 and c < 6:
            g.vwait(f"c{c+1}")
            for tg in pre(k): g.vwait(tg)
            g("s_barrier")
            if stamps and c in stamps: stamp(g, stamps[c])
        per = [[] for _ in range(8)]
        if k+1 < 28: spread(per, T(g1_frag_reads(k+1), f"fr{k+1}"), 0, 4)
        items = sched[k]
        early, late, vx = post(k)
        dm = [[] for _ in range(8)]
        if len(items) == 4: sg, xg = [1, 3, 5, 7], [2, 6]
        elif len(items) == 3: sg, xg = ([1, 5, 7], [3, 6]) if vx else ([1, 4, 7], [])
        else: sg, xg = [], [1, 3, 5, 7, 2, 6, 4, 0]
        for it_, gp in zip(items, sg): dm[gp].append(it_)
        assert len(vx) <= len(xg), (k, len(vx))
        xs = sorted(xg[:len(vx)])
        if early: spread(per, early, 0, 7)
        for grp_, gp in zip(vx, xs): per[gp] += grp_
        if late: spread(per, late, 4, 7)
        m = g1_mfmas(k)
        for i in range(8):
            if GSTAMP is not None and k == GSTAMP: stamp(g, i + 1)
            if GSTAMP is not None and k == GSTAMP + 1 and i < 5: stamp(g, i + 9)
            g(m[i])
            for s_, tag in per[i]:
                if s_ == "CALL": tag()
                else:
                    g.emit(s_, tag)
                    if "m0" in s_ and not s_.startswith("buffer_") : m0_dirty[0] = True
                    if "m0," in s_: m0_dirty[0] = True
            for (salu, load, m0i), tag in dm[i]:
                if salu:
                    for x in salu: g(x)
                    m0_dirty[0] = False
                elif m0_dirty[0]:
                    g(m0i); g("s_nop 0"); m0_dirty[0] = False
                g.vm(load, tag)
m0_dirty = [False]
TCHK = eval(os.environ.get('TCHK', '(12,13,14,17,18,19,19,19,21,21,22,23,23,23)'))
KPK = int(os.environ.get('KPK', '11'))

v_cs = 72
v_rc = 100
v_t = 108
v_csa = v_t + 1
def epi_pre_reads():
    return lines(f"""
    v_and_b32 v{v_t}, 31, v{v_lane}
    s_lshl_b32 s{s_t1}, s{s_ns}, 9
    s_add_u32 s{s_t1}, s{s_t1}, {LST}
    v_lshl_add_u32 v{v_t}, v{v_t}, 3, s{s_t1}
    v_lshrrev_b32 v{v_csa}, 5, v{v_lane}
    s_lshl_b32 s{s_t1}, s{s_mf}, 8
    s_add_u32 s{s_t1}, s{s_t1}, {LST+1024}
    v_lshl_add_u32 v{v_csa}, v{v_csa}, 4, s{s_t1}
    ds_read_b64 v[{v_t+2}:{v_t+3}], v{v_t}
    ds_read_b64 v[{v_t+4}:{v_t+5}], v{v_t} offset:256
    """) + epi_cs_reads()
def epi_cs_reads():
    return [f"ds_read_b128 v[{v_cs}:{v_cs+3}], v{v_csa}", f"ds_read_b128 v[{v_cs+4}:{v_cs+7}], v{v_csa} offset:32",
            f"ds_read_b128 v[{v_cs+8}:{v_cs+11}], v{v_csa} offset:512", f"ds_read_b128 v[{v_cs+12}:{v_cs+15}], v{v_csa} offset:544",
            f"v_add_u32 v{v_csa}, 64, v{v_csa}"]
def epi_hoff():
    return lines(f"""
    s_lshl_b32 s{s_t0}, s{s_mi}, 2
    s_lshl_b32 s{s_t1}, s{s_ns}, 1
    s_add_u32 s{s_t0}, s{s_t0}, s{s_t1}
    s_mul_i32 s{s_t0}, s{s_t0}, 112
    s_lshl_b32 s{s_t1}, s{s_fi}, 3
    s_add_u32 s{s_t0}, s{s_t0}, s{s_t1}
    s_lshl_b32 s{s_t1}, s{s_mf}, 2
    s_add_u32 s{s_t0}, s{s_t0}, s{s_t1}
    s_lshl_b32 s{s_hoff}, s{s_t0}, 10
    s_add_u32 s{s_hoff}, s{s_hoff}, {WS_H}
    """)
HST = os.environ.get('HST', 'sc1')
vW0, vW1, vW2, vW3 = 120, 121, 122, 123
def g1_epilogue(g, aux):
    for nt in range(2):
        m, sd = v_t+2+2*nt, v_t+3+2*nt
        rc = v_rc + 4*nt
        g(f"""
        v_rcp_f32 v{v_t+6}, v{sd}
        v_sub_f32 v{rc}, 0, v{m}
        v_mul_f32 v{rc+1}, v{sd}, v{sd}
        v_mul_f32 v{rc+2}, {fh(C1)}, v{v_t+6}
        v_mul_f32 v{v_t+7}, v{v_t+6}, v{v_t+6}
        v_mul_f32 v{v_t+7}, v{v_t+7}, v{v_t+6}
        v_mul_f32 v{rc+3}, {fh(C2)}, v{v_t+7}
        """)
    P = 88
    Z = 20
    def pr(x): return f"v[{x}:{x+1}]"
    for it in range(4):
        ft, hq = it >> 1, it & 1
        if EST: stamp(g, 2 + it)
        main = []
        main.append(("LWAIT", "cs"))
        for nt in range(2):
            rc = v_rc + 4*nt; nm = f"v[{rc}:{rc+1}]"
            for pp in range(4):
                r = 8*hq + 2*pp
                tg = accg(ft, nt) + r; tu = accu(ft, nt) + r
                main.append((f"v_pk_fma_f32 {pr(tg)}, {pr(v_cs+2*pp)}, {nm}, {pr(tg)} op_sel_hi:[1,0,1]", None))
                main.append((f"v_pk_fma_f32 {pr(tu)}, {pr(v_cs+8+2*pp)}, {nm}, {pr(tu)} op_sel_hi:[1,0,1]", None))
        if it < 3: main += T(epi_cs_reads(), "cs")
        for nt in range(2):
            rc = v_rc + 4*nt; nm = f"v[{rc}:{rc+1}]"; cc = f"v[{rc+2}:{rc+3}]"
            steps = [
              lambda tg,tu,z: [f"v_pk_mul_f32 {pr(z)}, {pr(tg)}, {pr(tg)}"],
              lambda tg,tu,z: [f"v_pk_fma_f32 {pr(z)}, {pr(z)}, {cc}, {cc} op_sel:[0,1,0] op_sel_hi:[1,1,0]"],
              lambda tg,tu,z: [f"v_pk_mul_f32 {pr(z)}, {pr(z)}, {pr(tg)}"],
              lambda tg,tu,z: [f"v_exp_f32 v{z}, v{z}", f"v_exp_f32 v{z+1}, v{z+1}"],
              lambda tg,tu,z: [f"v_pk_mul_f32 {pr(tu)}, {pr(tu)}, {pr(tg)}"],
              lambda tg,tu,z: [f"v_pk_fma_f32 {pr(z)}, {pr(z)}, {nm}, {nm} op_sel:[0,1,1] op_sel_hi:[1,1,1]"],
              lambda tg,tu,z: [f"v_rcp_f32 v{z}, v{z}", f"v_rcp_f32 v{z+1}, v{z+1}"],
              lambda tg,tu,z: [f"v_pk_mul_f32 {pr(tu)}, {pr(tu)}, {pr(z)}"],
            ]
            for st in steps:
                for pp in range(4):
                    r = 8*hq + 2*pp
                    main += T(st(accg(ft, nt) + r, accu(ft, nt) + r, Z + 8*nt + 2*pp))
            for pp in range(4):
                r = 8*hq + 2*pp
                main.append((f"v_cvt_pk_bf16_f32 v{P+4*nt+pp}, v{accu(ft, nt)+r}, v{accu(ft, nt)+r+1}", None))
            off = (nt*112 + 2*ft + hq) * 1024
            main.append((f"s_add_u32 s{s_t2}, s{s_hoff}, {off}\nbuffer_store_dwordx4 v[{P+4*nt}:{P+4*nt+3}], v{v_l16}, s[{sWS}:{sWS+3}], s{s_t2} offen {HST}", "hst"))
        a = aux[it]
        if os.environ.get("XAUX") == "front":
            for x2, t2 in a:
                if x2 == "CALL": t2()
                else: g.emit(x2, t2)
            a = []
            if EST: stamp(g, 6 + it)
        n, k = len(main), 0
        for i, (x, tg_) in enumerate(main):
            g.emit(x, tg_)
            while k < len(a) and k < ((i+1)*len(a))//n:
                x2, t2 = a[k]
                if x2 == "CALL": t2()
                else: g.emit(x2, t2)
                k += 1

def g1_epilogue_loop(g, blocks):
    for nt in range(2):
        m, sd = v_t+2+2*nt, v_t+3+2*nt
        rc = v_rc + 4*nt
        g(f"""
        v_rcp_f32 v{v_t+6}, v{sd}
        v_sub_f32 v{rc}, 0, v{m}
        v_mul_f32 v{rc+1}, v{sd}, v{sd}
        v_mul_f32 v{rc+2}, {fh(C1)}, v{v_t+6}
        v_mul_f32 v{v_t+7}, v{v_t+6}, v{v_t+6}
        v_mul_f32 v{v_t+7}, v{v_t+7}, v{v_t+6}
        v_mul_f32 v{rc+3}, {fh(C2)}, v{v_t+7}
        """)
    TG = 20
    P = 88
    g(f"s_mov_b32 s{s_t0}, 0\ns_mov_b32 s{s_t1}, s{s_hoff}\ns_mov_b32 s96, s{s_m0x}")
    def wd_dyn():
        if os.environ.get("XNOWD"): return
        g(f"s_mov_b32 m0, s96\ns_add_u32 s96, s96, 2048")
        for x in ptr_next(28, 29, s_woff, 14336): g(x)
        g(f"buffer_load_dwordx4 v{vW0}, s[{sWD2}:{sWD2+3}], s{s_t3} offen lds")
        g(f"buffer_load_dwordx4 v{vW1}, s[{sWD2}:{sWD2+3}], s{s_t3} offen offset:1024 lds")
    wd_dyn()
    g.lab("E1_loop")
    g(f"s_set_gpr_idx_on s{s_t0}, gpr_idx(SRC2)")
    for nt in range(2):
        rc = v_rc + 4*nt; nm = f"v[{rc}:{rc+1}]"
        b = TG + 24*nt
        for pp in range(4):
            r = 2*pp
            g(f"v_pk_fma_f32 v[{b+r}:{b+r+1}], v[{v_cs+r}:{v_cs+r+1}], {nm}, v[{accg(0,nt)+r}:{accg(0,nt)+r+1}] op_sel_hi:[1,0,1]")
            g(f"v_pk_fma_f32 v[{b+8+r}:{b+8+r+1}], v[{v_cs+8+r}:{v_cs+8+r+1}], {nm}, v[{accu(0,nt)+r}:{accu(0,nt)+r+1}] op_sel_hi:[1,0,1]")
    g("s_set_gpr_idx_off")
    for x in epi_cs_reads(): g(x)
    for nt in range(2):
        wd_dyn()
        rc = v_rc + 4*nt; nm = f"v[{rc}:{rc+1}]"; cc = f"v[{rc+2}:{rc+3}]"
        b = TG + 24*nt
        def pr(x): return f"v[{x}:{x+1}]"
        steps = [
          lambda tg,tu,z: [f"v_pk_mul_f32 {pr(z)}, {pr(tg)}, {pr(tg)}"],
          lambda tg,tu,z: [f"v_pk_fma_f32 {pr(z)}, {pr(z)}, {cc}, {cc} op_sel:[0,1,0] op_sel_hi:[1,1,0]"],
          lambda tg,tu,z: [f"v_pk_mul_f32 {pr(z)}, {pr(z)}, {pr(tg)}"],
          lambda tg,tu,z: [f"v_exp_f32 v{z}, v{z}", f"v_exp_f32 v{z+1}, v{z+1}"],
          lambda tg,tu,z: [f"v_pk_mul_f32 {pr(tu)}, {pr(tu)}, {pr(tg)}"],
          lambda tg,tu,z: [f"v_pk_fma_f32 {pr(z)}, {pr(z)}, {nm}, {nm} op_sel:[0,1,1] op_sel_hi:[1,1,1]"],
          lambda tg,tu,z: [f"v_rcp_f32 v{z}, v{z}", f"v_rcp_f32 v{z+1}, v{z+1}"],
          lambda tg,tu,z: [f"v_pk_mul_f32 {pr(tu)}, {pr(tu)}, {pr(z)}"],
        ]
        for st in steps:
            for pp in range(4):
                for x in st(b+2*pp, b+8+2*pp, b+16+2*pp): g(x)
        for pp in range(4):
            g(f"v_cvt_pk_bf16_f32 v{P+4*nt+pp}, v{b+8+2*pp}, v{b+8+2*pp+1}")
        if os.environ.get("XNOST"): pass
        elif nt == 0: g(f"buffer_store_dwordx4 v[{P}:{P+3}], v{v_l16}, s[{sWS}:{sWS+3}], s{s_t1} offen {HST}")
        else: g(f"s_add_u32 s{s_t2}, s{s_t1}, {112*1024}\nbuffer_store_dwordx4 v[{P+4}:{P+7}], v{v_l16}, s[{sWS}:{sWS+3}], s{s_t2} offen {HST}")
    POSTB = os.environ.get("POSTB", "1") == "1"
    if POSTB:
        g.vmops = list(g.vmops) + ["wd", "wd"]
        for it in range(4): g.vmops += [f"wd{9+2*it}", f"wd{9+2*it}", "hst", f"wd{10+2*it}", f"wd{10+2*it}", "hst"]
        g(f"""
        s_add_u32 s{s_t1}, s{s_t1}, 1024
        s_add_u32 s{s_t0}, s{s_t0}, 8
        s_bitcmp1_b32 s{s_t0}, 4
        s_cselect_b32 s{s_t2}, 16, 0
        s_add_u32 s{s_t0}, s{s_t0}, s{s_t2}
        s_cmp_lt_u32 s{s_t0}, 64
        s_waitcnt lgkmcnt(0)
        s_cbranch_scc1 E1_loop
        """)
        g.ldops = []
        for it in range(4): blocks[it]()
        return
    g(f"s_cmp_eq_u32 s{s_t0}, 0\ns_cbranch_scc1 E1_b0\ns_cmp_eq_u32 s{s_t0}, 8\ns_cbranch_scc1 E1_b1\ns_cmp_eq_u32 s{s_t0}, 32\ns_cbranch_scc1 E1_b2\ns_branch E1_b3")
    base_vm = list(g.vmops)
    seq = ["wd", "wd"]
    g.vmops = base_vm + seq
    for it in range(4):
        g.vmops += [f"wd{9+2*it}", f"wd{9+2*it}", "hst", f"wd{10+2*it}", f"wd{10+2*it}", "hst"]
        g.lab(f"E1_b{it}")
        g.ldops = []
        if EST: stamp(g, 2 + 2*it)
        blocks[it]()
        if EST: stamp(g, 3 + 2*it)
        if it < 3: g("s_branch E1_next")
    g.lab("E1_next")
    g(f"""
    s_add_u32 s{s_t1}, s{s_t1}, 1024
    s_add_u32 s{s_t0}, s{s_t0}, 8
    s_bitcmp1_b32 s{s_t0}, 4
    s_cselect_b32 s{s_t2}, 16, 0
    s_add_u32 s{s_t0}, s{s_t0}, s{s_t2}
    s_cmp_lt_u32 s{s_t0}, 64
    s_waitcnt lgkmcnt(0)
    s_cbranch_scc1 E1_loop
    """)

a_h = 224
def conv_h_loads():
    L = [f"v_lshlrev_b32 v{v_hv}, 4, v0", f"s_lshl_b32 s{s_zoff}, s2, 13"]
    for ch in range(2):
        r = a_h + ch*8
        L.append(f"buffer_load_dwordx4 a[{r}:{r+3}], v{v_hv}, s[{sSK2}:{sSK2+3}], s{s_zoff} offen")
        L.append(f"buffer_load_dwordx2 a[{r+4}:{r+5}], v{v_hv}, s[{sSK2}:{sSK2+3}], s{s_zoff} offen offset:16")
        if ch == 0: L.append(f"s_add_u32 s{s_zoff}, s{s_zoff}, 4096")
    return L

def conv_build_L(ch, W=2, C1=8, C3=12, AD=16):
    L = [f"v_lshlrev_b32 v{AD}, 4, v0", f"v_add_u32 v{AD}, {LCV+32+ch*CVCH}, v{AD}"]
    for i in range(6): L.append(f"v_accvgpr_read_b32 v{W+i}, a{a_h+8*ch+i}")
    for i in range(4): L.append(f"v_alignbit_b32 v{C1+i}, v{W+i+1}, v{W+i}, 16")
    for i in range(3): L.append(f"v_mov_b32 v{C3+i}, v{C1+i+1}")
    L.append(f"v_alignbit_b32 v{C3+3}, v{W+5}, v{W+4}, 16")
    L.append(f"ds_write_b128 v{AD}, v[{C1}:{C1+3}] offset:{CVCOPY}")
    L.append(f"ds_write_b128 v{AD}, v[{C3}:{C3+3}] offset:{3*CVCOPY}")
    return L
def conv_copy_dma(i):
    return ["\n".join([f"s_add_u32 m0, s90, {i*1024}", f"s_add_u32 s{s_t1}, s91, {i*1024}",
                        f"buffer_load_dwordx4 v{v_l16}, s[{sSK2}:{sSK2+3}], s{s_t1} offen lds"])]
def conv_copy_setup():
    return lines(f"""
    s_mul_i32 s90, s{s_ns}, {CVCH}
    s_mul_i32 s91, s{s_mf}, {2*CVCOPY}
    s_add_u32 s90, s90, s91
    s_add_u32 s90, s90, {LCV+32}
    s_lshl_b32 s91, s2, 13
    s_lshl_b32 s{s_t1}, s{s_ns}, 12
    s_add_u32 s91, s91, s{s_t1}
    s_lshl_b32 s{s_t1}, s{s_mf}, 2
    s_add_u32 s91, s91, s{s_t1}
    """)
def conv_pads(g):
    pass
def conv_pads_L():
    return None

def conv_u_dma():
    return lines(f"""
    s_lshl_b32 s98, s2, 13
    s_add_u32 s98, s98, s{s_t4}
    s_add_u32 s98, s98, {WS_KVT}
    s_mul_i32 s{s_t2}, s{s_ns}, {CVUS}
    s_lshl_b32 s99, s{s_mf}, 11
    s_add_u32 s{s_t2}, s{s_t2}, s99
    s_add_u32 m0, s{s_t2}, {LU}
    s_nop 0
    buffer_load_dwordx4 v{v_l16}, s[{sWS}:{sWS+3}], s98 offen sc1 lds
    buffer_load_dwordx4 v{v_l16}, s[{sWS}:{sWS+3}], s98 offen offset:1024 sc1 lds
    """)

def conv_pad_code(g):
    g(f"""
    s_cmp_eq_u32 s{s_w}, 0
    s_cbranch_scc0 CB_w1
    v_mov_b32 v8, 0
    v_mov_b32 v9, 0
    v_mov_b32 v10, 0
    v_mov_b32 v11, 0
    """)
    for ch in range(2):
        g(f"""
        v_accvgpr_read_b32 v12, a{a_h+8*ch}
        v_accvgpr_read_b32 v13, a{a_h+8*ch+1}
        s_nop 0
        v_readlane_b32 s34, v12, 0
        v_readlane_b32 s35, v13, 0
        s_nop 3
        s_lshl_b32 s98, s34, 16
        s_lshr_b32 s99, s34, 16
        s_lshl_b32 s35, s35, 16
        s_or_b32 s99, s99, s35
        v_writelane_b32 v11, s98, {8*ch+3}
        v_writelane_b32 v11, s34, {8*ch+5}
        v_writelane_b32 v11, s99, {8*ch+7}
        v_writelane_b32 v10, s98, {8*ch+7}
        """)
    g(f"""
    v_lshrrev_b32 v12, 3, v{v_lane}
    v_mul_u32_u24 v12, {CVCH}, v12
    v_bfe_u32 v13, v{v_lane}, 1, 2
    v_mul_u32_u24 v13, {CVCOPY}, v13
    v_add_u32 v12, v12, v13
    v_and_b32 v13, 1, v{v_lane}
    v_lshl_add_u32 v12, v13, 4, v12
    v_add_u32 v12, {LCV}, v12
    s_mov_b64 exec, 0xffff
    ds_write_b128 v12, v[8:11]
    s_mov_b64 exec, -1
    s_branch CB_done
    CB_w1:
    s_cmp_eq_u32 s{s_w}, 1
    s_cbranch_scc0 CB_done
    v_mov_b32 v8, 0
    v_mov_b32 v9, 0
    v_mov_b32 v10, 0
    v_mov_b32 v11, 0
    v_add_u32 v12, {LU+4096}, v{v_l16}
    ds_write_b128 v12, v[8:11]
    ds_write_b128 v12, v[8:11] offset:{CVUS}
    CB_done:
    """)

cv_D = 128
cv_A = [160, 64]; cv_B = [192, 92]
cv_A = [160, 20]; cv_B = [192, 56]
v_la, v_lb = 124, 125
def conv_addr():
    return lines(f"""
    v_and_b32 v96, 15, v{v_lane}
    v_lshrrev_b32 v97, 4, v{v_lane}
    v_add_u32 v98, 1, v96
    v_and_b32 v99, 3, v98
    v_mul_u32_u24 v99, {CVCOPY}, v99
    v_lshrrev_b32 v98, 2, v98
    v_lshl_add_u32 v99, v98, 3, v99
    v_lshl_add_u32 v99, v97, 4, v99
    s_mul_i32 s98, s{s_ns}, {CVCH}
    s_add_u32 s98, s98, {LCV}
    v_add_u32 v{v_la}, s98, v99
    v_lshlrev_b32 v98, 5, v96
    v_lshlrev_b32 v99, 4, v97
    v_sub_u32 v99, v99, v98
    s_mul_i32 s98, s{s_ns}, {CVUS}
    s_lshl_b32 s99, s{s_mf}, 9
    s_sub_u32 s98, s98, s99
    s_add_u32 s98, s98, {LU + 4064 - 3072}
    v_add_u32 v{v_lb}, s98, v99
    """)
def conv_reads(cl):
    A, B = cv_A[cl & 1], cv_B[cl & 1]
    L = []
    for i in range(8):
        L.append(f"ds_read_b64 v[{A+4*i}:{A+4*i+1}], v{v_la} offset:{64*cl+512*i}")
        L.append(f"ds_read_b64 v[{A+4*i+2}:{A+4*i+3}], v{v_la} offset:{64*cl+512*i+8}")
        L.append(f"ds_read_b128 v[{B+4*i}:{B+4*i+3}], v{v_lb} offset:{64*cl+512*(7-i)}")
    return L
def conv_mfmas(cl):
    A, B = cv_A[cl & 1], cv_B[cl & 1]
    L = []
    pairs = sorted([(a, ib) for a in range(8) for ib in range(8) if (a + ib - 1) in (0, 2, 4, 6)], key=lambda p: (max(p), p))
    first = set()
    for a, ib in pairs:
        tau = (a + ib - 1) // 2
        d = cv_D + 4*tau
        cin = "0" if (cl == 0 and tau not in first) else f"v[{d}:{d+3}]"
        first.add(tau)
        L.append(f"v_mfma_f32_16x16x32_bf16 v[{d}:{d+3}], v[{A+4*a}:{A+4*a+3}], v[{B+4*ib}:{B+4*ib+3}], {cin}")
    assert len(L) == 20
    return L

def wd_setup_v():
    a, b, c, d, e, f = 112, 113, 114, 115, 116, 117
    return lines(f"""
    v_lshrrev_b32 v{a}, 3, v{v_lane}
    v_and_b32 v{b}, 7, v{v_lane}
    v_bfe_u32 v{c}, v{a}, 1, 1
    v_lshlrev_b32 v{c}, 2, v{c}
    v_xor_b32 v{b}, v{b}, v{c}
    v_mul_u32_u24 v{a}, 896, v{a}
    v_lshl_add_u32 v{e}, v{b}, 4, v{a}
    v_add_u32 v{f}, {8*896-1024}, v{e}
    v_accvgpr_write_b32 a248, v{e}
    v_accvgpr_write_b32 a249, v{f}
    v_lshrrev_b32 v{a}, 5, v{v_lane}
    v_bfe_u32 v{b}, v{v_lane}, 2, 2
    v_lshl_add_u32 v{a}, v{a}, 2, v{b}
    v_lshlrev_b32 v{a}, 7, v{a}
    v_bfe_u32 v{c}, v{v_lane}, 4, 1
    v_bfe_u32 v{d}, v{v_lane}, 1, 1
    v_lshl_add_u32 v{c}, v{c}, 1, v{d}
    v_lshl_add_u32 v{a}, v{c}, 4, v{a}
    v_and_b32 v{c}, 1, v{v_lane}
    v_lshl_add_u32 v{a}, v{c}, 3, v{a}
    v_bfe_u32 v{b}, v{v_lane}, 3, 1
    v_xor_b32 v{b}, s{s_ns}, v{b}
    v_lshl_add_u32 v{e}, v{b}, 6, v{a}
    v_xor_b32 v{b}, 1, v{b}
    v_lshl_add_u32 v{f}, v{b}, 6, v{a}
    s_mul_i32 s{s_t0}, s{s_w}, {RING}
    v_add_u32 v{a}, s{s_t0}, v{e}
    v_add_u32 v{b}, s{s_t0}, v{f}
    v_accvgpr_write_b32 a250, v{a}
    v_accvgpr_write_b32 a251, v{b}
    s_lshl_b32 s{s_t0}, s{s_w}, 13
    s_add_u32 s{s_t0}, s{s_t0}, {E1B}
    v_add_u32 v{a}, s{s_t0}, v{e}
    v_add_u32 v{b}, s{s_t0}, v{f}
    v_accvgpr_write_b32 a252, v{a}
    v_accvgpr_write_b32 a253, v{b}
    """)
def wd_setup_s():
    return lines(f"""
    s_mul_i32 s{s_woff}, s{s_w}, {448*896}
    s_lshl_b32 s{s_t0}, s{s_ct}, 7
    s_add_u32 s{s_woff}, s{s_woff}, s{s_t0}
    s_mul_i32 s{s_m0x}, s{s_w}, {RING}
    s_lshl_b32 s{s_eb}, s{s_w}, 13
    s_add_u32 s{s_eb}, s{s_eb}, {E1B}
    v_accvgpr_read_b32 v{vW0}, a248
    v_accvgpr_read_b32 v{vW1}, a249
    v_accvgpr_read_b32 v{vW2}, a250
    v_accvgpr_read_b32 v{vW3}, a251
    v_accvgpr_read_b32 v{vW4}, a252
    v_accvgpr_read_b32 v{vW5}, a253
    """) + rot_setup(28, 29, s_woff, 14336) + lines(f"""
    v_subrev_u32 v{vW6}, {E1B-E2B}, v{vW4}
    v_subrev_u32 v{vW7}, {E1B-E2B}, v{vW5}
    """)
NSLOT = 10
ROT = os.environ.get("ROT", "0") == "1"
def ptr_next(p, pend, pbase, stride):
    return ["\n".join([f"s_mov_b32 s{s_t3}, s{p}", f"s_add_u32 s{p}, s{p}, {stride}", f"s_cmp_eq_u32 s{p}, s{pend}", f"s_cselect_b32 s{p}, s{pbase}, s{p}"])]
def rot_setup(p, pend, pbase, stride):
    L = [f"s_add_u32 s{pend}, s{pbase}, {28*stride}"]
    if not ROT: return L + [f"s_mov_b32 s{p}, s{pbase}"]
    return L + [f"s_and_b32 s{p}, s{s_mi}, 3", f"s_mul_i32 s{p}, s{p}, 7", f"s_lshl_b32 s{s_t2}, s{s_ct}, 2", f"s_add_u32 s{p}, s{p}, s{s_t2}",
                f"s_cmp_ge_u32 s{p}, 28\ns_cselect_b32 s{s_t2}, 28, 0\ns_sub_u32 s{p}, s{p}, s{s_t2}",
                f"s_mul_i32 s{p}, s{p}, {stride}", f"s_add_u32 s{p}, s{p}, s{pbase}"]
s_eb = 33
vW4, vW5 = 118, 119
vW6, vW7 = 116, 117
def wd_dma_e(j, e):
    m0 = f"s_add_u32 m0, s{s_eb}, {e*2048}" if e < 4 else f"s_sub_u32 m0, s{s_eb}, {E1B-E2B-(e-4)*2048}"
    return ["\n".join([m0] + ptr_next(28, 29, s_woff, 14336) + [
            f"buffer_load_dwordx4 v{vW0}, s[{sWD2}:{sWD2+3}], s{s_t3} offen lds"]),
            "\n".join([m0, "s_nop 0", f"buffer_load_dwordx4 v{vW1}, s[{sWD2}:{sWD2+3}], s{s_t3} offen offset:1024 lds"])]
def wd_tr_e(j, e):
    L = []
    b = vW4 if e < 4 else vW6
    off = (e & 3)*2048
    for sm in range(2):
        r = 8*j + 4*sm
        L.append(f"ds_read_b64_tr_b16 a[{r}:{r+1}], v{b+sm} offset:{off}")
        L.append(f"ds_read_b64_tr_b16 a[{r+2}:{r+3}], v{b+sm} offset:{off+1024}")
    return L
def wd_dma(j, sl=None):
    if sl is None: sl = j % NSLOT
    return [f"s_add_u32 m0, s{s_m0x}, {sl*2048}"] + ptr_next(28, 29, s_woff, 14336) + [
            f"buffer_load_dwordx4 v{vW0}, s[{sWD2}:{sWD2+3}], s{s_t3} offen lds",
            f"buffer_load_dwordx4 v{vW1}, s[{sWD2}:{sWD2+3}], s{s_t3} offen offset:1024 lds"]
def wd_tr(j, sl=None):
    if sl is None: sl = j % NSLOT
    L = []
    for sm in range(2):
        r = 8*j + 4*sm
        L.append(f"ds_read_b64_tr_b16 a[{r}:{r+1}], v{vW2+sm} offset:{sl*2048}")
        L.append(f"ds_read_b64_tr_b16 a[{r+2}:{r+3}], v{vW2+sm} offset:{sl*2048+1024}")
    return L

vH0, vH1, vH2 = 2, 3, 4
def g2_setup():
    return lines(f"""
    s_lshl_b32 s{s_t0}, s{s_mi}, 2
    s_lshl_b32 s{s_t1}, s{s_hi}, 1
    s_add_u32 s{s_t0}, s{s_t0}, s{s_t1}
    s_mul_i32 s{s_t0}, s{s_t0}, 112
    s_mul_i32 s{s_t1}, s{s_w}, 28
    s_add_u32 s{s_t0}, s{s_t0}, s{s_t1}
    s_lshl_b32 s{s_xoff}, s{s_t0}, 10
    s_add_u32 s{s_xoff}, s{s_xoff}, {WS_H}
    s_mul_i32 s{s_t0}, s{s_mf}, {112*1024}
    v_add_u32 v{vH0}, s{s_t0}, v{v_l16}
    s_sub_u32 s{s_t0}, {112*1024 - 1024}, s{s_t0}
    v_add_u32 v{vH1}, s{s_t0}, v{v_l16}
    v_add_u32 v{vH2}, s{s_m0x}, v{v_l16}
    """) + rot_setup(30, 31, s_xoff, 1024)
HSC = os.environ.get('HSC', 'sc1')
def h_dma(j):
    sl = j % NSLOT
    m0 = f"s_add_u32 m0, s{s_m0x}, {sl*2048}"
    return ["\n".join([m0] + ptr_next(30, 31, s_xoff, 1024) + [f"buffer_load_dwordx4 v{vH0}, s[{sWS}:{sWS+3}], s{s_t3} offen {HSC} lds"]),
            "\n".join([m0, "s_nop 0", f"buffer_load_dwordx4 v{vH1}, s[{sWS}:{sWS+3}], s{s_t3} offen offset:1024 {HSC} lds"])]
def h_reads(j):
    sl = j % NSLOT
    b = g2_fr + (j % 4)*8
    return [f"ds_read_b128 v[{b}:{b+3}], v{vH2} offset:{sl*2048}", f"ds_read_b128 v[{b+4}:{b+7}], v{vH2} offset:{sl*2048+1024}"]
def hflag_offsets():
    return lines(f"""
    v_min_u32 v{v_poll}, 27, v{v_lane}
    v_lshrrev_b32 v{v_poll+1}, 1, v{v_poll}
    v_and_b32 v{v_poll}, 1, v{v_poll}
    v_lshl_add_u32 v{v_poll}, v{v_poll+1}, 2, v{v_poll}
    v_lshlrev_b32 v{v_poll}, 6, v{v_poll}
    s_lshl_b32 s{s_pb}, s{s_mi}, 12
    s_lshl_b32 s{s_t0}, s{s_hi}, 7
    s_add_u32 s{s_pb}, s{s_pb}, s{s_t0}
    s_add_u32 s{s_pb}, s{s_pb}, {WS_FH}
    """)

HFG = int(os.environ.get('HFG', '12'))
def conv_main(g, hflag):
    CL = 20; NG = 8*CL
    per = [[] for _ in range(NG + 8)]
    m = []
    for cl in range(8):
        m += conv_mfmas(cl)
        if cl < 7:
            rd = conv_reads(cl+1)
            for i, x in enumerate(rd): per[CL*cl + (i*16)//24].append((x, f"cv{cl+1}"))
    per[0].append(("VWAIT", "wd16"))
    trg = {}
    for n_, j in enumerate(range(8, 21)):
        gp = 6*n_
        trg[j] = gp
        if j == 17: per[gp].append(("VWAIT", "wd20"))
        tl = T(wd_tr(j, j-8) if j < 17 else wd_tr_e(j, j-17), f"tr{j}")
        for q, x in enumerate(tl): per[gp + q].append(x)
    for i, j in enumerate(range(21, 28)):
        g2 = trg[8+i] + 8
        per[g2].append(("LWAIT", f"tr{8+i}"))
        dl = T(wd_dma(j, j-21), f"wd{j}")
        per[g2] += dl[:2]
        per[g2+1] += dl[2:]
    if os.environ.get("POSTB", "1") != "1": per[HFG].append(("CALL", hflag))
    for i, j in enumerate(range(21, 28)):
        gp = 80 + 3*i
        per[gp].append(("VWAIT", f"wd{j}"))
        tl = T(wd_tr(j, j-21), f"tr{j}")
        per[gp] += tl[:2]; per[gp+1] += tl[2:]
    spread(per, T(hflag_offsets()), 66, 71)
    spread(per, T(g2_setup()), 72, 79)
    HCG = int(os.environ.get("HCG", "102"))
    per[HCG - 14] += poll_issue("ph")
    per[HCG].append(("HCHECK", None))
    per[HCG].append(("LWAIT", "tr27"))
    nh = min(10, (NG - 2 - HCG) // 5)
    for s_ in range(nh):
        gp = HCG + 1 + 5*s_
        hl_ = T(h_dma(s_), f"h{s_}")
        per[gp] += hl_[:1]; per[gp+2] += hl_[1:]
    global NH0
    NH0 = nh
    spread(per, T(conv_epi_pre()), 139, 150)
    for i in range(NG):
        if EST and i in (0, 40, 80, 120): stamp(g, 11 + i//40)
        if CST and i % 13 == 0: stamp(g, 1 + i//13)
        if i % CL == 0: g.lwait(f"cv{i//CL}")
        g(m[i])
        for x, tag in per[i]:
            if x == "CALL": tag()
            elif x == "HCHECK": poll_check(g, "G_p2", "ph")
            else: g.emit(x, tag)

def conv_epi_pre():
    L = lines(f"""
    v_and_b32 v54, 15, v{v_lane}
    v_lshrrev_b32 v55, 4, v{v_lane}
    v_lshlrev_b32 v54, 5, v54
    v_lshl_add_u32 v53, v55, 3, v54
    s_mul_i32 s98, s{s_ns}, {CVUS}
    s_lshl_b32 s99, s{s_mf}, 9
    s_sub_u32 s98, s98, s99
    s_add_u32 s98, s98, {LU + 4088 - 3072}
    v_sub_u32 v52, s98, v53
    s_lshl_b32 s98, s2, 13
    s_lshl_b32 s34, s{s_ns}, 12
    s_add_u32 s98, s98, s34
    s_add_u32 s98, s98, s99
    s_add_u32 s98, s98, {WS_ZP}
    """)
    L += [f"s_cmp_eq_u32 s{s_ns}, 0\ns_cselect_b32 s99, s100, s101"]
    for tau in range(4):
        L.append(f"ds_read_b64 v[{88+2*tau}:{89+2*tau}], v52 offset:{1024*(3-tau)}")
    return L
def conv_epilogue(g):
    KV, U, O = 88, 96, 112
    g("s_waitcnt lgkmcnt(0)")
    for tau in range(4):
        k = KV + 2*tau; u = U + 4*tau
        g(f"v_and_b32 v{u}, 0xffff0000, v{k+1}\nv_lshlrev_b32 v{u+1}, 16, v{k+1}\nv_and_b32 v{u+2}, 0xffff0000, v{k}\nv_lshlrev_b32 v{u+3}, 16, v{k}")
    for tau in range(4):
        for r in range(4): g(f"v_fmac_f32 v{cv_D+4*tau+r}, s99, v{U+4*tau+r}")
    for tau in range(4):
        g(f"v_cvt_pk_bf16_f32 v{O+2*tau}, v{cv_D+4*tau}, v{cv_D+4*tau+1}\nv_cvt_pk_bf16_f32 v{O+2*tau+1}, v{cv_D+4*tau+2}, v{cv_D+4*tau+3}")
    for tau in range(4):
        g.vm(f"buffer_store_dwordx2 v[{O+2*tau}:{O+2*tau+1}], v53, s[{sWS}:{sWS+3}], s98 offen offset:{1024*tau} sc1", "zst")

g2_acc = 192
g2_fr = 160
G2ST = os.environ.get('G2ST') == '1'
NH0 = int(os.environ.get('NH0', '4'))
def g2_mfma(j, sm, sn):
    b = g2_fr + (j % 4)*8
    acc = g2_acc + (sm*2+sn)*16
    cin = "0" if j == 0 else f"v[{acc}:{acc+15}]"
    return f"v_mfma_f32_32x32x16_bf16 v[{acc}:{acc+15}], a[{8*j+4*sm}:{8*j+4*sm+3}], v[{b+4*sn}:{b+4*sn+3}], {cin}"
def g2_main(g, extra):
    nd = NH0
    g.ldops = []
    g.vwait("h1")
    for x in h_reads(0): g.ld(x, "hr0")
    for x in h_reads(1): g.ld(x, "hr1")
    JT = 24
    for j in range(JT):
        if G2ST and j % 2 == 0: stamp(g, 1 + j//2)
        g.lwait(f"hr{j}")
        fill = []
        cnt = 0
        while nd < 28 and nd <= j + 9 and cnt < 2:
            fill += T(h_dma(nd), f"h{nd}"); nd += 1; cnt += 1
        m = [g2_mfma(j, sm, sn) for sm in range(2) for sn in range(2)]
        per = [[] for _ in range(4)]
        if fill: spread(per, fill, 0, 3)
        ex = extra(j)
        if ex: spread(per, ex, 0, 3)
        per[3].append(("VWAIT", f"h{j+2}"))
        per[3] += T(h_reads(j+2), f"hr{j+2}")
        for i in range(4):
            g(m[i])
            for x, tag in per[i]:
                if x == "CALL": tag()
                else: g.emit(x, tag)
    g.vwait("h27")
    for j in (26, 27):
        for x in h_reads(j): g.ld(x, f"hr{j}")
    g(f"v_add_u32 v22, s{s_m0x}, v{v_l16}")
    for x in range(1, 4):
        g(f"s_xor_b32 s{s_t0}, s{s_w}, {x}\ns_mul_i32 s{s_t0}, s{s_t0}, {RING}\nv_add_u32 v{22+x}, s{s_t0}, v{v_l16}")
    g.lwait("hr27")
    order = [1, 2, 3, 0]
    pend = []
    ex = extra(24) + extra(25) + extra(26)
    for sl in order:
        sm, sn = sl >> 1, sl & 1
        for j in range(JT, 28):
            g(g2_mfma(j, sm, sn))
            if pend:
                g(pend.pop(0))
            elif ex:
                x, tag = ex.pop(0)
                if x == "CALL": tag()
                else: g.emit(x, tag)
        if sl != 0:
            pend += ["s_nop 4", "s_nop 4"] + [f"ds_write_b128 v22, v[{g2_acc + sl*16 + 4*q}:{g2_acc + sl*16 + 4*q + 3}] offset:{sl*4096 + q*1024}" for q in range(4)]
    for x, tag in ex:
        if x == "CALL": tag()
        else: g.emit(x, tag)
    g("s_nop 7")
    for x in pend: g(x)

def g2_reduce2(g):
    g.vwait("x")
    g("s_waitcnt lgkmcnt(0)\ns_barrier")
    for x in final_x_reads(): g(x)
    for x in range(1, 4):
        for q in range(4):
            r = g2_acc + x*16 + 4*q
            g(f"ds_read_b128 v[{r}:{r+3}], v{22+x} offset:{x*4096 + q*1024}")
    for x in range(1, 4):
        g(f"s_waitcnt lgkmcnt({4*(3-x)})")
        for q in range(8):
            a = g2_acc + 2*q; b = g2_acc + x*16 + 2*q
            g(f"v_pk_add_f32 v[{a}:{a+1}], v[{a}:{a+1}], v[{b}:{b+1}]")

fx = 32
LXF = 114688
def final_loads_x():
    L = [f"v_lshrrev_b32 v26, 3, v{v_lane}", f"v_and_b32 v27, 7, v{v_lane}", f"v_lshrrev_b32 v24, 4, v{v_lane}",
         f"v_xor_b32 v25, v27, v24", f"v_mul_u32_u24 v26, 896, v26", f"v_lshl_add_u32 v25, v25, 4, v26",
         f"v_xor_b32 v27, 4, v27", f"v_xor_b32 v27, v27, v24", f"v_lshl_add_u32 v26, v27, 4, v26", f"v_add_u32 v26, {8*896-1024}, v26",
         f"s_lshl_b32 s{s_t0}, s{s_mi}, 7", f"s_lshl_b32 s{s_t1}, s{s_hi}, 6", f"s_add_u32 s{s_t0}, s{s_t0}, s{s_t1}",
         f"s_lshl_b32 s{s_t1}, s{s_w}, 4", f"s_add_u32 s{s_t1}, s{s_t1}, s{s_t0}", f"s_mul_i32 s{s_t1}, s{s_t1}, 896",
         f"s_lshl_b32 s{s_t2}, s{s_ct}, 7", f"s_add_u32 s{s_t1}, s{s_t1}, s{s_t2}"]
    L.append("\n".join([f"s_add_u32 m0, s{s_t4}, {LXF}", "s_nop 0",
             f"buffer_load_dwordx4 v25, s[{sX}:{sX+3}], s{s_t1} offen lds",
             f"buffer_load_dwordx4 v26, s[{sX}:{sX+3}], s{s_t1} offen offset:1024 lds"]))
    L += [f"s_lshl_b32 s{s_t1}, s{s_mf}, 5", f"s_add_u32 s{s_t0}, s{s_t0}, s{s_t1}", f"s_mul_i32 s{s_zoff}, s{s_t0}, 896",
          f"s_add_u32 s{s_zoff}, s{s_zoff}, s{s_t2}", f"s_lshl_b32 s{s_t1}, s{s_ns}, 6", f"s_add_u32 s{s_zoff}, s{s_zoff}, s{s_t1}"]
    return L
def final_x_reads():
    L = [f"v_and_b32 v56, 31, v{v_lane}", f"v_bfe_u32 v57, v{v_lane}, 1, 3", f"s_lshl_b32 s{s_t0}, s{s_ns}, 2", f"v_xor_b32 v57, s{s_t0}, v57",
         f"s_lshl_b32 s{s_t1}, s{s_mf}, 12", f"s_add_u32 s{s_t1}, s{s_t1}, {LXF}", f"v_lshl_add_u32 v56, v56, 7, s{s_t1}",
         f"v_lshrrev_b32 v58, 5, v{v_lane}", f"v_lshl_add_u32 v56, v58, 3, v56"]
    for q in range(4):
        L += [f"v_xor_b32 v58, {q}, v57", f"v_lshl_add_u32 v58, v58, 4, v56", f"ds_read_b64 v[{fx+2*q}:{fx+2*q+1}], v58"]
    return L
s_zp = 49
def final_z_setup():
    return lines(f"""
    v_and_b32 v28, 31, v{v_lane}
    v_lshlrev_b32 v28, 1, v28
    v_lshrrev_b32 v27, 5, v{v_lane}
    v_lshl_add_u32 v28, v27, 14, v28
    s_lshl_b32 s{s_t0}, s{s_ct}, 5
    s_lshl_b32 s{s_t1}, s{s_ns}, 4
    s_add_u32 s{s_t0}, s{s_t0}, s{s_t1}
    s_lshl_b32 s{s_pb}, s{s_t0}, 8
    s_lshl_b32 s{s_t0}, s{s_t0}, 13
    s_lshl_b32 s{s_t1}, s{s_mi}, 7
    s_lshl_b32 s{s_t2}, s{s_hi}, 6
    s_add_u32 s{s_t1}, s{s_t1}, s{s_t2}
    s_lshl_b32 s{s_t2}, s{s_mf}, 5
    s_add_u32 s{s_t1}, s{s_t1}, s{s_t2}
    s_lshl_b32 s{s_t1}, s{s_t1}, 1
    s_add_u32 s{s_t0}, s{s_t0}, s{s_t1}
    s_add_u32 s{s_zp}, s{s_t0}, {WS_ZP}
    s_bfe_u32 s{s_t1}, s{s_mi}, 0x10001
    s_lshl_b32 s{s_t1}, s{s_t1}, 6
    s_add_u32 s{s_pb}, s{s_pb}, s{s_t1}
    s_add_u32 s{s_pb}, s{s_pb}, {WS_FZ}
    v_min_u32 v{v_poll}, 31, v{v_lane}
    v_lshrrev_b32 v{v_poll+1}, 1, v{v_poll}
    v_and_b32 v{v_poll}, 1, v{v_poll}
    v_lshlrev_b32 v{v_poll}, 7, v{v_poll}
    v_lshl_add_u32 v{v_poll}, v{v_poll+1}, 8, v{v_poll}
    """)
fz = 64
def final_loads_z(g):
    for q in range(4):
        for i in range(4):
            g(f"s_add_u32 s{s_t3}, s{s_zp}, {(8*q+i)*4096}")
            g.vm(f"buffer_load_ushort v{fz+4*q+i}, v28, s[{sWS}:{sWS+3}], s{s_t3} offen sc1", "z")
def final_pre():
    return lines(f"""
    v_and_b32 v22, 31, v{v_lane}
    v_lshlrev_b32 v22, 3, v22
    s_lshl_b32 s{s_t0}, s{s_mi}, 10
    s_lshl_b32 s{s_t1}, s{s_hi}, 9
    s_add_u32 s{s_t0}, s{s_t0}, s{s_t1}
    s_lshl_b32 s{s_t1}, s{s_mf}, 8
    s_add_u32 s{s_t0}, s{s_t0}, s{s_t1}
    s_add_u32 s{s_t0}, s{s_t0}, {WS_STATS}
    buffer_load_dwordx2 v[30:31], v22, s[{sWS}:{sWS+3}], s{s_t0} offen sc1
    v_and_b32 v29, 31, v{v_lane}
    v_mul_u32_u24 v29, 896, v29
    v_lshrrev_b32 v27, 5, v{v_lane}
    v_lshl_add_u32 v29, v27, 4, v29
    """)
def final(g):
    g(f"""
    s_waitcnt vmcnt(0)
    v_rcp_f32 v31, v31
    v_mov_b32 v20, {fh(-math.log2(math.e))}
    v_mov_b32 v21, 1.0
    v_mul_f32 v30, v30, v31
    v_sub_f32 v30, 0, v30
    """)
    O = g2_acc
    X = 48; Zz = 64; Tt = 80; XN = 96
    def pr(x): return f"v[{x}:{x+1}]"
    steps = [
      lambda i: [f"v_pk_mul_f32 {pr(Tt+2*i)}, {pr(O+2*i)}, v[20:21] op_sel_hi:[1,0]"],
      lambda i: [f"v_exp_f32 v{Tt+2*i}, v{Tt+2*i}", f"v_exp_f32 v{Tt+2*i+1}, v{Tt+2*i+1}"],
      lambda i: [f"v_lshlrev_b32 v{X+2*i}, 16, v{fx+i}", f"v_and_b32 v{X+2*i+1}, 0xffff0000, v{fx+i}"],
      lambda i: [f"v_pk_add_f32 {pr(Tt+2*i)}, {pr(Tt+2*i)}, v[20:21] op_sel:[0,1] op_sel_hi:[1,1]"],
      lambda i: [f"v_lshlrev_b32 v{Zz+2*i}, 16, v{fz+2*i}", f"v_lshlrev_b32 v{Zz+2*i+1}, 16, v{fz+2*i+1}"],
      lambda i: [f"v_rcp_f32 v{Tt+2*i}, v{Tt+2*i}", f"v_rcp_f32 v{Tt+2*i+1}, v{Tt+2*i+1}"],
      lambda i: [f"v_pk_fma_f32 {pr(XN+2*i)}, {pr(X+2*i)}, v[30:31], v[30:31] op_sel:[0,1,0] op_sel_hi:[1,1,0]"],
      lambda i: [f"v_pk_mul_f32 {pr(Tt+2*i)}, {pr(Tt+2*i)}, {pr(O+2*i)}"],
      lambda i: [f"v_pk_mul_f32 {pr(Zz+2*i)}, {pr(Zz+2*i)}, {pr(XN+2*i)}"],
      lambda i: [f"v_pk_fma_f32 {pr(Tt+2*i)}, {pr(Tt+2*i)}, {pr(Zz+2*i)}, {pr(X+2*i)}"],
    ]
    for st in steps:
        for i in range(8):
            for x in st(i): g(x)
    P = 112
    for i in range(8): g(f"v_cvt_pk_bf16_f32 v{P+i}, v{Tt+2*i}, v{Tt+2*i+1}")
    g("s_nop 1")
    for qq in (0, 2):
        g(f"v_permlane32_swap_b32 v{P+2*qq}, v{P+2*qq+2}\nv_permlane32_swap_b32 v{P+2*qq+1}, v{P+2*qq+3}")
    for qq in (0, 2):
        g(f"buffer_store_dwordx4 v[{P+2*qq}:{P+2*qq+3}], v29, s[{sOUT2}:{sOUT2+3}], s{s_zoff} offen offset:{16*qq} {os.environ.get('OUTF','')}")

def kflag_offsets():
    if SPK:
        return lines(f"""v_min_u32 v{v_poll}, 31, v{v_lane}
        v_lshlrev_b32 v{v_poll}, 6, v{v_poll}
        s_mov_b32 s{s_pb}, {WS_FK}""")
    return lines(f"""
    v_min_u32 v{v_poll}, 31, v{v_lane}
    v_lshrrev_b32 v{v_poll+1}, 1, v{v_poll}
    v_and_b32 v{v_poll}, 1, v{v_poll}
    v_lshlrev_b32 v{v_poll}, 7, v{v_poll}
    v_lshl_add_u32 v{v_poll}, v{v_poll+1}, 12, v{v_poll}
    s_lshr_b32 s{s_pb}, s2, 4
    s_lshl_b32 s{s_pb}, s{s_pb}, 8
    s_bfe_u32 s{s_t0}, s2, 0x10003
    s_lshl_b32 s{s_t0}, s{s_t0}, 6
    s_add_u32 s{s_pb}, s{s_pb}, s{s_t0}
    s_add_u32 s{s_pb}, s{s_pb}, {WS_FK}
    """)
s_fo = 32
def flag_off(base):
    return lines(f"""s_lshl_b32 s{s_fo}, s{s_mi}, 4
    s_add_u32 s{s_fo}, s{s_fo}, s{s_fi}
    s_lshl_b32 s{s_fo}, s{s_fo}, 2
    s_add_u32 s{s_fo}, s{s_fo}, s{s_w}
    s_lshl_b32 s{s_fo}, s{s_fo}, 6
    s_add_u32 s{s_fo}, s{s_fo}, {base}""")
def wave_flag_L(vt, so=s_fo):
    return [f"v_mov_b32 v{vt}, 0", f"v_mov_b32 v{vt+1}, s{s_tag}", "s_mov_b64 exec, 1",
            f"buffer_store_dword v{vt+1}, v{vt}, s[{sWS}:{sWS+3}], s{so} offen sc1", "s_mov_b64 exec, -1"]

sTC = 28
def touch_setup():
    a, b = 104, 105
    return lines(f"""
    s_mov_b32 s{sTC}, s{sWD2}
    s_mov_b32 s{sTC+1}, s{sWD2+1}
    s_mov_b32 s{sTC+2}, {D*F*2}
    s_mov_b32 s{sTC+3}, 0x20000
    s_lshr_b32 s96, s2, 3
    s_mul_i32 s96, s96, 57344
    s_sub_u32 s96, s96, {32*128}
    s_movk_i32 s97, {32*128}
    s_mul_i32 s{s_t0}, s{s_w}, 8
    v_add_u32 v{a}, s{s_t0}, v{v_lane}
    v_lshlrev_b32 v{a}, 7, v{a}
    v_mov_b32 v{b}, 0x7ffffff0
    v_cmp_gt_u32 vcc, 8, v{v_lane}
    s_nop 1
    v_cndmask_b32 v19, v{b}, v{a}, vcc
    """)
sTG = 84
def g1touch_setup(first_chunk=1):
    a, b = 104, 105
    return lines(f"""
    s_and_b32 s{s_t0}, s{s_mi}, 1
    s_cmp_eq_u32 s{s_t0}, 1
    s_cselect_b32 s{sTG}, s{sWU}, s{sWG}
    s_cselect_b32 s{sTG+1}, s{sWU+1}, s{sWG+1}
    s_mov_b32 s{sTG+2}, {D*F*2}
    s_mov_b32 s92, {first_chunk*64*3584}
    s_mov_b32 s93, {64*3584}
    s_cmp_ge_u32 s{s_w}, 2
    s_cselect_b32 s{sTG}, s{sX}, s{sTG}
    s_cselect_b32 s{sTG+1}, s{sX+1}, s{sTG+1}
    s_cselect_b32 s{sTG+2}, {S*D*2}, s{sTG+2}
    s_cselect_b32 s92, {128*first_chunk}, s92
    s_cselect_b32 s93, 128, s93
    s_mov_b32 s{sTG+3}, 0x20000
    s_bfe_u32 s{s_t0}, s{s_mi}, 0x10001
    s_lshl_b32 s{s_t0}, s{s_t0}, 5
    s_lshl_b32 s{s_t1}, s{s_mf}, 4
    s_add_u32 s{s_t0}, s{s_t0}, s{s_t1}
    v_lshrrev_b32 v{a}, 1, v{v_lane}
    v_add_u32 v{a}, s{s_t0}, v{a}
    v_mul_u32_u24 v{a}, 3584, v{a}
    v_and_b32 v{b}, 1, v{v_lane}
    v_lshl_add_u32 v{a}, v{b}, 7, v{a}
    s_lshl_b32 s{s_t0}, s{s_fi}, 8
    v_add_u32 v{a}, s{s_t0}, v{a}
    v_cmp_gt_u32 vcc, 32, v{v_lane}
    v_mov_b32 v{b}, 0x7ffffff0
    s_mul_i32 s{s_t0}, s{s_ct}, 19
    s_mul_i32 s{s_t2}, s{s_mf}, 10
    s_add_u32 s{s_t0}, s{s_t0}, s{s_t2}
    s_lshl_b32 s{s_t1}, s{s_mi}, 7
    v_cndmask_b32 v87, v{b}, v{a}, vcc
    v_add_u32 v{a}, s{s_t0}, v{v_lane}
    s_movk_i32 s{s_t2}, 128
    v_cmp_gt_u32 vcc, 10, v{v_lane}
    v_cmp_gt_u32 s[94:95], s{s_t2}, v{a}
    v_add_u32 v{a}, s{s_t1}, v{a}
    v_mul_u32_u24 v{a}, 896, v{a}
    s_and_b64 vcc, vcc, s[94:95]
    s_nop 1
    v_cndmask_b32 v{a}, v{b}, v{a}, vcc
    s_cmp_ge_u32 s{s_w}, 2
    s_cselect_b64 vcc, -1, 0
    s_nop 1
    v_cndmask_b32 v87, v87, v{a}, vcc
    """)
def g1pref_setup():
    return lines(f"""
    s_and_b32 s{s_t0}, s{s_mi}, 1
    s_cmp_eq_u32 s{s_t0}, 1
    s_cselect_b32 s{sTG}, s{sWU}, s{sWG}
    s_cselect_b32 s{sTG+1}, s{sWU+1}, s{sWG+1}
    s_mov_b32 s{sTG+2}, {D*F*2}
    s_mov_b32 s{sTG+3}, 0x20000
    s_lshl_b32 s{s_t0}, s{s_mi}, 7
    s_mul_i32 s{s_t1}, s{s_ct}, 19
    s_add_u32 s{s_t0}, s{s_t0}, s{s_t1}
    s_mul_i32 s{s_t0}, s{s_t0}, 896
    s_mul_i32 s{s_t1}, s{s_w}, 4352
    s_add_u32 s92, s{s_t0}, s{s_t1}
    s_bfe_u32 s{s_t0}, s{s_mi}, 0x10001
    s_lshl_b32 s{s_t0}, s{s_t0}, 5
    s_lshl_b32 s{s_t1}, s{s_w}, 3
    s_add_u32 s{s_t0}, s{s_t0}, s{s_t1}
    s_mul_i32 s93, s{s_t0}, 3584
    s_lshl_b32 s{s_t0}, s{s_fi}, 8
    s_add_u32 s93, s93, s{s_t0}
    v_lshrrev_b32 v104, 4, v{v_lane}
    v_mul_u32_u24 v104, 3584, v104
    v_and_b32 v105, 15, v{v_lane}
    v_lshl_add_u32 v87, v105, 4, v104
    """)
def g1pref_w(c, h):
    return ["\n".join([f"s_add_u32 s91, s93, {(64*c+4*h)*3584}", f"buffer_load_dwordx4 a[244:247], v87, s[{sTG}:{sTG+3}], s91 offen"])]
def g1pref_x(i):
    return ["\n".join([f"s_add_u32 s91, s92, {1024*i}", f"buffer_load_dwordx4 a[244:247], v{v_l16}, s[{sX}:{sX+3}], s91 offen"])]
def g1touch_L():
    return [f"buffer_load_dword a255, v87, s[{sTG}:{sTG+3}], s92 offen", "s_add_u32 s92, s92, s93"]
def wdpref(i):
    return ["\n".join([f"s_add_u32 s91, s96, {1024*i}", f"buffer_load_dwordx4 a[244:247], v{v_l16}, s[{sWD2}:{sWD2+3}], s91 offen"])]
def wdpref_setup():
    return [f"s_lshr_b32 s96, s2, 3", f"s_mul_i32 s96, s96, 57344", f"s_mul_i32 s97, s{s_w}, {14*1024}", "s_add_u32 s96, s96, s97"]
def touch_L():
    return ["s_add_u32 s96, s96, s97", f"buffer_load_dword a255, v19, s[{sTC}:{sTC+3}], s96 offen"]
TOUCH = os.environ.get("TOUCH", "none")
def gemm_path(g, stamps=False):
    RTS = os.environ.get("RTS") == "1"
    rmap = {0: 0, 2: 1, 5: 2, 6: 3, 9: 4, 11: 5, 14: 6}
    def S_(i):
        if RTS:
            if i in rmap:
                stamp(g, rmap[i], True)
                g(f"s_memrealtime s[{STAMP0+2*(7+rmap[i])}:{STAMP0+2*(7+rmap[i])+1}]")
        else: stamp(g, i, stamps)
    g.vreset()
    S_(0)
    g1_prologue(g)
    TG1 = os.environ.get("TG1", "none")
    NPF = int(os.environ.get("NPF", "4"))
    pf = []
    if TG1 == "c":
        for x in g1pref_setup(): g(x)
        pf = g1pref_w(0, 0) + g1pref_w(0, 1) + [g1pref_x(i)[0] for i in range(5)]
        for c in range(1, NPF): pf += g1pref_w(c, 0) + g1pref_w(c, 1)
    else:
        for grp in g1_groups(0): emit_mixed(g, grp, "c0")
    g(f"s_mov_b32 s{s_spin}, {WS_EPOCH}\ns_load_dword s{s_tag}, s[{sWS}:{sWS+1}], s{s_spin}\ns_lshl_b32 s98, s2, 2\ns_load_dword s99, s[96:97], s98")
    if KPA:
        for r, sz in ((sKK, S*D*2), (sVV, S*D*2), (sSH, D*8)): srd_fix(g, r, sz)
        emit_mixed(g, kp_shk_load(), "shk")
        kpa_dma(g)
        for x in g1_addr(): g(x)
        for grp in g1_groups(1): emit_mixed(g, grp, "c1")
        for r, sz in ((sWS, WS_END), (sWD2, D*F*2), (sSK2, D*S*2)): srd_fix(g, r, sz)
        kps_setup(g, AKT, AVT, AKO, 1)
        g.vwait("shk")
        for x in kp_build_B(): g(x)
        S_(1)
        g.vwait("kp")
        g("s_barrier")
        kpa_compute(g)
    else:
        for x in g1_addr(): g(x)
        for grp in g1_groups(1): emit_mixed(g, grp, "c1")
        late_setup = []
        for r, sz in ((sSH, D*8), (sKK, S*D*2), (sVV, S*D*2), (sWS, WS_END), (sWD2, D*F*2), (sSK2, D*S*2)):
            late_setup += [f"s_and_b32 s{r+1}, s{r+1}, 0xffff", f"s_mov_b32 s{r+2}, {sz}", f"s_mov_b32 s{r+3}, 0x20000"]
        S_(1)
    g("s_waitcnt lgkmcnt(0)")
    make_tag(g)
    g(f"s_lshl_b32 s100, s99, 16\ns_and_b32 s101, s99, 0xffff0000")
    g.vwait("c0")
    g("s_barrier")
    S_(2)
    def pre(k):
        if SPK or KPE: return []
        if KPA: return ["kvst"] if k == 7 else []
        return ["kp"] if k == KPK else []
    class _C:
        def __init__(self): self.L = []
        def __call__(self, t): self.L += lines(t)
    _c = _C()
    if KPE: kps_setup(_c, LKT2, LVT2, 24576, 2)
    else: kps_setup(_c)
    ksu = _c.L
    bB = kp_build_B()
    wsv = wd_setup_v(); eh = epi_hoff()
    def p1check(): poll_check(g, "G_p1", "p1")
    def post(k):
        E, L, X = [], [], []
        hl = conv_h_loads()
        if k == 19: E += T(wd_setup_s())
        if k == 21: E += T(conv_addr())
        kdl = kps_dma_L()
        if SPK: pass
        elif not KPA:
            kds = kps_dma_setup()
            if k == 0: E += T(late_setup)
            if k == 1: E += T(kp_shk_load(), "shk") + T(kds[:16])
            if k == 2: E += T(kds[16:])
            if k == 4: E += T(ksu[:24])
            if k == 5: E += T(ksu[24:48])
            if k == 6: E += T(ksu[48:]) + [("VWAIT", "shk")] + T(bB[:10])
            if k == 7: E += T(bB[10:])
        else:
            if k == 6: E += T(flag_off(WS_FK))
            if k == 7: X.append(T(wave_flag_L(86), "kflag"))
        if k == 9: E += T(wsv[:20])
        if k == 10: E += T(wsv[20:])
        if k == 11: E += T(eh)
        if TOUCH == "roll":
            for _ in range(list(TCHK).count(k)): X.append(T(touch_L(), "t2"))
        if TOUCH == "wide":
            WK0 = int(os.environ.get("WK0", "19"))
            plan = {}
            kk = WK0; i = 0
            while i < 14:
                n = 1 if kk <= 18 else int(os.environ.get('WN', '3'))
                plan[kk] = list(range(i, min(14, i+n))); i += n; kk += 1
            for i in plan.get(k, []): X.append(T(wdpref(i), "t2"))
        if TG1 == "c":
            later = [(c, h) for c in range(NPF, 7) for h in range(2)]
            if k < len(later): X.append(T(g1pref_w(*later[k]), "tg2"))
        if KPE:
            kskip = True
            if k in (19, 20, 21, 22): X.append(T(kdl[k-19:k-18], "kp"))
            if k in (22, 23): X.append(T(kps_t0_L()[k-22:k-21], "kp"))
        elif KPA or SPK:
            kskip = True
        elif os.environ.get("XNOKP"):
            if k == 3: X.append(T(kdl[0:1], "kp"))
            if k == KPK + 6: X.append(T(kps_store_L()[:1], "kvst"))
            if k == KPK + 10: E += T(flag_off(WS_FK))
            if k == KPK + 11: X.append([("VWAIT", "kvst")] + T(wave_flag_L(86), "kflag"))
            kskip = True
        else: kskip = False
        if not kskip and k in (3, 4, 5, 6): X.append(T(kdl[k-3:k-2], "kp"))
        if not kskip and k in (8, 9): X.append(T(kps_t0_L()[k-8:k-7], "kp"))
        if not kskip and k == KPK + 1: L += T(kps_stage1(), "kp1r")
        if not kskip and k == KPK + 2: E += [("LWAIT", "kp1r")] + T(kps_stage2()) + T(kps_stage3())
        if not kskip and k == KPK + 3: E += T(kps_stage4())
        if not kskip and k == KPK + 5: E += kps_stage5()
        if not kskip:
            if k == KPK + 6: X.append([("LWAIT", "kprb")] + T(kps_store_L()[:1], "kvst"))
            if k == KPK + 7: X.append(T(kps_store_L()[1:], "kvst"))
            if k == KPK + 10: E += T(flag_off(WS_FK))
            if k == KPK + 11: X.append([("VWAIT", "kvst")] + T(wave_flag_L(86), "kflag"))
        if MVG1:
            if k == 16: X.append(T(hl[:4], "h"))
            if k == 17: X.append(T(hl[4:], "h"))
            cb0 = conv_build_L(0, 2, 88, 92, 8); cb1 = conv_build_L(1, 2, 88, 92, 8)
            if k == 24: L += [("VWAIT", "h")] + T(cb0[:10])
            if k == 25: E += T(cb0[10:])
            if k == 26: E += T(cb1)
            if k == 27: E += [("CALL", lambda: conv_pad_code(g))]
        else:
            if k == 22: L += T(hl[:4], "h")
            if k == 23: L += T(hl[4:], "h")
        if k == 20:
            L += T(f"""v_min_u32 v{v_poll}, 31, v{v_lane}
            v_lshlrev_b32 v{v_poll}, 6, v{v_poll}
            s_mov_b32 s{s_pb}, {WS_FA}""")
        if k == 20: E += T(wd_dma_e(0, 0), "wd0") + T(wd_dma_e(1, 1), "wd1")
        if k == 21: E += T(wd_dma_e(2, 2), "wd2") + T(wd_dma_e(3, 3), "wd3"); L += poll_issue("p1")
        if k == 22:
            E += T(f"""v_lshrrev_b32 v{v_tch}, 5, v{v_lane}
            v_mul_u32_u24 v{v_tch}, {7168-512}, v{v_tch}
            v_add_u32 v{v_tch}, v{v_tch}, v{v_l16}
            s_mov_b32 s{sOUT2}, s64
            s_and_b32 s{sOUT2+1}, s65, 0xffff
            s_mov_b32 s{sOUT2+2}, {S*D*2}
            s_mov_b32 s{sOUT2+3}, 0x20000""")
        if k == 24:
            E += [("CALL", p1check)] + [("\n".join(lines(f"""s_mov_b32 m0, {LST}
            s_lshl_b32 s{s_t1}, s{s_mi}, 10
            s_add_u32 s{s_t1}, s{s_t1}, {WS_STATS}
            buffer_load_dwordx4 v{v_l16}, s[{sWS}:{sWS+3}], s{s_t1} offen sc1 lds""")), "st"), ("\n".join(lines(f"""s_mov_b32 m0, {LST+1024}
            s_lshl_b32 s{s_t1}, s{s_fi}, 9
            s_add_u32 s{s_t1}, s{s_t1}, {WS_CS}
            buffer_load_dwordx4 v{v_tch}, s[{sWS}:{sWS+3}], s{s_t1} offen sc1 lds""")), "st")]
            if not MVG1: L += [("VWAIT", "wd1")] + T(wd_tr_e(0, 0), "tr0") + T(wd_tr_e(1, 1), "tr1")
        if k == 25:
            E += T(kflag_offsets()) + ([] if (SPK or KPE) else poll_issue("pk"))
            if not MVG1: L += [("VWAIT", "wd3")] + T(wd_tr_e(2, 2), "tr2") + T(wd_tr_e(3, 3), "tr3")
        if k == 23: E += T(conv_copy_setup())
        if k in (24, 25): X += [T(conv_copy_dma(2*(k-24)), "cc"), T(conv_copy_dma(2*(k-24)+1), "cc")]
        if MVG1:
            if k == 22: L += [("VWAIT", "wd1")] + T(wd_tr_e(0, 0), "tr0") + T(wd_tr_e(1, 1), "tr1")
            if k == 23: L += [("VWAIT", "wd3")] + T(wd_tr_e(2, 2), "tr2") + T(wd_tr_e(3, 3), "tr3")
            if k == 24: X += [[("LWAIT", "tr1")] + T(wd_dma_e(4, 0), "wd4")]
            if k == 25: X += [[("LWAIT", "tr3")] + T(wd_dma_e(5, 1), "wd5"), T(wd_dma_e(6, 2), "wd6")]
            if k == 26: X += [T(wd_dma_e(7, 3), "wd7")]
            if k == 27:
                L += [("VWAIT", "st")] + T(epi_pre_reads(), "cs") + [("VWAIT", "wd7")]
                for j in range(4, 8): L += T(wd_tr_e(j, j-4), f"tr{j}")
        else:
            if k == 26:
                E += [("LWAIT", "tr1")] + T(wd_dma_e(4, 0), "wd4") + T(wd_dma_e(5, 1), "wd5")
            if k == 27:
                E += [("LWAIT", "tr3")] + T(wd_dma_e(6, 2), "wd6") + T(wd_dma_e(7, 3), "wd7")
                L += [("VWAIT", "st")] + ([] if KPE else T(epi_pre_reads(), "cs"))
        return E, L, X
    g1_main(g, pre, post, stamps={0: 3, 5: 4} if stamps else None)
    S_(5)
    if KPE:
        g.vwait("kp")
    g("s_waitcnt lgkmcnt(0)\ns_barrier")
    if KPE:
        kpe_compute(g)
        for x in epi_pre_reads(): g(x)
        g("s_waitcnt lgkmcnt(0)\ns_barrier")
    def pkc(): poll_check(g, "G_pk", "pk")
    def padc(): conv_pad_code(g)
    def wdring(j): return T(wd_dma(j, j-8), f"wd{j}")
    aux0 = wdring(8) + wdring(9) + [("CALL", pkc)] + [("\n".join(conv_u_dma()), "u")] + wdring(10) + [("VWAIT", "h")] + T(conv_build_L(0))
    aux1 = wdring(11) + wdring(12) + T(conv_build_L(1)) + [("VWAIT", "wd7")]
    for j in range(4, 8): aux1 += T(wd_tr_e(j, j-4), f"tr{j}")
    aux2 = wdring(13) + wdring(14) + [("CALL", padc)] + wdring(15) + wdring(16)
    aux3 = [("LWAIT", "tr7")]
    for j in range(17, 21): aux3 += T(wd_dma_e(j, j-17), f"wd{j}")
    aux3 += T(conv_addr())
    if EST: stamp(g, 1)
    if os.environ.get("ELOOP", "1") == "1":
        def mk(L):
            def f():
                for x2, t2 in L:
                    if x2 == "CALL": t2()
                    else: g.emit(x2, t2)
            return f
        ku = [("CALL", pkc)] + [("\n".join(conv_u_dma()), "u")]
        late = SPK or KPE
        b0 = ([] if late else ku) + ([] if MVG1 else [("VWAIT", "h")] + T(conv_build_L(0)))
        b1 = []
        if KPE:
            b0 += [("VWAIT", "kvst")] + T(flag_off(WS_FK)) + T(wave_flag_L(2), "kflag")
        if not MVG1:
            b1 += T(conv_build_L(1)) + [("VWAIT", "wd7")]
            for j in range(4, 8): b1 += T(wd_tr_e(j, j-4), f"tr{j}")
        b2 = ([] if MVG1 else [("CALL", padc)]) + (poll_issue("pk") if late else [])
        b3 = list(ku) if late else []
        if os.environ.get("POSTB", "1") == "1":
            b3 += [("LWAIT", "tr7")]
            hf = [("VWAIT", "hst")] + T(flag_off(WS_FH)) + T(wave_flag_L(52), "hflag")
            b2 = hf + b2
        for j in range(17, 21): b3 += T(wd_dma_e(j, j-17), f"wd{j}")
        g1_epilogue_loop(g, [mk(b0), mk(b1), mk(b2), mk(b3)])
    else:
        g1_epilogue(g, [aux0, aux1, aux2, aux3])
    if EST: stamp(g, 10)
    S_(6)
    g.vwait("u")
    g("s_waitcnt lgkmcnt(0)\ns_barrier")
    g.ldops = []
    for x in conv_reads(0): g.ld(x, "cv0")
    S_(7)
    def hflag():
        g.vwait("hst")
        for x in flag_off(WS_FH) + wave_flag_L(52): g.emit(x, "hflag")
    S_(8)
    conv_main(g, hflag)
    if CST: stamp(g, 13)
    S_(9)
    conv_epilogue(g)
    S_(10)
    def zflag():
        g.vwait("zst")
        g(f"s_lshl_b32 s{s_fo}, s2, 2\ns_add_u32 s{s_fo}, s{s_fo}, s{s_w}\ns_lshl_b32 s{s_fo}, s{s_fo}, 6\ns_add_u32 s{s_fo}, s{s_fo}, {WS_FZ}")
        for x in wave_flag_L(52): g.emit(x, "zflag")
    ZFJ = int(os.environ.get('ZFJ', '8'))
    def zcheck(): poll_check(g, "G_p3", "pz")
    zl = []
    for q in range(4):
        for i in range(4):
            zl.append((f"s_add_u32 s{s_t2}, s{s_zp}, {(8*q+i)*4096}\nbuffer_load_ushort v{fz+4*q+i}, v28, s[{sWS}:{sWS+3}], s{s_t2} offen sc1", "z"))
    zl = zl
    def extra(j):
        L = []
        if j == 14: L += T(final_loads_x(), "x")
        if j == ZFJ: L += [("CALL", zflag)]
        if j == 17: L += T(final_z_setup())
        if j == 23: L += poll_issue("pz")
        if j == 20: L += T(final_pre())
        return L
    g2_main(g, extra)
    S_(11)
    zcheck()
    for x, tg in zl: g.emit(x, tg)
    g2_reduce2(g)
    S_(12)
    final(g)
    S_(13)
    if stamps: g("s_waitcnt vmcnt(0)")
    S_(14)

def epoch_update(g):
    g(f"""s_cmp_lg_u32 s2, 224
    s_cbranch_scc1 G_noep
    s_cmp_lg_u32 s{s_w}, 0
    s_cbranch_scc1 G_noep
    v_and_b32 v2, 63, v0
    s_mov_b32 s{s_spin}, 0x8000""")
    for part in range(4):
        g(f"""v_add_u32 v{4+part}, {part*64}, v2
        v_min_u32 v{4+part}, 223, v{4+part}
        v_lshlrev_b32 v{4+part}, 8, v{4+part}
        v_add_u32 v{4+part}, {WS_FZ}, v{4+part}""")
    g(f"""v_min_u32 v8, 31, v2
    v_lshlrev_b32 v8, 6, v8
    v_add_u32 v8, {WS_FA}, v8
    G_ep_loop:""")
    for part in range(5):
        g(f"buffer_load_dword v{10+part}, v{4+part}, s[{sWS}:{sWS+3}], 0 offen sc1")
    g("s_waitcnt vmcnt(0)")
    for part in range(5): g(f"v_xor_b32 v{10+part}, s{s_tag}, v{10+part}")
    g("v_or3_b32 v10, v10, v11, v12\nv_or3_b32 v10, v10, v13, v14\nv_cmp_ne_u32 vcc, 0, v10")
    g(f"""s_cbranch_vccz G_ep_done
    s_sleep 8
    s_sub_u32 s{s_spin}, s{s_spin}, 1
    s_cmp_lg_u32 s{s_spin}, 0
    s_cbranch_scc1 G_ep_loop
    G_ep_done:
    v_mov_b32 v2, {WS_EPOCH}
    v_mov_b32 v3, s{s_tag}
    s_mov_b64 exec, 1
    buffer_store_dword v3, v2, s[{sWS}:{sWS+3}], 0 offen sc1
    s_mov_b64 exec, -1
    s_waitcnt vmcnt(0)
    G_noep:""")

def gen_full(stamps=False):
    g = G()
    g(header([f"grid=(256,1,1) block=(256,1,1) lds={LDS_TOTAL}"]))
    g(kstart(KN))
    g("s_cmp_ge_u32 s2, 224\ns_cbranch_scc1 L_spare")
    if stamps: start_rt(g)
    gemm_path(g, stamps=stamps)
    if stamps: dump_stamps(g)
    g("s_endpgm")
    g("L_spare:")
    g("s_cmp_ge_u32 s2, 256\ns_cbranch_scc1 L_end")
    if stamps: start_rt(g)
    spare(g, flags=True, stamps=stamps)
    epoch_update(g)
    if stamps: dump_stamps(g)
    g("L_end:\ns_endpgm")
    g(kdesc(KN, vgpr=512, sgpr=102, accum=256))
    return g.a.text()
def gen_full_stamps(): return gen_full(stamps=True)
def gen_kst0():
    global KSTAMP, stamp
    KSTAMP = 0
    return gen_kstx()
def gen_kst14():
    global KSTAMP
    KSTAMP = 14
    return gen_kstx()
def gen_est():
    return gen_kstx()
def gen_gst():
    global GSTAMP
    GSTAMP = int(os.environ["GK"])
    return gen_kstx()
def gen_kstx():
    g = G()
    g(header([f"grid=(256,1,1) block=(256,1,1) lds={LDS_TOTAL}"]))
    g(kstart(KN))
    g("s_cmp_ge_u32 s2, 224\ns_cbranch_scc1 L_spare")
    stamp(g, 0)
    gemm_path(g, stamps=False)
    dump_stamps(g)
    g("s_endpgm")
    g("L_spare:")
    g("s_cmp_ge_u32 s2, 256\ns_cbranch_scc1 L_end")
    spare(g, flags=True, stamps=False)
    epoch_update(g)
    g("L_end:\ns_endpgm")
    g(kdesc(KN, vgpr=512, sgpr=102, accum=256))
    return g.a.text()

if __name__ == "__main__":
    import runner
    which = sys.argv[1]
    txt = globals()["gen_"+which]()
    open(f"dev/{which}.s", "w").write(txt)
    runner.build(f"dev/{which}.s", KN, 13)
    from runner import cl
    print("ok", len(txt), cl.address_register_problem(f"dev/{which}.co", KN))
```

```python
import math, struct, sys
from dsl import *

S, D, F = 2048, 448, 1792
KN = "recurrent_scan__ssm_conv_h3__geglu_ffn__prompt_kernel"
def f2u(x): return struct.unpack('<I', struct.pack('<f', x))[0]
def fh(x): return hex(f2u(x))

import os
WSB = int(os.environ.get("WSB", "0"), 0)
WS_EPOCH = WSB + 0
WS_FA = WSB + 0x1000
WS_FK = WSB + 0x10000
WS_FH = WSB + 0x20000
WS_FZ = WSB + 0x30000
WS_STATS = WSB + 0x40000
WS_CS    = WS_STATS + 2048*8
WS_KVT   = WSB + 0x50000
WS_ZP    = WS_KVT + D*S*2
WS_H     = WS_ZP + D*S*2
WS_END   = WS_H + 64*112*1024
WS_STAMPS = 40<<20

KA = dict(q=0,k=8,v=16,shk=24,ssmk=32,ssmD=40,bx=48,wg=56,wu=64,wd=72,out=80,dbg=88,ws=96)
C1 = -2*math.sqrt(2/math.pi)*math.log2(math.e)
C2 = C1*0.044715
LDS_TOTAL = 163840

SPK = os.environ.get('SPK', '0') == '1'
class G:
    def __init__(self):
        self.a = Asm()
        self.vmops = []
        self.ldops = []
        self.stags = set(["hst"])
    def __call__(self, s): self.a(s)
    def vm(self, s, tag=None):
        self.a(s); self.vmops.append(tag)
        if "store" in s: self.stags.add(tag)
    def vwait(self, tag):
        idx = max(i for i, t in enumerate(self.vmops) if t == tag)
        st = tag in self.stags
        n = len(self.vmops) - 1 - idx
        assert n <= 63, n
        self.a(f"s_waitcnt vmcnt({n})")
    def vreset(self): self.vmops = []
    def ld(self, s, tag=None):
        self.a(s); self.ldops.append(tag)
    def lwait(self, tag):
        idx = max(i for i, t in enumerate(self.ldops) if t == tag)
        n = min(15, len(self.ldops) - 1 - idx)
        self.a(f"s_waitcnt lgkmcnt({n})")
    def emit(self, s, tag=None):
        if "\n" in s:
            for x in s.split("\n"): self.emit(x, tag)
        elif s == "VWAIT": self.vwait(tag)
        elif s == "LWAIT": self.lwait(tag)
        elif s.startswith("buffer_"): self.vm(s, tag)
        elif s.startswith("ds_"): self.ld(s, tag)
        else: self.a(s)
    def lab(self, n): self.a.label(n)

def srd_load(g, r, name):
    g(f"s_load_dwordx2 s[{r}:{r+1}], s[0:1], {KA[name]}")
def srd_fix(g, r, size):
    g(f"s_and_b32 s{r+1}, s{r+1}, 0xffff\ns_mov_b32 s{r+2}, {size}\ns_mov_b32 s{r+3}, 0x20000")

sX, sWG, sWU, sWS, sWD, sSK, sOUT, sDD = 4, 8, 12, 16, 20, 24, 28, 32
s_w, s_mi, s_fi, s_mf, s_ns = 36, 37, 38, 39, 40
s_xoff, s_woff, s_m0x, s_m0w = 41, 42, 43, 44
s_t0, s_t1, s_t2, s_t3 = 45, 46, 47, 48
s_hoff = 49
s_tag = 50
s_spin = 51
STAMP0 = 66
NSTAMP = 15
def stamp(g, i, on=True):
    if on: g(f"s_memtime s[{STAMP0+2*i}:{STAMP0+2*i+1}]")
def start_rt(g):
    g("s_memrealtime s[98:99]\ns_waitcnt lgkmcnt(0)\nv_mov_b32 v20, s98\nv_accvgpr_write_b32 a254, v20")
def dump_stamps(g, n=NSTAMP):
    g(f"""s_waitcnt lgkmcnt(0) vmcnt(0)
    s_memrealtime s[{STAMP0+2*n}:{STAMP0+2*n+1}]
    s_waitcnt lgkmcnt(0)
    s_mov_b32 s{sWS+2}, 0x7fffffff
    s_lshl_b32 s{s_t0}, s2, 9
    s_lshl_b32 s{s_t1}, s{s_w}, 7
    s_add_u32 s{s_t0}, s{s_t0}, s{s_t1}
    s_add_u32 s{s_t0}, s{s_t0}, {WS_STAMPS}
    v_mov_b32 v2, 0""")
    for i in range(n+1):
        g(f"v_mov_b32 v3, s{STAMP0+2*i}\nbuffer_store_dword v3, v2, s[{sWS}:{sWS+3}], s{s_t0} offen offset:{4*i}")
    g(f"v_accvgpr_read_b32 v3, a254\nbuffer_store_dword v3, v2, s[{sWS}:{sWS+3}], s{s_t0} offen offset:{4*(n+1)}")
    g("s_waitcnt vmcnt(0)")

def load_tag(g):
    g(f"s_mov_b32 s{s_spin}, {WS_EPOCH}\ns_load_dword s{s_tag}, s[{sWS}:{sWS+1}], s{s_spin}")
def make_tag(g):
    g(f"s_mul_i32 s{s_tag}, s{s_tag}, 0x9E3779B1\ns_add_u32 s{s_tag}, s{s_tag}, 0x7F4A7C15")

def rnd_bf16(g, r, tmp=None):
    g(f"v_cvt_pk_bf16_f32 v{r}, v{r}, v{r}\nv_lshlrev_b32 v{r}, 16, v{r}")

def publish_flag(g, off_expr_sgpr, lab):
    g("s_waitcnt vmcnt(0)\ns_barrier")
    g(f"""s_cmp_lg_u32 s{s_w}, 0
    s_cbranch_scc1 {lab}
    v_mov_b32 v2, 0
    v_mov_b32 v3, s{s_tag}
    s_mov_b64 exec, 1
    buffer_store_dword v3, v2, s[{sWS}:{sWS+3}], s{off_expr_sgpr} offen sc1
    s_mov_b64 exec, -1
    {lab}:""")

def flag_store(g, off_sgpr, lab, vt=14):
    g(f"""s_cmp_lg_u32 s{s_w}, 0
    s_cbranch_scc1 {lab}
    v_mov_b32 v{vt}, 0
    v_mov_b32 v{vt+1}, s{s_tag}
    s_mov_b64 exec, 1
    buffer_store_dword v{vt+1}, v{vt}, s[{sWS}:{sWS+3}], s{off_sgpr} offen sc1
    s_mov_b64 exec, -1
    {lab}:""")


def spare_k(g, sK, sV, sSH):
    LK, LV, LO = SLK, SLV, SLO
    vl = 1
    kB1, kB2 = 72, 76
    A, V, Dd, U, O = 20, 52, 96, 112, 60
    g(f"""
    v_lshrrev_b32 v8, 2, v3
    v_and_b32 v9, 3, v3
    v_lshl_add_u32 v8, v8, 4, v9              ; 16(m>>2) + (m&3)
    v_lshrrev_b32 v9, 1, v4
    v_sub_u32 v8, v8, v9
    v_add_u32 v8, 1, v8
    v_mul_u32_u24 v8, 896, v8
    v_and_b32 v9, 1, v4
    v_lshl_add_u32 v8, v9, 4, v8
    s_lshl_b32 s{s_t0}, s{s_w}, 5
    s_add_u32 s{s_t1}, s{s_t0}, {LK}
    v_add_u32 v80, s{s_t1}, v8
    v_lshrrev_b32 v8, 2, v3
    v_lshl_add_u32 v8, v4, 4, v8              ; 16q + (i>>2)
    v_mul_u32_u24 v8, 896, v8
    v_and_b32 v9, 3, v3
    v_lshl_add_u32 v8, v9, 3, v8
    s_add_u32 s{s_t1}, s{s_t0}, {LV}
    v_add_u32 v81, s{s_t1}, v8                ; V addr
    v_lshlrev_b32 v8, 1, v4
    v_sub_u32 v8, 6, v8
    v_and_b32 v9, 7, v3
    v_xor_b32 v8, v8, v9
    v_xor_b32 v9, 1, v8
    v_lshlrev_b32 v83, 7, v3
    s_lshl_b32 s{s_t1}, s{s_w}, 11
    s_add_u32 s{s_t1}, s{s_t1}, {LO}
    v_add_u32 v83, s{s_t1}, v83
    v_lshl_add_u32 v82, v8, 4, v83
    v_lshl_add_u32 v83, v9, 4, v83
    v_lshrrev_b32 v8, 3, v{vl}
    v_and_b32 v9, 7, v{vl}
    v_xor_b32 v84, v9, v8
    v_lshlrev_b32 v85, 7, v8
    v_lshl_add_u32 v84, v84, 4, v85
    v_add_u32 v84, s{s_t1}, v84
    v_lshlrev_b32 v85, 12, v8
    v_lshl_add_u32 v85, v9, 4, v85
    s_lshl_b32 s{s_t0}, s{s_w}, 16            ; 16w channels * 4096
    s_lshl_b32 s{s_t1}, s52, 7                ; 64rb*2
    s_sub_u32 s60, s{s_t0}, s{s_t1}
    s_add_u32 s60, s60, {WS_KVT + 1984*2}     ; store soffset ; += 64*4096 per iteration
    v_lshlrev_b32 v86, 3, v3
    s_lshl_b32 s61, s{s_w}, 7
    v_lshrrev_b32 v87, 1, v4
    v_lshlrev_b32 v87, 4, v87                 ; 16*(kq>>1)
    v_and_b32 v88, 1, v3
    v_lshlrev_b32 v88, 4, v88                 ; 16*(n&1)
    v_lshrrev_b32 v89, 3, v3
    v_and_b32 v90, 1, v4
    v_cmp_eq_u32 s[62:63], v89, v90
    v_bfe_u32 v89, v3, 1, 2                   ; (n&7)>>1
    v_cmp_eq_u32 s[64:65], 0, v89
    v_cmp_eq_u32 s[66:67], 1, v89
    v_cmp_eq_u32 s[68:69], 2, v89
    v_cmp_eq_u32 s[70:71], 3, v89
    s_mov_b32 s72, 0
    buffer_load_dwordx2 v[92:93], v86, s[{sSH}:{sSH+3}], s61 offen
    s_waitcnt vmcnt(0)
    s_barrier
    """)
    g.lab("SPK_loop")
    for t in range(4):
        g(f"ds_read_b128 v[{A+8*t}:{A+8*t+3}], v80 offset:{4*896*t+2*896}")
        g(f"ds_read_b128 v[{A+8*t+4}:{A+8*t+7}], v80 offset:{4*896*t}")
    for t in range(4):
        g(f"ds_read_b64_tr_b16 v[{V+2*t}:{V+2*t+1}], v81 offset:{4*896*t}")
    g(f"""
    s_waitcnt vmcnt(2)
    v_lshrrev_b32 v94, v87, v92
    v_lshrrev_b32 v95, v87, v93
    v_and_b32 v94, 0xffff, v94
    v_and_b32 v95, 0xffff, v95
    v_lshlrev_b32 v94, v88, v94
    v_lshlrev_b32 v95, v88, v95
    v_cndmask_b32 v94, 0, v94, s[62:63]
    v_cndmask_b32 v95, 0, v95, s[62:63]
    s_add_u32 s61, s61, 512
    buffer_load_dwordx2 v[92:93], v86, s[{sSH}:{sSH+3}], s61 offen
    """)
    for i in range(4):
        g(f"v_cndmask_b32 v{kB1+i}, 0, v94, s[{64+2*i}:{65+2*i}]\nv_cndmask_b32 v{kB2+i}, 0, v95, s[{64+2*i}:{65+2*i}]")
    g("v_add_u32 v80, 128, v80\nv_add_u32 v81, 128, v81")
    for t in range(4):
        g(f"s_waitcnt lgkmcnt({10-2*t})")
        g(f"v_mfma_f32_16x16x32_bf16 v[{Dd+4*t}:{Dd+4*t+3}], v[{A+8*t}:{A+8*t+3}], v[{kB1}:{kB1+3}], 0")
        g(f"v_mfma_f32_16x16x32_bf16 v[{Dd+4*t}:{Dd+4*t+3}], v[{A+8*t+4}:{A+8*t+7}], v[{kB2}:{kB2+3}], v[{Dd+4*t}:{Dd+4*t+3}]")
    g("s_waitcnt lgkmcnt(0)")
    for t in range(4):
        for h_ in range(2):
            g(f"v_lshlrev_b32 v{U+4*t+2*h_}, 16, v{V+2*t+h_}\nv_and_b32 v{U+4*t+2*h_+1}, 0xffff0000, v{V+2*t+h_}")
    for t in range(4):
        for h_ in range(2):
            g(f"v_pk_mul_f32 v[{Dd+4*t+2*h_}:{Dd+4*t+2*h_+1}], v[{Dd+4*t+2*h_}:{Dd+4*t+2*h_+1}], v[{U+4*t+2*h_}:{U+4*t+2*h_+1}]")
    for e in range(8):
        t = 3 - (e >> 1); r = 3 - 2*(e & 1)
        g(f"v_cvt_pk_bf16_f32 v{O+e}, v{Dd+4*t+r}, v{Dd+4*t+r-1}")
    g(f"""ds_write_b128 v82, v[{O}:{O+3}]
    ds_write_b128 v83, v[{O+4}:{O+7}]
    ds_read_b128 v[{U}:{U+3}], v84
    ds_read_b128 v[{U+4}:{U+7}], v84 offset:1024
    s_add_u32 s73, s60, {8*4096}
    s_waitcnt lgkmcnt(0)
    buffer_store_dwordx4 v[{U}:{U+3}], v85, s[{sWS}:{sWS+3}], s60 offen sc1
    buffer_store_dwordx4 v[{U+4}:{U+7}], v85, s[{sWS}:{sWS+3}], s73 offen sc1
    s_add_u32 s60, s60, {64*4096}
    s_add_u32 s72, s72, 1
    s_cmp_lt_u32 s72, 7
    s_cbranch_scc1 SPK_loop
    """)
SLK = 73728
SLV = 16384
SLO = 135168

def spare(g, flags=True, stamps=False):
    sWC = 32
    s_j = 37
    vl = 1
    LC = 0
    sK, sV, sSH = 20, 24, 28
    srd_load(g, sX, 'q'); srd_load(g, sWG, 'wg'); srd_load(g, sWU, 'wu'); srd_load(g, sWS, 'ws')
    srd_load(g, sK, 'k'); srd_load(g, sV, 'v'); srd_load(g, sSH, 'shk')
    g(f"""
    v_and_b32 v{vl}, 63, v0
    v_lshrrev_b32 v2, 6, v0
    s_sub_u32 s{s_j}, s2, 224
    v_readfirstlane_b32 s{s_w}, v2
    v_and_b32 v3, 15, v{vl}              ; n / p
    v_lshrrev_b32 v4, 4, v{vl}           ; q / rgl
    s_lshl_b32 s{s_t0}, s{s_w}, 4
    v_add_u32 v5, s{s_t0}, v3            ; 16w + n
    v_mul_u32_u24 v5, 896, v5
    v_lshl_add_u32 v5, v4, 4, v5         ; R voffset
    s_and_b32 s{s_t0}, s{s_j}, 7              ; xcd
    s_lshr_b32 s{s_t1}, s{s_j}, 3             ; q
    s_lshr_b32 s{s_t2}, s{s_t0}, 1            ; xcd>>1
    s_and_b32 s{s_t0}, s{s_t0}, 1             ; p
    s_lshl_b32 s52, s{s_t2}, 3
    s_lshl_b32 s53, s{s_t0}, 2
    s_add_u32 s52, s52, s53
    s_add_u32 s52, s52, s{s_t1}               ; s52 = rb = 8*(x>>1) + 4p + q
    s_lshl_b32 s53, s{s_t2}, 2
    s_add_u32 s53, s53, s{s_t1}               ; s53 = i = 4*(x>>1) + q
    s_mul_i32 s54, s{s_t0}, 7                 ; 7p
    s_mul_i32 s{s_xoff}, s52, {64*896}
    s_lshl_b32 s{s_t0}, s{s_w}, 2
    v_add_u32 v6, s{s_t0}, v4
    v_mul_u32_u24 v6, 3584, v6
    v_lshl_add_u32 v6, v3, 4, v6         ; C voffset
    s_cmp_ge_u32 s53, 7
    s_cselect_b32 s{s_t1}, 7, 0
    s_sub_u32 s{s_fi}, s53, s{s_t1}
    s_add_u32 s{s_fi}, s{s_fi}, s54      ; fb
    s_lshl_b32 s{s_woff}, s{s_fi}, 8
    s_waitcnt lgkmcnt(0)
    """)
    load_tag(g)
    g(f"""s_cmp_ge_u32 s53, 7
    s_cselect_b32 s{sWC}, s{sWU}, s{sWG}
    s_cselect_b32 s{sWC+1}, s{sWU+1}, s{sWG+1}""")
    srd_fix(g, sX, S*D*2); srd_fix(g, sWC, D*F*2); srd_fix(g, sWS, WS_END)
    srd_fix(g, sK, S*D*2); srd_fix(g, sV, S*D*2); srd_fix(g, sSH, D*8)
    stamp(g, 0, stamps)
    RB = 16
    CB = 72
    CA = 200
    LR = 16384
    g(f"v_lshlrev_b32 v7, 4, v{vl}")
    g(f"s_cmp_ge_u32 s53, 14\ns_cbranch_scc1 SP_noC1")
    g(f"s_mov_b32 s{s_t3}, s{s_woff}")
    for i in range(28):
        g(f"buffer_load_dwordx4 v[{CB+4*i}:{CB+4*i+3}], v6, s[{sWC}:{sWC+3}], s{s_t3} offen")
        if i < 27: g(f"s_add_u32 s{s_t3}, s{s_t3}, {16*3584}")
    g.lab("SP_noC1")
    g(f"s_mul_i32 s{s_t0}, s{s_w}, 14336\ns_add_u32 m0, s{s_t0}, {LR}\ns_add_u32 s{s_t1}, s{s_xoff}, s{s_t0}")
    for i in range(14):
        if i and i % 4 == 0: g(f"s_add_u32 m0, m0, 4096\ns_add_u32 s{s_t1}, s{s_t1}, 4096")
        g(f"buffer_load_dwordx4 v7, s[{sX}:{sX+3}], s{s_t1} offen offset:{1024*(i%4)} lds")
    def dma14(sr, ldsbase):
        g(f"s_mul_i32 s{s_t0}, s{s_w}, 14336\ns_add_u32 m0, s{s_t0}, {ldsbase}\ns_add_u32 s{s_t1}, s{s_xoff}, s{s_t0}")
        for i in range(14):
            if i and i % 4 == 0: g(f"s_add_u32 m0, m0, 4096\ns_add_u32 s{s_t1}, s{s_t1}, 4096")
            g(f"buffer_load_dwordx4 v7, s[{sK if sr == 'k' else sV}:{(sK if sr == 'k' else sV)+3}], s{s_t1} offen offset:{1024*(i%4)} lds")
    if SPK:
        dma14('k', SLK + 2688)
        g(f"""s_cmp_lg_u32 s{s_w}, 3
    s_cbranch_scc1 SP_halo_done
    s_cmp_eq_u32 s52, 0
    s_cbranch_scc1 SP_halo_zero
    s_sub_u32 s{s_t1}, s{s_xoff}, 2688
    s_mov_b32 m0, {SLK}
    s_nop 0
    buffer_load_dwordx4 v7, s[{sK}:{sK+3}], s{s_t1} offen lds
    buffer_load_dwordx4 v7, s[{sK}:{sK+3}], s{s_t1} offen offset:1024 lds
    s_mov_b32 exec_hi, 0xff
    buffer_load_dwordx4 v7, s[{sK}:{sK+3}], s{s_t1} offen offset:2048 lds
    s_mov_b32 exec_hi, -1
    s_branch SP_halo_done
    SP_halo_zero:
    v_mov_b32 v12, 0
    v_mov_b32 v13, 0
    v_mov_b32 v14, 0
    v_mov_b32 v15, 0
    v_add_u32 v2, {SLK}, v7
    ds_write_b128 v2, v[12:15]
    ds_write_b128 v2, v[12:15] offset:1024
    s_mov_b32 exec_hi, 0xff
    ds_write_b128 v2, v[12:15] offset:2048
    s_mov_b32 exec_hi, -1
    SP_halo_done:
        """)
    stamp(g, 1, stamps)
    g(f"s_cmp_ge_u32 s53, 14\ns_cbranch_scc1 SP_noC1b")
    g(f"s_mov_b32 s90, 0x00003f80\ns_mov_b32 s91, 0x3f800000")
    for c in range(8): g(f"v_mov_b32 v{CA+c}, 0")
    g(f"s_waitcnt vmcnt({35 if SPK else 21})\ns_mov_b32 s{s_t0}, 0")
    g.lab("SP_Cloop")
    g(f"s_set_gpr_idx_on s{s_t0}, gpr_idx(SRC0)")
    for i in range(7):
        for q in range(4):
            g(f"v_dot2_f32_bf16 v{CA+2*q}, v{CB+4*i+q}, s90, v{CA+2*q}")
            g(f"v_dot2_f32_bf16 v{CA+2*q+1}, v{CB+4*i+q}, s91, v{CA+2*q+1}")
    g(f"""s_set_gpr_idx_off
    s_add_u32 s{s_t0}, s{s_t0}, 28
    s_waitcnt vmcnt({28 if SPK else 14})
    s_cmp_lt_u32 s{s_t0}, 112
    s_cbranch_scc1 SP_Cloop""")
    g(f"""
    s_lshl_b32 s{s_t0}, s{s_w}, 2
    v_add_u32 v13, s{s_t0}, v4            ; rg
    v_lshlrev_b32 v13, 9, v13
    v_lshl_add_u32 v13, v3, 5, v13
    s_nop 2
    ds_write_b128 v13, v[{CA}:{CA+3}]
    ds_write_b128 v13, v[{CA+4}:{CA+7}] offset:16
    SP_noC1b:
    """)
    g(f"""
    s_mul_i32 s{s_t0}, s{s_w}, 14336
    s_add_u32 s{s_t0}, s{s_t0}, {LR}
    v_mul_u32_u24 v5, 896, v3
    v_lshl_add_u32 v5, v4, 4, v5
    v_add_u32 v5, s{s_t0}, v5
    s_waitcnt vmcnt({14 if SPK else 0})
    """)
    for ks in range(14): g(f"ds_read_b128 v[{RB+4*ks}:{RB+4*ks+3}], v5 offset:{64*ks}")
    g("v_mov_b32 v8, 0x3f803f80\nv_mov_b32 v9, 0x3f803f80\nv_mov_b32 v10, 0x3f803f80\nv_mov_b32 v11, 0x3f803f80\ns_waitcnt lgkmcnt(0)\ns_barrier")
    D1, D2 = 184, 188
    for ks in range(14):
        A = f"v[{RB+4*ks}:{RB+4*ks+3}]"
        c1 = "0" if ks == 0 else f"v[{D1}:{D1+3}]"
        c2 = "0" if ks == 0 else f"v[{D2}:{D2+3}]"
        g(f"v_mfma_f32_16x16x32_bf16 v[{D1}:{D1+3}], {A}, v[8:11], {c1}")
        g(f"v_mfma_f32_16x16x32_bf16 v[{D2}:{D2+3}], {A}, {A}, {c2}")
    g(f"""
    v_and_b32 v12, 3, v{vl}
    v_cmp_eq_u32 s[90:91], 1, v12
    v_cmp_eq_u32 s[92:93], 2, v12
    v_cmp_eq_u32 s[94:95], 3, v12
    v_lshrrev_b32 v13, 2, v3              ; n>>2
    v_cmp_eq_u32 s[96:97], v13, v4        ; q == n>>2
    s_nop 7
    v_cndmask_b32 v{D1}, v{D1}, v{D1+1}, s[90:91]
    v_cndmask_b32 v{D2}, v{D2}, v{D2+1}, s[90:91]
    v_cndmask_b32 v{D1}, v{D1}, v{D1+2}, s[92:93]
    v_cndmask_b32 v{D2}, v{D2}, v{D2+2}, s[92:93]
    v_cndmask_b32 v{D1}, v{D1}, v{D1+3}, s[94:95]
    v_cndmask_b32 v{D2}, v{D2}, v{D2+3}, s[94:95]
    v_mul_f32 v{D1}, {fh(1.0/448)}, v{D1}            ; mean
    v_mul_f32 v{D2}, {fh(1.0/448)}, v{D2}            ; E[x^2]
    v_fma_f32 v{D2}, -v{D1}, v{D1}, v{D2}            ; var
    v_max_f32 v{D2}, 0, v{D2}
    """)
    rnd_bf16(g, D1); rnd_bf16(g, D2)
    g(f"v_add_f32 v{D2}, {fh(1e-5)}, v{D2}"); rnd_bf16(g, D2)
    g(f"v_sqrt_f32 v{D2}, v{D2}\ns_nop 0"); rnd_bf16(g, D2)
    g(f"""
    v_mov_b32 v{D1+1}, v{D2}
    s_lshl_b32 s{s_t0}, s52, 9
    s_lshl_b32 s{s_t1}, s{s_w}, 7
    s_add_u32 s{s_t0}, s{s_t0}, s{s_t1}
    s_add_u32 s{s_t0}, s{s_t0}, {WS_STATS}
    v_lshlrev_b32 v13, 3, v3
    s_mov_b64 exec, s[96:97]
    buffer_store_dwordx2 v[{D1}:{D1+1}], v13, s[{sWS}:{sWS+3}], s{s_t0} offen sc1
    s_mov_b64 exec, -1
    """)
    stamp(g, 2, stamps)
    g(f"""s_cmp_ge_u32 s53, 14
    s_cbranch_scc1 SP_noC2
    s_cmp_ge_u32 s{s_w}, 2
    s_cbranch_scc1 SP_noC2
    v_lshlrev_b32 v13, 2, v0
    v_mov_b32 v14, v13
    """)
    for r in range(16): g(f"ds_read_b32 v{CB+r}, v14 offset:{512*r}")
    g("s_waitcnt lgkmcnt(0)")
    for r in range(8): g(f"v_add_f32 v{CB+r}, v{CB+r}, v{CB+r+8}")
    for r in range(4): g(f"v_add_f32 v{CB+r}, v{CB+r}, v{CB+r+4}")
    g(f"v_add_f32 v{CB}, v{CB}, v{CB+2}\nv_add_f32 v{CB+1}, v{CB+1}, v{CB+3}\nv_add_f32 v{CB}, v{CB}, v{CB+1}")
    g(f"""
    s_cmp_ge_u32 s53, 7
    s_cselect_b32 s{s_t0}, 7168, 0
    s_lshl_b32 s{s_t1}, s{s_fi}, 9
    s_add_u32 s{s_t0}, s{s_t0}, s{s_t1}
    s_add_u32 s{s_t0}, s{s_t0}, {WS_CS}
    buffer_store_dword v{CB}, v13, s[{sWS}:{sWS+3}], s{s_t0} offen sc1
    SP_noC2:
    """)
    stamp(g, 3, stamps)
    g("s_waitcnt vmcnt(0) lgkmcnt(0)")
    make_tag(g)
    g("s_barrier")
    if flags:
        g(f"s_lshl_b32 s{s_t0}, s{s_j}, 6\ns_add_u32 s{s_t0}, s{s_t0}, {WS_FA}")
        flag_store(g, s_t0, "SP_nf1")
    stamp(g, 4, stamps)
    if SPK:
        dma14('v', SLV)
        spare_k(g, sK, sV, sSH)
        g("s_waitcnt vmcnt(0)\ns_barrier")
        g(f"s_lshl_b32 s{s_t0}, s{s_j}, 6\ns_add_u32 s{s_t0}, s{s_t0}, {WS_FK}")
        flag_store(g, s_t0, "SP_nf2")
        stamp(g, 5, stamps)


def lines(txt):
    out = []
    for l in txt.strip().split("\n"):
        l = l.split(";")[0].strip()
        if l: out.append(l)
    return out
def emit_mixed(g, L, tag):
    for x in L: g.emit(x, tag)
def T(L, tag=None):
    L = lines(L) if isinstance(L, str) else list(L)
    out = []; cur = None
    for x in L:
        if "\n" in x:
            out.append((x, tag))
        elif x.startswith("s_mov_b64 exec,") and not x.endswith("-1"):
            cur = [x]
        elif cur is not None:
            cur.append(x)
            if x == "s_mov_b64 exec, -1":
                out.append(("\n".join(cur), tag)); cur = None
        else:
            out.append((x, tag))
    assert cur is None
    return out

LX = 0; LW = 49152
LKT = 147968; LVT = LKT + 4352; LKO = LKT + 8448
LST = 18432
RING = 20480
LCV = 114688; CVCOPY = 4160; CVCH = 4*CVCOPY
LU = 152576; CVUS = 5120
E1B = 81920; E2B = 16384

sKK, sVV, sSH = 20, 24, 28
sWD2, sSK2, sOUT2 = 56, 60, 8
s_kv, s_kk, s_kt, s_ko = 32, 33, 34, 35
s_hi, s_ct = 52, 53
s_zoff = 54
s_pb = 55
s_t4 = 3

v_lane = 1
v_xd = 2
v_wd = 6
v_xa = 10
v_wa = 14
v_l16 = 18
v_fr = 20
v_poll = 126
v_hv = 70
v_tch = 71
v_acc = 128
def accg(ft, nt): return v_acc + (ft*2+nt)*16
def accu(ft, nt): return v_acc + 64 + (ft*2+nt)*16
kB1, kB2, kvA, kvV, kvOW, kvOR, kvG, kvD0, kvD1 = 72, 76, 80, 81, 82, 83, 84, 85, 86
kA, kV, kD, kU, kO = 88, 104, 108, 116, 124

def poll_check(g, name, issued_tag):
    vt = v_poll
    if issued_tag is not None:
        g.vwait(issued_tag)
        g(f"v_cmp_ne_u32 vcc, s{s_tag}, v{vt+1}\ns_cbranch_vccz {name}_done")
    g(f"""
    s_mov_b32 s{s_spin}, 0x8000
    {name}_loop:
    buffer_load_dword v{vt+1}, v{vt}, s[{sWS}:{sWS+3}], s{s_pb} offen sc1
    s_waitcnt vmcnt(0)
    v_cmp_ne_u32 vcc, s{s_tag}, v{vt+1}
    s_cbranch_vccz {name}_done
    s_sleep 1
    s_sub_u32 s{s_spin}, s{s_spin}, 1
    s_cmp_lg_u32 s{s_spin}, 0
    s_cbranch_scc1 {name}_loop
    {name}_done:
    """)
def poll_issue(tag): return [(f"buffer_load_dword v{v_poll+1}, v{v_poll}, s[{sWS}:{sWS+3}], s{s_pb} offen sc1", tag)]
def wave_flag(g, off_sgpr):
    g(f"""v_mov_b32 v{v_hv}, 0
    v_mov_b32 v{v_tch}, s{s_tag}
    s_mov_b64 exec, 1""")
    g.vm(f"buffer_store_dword v{v_tch}, v{v_hv}, s[{sWS}:{sWS+3}], s{off_sgpr} offen sc1", "flag")
    g("s_mov_b64 exec, -1")

def g1_prologue(g):
    srd_load(g, sX, 'q'); srd_load(g, sWG, 'wg'); srd_load(g, sWU, 'wu')
    srd_load(g, sKK, 'k'); srd_load(g, sVV, 'v'); srd_load(g, sSH, 'shk'); srd_load(g, sWS, 'ws')
    srd_load(g, sWD2, 'wd'); srd_load(g, sSK2, 'ssmk'); srd_load(g, 64, 'out'); srd_load(g, 96, 'ssmD')
    g(f"""
    v_and_b32 v{v_lane}, 63, v0
    v_lshrrev_b32 v20, 6, v0
    s_lshr_b32 s{s_t0}, s2, 3
    s_and_b32 s{s_t1}, s2, 7
    v_readfirstlane_b32 s{s_w}, v20
    s_mul_i32 s{s_t2}, s{s_t0}, 37
    s_lshr_b32 s{s_t2}, s{s_t2}, 8
    s_mul_i32 s{s_t3}, s{s_t2}, 7
    s_sub_u32 s{s_ct}, s{s_t0}, s{s_t3}
    s_lshr_b32 s{s_mi}, s{s_t1}, 1
    s_lshl_b32 s{s_mi}, s{s_mi}, 2
    s_add_u32 s{s_mi}, s{s_mi}, s{s_t2}
    s_and_b32 s{s_hi}, s{s_t1}, 1
    s_mul_i32 s{s_t1}, s{s_hi}, 7
    s_add_u32 s{s_fi}, s{s_ct}, s{s_t1}
    v_lshrrev_b32 v20, 3, v{v_lane}
    v_lshrrev_b32 v21, 4, v{v_lane}
    v_and_b32 v22, 7, v{v_lane}
    v_mul_u32_u24 v20, 896, v20
    v_xor_b32 v23, v22, v21
    v_xor_b32 v28, 4, v23
    v_lshl_add_u32 v{v_xd}, v23, 4, v20
    v_lshl_add_u32 v28, v28, 4, v20
    v_add_u32 v{v_xd+1}, {8*896-1024}, v28
    v_add_u32 v{v_xd+2}, {2*(8*896-1024)}, v{v_xd}
    v_add_u32 v{v_xd+3}, {3*(8*896-1024)}, v28
    v_and_b32 v22, 15, v{v_lane}
    v_lshlrev_b32 v23, 2, v21
    v_sub_u32 v22, v22, v23
    v_and_b32 v22, 15, v22
    v_mul_u32_u24 v23, 3584, v21
    v_lshl_add_u32 v{v_wd}, v22, 4, v23
    v_add_u32 v{v_wd+1}, {4*3584-1024}, v{v_wd}
    v_add_u32 v{v_wd+2}, {2*(4*3584-1024)}, v{v_wd}
    v_add_u32 v{v_wd+3}, {3*(4*3584-1024)}, v{v_wd}
    s_lshl_b32 s{s_t0}, s{s_mi}, 7
    s_lshl_b32 s{s_t1}, s{s_w}, 5
    s_add_u32 s{s_t0}, s{s_t0}, s{s_t1}
    s_mul_i32 s{s_xoff}, s{s_t0}, 896
    s_mul_i32 s{s_woff}, s{s_w}, {16*3584}
    s_lshl_b32 s{s_t0}, s{s_fi}, 8
    s_add_u32 s{s_woff}, s{s_woff}, s{s_t0}
    s_lshl_b32 s{s_m0x}, s{s_w}, 12
    s_add_u32 s{s_m0w}, s{s_m0x}, {LW}
    s_and_b32 s{s_mf}, s{s_w}, 1
    s_lshr_b32 s{s_ns}, s{s_w}, 1
    s_lshl_b32 s{s_t4}, s{s_w}, 11
    v_lshlrev_b32 v{v_l16}, 4, v{v_lane}
    s_waitcnt lgkmcnt(0)
    """)
    srd_fix(g, sX, S*D*2); srd_fix(g, sWG, D*F*2); srd_fix(g, sWU, D*F*2)

def g1_dma_x(c):
    sl = c % 3
    L = [f"s_add_u32 m0, s{s_m0x}, {LX + sl*16384}", f"s_add_u32 s{s_t3}, s{s_xoff}, {128*c}"]
    for ii in range(4):
        L.append(f"buffer_load_dwordx4 v{v_xd+ii}, s[{sX}:{sX+3}], s{s_t3} offen offset:{1024*ii} lds")
    return L
def g1_dma_w(c, mat):
    sl = c % 3
    sr = sWG if mat == 0 else sWU
    L = [f"s_add_u32 m0, s{s_m0w}, {sl*32768 + mat*16384}", f"s_add_u32 s{s_t3}, s{s_woff}, {64*c*3584}"]
    for ii in range(4):
        L.append(f"buffer_load_dwordx4 v{v_wd+ii}, s[{sr}:{sr+3}], s{s_t3} offen offset:{1024*ii} lds")
    return L
def g1_groups(c): return [g1_dma_x(c), g1_dma_w(c,0), g1_dma_w(c,1)]

def kp_setup_dma():
    return lines(f"""
    v_lshrrev_b32 v104, 2, v{v_lane}
    v_and_b32 v105, 3, v{v_lane}
    v_mul_u32_u24 v104, 896, v104
    v_lshl_add_u32 v{kvD1}, v105, 4, v104
    s_lshl_b32 s{s_t0}, s{s_mi}, 7
    s_lshl_b32 s{s_t2}, s{s_fi}, 6
    s_add_u32 s{s_t1}, s{s_t0}, 61
    s_mul_i32 s{s_kt}, s{s_t1}, 896
    s_add_u32 s{s_kt}, s{s_kt}, s{s_t2}
    s_lshl_b32 s{s_t1}, s{s_w}, 4
    s_add_u32 s{s_t0}, s{s_t0}, s{s_t1}
    s_mul_i32 s{s_kv}, s{s_t0}, 896
    s_add_u32 s{s_kv}, s{s_kv}, s{s_t2}
    s_cmp_eq_u32 s{s_t0}, 0
    s_cselect_b32 s{s_t1}, 0, 2688
    s_cselect_b32 s{s_t2}, 2688, 0
    s_sub_u32 s{s_kk}, s{s_kv}, s{s_t1}
    v_subrev_u32 v{kvD0}, s{s_t2}, v{kvD1}
    """)
def kp_dma(h):
    NL = "\n"
    if h == 0:
        return [NL.join([f"s_lshr_b32 s{s_t0}, s{s_t4}, 1", f"s_add_u32 m0, s{s_t0}, {LKT}", "s_nop 0",
                         f"buffer_load_dwordx4 v{kvD0}, s[{sKK}:{sKK+3}], s{s_kk} offen lds"]),
                NL.join([f"s_lshr_b32 s{s_t0}, s{s_t4}, 1", f"s_add_u32 m0, s{s_t0}, {LVT}", "s_nop 0",
                         f"buffer_load_dwordx4 v{kvD1}, s[{sVV}:{sVV+3}], s{s_kv} offen lds"]),
                NL.join([f"s_mov_b32 m0, {LKT+4096}", "s_mov_b64 exec, 0xfff",
                         f"buffer_load_dwordx4 v{kvD1}, s[{sKK}:{sKK+3}], s{s_kt} offen lds", "s_mov_b64 exec, -1"])]
    return [NL.join([f"s_lshr_b32 s{s_t0}, s{s_t4}, 1", f"s_add_u32 m0, s{s_t0}, {LKT}", f"s_add_u32 s{s_t1}, s{s_kv}, {57344-2688}",
                     f"buffer_load_dwordx4 v{kvD1}, s[{sKK}:{sKK+3}], s{s_t1} offen lds"]),
            NL.join([f"s_lshr_b32 s{s_t0}, s{s_t4}, 1", f"s_add_u32 m0, s{s_t0}, {LVT}", f"s_add_u32 s{s_t1}, s{s_kv}, 57344",
                     f"buffer_load_dwordx4 v{kvD1}, s[{sVV}:{sVV+3}], s{s_t1} offen lds"]),
            NL.join([f"s_mov_b32 m0, {LKT+4096}", f"s_add_u32 s{s_t1}, s{s_kt}, 57344", "s_mov_b64 exec, 0xfff",
                     f"buffer_load_dwordx4 v{kvD1}, s[{sKK}:{sKK+3}], s{s_t1} offen lds", "s_mov_b64 exec, -1"])]
def kp_shk_load():
    return lines(f"""
    v_and_b32 v{kA+2}, 15, v{v_lane}
    s_lshl_b32 s{s_t0}, s{s_fi}, 5
    s_lshl_b32 s{s_t1}, s{s_mf}, 4
    s_add_u32 s{s_t0}, s{s_t0}, s{s_t1}
    s_lshl_b32 s{s_t1}, s{s_t0}, 3
    v_lshlrev_b32 v{kA+3}, 3, v{kA+2}
    buffer_load_dwordx2 v[{kA}:{kA+1}], v{kA+3}, s[{sSH}:{sSH+3}], s{s_t1} offen
    """)
def kp_setup_addr():
    n, kq, t0, t1 = 104, 105, 106, 107
    return lines(f"""
    v_and_b32 v{n}, 15, v{v_lane}
    v_lshrrev_b32 v{kq}, 4, v{v_lane}
    v_lshrrev_b32 v{t0}, 2, v{n}
    v_and_b32 v{t1}, 3, v{n}
    v_lshl_add_u32 v{t0}, v{t0}, 3, v{t1}
    v_lshrrev_b32 v{t1}, 1, v{kq}
    v_sub_u32 v{t0}, v{t0}, v{t1}
    v_add_u32 v{t0}, 1, v{t0}
    s_lshl_b32 s{s_t0}, s{s_ns}, 5
    v_add_u32 v{t0}, s{s_t0}, v{t0}
    v_lshlrev_b32 v{t0}, 6, v{t0}
    v_and_b32 v{t1}, 1, v{kq}
    v_lshl_add_u32 v{t0}, v{t1}, 4, v{t0}
    s_lshl_b32 s{s_t1}, s{s_mf}, 5
    s_add_u32 s{s_t2}, s{s_t1}, {LKT}
    v_add_u32 v{kvA}, s{s_t2}, v{t0}
    v_lshrrev_b32 v{t0}, 2, v{n}
    v_lshl_add_u32 v{t0}, v{kq}, 3, v{t0}
    v_add_u32 v{t0}, s{s_t0}, v{t0}
    v_lshlrev_b32 v{t0}, 6, v{t0}
    v_and_b32 v{t1}, 3, v{n}
    v_lshl_add_u32 v{t0}, v{t1}, 3, v{t0}
    s_add_u32 s{s_t2}, s{s_t1}, {LVT}
    v_add_u32 v{kvV}, s{s_t2}, v{t0}
    s_lshr_b32 s{s_t0}, s{s_t4}, 1
    s_add_u32 s{s_t0}, s{s_t0}, {LKO}
    v_sub_u32 v{t0}, 3, v{kq}
    v_lshlrev_b32 v{t0}, 4, v{t0}
    v_lshl_add_u32 v{t0}, v{n}, 6, v{t0}
    v_add_u32 v{kvOW}, s{s_t0}, v{t0}
    v_add_u32 v{kvOR}, s{s_t0}, v{v_l16}
    v_lshrrev_b32 v{t0}, 2, v{v_lane}
    v_lshlrev_b32 v{t0}, 12, v{t0}
    v_and_b32 v{t1}, 3, v{v_lane}
    v_lshl_add_u32 v{kvG}, v{t1}, 4, v{t0}
    s_lshl_b32 s{s_t0}, s{s_fi}, 5
    s_lshl_b32 s{s_t1}, s{s_mf}, 4
    s_add_u32 s{s_t0}, s{s_t0}, s{s_t1}
    s_lshl_b32 s{s_t0}, s{s_t0}, 12
    s_lshl_b32 s{s_t1}, s{s_mi}, 8
    s_sub_u32 s{s_t0}, s{s_t0}, s{s_t1}
    s_lshl_b32 s{s_t1}, s{s_ns}, 6
    s_sub_u32 s{s_t0}, s{s_t0}, s{s_t1}
    s_add_u32 s{s_ko}, s{s_t0}, {WS_KVT + 4032}
    """)
def kp_build_B():
    n, kq, a, b, c, d = 108, 109, 110, 111, 112, 113
    L = lines(f"""
    v_and_b32 v{n}, 15, v{v_lane}
    v_lshrrev_b32 v{kq}, 4, v{v_lane}
    v_lshrrev_b32 v{a}, 1, v{kq}
    v_lshlrev_b32 v{a}, 4, v{a}
    v_lshrrev_b32 v{b}, v{a}, v{kA}
    v_lshrrev_b32 v{c}, v{a}, v{kA+1}
    v_and_b32 v{b}, 0xffff, v{b}
    v_and_b32 v{c}, 0xffff, v{c}
    v_and_b32 v{a}, 1, v{n}
    v_lshlrev_b32 v{a}, 4, v{a}
    v_lshlrev_b32 v{b}, v{a}, v{b}
    v_lshlrev_b32 v{c}, v{a}, v{c}
    v_lshrrev_b32 v{a}, 3, v{n}
    v_and_b32 v{d}, 1, v{kq}
    v_cmp_eq_u32 vcc, v{a}, v{d}
    v_bfe_u32 v{a}, v{n}, 1, 2
    s_nop 0
    v_cndmask_b32 v{b}, 0, v{b}, vcc
    v_cndmask_b32 v{c}, 0, v{c}, vcc
    """)
    for i in range(4):
        L += [f"v_cmp_eq_u32 vcc, {i}, v{a}", "s_nop 1", f"v_cndmask_b32 v{kB1+i}, 0, v{b}, vcc", f"v_cndmask_b32 v{kB2+i}, 0, v{c}, vcc"]
    return L
def kp_reads():
    L = []
    for t in range(2):
        L.append(f"ds_read_b128 v[{kA+8*t}:{kA+8*t+3}], v{kvA} offset:{256*t+128}")
        L.append(f"ds_read_b128 v[{kA+8*t+4}:{kA+8*t+7}], v{kvA} offset:{256*t}")
        L.append(f"ds_read_b64_tr_b16 v[{kV+2*t}:{kV+2*t+1}], v{kvV} offset:{256*t}")
    return L
def kp_mfma():
    L = []
    for t in range(2): L.append(f"v_mfma_f32_16x16x32_bf16 v[{kD+4*t}:{kD+4*t+3}], v[{kA+8*t}:{kA+8*t+3}], v[{kB1}:{kB1+3}], 0")
    for t in range(2): L.append(f"v_mfma_f32_16x16x32_bf16 v[{kD+4*t}:{kD+4*t+3}], v[{kA+8*t+4}:{kA+8*t+7}], v[{kB2}:{kB2+3}], v[{kD+4*t}:{kD+4*t+3}]")
    for t in range(2):
        for h in range(2):
            L += [f"v_lshlrev_b32 v{kU+4*t+2*h}, 16, v{kV+2*t+h}", f"v_and_b32 v{kU+4*t+2*h+1}, 0xffff0000, v{kV+2*t+h}"]
    return L
def kp_finish():
    L = []
    for t in range(2):
        for h in range(2):
            L.append(f"v_pk_mul_f32 v[{kD+4*t+2*h}:{kD+4*t+2*h+1}], v[{kD+4*t+2*h}:{kD+4*t+2*h+1}], v[{kU+4*t+2*h}:{kU+4*t+2*h+1}]")
    for e in range(4):
        t = 1 - (e >> 1); r = 3 - 2*(e & 1)
        L.append(f"v_cvt_pk_bf16_f32 v{kO+e}, v{kD+4*t+r}, v{kD+4*t+r-1}")
    L.append(f"ds_write_b128 v{kvOW}, v[{kO}:{kO+3}]")
    return L
def kp_readback(): return [f"ds_read_b128 v[{kO}:{kO+3}], v{kvOR}"]
def kp_store(h):
    if h == 0: return [f"buffer_store_dwordx4 v[{kO}:{kO+3}], v{kvG}, s[{sWS}:{sWS+3}], s{s_ko} offen sc1"]
    return [f"s_sub_u32 s{s_t0}, s{s_ko}, 128", f"buffer_store_dwordx4 v[{kO}:{kO+3}], v{kvG}, s[{sWS}:{sWS+3}], s{s_t0} offen sc1"]


LKT2 = 147456; LVT2 = 155648; LKO2 = 147456
def kps_dma_setup():
    return lines(f"""
    v_lshrrev_b32 v106, 2, v{v_lane}
    v_and_b32 v107, 3, v{v_lane}
    v_mul_u32_u24 v106, 896, v106
    v_lshl_add_u32 v104, v107, 4, v106
    v_add_u32 v105, {16*896-1024}, v104
    s_lshl_b32 s{s_t0}, s{s_mi}, 7
    s_lshl_b32 s{s_t1}, s{s_w}, 5
    s_add_u32 s{s_t0}, s{s_t0}, s{s_t1}
    s_mul_i32 s34, s{s_t0}, 896
    s_lshl_b32 s{s_t2}, s{s_fi}, 6
    s_add_u32 s34, s34, s{s_t2}
    v_and_b32 v106, 15, v{v_lane}
    v_lshrrev_b32 v107, 2, v106
    v_and_b32 v106, 3, v106
    v_lshl_add_u32 v106, v107, 4, v106
    v_lshrrev_b32 v107, 5, v{v_lane}
    v_sub_u32 v106, v106, v107
    v_add_u32 v106, 1, v106
    v_mul_u32_u24 v106, 896, v106
    v_bfe_u32 v107, v{v_lane}, 4, 1
    v_lshl_add_u32 v106, v107, 4, v106
    s_lshl_b32 s{s_t0}, s{s_mi}, 7
    s_lshl_b32 s{s_t1}, s{s_ns}, 6
    s_add_u32 s{s_t0}, s{s_t0}, s{s_t1}
    s_mul_i32 s35, s{s_t0}, 896
    s_add_u32 s35, s35, s{s_t2}
    s_lshl_b32 s{s_t1}, s{s_mf}, 5
    s_add_u32 s35, s35, s{s_t1}
    s_cmp_eq_u32 s{s_t0}, 0
    s_cselect_b32 s{s_t1}, 0, 2688
    s_cselect_b32 s{s_t2}, 2688, 0
    s_sub_u32 s35, s35, s{s_t1}
    v_subrev_u32 v106, s{s_t2}, v106
    v_add_u32 v107, 1792, v106
    """)
def kps_dma_L():
    NL = "\n"
    return [NL.join([f"s_add_u32 m0, s{s_t4}, {LKT2}", "s_nop 0", f"buffer_load_dwordx4 v104, s[{sKK}:{sKK+3}], s34 offen lds"]),
            NL.join([f"s_add_u32 m0, s{s_t4}, {LKT2}", "s_nop 0", f"buffer_load_dwordx4 v105, s[{sKK}:{sKK+3}], s34 offen offset:1024 lds"]),
            NL.join([f"s_add_u32 m0, s{s_t4}, {LVT2}", "s_nop 0", f"buffer_load_dwordx4 v104, s[{sVV}:{sVV+3}], s34 offen lds"]),
            NL.join([f"s_add_u32 m0, s{s_t4}, {LVT2}", "s_nop 0", f"buffer_load_dwordx4 v105, s[{sVV}:{sVV+3}], s34 offen offset:1024 lds"])]
kT0 = 88
def kps_t0_L():
    return [f"buffer_load_dwordx4 v[{kT0}:{kT0+3}], v107, s[{sKK}:{sKK+3}], s35 offen",
            f"buffer_load_dwordx4 v[{kT0+4}:{kT0+7}], v106, s[{sKK}:{sKK+3}], s35 offen"]
def kps_setup(g, LKT2=LKT2, LVT2=LVT2, LKO2=LKO2, radd=2):
    g(f"""
    v_and_b32 v108, 15, v{v_lane}
    v_lshrrev_b32 v109, 4, v{v_lane}
    v_lshrrev_b32 v110, 2, v108
    v_and_b32 v111, 3, v108
    v_lshl_add_u32 v110, v110, 4, v111
    v_lshrrev_b32 v111, 1, v109
    v_sub_u32 v110, v110, v111
    v_add_u32 v110, {radd}, v110
    s_lshl_b32 s{s_t0}, s{s_ns}, 6
    v_add_u32 v110, s{s_t0}, v110
    v_lshlrev_b32 v110, 6, v110
    v_and_b32 v111, 1, v109
    v_lshl_add_u32 v110, v111, 4, v110
    s_lshl_b32 s{s_t1}, s{s_mf}, 5
    s_add_u32 s{s_t2}, s{s_t1}, {LKT2}
    v_add_u32 v80, s{s_t2}, v110
    v_lshrrev_b32 v110, 2, v108
    v_lshl_add_u32 v110, v109, 4, v110
    v_add_u32 v110, s{s_t0}, v110
    v_lshlrev_b32 v110, 6, v110
    v_and_b32 v111, 3, v108
    v_lshl_add_u32 v110, v111, 3, v110
    s_add_u32 s{s_t2}, s{s_t1}, {LVT2}
    v_add_u32 v81, s{s_t2}, v110
    v_lshlrev_b32 v110, 1, v109
    v_sub_u32 v110, 6, v110
    v_and_b32 v111, 7, v108
    v_xor_b32 v110, v110, v111
    v_xor_b32 v111, 1, v110
    v_lshlrev_b32 v83, 7, v108
    s_add_u32 s{s_t1}, s{s_t4}, {LKO2}
    v_add_u32 v83, s{s_t1}, v83
    v_lshl_add_u32 v82, v110, 4, v83
    v_lshl_add_u32 v83, v111, 4, v83
    v_lshrrev_b32 v110, 3, v{v_lane}
    v_and_b32 v111, 7, v{v_lane}
    v_xor_b32 v84, v111, v110
    v_lshlrev_b32 v85, 7, v110
    v_lshl_add_u32 v84, v84, 4, v85
    v_add_u32 v84, s{s_t1}, v84
    v_lshlrev_b32 v85, 12, v110
    v_lshl_add_u32 v85, v111, 4, v85
    s_lshl_b32 s{s_t0}, s{s_fi}, 5
    s_lshl_b32 s{s_t1}, s{s_mf}, 4
    s_add_u32 s{s_t0}, s{s_t0}, s{s_t1}
    s_lshl_b32 s{s_t0}, s{s_t0}, 12
    s_lshl_b32 s{s_t1}, s{s_mi}, 8
    s_lshl_b32 s{s_t2}, s{s_ns}, 7
    s_add_u32 s{s_t1}, s{s_t1}, s{s_t2}
    s_sub_u32 s{s_t0}, s{s_t0}, s{s_t1}
    s_add_u32 s94, s{s_t0}, {WS_KVT + 1984*2}
    s_add_u32 s95, s94, {8*4096}
    """)
kpA, kpV, kpU, kpO = 96, 120, 100, 116
kpD = [68, 88, 92, 96]
def kps_stage1():
    L = []
    for t in range(1, 4):
        L.append(f"ds_read_b128 v[{kpA+8*(t-1)}:{kpA+8*(t-1)+3}], v80 offset:{256*(t-1)+128}")
        L.append(f"ds_read_b128 v[{kpA+8*(t-1)+4}:{kpA+8*(t-1)+7}], v80 offset:{256*(t-1)}")
    for t in range(4):
        L.append(f"ds_read_b64_tr_b16 v[{kpV+2*t}:{kpV+2*t+1}], v81 offset:{256*t}")
    return L
def kps_stage2():
    L = []
    for t in range(4):
        a = kT0 if t == 0 else kpA+8*(t-1)
        L.append(f"v_mfma_f32_16x16x32_bf16 v[{kpD[t]}:{kpD[t]+3}], v[{a}:{a+3}], v[{kB1}:{kB1+3}], 0")
        L.append(f"v_mfma_f32_16x16x32_bf16 v[{kpD[t]}:{kpD[t]+3}], v[{a+4}:{a+7}], v[{kB2}:{kB2+3}], v[{kpD[t]}:{kpD[t]+3}]")
    return L
def kps_stage3():
    L = []
    for t in range(4):
        for h in range(2):
            L += [f"v_lshlrev_b32 v{kpU+4*t+2*h}, 16, v{kpV+2*t+h}", f"v_and_b32 v{kpU+4*t+2*h+1}, 0xffff0000, v{kpV+2*t+h}"]
    return L
def kps_stage4():
    L = []
    for t in range(4):
        for r in range(4): L.append(f"v_mul_f32 v{kpD[t]+r}, v{kpD[t]+r}, v{kpU+4*t+r}")
    for e in range(8):
        t = 3 - (e >> 1); r = 3 - 2*(e & 1)
        L.append(f"v_cvt_pk_bf16_f32 v{kpO+e}, v{kpD[t]+r}, v{kpD[t]+r-1}")
    return L
def kps_stage5():
    O = kpO
    return [(f"ds_write_b128 v82, v[{O}:{O+3}]", None), (f"ds_write_b128 v83, v[{O+4}:{O+7}]", None),
            (f"ds_read_b128 v[{O}:{O+3}], v84", None), (f"ds_read_b128 v[{O+4}:{O+7}], v84 offset:1024", "kprb")]
def kps_store_L():
    O = 116
    return [f"buffer_store_dwordx4 v[{O}:{O+3}], v85, s[{sWS}:{sWS+3}], s94 offen sc1",
            f"buffer_store_dwordx4 v[{O+4}:{O+7}], v85, s[{sWS}:{sWS+3}], s95 offen sc1"]


AKT = 114688; AVT = AKT + 9216; AKO = AVT + 8192
def kpa_dma(g):
    g(f"""
    v_lshrrev_b32 v100, 2, v{v_lane}
    v_and_b32 v101, 3, v{v_lane}
    v_mul_u32_u24 v100, 896, v100
    v_lshl_add_u32 v104, v101, 4, v100
    v_add_u32 v105, {16*896-1024}, v104
    s_lshl_b32 s{s_t0}, s{s_mi}, 7
    s_lshl_b32 s{s_t1}, s{s_w}, 5
    s_add_u32 s{s_t0}, s{s_t0}, s{s_t1}
    s_mul_i32 s34, s{s_t0}, 896
    s_lshl_b32 s{s_t2}, s{s_fi}, 6
    s_add_u32 s34, s34, s{s_t2}
    s_cmp_eq_u32 s{s_t0}, 0
    s_cselect_b32 s{s_t1}, 0, 2688
    s_cselect_b32 s{s_t2}, 2688, 0
    s_sub_u32 s35, s34, s{s_t1}
    v_subrev_u32 v106, s{s_t2}, v104
    v_subrev_u32 v107, s{s_t2}, v105
    s_add_u32 m0, s{s_t4}, {AKT}
    s_nop 0
    """)
    g.vm(f"buffer_load_dwordx4 v106, s[{sKK}:{sKK+3}], s35 offen lds", "kp")
    g.vm(f"buffer_load_dwordx4 v107, s[{sKK}:{sKK+3}], s35 offen offset:1024 lds", "kp")
    g(f"s_add_u32 m0, s{s_t4}, {AVT}\ns_nop 0")
    g.vm(f"buffer_load_dwordx4 v104, s[{sVV}:{sVV+3}], s34 offen lds", "kp")
    g.vm(f"buffer_load_dwordx4 v105, s[{sVV}:{sVV+3}], s34 offen offset:1024 lds", "kp")
    g(f"""s_lshl_b32 s{s_t0}, s{s_mi}, 7
    s_add_u32 s{s_t0}, s{s_t0}, 125
    s_mul_i32 s{s_t0}, s{s_t0}, 896
    s_lshl_b32 s{s_t1}, s{s_fi}, 6
    s_add_u32 s{s_t0}, s{s_t0}, s{s_t1}
    s_mov_b32 m0, {AKT + 8192}
    s_mov_b64 exec, 0xfff""")
    g.vm(f"buffer_load_dwordx4 v104, s[{sKK}:{sKK+3}], s{s_t0} offen lds", "kp")
    g("s_mov_b64 exec, -1")
def kpa_compute(g):
    A, V, Dd, U, O = 20, 52, 96, 112, 60
    for t in range(4):
        g(f"ds_read_b128 v[{A+8*t}:{A+8*t+3}], v80 offset:{256*t+128}")
        g(f"ds_read_b128 v[{A+8*t+4}:{A+8*t+7}], v80 offset:{256*t}")
    for t in range(4):
        g(f"ds_read_b64_tr_b16 v[{V+2*t}:{V+2*t+1}], v81 offset:{256*t}")
    for t in range(4):
        g(f"s_waitcnt lgkmcnt({10-2*t})")
        g(f"v_mfma_f32_16x16x32_bf16 v[{Dd+4*t}:{Dd+4*t+3}], v[{A+8*t}:{A+8*t+3}], v[{kB1}:{kB1+3}], 0")
        g(f"v_mfma_f32_16x16x32_bf16 v[{Dd+4*t}:{Dd+4*t+3}], v[{A+8*t+4}:{A+8*t+7}], v[{kB2}:{kB2+3}], v[{Dd+4*t}:{Dd+4*t+3}]")
    g("s_waitcnt lgkmcnt(0)")
    for t in range(4):
        for h in range(2):
            g(f"v_lshlrev_b32 v{U+4*t+2*h}, 16, v{V+2*t+h}\nv_and_b32 v{U+4*t+2*h+1}, 0xffff0000, v{V+2*t+h}")
    for t in range(4):
        for h in range(2):
            g(f"v_pk_mul_f32 v[{Dd+4*t+2*h}:{Dd+4*t+2*h+1}], v[{Dd+4*t+2*h}:{Dd+4*t+2*h+1}], v[{U+4*t+2*h}:{U+4*t+2*h+1}]")
    for e in range(8):
        t = 3 - (e >> 1); r = 3 - 2*(e & 1)
        g(f"v_cvt_pk_bf16_f32 v{O+e}, v{Dd+4*t+r}, v{Dd+4*t+r-1}")
    g(f"""ds_write_b128 v82, v[{O}:{O+3}]
    ds_write_b128 v83, v[{O+4}:{O+7}]
    ds_read_b128 v[{U}:{U+3}], v84
    ds_read_b128 v[{U+4}:{U+7}], v84 offset:1024
    s_waitcnt lgkmcnt(0)""")
    g.vm(f"buffer_store_dwordx4 v[{U}:{U+3}], v85, s[{sWS}:{sWS+3}], s94 offen sc1", "kvst")
    g.vm(f"buffer_store_dwordx4 v[{U+4}:{U+7}], v85, s[{sWS}:{sWS+3}], s95 offen sc1", "kvst")


def kpe_compute(g):
    A, V, Dd, U, O = 20, 52, 96, 2, 60
    for t in range(1, 4):
        g(f"ds_read_b128 v[{A+8*(t-1)}:{A+8*(t-1)+3}], v80 offset:{256*(t-1)+128}")
        g(f"ds_read_b128 v[{A+8*(t-1)+4}:{A+8*(t-1)+7}], v80 offset:{256*(t-1)}")
    for t in range(4):
        g(f"ds_read_b64_tr_b16 v[{V+2*t}:{V+2*t+1}], v81 offset:{256*t}")
    for t in range(4):
        a = kT0 if t == 0 else A+8*(t-1)
        if t: g(f"s_waitcnt lgkmcnt({10-2*t})")
        g(f"v_mfma_f32_16x16x32_bf16 v[{Dd+4*t}:{Dd+4*t+3}], v[{a}:{a+3}], v[{kB1}:{kB1+3}], 0")
        g(f"v_mfma_f32_16x16x32_bf16 v[{Dd+4*t}:{Dd+4*t+3}], v[{a+4}:{a+7}], v[{kB2}:{kB2+3}], v[{Dd+4*t}:{Dd+4*t+3}]")
    g("s_waitcnt lgkmcnt(0)")
    for t in range(4):
        for h in range(2):
            g(f"v_lshlrev_b32 v{U+4*t+2*h}, 16, v{V+2*t+h}\nv_and_b32 v{U+4*t+2*h+1}, 0xffff0000, v{V+2*t+h}")
    for t in range(4):
        for h in range(2):
            g(f"v_pk_mul_f32 v[{Dd+4*t+2*h}:{Dd+4*t+2*h+1}], v[{Dd+4*t+2*h}:{Dd+4*t+2*h+1}], v[{U+4*t+2*h}:{U+4*t+2*h+1}]")
    for e in range(8):
        t = 3 - (e >> 1); r = 3 - 2*(e & 1)
        g(f"v_cvt_pk_bf16_f32 v{O+e}, v{Dd+4*t+r}, v{Dd+4*t+r-1}")
    g(f"""ds_write_b128 v82, v[{O}:{O+3}]
    ds_write_b128 v83, v[{O+4}:{O+7}]
    ds_read_b128 v[{O}:{O+3}], v84
    ds_read_b128 v[{O+4}:{O+7}], v84 offset:1024
    s_waitcnt lgkmcnt(0)""")
    g.vm(f"buffer_store_dwordx4 v[{O}:{O+3}], v85, s[{sWS}:{sWS+3}], s94 offen sc1", "kvst")
    g.vm(f"buffer_store_dwordx4 v[{O+4}:{O+7}], v85, s[{sWS}:{sWS+3}], s95 offen sc1", "kvst")

def g1_addr():
    L = lines(f"""
    v_and_b32 v20, 31, v{v_lane}
    v_lshrrev_b32 v21, 5, v{v_lane}
    v_bfe_u32 v22, v{v_lane}, 1, 3
    v_xor_b32 v22, v22, v21
    s_lshl_b32 s{s_t0}, s{s_ns}, 13
    v_lshl_add_u32 v20, v20, 7, s{s_t0}
    """)
    for ks in range(4):
        L += [f"v_xor_b32 v23, {2*ks}, v22", f"v_lshl_add_u32 v{v_xa+ks}, v23, 4, v20"]
    L += lines(f"""
    v_bfe_u32 v20, v{v_lane}, 2, 2
    v_bfe_u32 v22, v{v_lane}, 4, 1
    v_bfe_u32 v23, v{v_lane}, 1, 1
    v_and_b32 v24, 1, v{v_lane}
    v_lshl_add_u32 v22, v22, 1, v23
    v_lshlrev_b32 v25, 11, v21
    v_lshl_add_u32 v25, v20, 8, v25
    v_lshl_add_u32 v25, v24, 3, v25
    v_lshl_add_u32 v25, v22, 4, v25
    v_add_u32 v25, {LW}, v25
    s_lshl_b32 s{s_t0}, s{s_mf}, 1
    """)
    for ft in range(2):
        L += lines(f"""
        v_add_u32 v26, s{s_t0}, v20
        v_add_u32 v26, {ft}, v26
        v_and_b32 v26, 3, v26
        v_lshl_add_u32 v{v_wa+ft}, v26, 6, v25
        v_add_u32 v{v_wa+2+ft}, 65536, v{v_wa+ft}
        """)
    return L

def g1_frag_reads(kstep):
    c, ks = divmod(kstep, 4)
    sl = c % 3
    b = v_fr + (kstep & 1)*24
    L = []
    for nt in range(2):
        L.append(f"ds_read_b128 v[{b+4*nt}:{b+4*nt+3}], v{v_xa+ks} offset:{sl*16384 + nt*4096}")
    for mat in range(2):
        for ft in range(2):
            r = b + 8 + mat*8 + ft*4
            base = v_wa + ft + (2 if sl == 2 else 0)
            off = (sl*32768 if sl < 2 else 0) + mat*16384 + ks*4096
            L.append(f"ds_read_b64_tr_b16 v[{r}:{r+1}], v{base} offset:{off}")
            L.append(f"ds_read_b64_tr_b16 v[{r+2}:{r+3}], v{base} offset:{off+1024}")
    return L

def g1_mfmas(kstep):
    b = v_fr + (kstep & 1)*24
    L = []
    for ft in range(2):
        for nt in range(2):
            for mat in range(2):
                acc = accg(ft, nt) if mat == 0 else accu(ft, nt)
                A = b + 8 + mat*8 + ft*4
                B = b + 4*nt
                cin = "0" if kstep == 0 else f"v[{acc}:{acc+15}]"
                if os.environ.get("MF16"):
                    c1 = "0" if kstep == 0 else f"v[{acc}:{acc+3}]"; c2 = "0" if kstep == 0 else f"v[{acc+4}:{acc+7}]"
                    L.append(f"v_mfma_f32_16x16x32_bf16 v[{acc}:{acc+3}], v[{A}:{A+3}], v[{B}:{B+3}], {c1}\nv_mfma_f32_16x16x32_bf16 v[{acc+4}:{acc+7}], v[{B}:{B+3}], v[{A}:{A+3}], {c2}")
                else:
                    L.append(f"v_mfma_f32_32x32x16_bf16 v[{acc}:{acc+15}], v[{A}:{A+3}], v[{B}:{B+3}], {cin}")
    return L

def spread(per, items, lo, hi):
    n = len(items)
    for i, x in enumerate(items):
        per[min(hi, lo + (i*(hi-lo+1))//n)].append(x)

KPA = os.environ.get("KPA", "0") == "1"
KPE = os.environ.get("KPE", "0") == "1"
MVG1 = os.environ.get("MVG1", "0") == "1"
CSPLIT = os.environ.get("CSPLIT", "1") == "1"
KSTAMP = None
EST = os.environ.get('EST') == '1'
CST = os.environ.get('CST') == '1'
GSTAMP = None
def g1_chunk_stream(c):
    out = []
    for grp in g1_groups(c):
        for i in range(4):
            out.append((grp[:2] if i == 0 else [], grp[2+i], grp[0]))
    return out
def g1_main(g, pre, post, stamps=None):
    g.ldops = []
    for s_ in g1_frag_reads(0): g.ld(s_, "fr0")
    sched = {k: [] for k in range(28)}
    st2 = g1_chunk_stream(2)
    for i, x in enumerate(st2): sched[i // 4].append((x, "c2"))
    for c in range(0, 4):
        stc = g1_chunk_stream(c+3)
        for i, x in enumerate(stc): sched[4*c + 3 + i // 3].append((x, f"c{c+3}"))
    cur_m0 = [None]
    for k in range(28):
        c, ks = divmod(k, 4)
        g.lwait(f"fr{k}")
        if KSTAMP is not None and KSTAMP <= k < KSTAMP + 14: stamp(g, k - KSTAMP + 1)
        if ks == 3 and c < 6:
            g.vwait(f"c{c+1}")
            for tg in pre(k): g.vwait(tg)
            g("s_barrier")
            if stamps and c in stamps: stamp(g, stamps[c])
        per = [[] for _ in range(8)]
        if k+1 < 28: spread(per, T(g1_frag_reads(k+1), f"fr{k+1}"), 0, 4)
        items = sched[k]
        early, late, vx = post(k)
        dm = [[] for _ in range(8)]
        if len(items) == 4: sg, xg = [1, 3, 5, 7], [2, 6]
        elif len(items) == 3: sg, xg = ([1, 5, 7], [3, 6]) if vx else ([1, 4, 7], [])
        else: sg, xg = [], [1, 3, 5, 7, 2, 6, 4, 0]
        for it_, gp in zip(items, sg): dm[gp].append(it_)
        assert len(vx) <= len(xg), (k, len(vx))
        xs = sorted(xg[:len(vx)])
        if early: spread(per, early, 0, 7)
        for grp_, gp in zip(vx, xs): per[gp] += grp_
        if late: spread(per, late, 4, 7)
        m = g1_mfmas(k)
        for i in range(8):
            if GSTAMP is not None and k == GSTAMP: stamp(g, i + 1)
            if GSTAMP is not None and k == GSTAMP + 1 and i < 5: stamp(g, i + 9)
            g(m[i])
            for s_, tag in per[i]:
                if s_ == "CALL": tag()
                else:
                    g.emit(s_, tag)
                    if "m0" in s_ and not s_.startswith("buffer_") : m0_dirty[0] = True
                    if "m0," in s_: m0_dirty[0] = True
            for (salu, load, m0i), tag in dm[i]:
                if salu:
                    for x in salu: g(x)
                    m0_dirty[0] = False
                elif m0_dirty[0]:
                    g(m0i); g("s_nop 0"); m0_dirty[0] = False
                g.vm(load, tag)
m0_dirty = [False]
TCHK = eval(os.environ.get('TCHK', '(12,13,14,17,18,19,19,19,21,21,22,23,23,23)'))
KPK = int(os.environ.get('KPK', '11'))

v_cs = 72
v_rc = 100
v_t = 108
v_csa = v_t + 1
def epi_pre_reads():
    return lines(f"""
    v_and_b32 v{v_t}, 31, v{v_lane}
    s_lshl_b32 s{s_t1}, s{s_ns}, 9
    s_add_u32 s{s_t1}, s{s_t1}, {LST}
    v_lshl_add_u32 v{v_t}, v{v_t}, 3, s{s_t1}
    v_lshrrev_b32 v{v_csa}, 5, v{v_lane}
    s_lshl_b32 s{s_t1}, s{s_mf}, 8
    s_add_u32 s{s_t1}, s{s_t1}, {LST+1024}
    v_lshl_add_u32 v{v_csa}, v{v_csa}, 4, s{s_t1}
    ds_read_b64 v[{v_t+2}:{v_t+3}], v{v_t}
    ds_read_b64 v[{v_t+4}:{v_t+5}], v{v_t} offset:256
    """) + epi_cs_reads()
def epi_cs_reads():
    return [f"ds_read_b128 v[{v_cs}:{v_cs+3}], v{v_csa}", f"ds_read_b128 v[{v_cs+4}:{v_cs+7}], v{v_csa} offset:32",
            f"ds_read_b128 v[{v_cs+8}:{v_cs+11}], v{v_csa} offset:512", f"ds_read_b128 v[{v_cs+12}:{v_cs+15}], v{v_csa} offset:544",
            f"v_add_u32 v{v_csa}, 64, v{v_csa}"]
def epi_hoff():
    return lines(f"""
    s_lshl_b32 s{s_t0}, s{s_mi}, 2
    s_lshl_b32 s{s_t1}, s{s_ns}, 1
    s_add_u32 s{s_t0}, s{s_t0}, s{s_t1}
    s_mul_i32 s{s_t0}, s{s_t0}, 112
    s_lshl_b32 s{s_t1}, s{s_fi}, 3
    s_add_u32 s{s_t0}, s{s_t0}, s{s_t1}
    s_lshl_b32 s{s_t1}, s{s_mf}, 2
    s_add_u32 s{s_t0}, s{s_t0}, s{s_t1}
    s_lshl_b32 s{s_hoff}, s{s_t0}, 10
    s_add_u32 s{s_hoff}, s{s_hoff}, {WS_H}
    """)
HST = os.environ.get('HST', 'sc1')
vW0, vW1, vW2, vW3 = 120, 121, 122, 123
def g1_epilogue(g, aux):
    for nt in range(2):
        m, sd = v_t+2+2*nt, v_t+3+2*nt
        rc = v_rc + 4*nt
        g(f"""
        v_rcp_f32 v{v_t+6}, v{sd}
        v_sub_f32 v{rc}, 0, v{m}
        v_mul_f32 v{rc+1}, v{sd}, v{sd}
        v_mul_f32 v{rc+2}, {fh(C1)}, v{v_t+6}
        v_mul_f32 v{v_t+7}, v{v_t+6}, v{v_t+6}
        v_mul_f32 v{v_t+7}, v{v_t+7}, v{v_t+6}
        v_mul_f32 v{rc+3}, {fh(C2)}, v{v_t+7}
        """)
    P = 88
    Z = 20
    def pr(x): return f"v[{x}:{x+1}]"
    for it in range(4):
        ft, hq = it >> 1, it & 1
        if EST: stamp(g, 2 + it)
        main = []
        main.append(("LWAIT", "cs"))
        for nt in range(2):
            rc = v_rc + 4*nt; nm = f"v[{rc}:{rc+1}]"
            for pp in range(4):
                r = 8*hq + 2*pp
                tg = accg(ft, nt) + r; tu = accu(ft, nt) + r
                main.append((f"v_pk_fma_f32 {pr(tg)}, {pr(v_cs+2*pp)}, {nm}, {pr(tg)} op_sel_hi:[1,0,1]", None))
                main.append((f"v_pk_fma_f32 {pr(tu)}, {pr(v_cs+8+2*pp)}, {nm}, {pr(tu)} op_sel_hi:[1,0,1]", None))
        if it < 3: main += T(epi_cs_reads(), "cs")
        for nt in range(2):
            rc = v_rc + 4*nt; nm = f"v[{rc}:{rc+1}]"; cc = f"v[{rc+2}:{rc+3}]"
            steps = [
              lambda tg,tu,z: [f"v_pk_mul_f32 {pr(z)}, {pr(tg)}, {pr(tg)}"],
              lambda tg,tu,z: [f"v_pk_fma_f32 {pr(z)}, {pr(z)}, {cc}, {cc} op_sel:[0,1,0] op_sel_hi:[1,1,0]"],
              lambda tg,tu,z: [f"v_pk_mul_f32 {pr(z)}, {pr(z)}, {pr(tg)}"],
              lambda tg,tu,z: [f"v_exp_f32 v{z}, v{z}", f"v_exp_f32 v{z+1}, v{z+1}"],
              lambda tg,tu,z: [f"v_pk_mul_f32 {pr(tu)}, {pr(tu)}, {pr(tg)}"],
              lambda tg,tu,z: [f"v_pk_fma_f32 {pr(z)}, {pr(z)}, {nm}, {nm} op_sel:[0,1,1] op_sel_hi:[1,1,1]"],
              lambda tg,tu,z: [f"v_rcp_f32 v{z}, v{z}", f"v_rcp_f32 v{z+1}, v{z+1}"],
              lambda tg,tu,z: [f"v_pk_mul_f32 {pr(tu)}, {pr(tu)}, {pr(z)}"],
            ]
            for st in steps:
                for pp in range(4):
                    r = 8*hq + 2*pp
                    main += T(st(accg(ft, nt) + r, accu(ft, nt) + r, Z + 8*nt + 2*pp))
            for pp in range(4):
                r = 8*hq + 2*pp
                main.append((f"v_cvt_pk_bf16_f32 v{P+4*nt+pp}, v{accu(ft, nt)+r}, v{accu(ft, nt)+r+1}", None))
            off = (nt*112 + 2*ft + hq) * 1024
            main.append((f"s_add_u32 s{s_t2}, s{s_hoff}, {off}\nbuffer_store_dwordx4 v[{P+4*nt}:{P+4*nt+3}], v{v_l16}, s[{sWS}:{sWS+3}], s{s_t2} offen {HST}", "hst"))
        a = aux[it]
        if os.environ.get("XAUX") == "front":
            for x2, t2 in a:
                if x2 == "CALL": t2()
                else: g.emit(x2, t2)
            a = []
            if EST: stamp(g, 6 + it)
        n, k = len(main), 0
        for i, (x, tg_) in enumerate(main):
            g.emit(x, tg_)
            while k < len(a) and k < ((i+1)*len(a))//n:
                x2, t2 = a[k]
                if x2 == "CALL": t2()
                else: g.emit(x2, t2)
                k += 1

def g1_epilogue_loop(g, blocks):
    for nt in range(2):
        m, sd = v_t+2+2*nt, v_t+3+2*nt
        rc = v_rc + 4*nt
        g(f"""
        v_rcp_f32 v{v_t+6}, v{sd}
        v_sub_f32 v{rc}, 0, v{m}
        v_mul_f32 v{rc+1}, v{sd}, v{sd}
        v_mul_f32 v{rc+2}, {fh(C1)}, v{v_t+6}
        v_mul_f32 v{v_t+7}, v{v_t+6}, v{v_t+6}
        v_mul_f32 v{v_t+7}, v{v_t+7}, v{v_t+6}
        v_mul_f32 v{rc+3}, {fh(C2)}, v{v_t+7}
        """)
    TG = 20
    P = 88
    g(f"s_mov_b32 s{s_t0}, 0\ns_mov_b32 s{s_t1}, s{s_hoff}\ns_mov_b32 s96, s{s_m0x}")
    def wd_dyn():
        if os.environ.get("XNOWD"): return
        g(f"s_mov_b32 m0, s96\ns_add_u32 s96, s96, 2048")
        for x in ptr_next(28, 29, s_woff, 14336): g(x)
        g(f"buffer_load_dwordx4 v{vW0}, s[{sWD2}:{sWD2+3}], s{s_t3} offen lds")
        g(f"buffer_load_dwordx4 v{vW1}, s[{sWD2}:{sWD2+3}], s{s_t3} offen offset:1024 lds")
    wd_dyn()
    g.lab("E1_loop")
    g(f"s_set_gpr_idx_on s{s_t0}, gpr_idx(SRC2)")
    for nt in range(2):
        rc = v_rc + 4*nt; nm = f"v[{rc}:{rc+1}]"
        b = TG + 24*nt
        for pp in range(4):
            r = 2*pp
            g(f"v_pk_fma_f32 v[{b+r}:{b+r+1}], v[{v_cs+r}:{v_cs+r+1}], {nm}, v[{accg(0,nt)+r}:{accg(0,nt)+r+1}] op_sel_hi:[1,0,1]")
            g(f"v_pk_fma_f32 v[{b+8+r}:{b+8+r+1}], v[{v_cs+8+r}:{v_cs+8+r+1}], {nm}, v[{accu(0,nt)+r}:{accu(0,nt)+r+1}] op_sel_hi:[1,0,1]")
    g("s_set_gpr_idx_off")
    for x in epi_cs_reads(): g(x)
    for nt in range(2):
        wd_dyn()
        rc = v_rc + 4*nt; nm = f"v[{rc}:{rc+1}]"; cc = f"v[{rc+2}:{rc+3}]"
        b = TG + 24*nt
        def pr(x): return f"v[{x}:{x+1}]"
        steps = [
          lambda tg,tu,z: [f"v_pk_mul_f32 {pr(z)}, {pr(tg)}, {pr(tg)}"],
          lambda tg,tu,z: [f"v_pk_fma_f32 {pr(z)}, {pr(z)}, {cc}, {cc} op_sel:[0,1,0] op_sel_hi:[1,1,0]"],
          lambda tg,tu,z: [f"v_pk_mul_f32 {pr(z)}, {pr(z)}, {pr(tg)}"],
          lambda tg,tu,z: [f"v_exp_f32 v{z}, v{z}", f"v_exp_f32 v{z+1}, v{z+1}"],
          lambda tg,tu,z: [f"v_pk_mul_f32 {pr(tu)}, {pr(tu)}, {pr(tg)}"],
          lambda tg,tu,z: [f"v_pk_fma_f32 {pr(z)}, {pr(z)}, {nm}, {nm} op_sel:[0,1,1] op_sel_hi:[1,1,1]"],
          lambda tg,tu,z: [f"v_rcp_f32 v{z}, v{z}", f"v_rcp_f32 v{z+1}, v{z+1}"],
          lambda tg,tu,z: [f"v_pk_mul_f32 {pr(tu)}, {pr(tu)}, {pr(z)}"],
        ]
        for st in steps:
            for pp in range(4):
                for x in st(b+2*pp, b+8+2*pp, b+16+2*pp): g(x)
        for pp in range(4):
            g(f"v_cvt_pk_bf16_f32 v{P+4*nt+pp}, v{b+8+2*pp}, v{b+8+2*pp+1}")
        if os.environ.get("XNOST"): pass
        elif nt == 0: g(f"buffer_store_dwordx4 v[{P}:{P+3}], v{v_l16}, s[{sWS}:{sWS+3}], s{s_t1} offen {HST}")
        else: g(f"s_add_u32 s{s_t2}, s{s_t1}, {112*1024}\nbuffer_store_dwordx4 v[{P+4}:{P+7}], v{v_l16}, s[{sWS}:{sWS+3}], s{s_t2} offen {HST}")
    POSTB = os.environ.get("POSTB", "1") == "1"
    if POSTB:
        g.vmops = list(g.vmops) + ["wd", "wd"]
        for it in range(4): g.vmops += [f"wd{9+2*it}", f"wd{9+2*it}", "hst", f"wd{10+2*it}", f"wd{10+2*it}", "hst"]
        g(f"""
        s_add_u32 s{s_t1}, s{s_t1}, 1024
        s_add_u32 s{s_t0}, s{s_t0}, 8
        s_bitcmp1_b32 s{s_t0}, 4
        s_cselect_b32 s{s_t2}, 16, 0
        s_add_u32 s{s_t0}, s{s_t0}, s{s_t2}
        s_cmp_lt_u32 s{s_t0}, 64
        s_waitcnt lgkmcnt(0)
        s_cbranch_scc1 E1_loop
        """)
        g.ldops = []
        for it in range(4): blocks[it]()
        return
    g(f"s_cmp_eq_u32 s{s_t0}, 0\ns_cbranch_scc1 E1_b0\ns_cmp_eq_u32 s{s_t0}, 8\ns_cbranch_scc1 E1_b1\ns_cmp_eq_u32 s{s_t0}, 32\ns_cbranch_scc1 E1_b2\ns_branch E1_b3")
    base_vm = list(g.vmops)
    seq = ["wd", "wd"]
    g.vmops = base_vm + seq
    for it in range(4):
        g.vmops += [f"wd{9+2*it}", f"wd{9+2*it}", "hst", f"wd{10+2*it}", f"wd{10+2*it}", "hst"]
        g.lab(f"E1_b{it}")
        g.ldops = []
        if EST: stamp(g, 2 + 2*it)
        blocks[it]()
        if EST: stamp(g, 3 + 2*it)
        if it < 3: g("s_branch E1_next")
    g.lab("E1_next")
    g(f"""
    s_add_u32 s{s_t1}, s{s_t1}, 1024
    s_add_u32 s{s_t0}, s{s_t0}, 8
    s_bitcmp1_b32 s{s_t0}, 4
    s_cselect_b32 s{s_t2}, 16, 0
    s_add_u32 s{s_t0}, s{s_t0}, s{s_t2}
    s_cmp_lt_u32 s{s_t0}, 64
    s_waitcnt lgkmcnt(0)
    s_cbranch_scc1 E1_loop
    """)

a_h = 224
def conv_h_loads():
    L = [f"v_lshlrev_b32 v{v_hv}, 4, v0", f"s_lshl_b32 s{s_zoff}, s2, 13"]
    for ch in range(2):
        r = a_h + ch*8
        L.append(f"buffer_load_dwordx4 a[{r}:{r+3}], v{v_hv}, s[{sSK2}:{sSK2+3}], s{s_zoff} offen")
        L.append(f"buffer_load_dwordx2 a[{r+4}:{r+5}], v{v_hv}, s[{sSK2}:{sSK2+3}], s{s_zoff} offen offset:16")
        if ch == 0: L.append(f"s_add_u32 s{s_zoff}, s{s_zoff}, 4096")
    return L

def conv_build_L(ch, W=2, C1=8, C3=12, AD=16):
    L = [f"v_lshlrev_b32 v{AD}, 4, v0", f"v_add_u32 v{AD}, {LCV+32+ch*CVCH}, v{AD}"]
    for i in range(6): L.append(f"v_accvgpr_read_b32 v{W+i}, a{a_h+8*ch+i}")
    for i in range(4): L.append(f"v_alignbit_b32 v{C1+i}, v{W+i+1}, v{W+i}, 16")
    for i in range(3): L.append(f"v_mov_b32 v{C3+i}, v{C1+i+1}")
    L.append(f"v_alignbit_b32 v{C3+3}, v{W+5}, v{W+4}, 16")
    L.append(f"ds_write_b128 v{AD}, v[{C1}:{C1+3}] offset:{CVCOPY}")
    L.append(f"ds_write_b128 v{AD}, v[{C3}:{C3+3}] offset:{3*CVCOPY}")
    return L
def conv_copy_dma(i):
    return ["\n".join([f"s_add_u32 m0, s90, {i*1024}", f"s_add_u32 s{s_t1}, s91, {i*1024}",
                        f"buffer_load_dwordx4 v{v_l16}, s[{sSK2}:{sSK2+3}], s{s_t1} offen lds"])]
def conv_copy_setup():
    return lines(f"""
    s_mul_i32 s90, s{s_ns}, {CVCH}
    s_mul_i32 s91, s{s_mf}, {2*CVCOPY}
    s_add_u32 s90, s90, s91
    s_add_u32 s90, s90, {LCV+32}
    s_lshl_b32 s91, s2, 13
    s_lshl_b32 s{s_t1}, s{s_ns}, 12
    s_add_u32 s91, s91, s{s_t1}
    s_lshl_b32 s{s_t1}, s{s_mf}, 2
    s_add_u32 s91, s91, s{s_t1}
    """)
def conv_pads(g):
    pass
def conv_pads_L():
    return None

def conv_u_dma():
    return lines(f"""
    s_lshl_b32 s98, s2, 13
    s_add_u32 s98, s98, s{s_t4}
    s_add_u32 s98, s98, {WS_KVT}
    s_mul_i32 s{s_t2}, s{s_ns}, {CVUS}
    s_lshl_b32 s99, s{s_mf}, 11
    s_add_u32 s{s_t2}, s{s_t2}, s99
    s_add_u32 m0, s{s_t2}, {LU}
    s_nop 0
    buffer_load_dwordx4 v{v_l16}, s[{sWS}:{sWS+3}], s98 offen sc1 lds
    buffer_load_dwordx4 v{v_l16}, s[{sWS}:{sWS+3}], s98 offen offset:1024 sc1 lds
    """)

def conv_pad_code(g):
    g(f"""
    s_cmp_eq_u32 s{s_w}, 0
    s_cbranch_scc0 CB_w1
    v_mov_b32 v8, 0
    v_mov_b32 v9, 0
    v_mov_b32 v10, 0
    v_mov_b32 v11, 0
    """)
    for ch in range(2):
        g(f"""
        v_accvgpr_read_b32 v12, a{a_h+8*ch}
        v_accvgpr_read_b32 v13, a{a_h+8*ch+1}
        s_nop 0
        v_readlane_b32 s34, v12, 0
        v_readlane_b32 s35, v13, 0
        s_nop 3
        s_lshl_b32 s98, s34, 16
        s_lshr_b32 s99, s34, 16
        s_lshl_b32 s35, s35, 16
        s_or_b32 s99, s99, s35
        v_writelane_b32 v11, s98, {8*ch+3}
        v_writelane_b32 v11, s34, {8*ch+5}
        v_writelane_b32 v11, s99, {8*ch+7}
        v_writelane_b32 v10, s98, {8*ch+7}
        """)
    g(f"""
    v_lshrrev_b32 v12, 3, v{v_lane}
    v_mul_u32_u24 v12, {CVCH}, v12
    v_bfe_u32 v13, v{v_lane}, 1, 2
    v_mul_u32_u24 v13, {CVCOPY}, v13
    v_add_u32 v12, v12, v13
    v_and_b32 v13, 1, v{v_lane}
    v_lshl_add_u32 v12, v13, 4, v12
    v_add_u32 v12, {LCV}, v12
    s_mov_b64 exec, 0xffff
    ds_write_b128 v12, v[8:11]
    s_mov_b64 exec, -1
    s_branch CB_done
    CB_w1:
    s_cmp_eq_u32 s{s_w}, 1
    s_cbranch_scc0 CB_done
    v_mov_b32 v8, 0
    v_mov_b32 v9, 0
    v_mov_b32 v10, 0
    v_mov_b32 v11, 0
    v_add_u32 v12, {LU+4096}, v{v_l16}
    ds_write_b128 v12, v[8:11]
    ds_write_b128 v12, v[8:11] offset:{CVUS}
    CB_done:
    """)

cv_D = 128
cv_A = [160, 64]; cv_B = [192, 92]
cv_A = [160, 20]; cv_B = [192, 56]
v_la, v_lb = 124, 125
def conv_addr():
    return lines(f"""
    v_and_b32 v96, 15, v{v_lane}
    v_lshrrev_b32 v97, 4, v{v_lane}
    v_add_u32 v98, 1, v96
    v_and_b32 v99, 3, v98
    v_mul_u32_u24 v99, {CVCOPY}, v99
    v_lshrrev_b32 v98, 2, v98
    v_lshl_add_u32 v99, v98, 3, v99
    v_lshl_add_u32 v99, v97, 4, v99
    s_mul_i32 s98, s{s_ns}, {CVCH}
    s_add_u32 s98, s98, {LCV}
    s_lshl_b32 s99, s{s_mf}, 8
    {"s_add_u32 s98, s98, s99" if CSPLIT else "s_nop 0"}
    v_add_u32 v{v_la}, s98, v99
    v_lshlrev_b32 v98, 5, v96
    v_lshlrev_b32 v99, 4, v97
    v_sub_u32 v99, v99, v98
    s_mul_i32 s98, s{s_ns}, {CVUS}
    s_lshl_b32 s99, s{s_mf}, {8 if CSPLIT else 9}
    {"s_add_u32" if CSPLIT else "s_sub_u32"} s98, s98, s99
    s_add_u32 s98, s98, {LU + 4064 - (3584 if CSPLIT else 3072)}
    v_add_u32 v{v_lb}, s98, v99
    """)
def conv_reads(cl):
    A, B = cv_A[cl & 1], cv_B[cl & 1]
    L = []
    for i in range(8):
        L.append(f"ds_read_b64 v[{A+4*i}:{A+4*i+1}], v{v_la} offset:{64*cl+512*i}")
        L.append(f"ds_read_b64 v[{A+4*i+2}:{A+4*i+3}], v{v_la} offset:{64*cl+512*i+8}")
        L.append(f"ds_read_b128 v[{B+4*i}:{B+4*i+3}], v{v_lb} offset:{64*cl+512*(7-i)}")
    return L
def conv_mfmas(cl):
    A, B = cv_A[cl & 1], cv_B[cl & 1]
    L = []
    if CSPLIT:
        pairs = sorted([(a, b) for a in range(8) for b in range(8) if a+b <= 7], key=lambda p: (max(p), p))
        first = set()
        for a, b in pairs:
            t = a + b
            d = cv_D + 4*t
            cin = "0" if (cl == 0 and t not in first) else f"v[{d}:{d+3}]"
            first.add(t)
            L.append(f"v_mfma_f32_16x16x32_bf16 v[{d}:{d+3}], v[{A+4*a}:{A+4*a+3}], v[{B+4*b}:{B+4*b+3}], {cin}")
        return L
    pairs = sorted([(a, ib) for a in range(8) for ib in range(8) if (a + ib - 1) in (0, 2, 4, 6)], key=lambda p: (max(p), p))
    first = set()
    for a, ib in pairs:
        tau = (a + ib - 1) // 2
        d = cv_D + 4*tau
        cin = "0" if (cl == 0 and tau not in first) else f"v[{d}:{d+3}]"
        first.add(tau)
        L.append(f"v_mfma_f32_16x16x32_bf16 v[{d}:{d+3}], v[{A+4*a}:{A+4*a+3}], v[{B+4*ib}:{B+4*ib+3}], {cin}")
    assert len(L) == 20
    return L

def wd_setup_v():
    a, b, c, d, e, f = 112, 113, 114, 115, 116, 117
    return lines(f"""
    v_lshrrev_b32 v{a}, 3, v{v_lane}
    v_and_b32 v{b}, 7, v{v_lane}
    v_bfe_u32 v{c}, v{a}, 1, 1
    v_lshlrev_b32 v{c}, 2, v{c}
    v_xor_b32 v{b}, v{b}, v{c}
    v_mul_u32_u24 v{a}, 896, v{a}
    v_lshl_add_u32 v{e}, v{b}, 4, v{a}
    v_add_u32 v{f}, {8*896-1024}, v{e}
    v_accvgpr_write_b32 a248, v{e}
    v_accvgpr_write_b32 a249, v{f}
    v_lshrrev_b32 v{a}, 5, v{v_lane}
    v_bfe_u32 v{b}, v{v_lane}, 2, 2
    v_lshl_add_u32 v{a}, v{a}, 2, v{b}
    v_lshlrev_b32 v{a}, 7, v{a}
    v_bfe_u32 v{c}, v{v_lane}, 4, 1
    v_bfe_u32 v{d}, v{v_lane}, 1, 1
    v_lshl_add_u32 v{c}, v{c}, 1, v{d}
    v_lshl_add_u32 v{a}, v{c}, 4, v{a}
    v_and_b32 v{c}, 1, v{v_lane}
    v_lshl_add_u32 v{a}, v{c}, 3, v{a}
    v_bfe_u32 v{b}, v{v_lane}, 3, 1
    v_xor_b32 v{b}, s{s_ns}, v{b}
    v_lshl_add_u32 v{e}, v{b}, 6, v{a}
    v_xor_b32 v{b}, 1, v{b}
    v_lshl_add_u32 v{f}, v{b}, 6, v{a}
    s_mul_i32 s{s_t0}, s{s_w}, {RING}
    v_add_u32 v{a}, s{s_t0}, v{e}
    v_add_u32 v{b}, s{s_t0}, v{f}
    v_accvgpr_write_b32 a250, v{a}
    v_accvgpr_write_b32 a251, v{b}
    s_lshl_b32 s{s_t0}, s{s_w}, 13
    s_add_u32 s{s_t0}, s{s_t0}, {E1B}
    v_add_u32 v{a}, s{s_t0}, v{e}
    v_add_u32 v{b}, s{s_t0}, v{f}
    v_accvgpr_write_b32 a252, v{a}
    v_accvgpr_write_b32 a253, v{b}
    """)
def wd_setup_s():
    return lines(f"""
    s_mul_i32 s{s_woff}, s{s_w}, {448*896}
    s_lshl_b32 s{s_t0}, s{s_ct}, 7
    s_add_u32 s{s_woff}, s{s_woff}, s{s_t0}
    s_mul_i32 s{s_m0x}, s{s_w}, {RING}
    s_lshl_b32 s{s_eb}, s{s_w}, 13
    s_add_u32 s{s_eb}, s{s_eb}, {E1B}
    v_accvgpr_read_b32 v{vW0}, a248
    v_accvgpr_read_b32 v{vW1}, a249
    v_accvgpr_read_b32 v{vW2}, a250
    v_accvgpr_read_b32 v{vW3}, a251
    v_accvgpr_read_b32 v{vW4}, a252
    v_accvgpr_read_b32 v{vW5}, a253
    """) + rot_setup(28, 29, s_woff, 14336) + lines(f"""
    v_subrev_u32 v{vW6}, {E1B-E2B}, v{vW4}
    v_subrev_u32 v{vW7}, {E1B-E2B}, v{vW5}
    """)
NSLOT = 10
ROT = os.environ.get("ROT", "0") == "1"
def ptr_next(p, pend, pbase, stride):
    return ["\n".join([f"s_mov_b32 s{s_t3}, s{p}", f"s_add_u32 s{p}, s{p}, {stride}", f"s_cmp_eq_u32 s{p}, s{pend}", f"s_cselect_b32 s{p}, s{pbase}, s{p}"])]
def rot_setup(p, pend, pbase, stride):
    L = [f"s_add_u32 s{pend}, s{pbase}, {28*stride}"]
    if not ROT: return L + [f"s_mov_b32 s{p}, s{pbase}"]
    return L + [f"s_and_b32 s{p}, s{s_mi}, 3", f"s_mul_i32 s{p}, s{p}, 7", f"s_lshl_b32 s{s_t2}, s{s_ct}, 2", f"s_add_u32 s{p}, s{p}, s{s_t2}",
                f"s_cmp_ge_u32 s{p}, 28\ns_cselect_b32 s{s_t2}, 28, 0\ns_sub_u32 s{p}, s{p}, s{s_t2}",
                f"s_mul_i32 s{p}, s{p}, {stride}", f"s_add_u32 s{p}, s{p}, s{pbase}"]
s_eb = 33
vW4, vW5 = 118, 119
vW6, vW7 = 116, 117
def wd_dma_e(j, e):
    m0 = f"s_add_u32 m0, s{s_eb}, {e*2048}" if e < 4 else f"s_sub_u32 m0, s{s_eb}, {E1B-E2B-(e-4)*2048}"
    return ["\n".join([m0] + ptr_next(28, 29, s_woff, 14336) + [
            f"buffer_load_dwordx4 v{vW0}, s[{sWD2}:{sWD2+3}], s{s_t3} offen lds"]),
            "\n".join([m0, "s_nop 0", f"buffer_load_dwordx4 v{vW1}, s[{sWD2}:{sWD2+3}], s{s_t3} offen offset:1024 lds"])]
def wd_tr_e(j, e):
    L = []
    b = vW4 if e < 4 else vW6
    off = (e & 3)*2048
    for sm in range(2):
        r = 8*j + 4*sm
        L.append(f"ds_read_b64_tr_b16 a[{r}:{r+1}], v{b+sm} offset:{off}")
        L.append(f"ds_read_b64_tr_b16 a[{r+2}:{r+3}], v{b+sm} offset:{off+1024}")
    return L
def wd_dma(j, sl=None):
    if sl is None: sl = j % NSLOT
    return [f"s_add_u32 m0, s{s_m0x}, {sl*2048}"] + ptr_next(28, 29, s_woff, 14336) + [
            f"buffer_load_dwordx4 v{vW0}, s[{sWD2}:{sWD2+3}], s{s_t3} offen lds",
            f"buffer_load_dwordx4 v{vW1}, s[{sWD2}:{sWD2+3}], s{s_t3} offen offset:1024 lds"]
def wd_tr(j, sl=None):
    if sl is None: sl = j % NSLOT
    L = []
    for sm in range(2):
        r = 8*j + 4*sm
        L.append(f"ds_read_b64_tr_b16 a[{r}:{r+1}], v{vW2+sm} offset:{sl*2048}")
        L.append(f"ds_read_b64_tr_b16 a[{r+2}:{r+3}], v{vW2+sm} offset:{sl*2048+1024}")
    return L

vH0, vH1, vH2 = 2, 3, 4
def g2_setup():
    return lines(f"""
    s_lshl_b32 s{s_t0}, s{s_mi}, 2
    s_lshl_b32 s{s_t1}, s{s_hi}, 1
    s_add_u32 s{s_t0}, s{s_t0}, s{s_t1}
    s_mul_i32 s{s_t0}, s{s_t0}, 112
    s_mul_i32 s{s_t1}, s{s_w}, 28
    s_add_u32 s{s_t0}, s{s_t0}, s{s_t1}
    s_lshl_b32 s{s_xoff}, s{s_t0}, 10
    s_add_u32 s{s_xoff}, s{s_xoff}, {WS_H}
    s_mul_i32 s{s_t0}, s{s_mf}, {112*1024}
    v_add_u32 v{vH0}, s{s_t0}, v{v_l16}
    s_sub_u32 s{s_t0}, {112*1024 - 1024}, s{s_t0}
    v_add_u32 v{vH1}, s{s_t0}, v{v_l16}
    v_add_u32 v{vH2}, s{s_m0x}, v{v_l16}
    """) + rot_setup(30, 31, s_xoff, 1024)
HSC = os.environ.get('HSC', 'sc1')
def h_dma(j):
    sl = j % NSLOT
    m0 = f"s_add_u32 m0, s{s_m0x}, {sl*2048}"
    return ["\n".join([m0] + ptr_next(30, 31, s_xoff, 1024) + [f"buffer_load_dwordx4 v{vH0}, s[{sWS}:{sWS+3}], s{s_t3} offen {HSC} lds"]),
            "\n".join([m0, "s_nop 0", f"buffer_load_dwordx4 v{vH1}, s[{sWS}:{sWS+3}], s{s_t3} offen offset:1024 {HSC} lds"])]
def h_reads(j):
    sl = j % NSLOT
    b = g2_fr + (j % 4)*8
    return [f"ds_read_b128 v[{b}:{b+3}], v{vH2} offset:{sl*2048}", f"ds_read_b128 v[{b+4}:{b+7}], v{vH2} offset:{sl*2048+1024}"]
def hflag_offsets():
    return lines(f"""
    v_min_u32 v{v_poll}, 27, v{v_lane}
    v_lshrrev_b32 v{v_poll+1}, 1, v{v_poll}
    v_and_b32 v{v_poll}, 1, v{v_poll}
    v_lshl_add_u32 v{v_poll}, v{v_poll+1}, 2, v{v_poll}
    v_lshlrev_b32 v{v_poll}, 6, v{v_poll}
    s_lshl_b32 s{s_pb}, s{s_mi}, 12
    s_lshl_b32 s{s_t0}, s{s_hi}, 7
    s_add_u32 s{s_pb}, s{s_pb}, s{s_t0}
    s_add_u32 s{s_pb}, s{s_pb}, {WS_FH}
    """)

HFG = int(os.environ.get('HFG', '12'))
def conv_main(g, hflag):
    CL = 36 if CSPLIT else 20; NCL = 4 if CSPLIT else 8; NG = NCL*CL
    per = [[] for _ in range(NG + 8)]
    m = []
    for cl in range(NCL):
        m += conv_mfmas(cl)
        if cl < NCL-1:
            rd = conv_reads(cl+1)
            for i, x in enumerate(rd): per[CL*cl + ((i*16)//24 if not CSPLIT else 2 + i)].append((x, f"cv{cl+1}"))
    per[0].append(("VWAIT", "wd16"))
    trg = {}
    for n_, j in enumerate(range(8, 21)):
        gp = (5 if CSPLIT else 6)*n_
        trg[j] = gp
        if j == 17: per[gp].append(("VWAIT", "wd20"))
        tl = T(wd_tr(j, j-8) if j < 17 else wd_tr_e(j, j-17), f"tr{j}")
        for q, x in enumerate(tl): per[gp + q].append(x)
    for i, j in enumerate(range(21, 28)):
        g2 = trg[8+i] + 8
        per[g2].append(("LWAIT", f"tr{8+i}"))
        dl = T(wd_dma(j, j-21), f"wd{j}")
        per[g2] += dl[:2]
        per[g2+1] += dl[2:]
    if os.environ.get("POSTB", "1") != "1": per[HFG].append(("CALL", hflag))
    for i, j in enumerate(range(21, 28)):
        gp = (70 if CSPLIT else 80) + 3*i
        per[gp].append(("VWAIT", f"wd{j}"))
        tl = T(wd_tr(j, j-21), f"tr{j}")
        per[gp] += tl[:2]; per[gp+1] += tl[2:]
    spread(per, T(hflag_offsets()), 56 if CSPLIT else 66, 61 if CSPLIT else 71)
    spread(per, T(g2_setup()), 62 if CSPLIT else 72, 69 if CSPLIT else 79)
    HCG = int(os.environ.get("HCG", "92" if CSPLIT else "102"))
    per[HCG - 14] += poll_issue("ph")
    per[HCG].append(("HCHECK", None))
    per[HCG].append(("LWAIT", "tr27"))
    nh = min(10, (NG - 2 - HCG) // 5)
    for s_ in range(nh):
        gp = HCG + 1 + 5*s_
        hl_ = T(h_dma(s_), f"h{s_}")
        per[gp] += hl_[:1]; per[gp+2] += hl_[1:]
    global NH0
    NH0 = nh
    spread(per, T(conv_epi_pre()), NG-21, NG-10)
    for i in range(NG):
        if CST and i % 13 == 0: stamp(g, 1 + i//13)
        if i % CL == 0: g.lwait(f"cv{i//CL}")
        g(m[i])
        for x, tag in per[i]:
            if x == "CALL": tag()
            elif x == "HCHECK": poll_check(g, "G_p2", "ph")
            else: g.emit(x, tag)

LXC = 81920
def conv_epi_pre():
    sh = 11 if CSPLIT else 9
    tstep = 512 if CSPLIT else 1024
    L = lines(f"""
    v_and_b32 v54, 15, v{v_lane}
    v_lshrrev_b32 v55, 4, v{v_lane}
    v_lshlrev_b32 v54, 5, v54
    v_lshl_add_u32 v53, v55, 3, v54
    s_mul_i32 s98, s{s_ns}, {CVUS}
    s_lshl_b32 s99, s{s_mf}, {sh}
    s_sub_u32 s98, s98, s99
    s_add_u32 s98, s98, {LU + 4088 - 3*tstep}
    v_sub_u32 v52, s98, v53
    s_lshl_b32 s98, s2, 13
    s_lshl_b32 s34, s{s_ns}, 12
    s_add_u32 s98, s98, s34
    s_add_u32 s98, s98, s99
    s_add_u32 s98, s98, {WS_ZP}
    """)
    L += [f"s_cmp_eq_u32 s{s_ns}, 0\ns_cselect_b32 s99, s100, s101"]
    for tau in range(4):
        L.append(f"ds_read_b64 v[{88+2*tau}:{89+2*tau}], v52 offset:{tstep*(3-tau)}")
    if CSPLIT:
        L += lines(f"""s_lshl_b32 s34, s{s_w}, 13
        s_add_u32 s35, s34, {LXC}
        v_add_u32 v54, s35, v{v_l16}
        s_xor_b32 s35, s34, 8192
        s_add_u32 s35, s35, {LXC}
        v_add_u32 v55, s35, v{v_l16}""")
    return L
def conv_epilogue(g):
    KV, U, O = 88, 96, 112
    Y = cv_D
    tstep = 512 if CSPLIT else 1024
    g("s_waitcnt lgkmcnt(0)")
    if CSPLIT:
        Y = 20
        g(f"s_cmp_eq_u32 s{s_mf}, 0\ns_cbranch_scc0 CX_p1\ns_nop 4")
        for q in range(4): g(f"ds_write_b128 v54, v[{cv_D+16+4*q}:{cv_D+16+4*q+3}] offset:{q*1024}")
        g("s_branch CX_w\nCX_p1:\ns_nop 4")
        for q in range(4): g(f"ds_write_b128 v54, v[{cv_D+4*q}:{cv_D+4*q+3}] offset:{q*1024}")
        g("CX_w:")
    for tau in range(4):
        k = KV + 2*tau; u = U + 4*tau
        g(f"v_and_b32 v{u}, 0xffff0000, v{k+1}\nv_lshlrev_b32 v{u+1}, 16, v{k+1}\nv_and_b32 v{u+2}, 0xffff0000, v{k}\nv_lshlrev_b32 v{u+3}, 16, v{k}")
    if CSPLIT:
        g("s_waitcnt lgkmcnt(0)\ns_barrier")
        for q in range(4): g(f"ds_read_b128 v[{Y+4*q}:{Y+4*q+3}], v55 offset:{q*1024}")
        g(f"s_cmp_eq_u32 s{s_mf}, 0\ns_waitcnt lgkmcnt(0)\ns_cbranch_scc0 CX_a1")
        for r in range(16): g(f"v_add_f32 v{Y+r}, v{Y+r}, v{cv_D+r}")
        g("s_branch CX_ad\nCX_a1:")
        for r in range(16): g(f"v_add_f32 v{Y+r}, v{Y+r}, v{cv_D+16+r}")
        g("CX_ad:")
    for tau in range(4):
        for r in range(4): g(f"v_fmac_f32 v{Y+4*tau+r}, s99, v{U+4*tau+r}")
    for tau in range(4):
        g(f"v_cvt_pk_bf16_f32 v{O+2*tau}, v{Y+4*tau}, v{Y+4*tau+1}\nv_cvt_pk_bf16_f32 v{O+2*tau+1}, v{Y+4*tau+2}, v{Y+4*tau+3}")
    for tau in range(4):
        g.vm(f"buffer_store_dwordx2 v[{O+2*tau}:{O+2*tau+1}], v53, s[{sWS}:{sWS+3}], s98 offen offset:{tstep*tau} sc1", "zst")

g2_acc = 192
g2_fr = 160
G2ST = os.environ.get('G2ST') == '1'
NH0 = int(os.environ.get('NH0', '4'))
def g2_mfma(j, sm, sn):
    b = g2_fr + (j % 4)*8
    acc = g2_acc + (sm*2+sn)*16
    cin = "0" if j == 0 else f"v[{acc}:{acc+15}]"
    return f"v_mfma_f32_32x32x16_bf16 v[{acc}:{acc+15}], a[{8*j+4*sm}:{8*j+4*sm+3}], v[{b+4*sn}:{b+4*sn+3}], {cin}"
def g2_main(g, extra):
    nd = NH0
    g.ldops = []
    g.vwait("h1")
    for x in h_reads(0): g.ld(x, "hr0")
    for x in h_reads(1): g.ld(x, "hr1")
    JT = 24
    for j in range(JT):
        if G2ST and j % 2 == 0: stamp(g, 1 + j//2)
        g.lwait(f"hr{j}")
        fill = []
        cnt = 0
        while nd < 28 and nd <= j + 9 and cnt < 2:
            fill += T(h_dma(nd), f"h{nd}"); nd += 1; cnt += 1
        m = [g2_mfma(j, sm, sn) for sm in range(2) for sn in range(2)]
        per = [[] for _ in range(4)]
        if fill: spread(per, fill, 0, 3)
        ex = extra(j)
        if ex: spread(per, ex, 0, 3)
        per[3].append(("VWAIT", f"h{j+2}"))
        per[3] += T(h_reads(j+2), f"hr{j+2}")
        for i in range(4):
            g(m[i])
            for x, tag in per[i]:
                if x == "CALL": tag()
                else: g.emit(x, tag)
    g.vwait("h27")
    for j in (26, 27):
        for x in h_reads(j): g.ld(x, f"hr{j}")
    g(f"v_add_u32 v22, s{s_m0x}, v{v_l16}")
    for x in range(1, 4):
        g(f"s_xor_b32 s{s_t0}, s{s_w}, {x}\ns_mul_i32 s{s_t0}, s{s_t0}, {RING}\nv_add_u32 v{22+x}, s{s_t0}, v{v_l16}")
    g.lwait("hr27")
    order = [1, 2, 3, 0]
    pend = []
    ex = extra(24) + extra(25) + extra(26)
    for sl in order:
        sm, sn = sl >> 1, sl & 1
        for j in range(JT, 28):
            g(g2_mfma(j, sm, sn))
            if pend:
                g(pend.pop(0))
            elif ex:
                x, tag = ex.pop(0)
                if x == "CALL": tag()
                else: g.emit(x, tag)
        if sl != 0:
            pend += ["s_nop 4", "s_nop 4"] + [f"ds_write_b128 v22, v[{g2_acc + sl*16 + 4*q}:{g2_acc + sl*16 + 4*q + 3}] offset:{sl*4096 + q*1024}" for q in range(4)]
    for x, tag in ex:
        if x == "CALL": tag()
        else: g.emit(x, tag)
    g("s_nop 7")
    for x in pend: g(x)

def g2_reduce2(g):
    g.vwait("x")
    g("s_waitcnt lgkmcnt(0)\ns_barrier")
    for x in final_x_reads(): g(x)
    for x in range(1, 4):
        for q in range(4):
            r = g2_acc + x*16 + 4*q
            g(f"ds_read_b128 v[{r}:{r+3}], v{22+x} offset:{x*4096 + q*1024}")
    for x in range(1, 4):
        g(f"s_waitcnt lgkmcnt({4*(3-x)})")
        for q in range(8):
            a = g2_acc + 2*q; b = g2_acc + x*16 + 2*q
            g(f"v_pk_add_f32 v[{a}:{a+1}], v[{a}:{a+1}], v[{b}:{b+1}]")

fx = 32
LXF = 114688
def final_loads_x():
    L = [f"v_lshrrev_b32 v26, 3, v{v_lane}", f"v_and_b32 v27, 7, v{v_lane}", f"v_lshrrev_b32 v24, 4, v{v_lane}",
         f"v_xor_b32 v25, v27, v24", f"v_mul_u32_u24 v26, 896, v26", f"v_lshl_add_u32 v25, v25, 4, v26",
         f"v_xor_b32 v27, 4, v27", f"v_xor_b32 v27, v27, v24", f"v_lshl_add_u32 v26, v27, 4, v26", f"v_add_u32 v26, {8*896-1024}, v26",
         f"s_lshl_b32 s{s_t0}, s{s_mi}, 7", f"s_lshl_b32 s{s_t1}, s{s_hi}, 6", f"s_add_u32 s{s_t0}, s{s_t0}, s{s_t1}",
         f"s_lshl_b32 s{s_t1}, s{s_w}, 4", f"s_add_u32 s{s_t1}, s{s_t1}, s{s_t0}", f"s_mul_i32 s{s_t1}, s{s_t1}, 896",
         f"s_lshl_b32 s{s_t2}, s{s_ct}, 7", f"s_add_u32 s{s_t1}, s{s_t1}, s{s_t2}"]
    L.append("\n".join([f"s_add_u32 m0, s{s_t4}, {LXF}", "s_nop 0",
             f"buffer_load_dwordx4 v25, s[{sX}:{sX+3}], s{s_t1} offen lds",
             f"buffer_load_dwordx4 v26, s[{sX}:{sX+3}], s{s_t1} offen offset:1024 lds"]))
    L += [f"s_lshl_b32 s{s_t1}, s{s_mf}, 5", f"s_add_u32 s{s_t0}, s{s_t0}, s{s_t1}", f"s_mul_i32 s{s_zoff}, s{s_t0}, 896",
          f"s_add_u32 s{s_zoff}, s{s_zoff}, s{s_t2}", f"s_lshl_b32 s{s_t1}, s{s_ns}, 6", f"s_add_u32 s{s_zoff}, s{s_zoff}, s{s_t1}"]
    return L
def final_x_reads():
    L = [f"v_and_b32 v56, 31, v{v_lane}", f"v_bfe_u32 v57, v{v_lane}, 1, 3", f"s_lshl_b32 s{s_t0}, s{s_ns}, 2", f"v_xor_b32 v57, s{s_t0}, v57",
         f"s_lshl_b32 s{s_t1}, s{s_mf}, 12", f"s_add_u32 s{s_t1}, s{s_t1}, {LXF}", f"v_lshl_add_u32 v56, v56, 7, s{s_t1}",
         f"v_lshrrev_b32 v58, 5, v{v_lane}", f"v_lshl_add_u32 v56, v58, 3, v56"]
    for q in range(4):
        L += [f"v_xor_b32 v58, {q}, v57", f"v_lshl_add_u32 v58, v58, 4, v56", f"ds_read_b64 v[{fx+2*q}:{fx+2*q+1}], v58"]
    return L
s_zp = 49
def final_z_setup():
    return lines(f"""
    v_and_b32 v28, 31, v{v_lane}
    v_lshlrev_b32 v28, 1, v28
    v_lshrrev_b32 v27, 5, v{v_lane}
    v_lshl_add_u32 v28, v27, 14, v28
    s_lshl_b32 s{s_t0}, s{s_ct}, 5
    s_lshl_b32 s{s_t1}, s{s_ns}, 4
    s_add_u32 s{s_t0}, s{s_t0}, s{s_t1}
    s_lshl_b32 s{s_pb}, s{s_t0}, 8
    s_lshl_b32 s{s_t0}, s{s_t0}, 13
    s_lshl_b32 s{s_t1}, s{s_mi}, 7
    s_lshl_b32 s{s_t2}, s{s_hi}, 6
    s_add_u32 s{s_t1}, s{s_t1}, s{s_t2}
    s_lshl_b32 s{s_t2}, s{s_mf}, 5
    s_add_u32 s{s_t1}, s{s_t1}, s{s_t2}
    s_lshl_b32 s{s_t1}, s{s_t1}, 1
    s_add_u32 s{s_t0}, s{s_t0}, s{s_t1}
    s_add_u32 s{s_zp}, s{s_t0}, {WS_ZP}
    s_bfe_u32 s{s_t1}, s{s_mi}, {'0x10003' if CSPLIT else '0x10001'}
    s_lshl_b32 s{s_t1}, s{s_t1}, 6
    s_add_u32 s{s_pb}, s{s_pb}, s{s_t1}
    s_add_u32 s{s_pb}, s{s_pb}, {WS_FZ}
    v_min_u32 v{v_poll}, 31, v{v_lane}
    v_lshrrev_b32 v{v_poll+1}, 1, v{v_poll}
    v_and_b32 v{v_poll}, 1, v{v_poll}
    v_lshlrev_b32 v{v_poll}, 7, v{v_poll}
    v_lshl_add_u32 v{v_poll}, v{v_poll+1}, 8, v{v_poll}
    """)
fz = 64
def final_loads_z(g):
    for q in range(4):
        for i in range(4):
            g(f"s_add_u32 s{s_t3}, s{s_zp}, {(8*q+i)*4096}")
            g.vm(f"buffer_load_ushort v{fz+4*q+i}, v28, s[{sWS}:{sWS+3}], s{s_t3} offen sc1", "z")
def final_pre():
    return lines(f"""
    v_and_b32 v22, 31, v{v_lane}
    v_lshlrev_b32 v22, 3, v22
    s_lshl_b32 s{s_t0}, s{s_mi}, 10
    s_lshl_b32 s{s_t1}, s{s_hi}, 9
    s_add_u32 s{s_t0}, s{s_t0}, s{s_t1}
    s_lshl_b32 s{s_t1}, s{s_mf}, 8
    s_add_u32 s{s_t0}, s{s_t0}, s{s_t1}
    s_add_u32 s{s_t0}, s{s_t0}, {WS_STATS}
    buffer_load_dwordx2 v[30:31], v22, s[{sWS}:{sWS+3}], s{s_t0} offen sc1
    v_and_b32 v29, 31, v{v_lane}
    v_mul_u32_u24 v29, 896, v29
    v_lshrrev_b32 v27, 5, v{v_lane}
    v_lshl_add_u32 v29, v27, 4, v29
    """)
def final(g):
    g(f"""
    s_waitcnt vmcnt(0)
    v_rcp_f32 v31, v31
    v_mov_b32 v20, {fh(-math.log2(math.e))}
    v_mov_b32 v21, 1.0
    v_mul_f32 v30, v30, v31
    v_sub_f32 v30, 0, v30
    """)
    O = g2_acc
    X = 48; Zz = 64; Tt = 80; XN = 96
    def pr(x): return f"v[{x}:{x+1}]"
    steps = [
      lambda i: [f"v_pk_mul_f32 {pr(Tt+2*i)}, {pr(O+2*i)}, v[20:21] op_sel_hi:[1,0]"],
      lambda i: [f"v_exp_f32 v{Tt+2*i}, v{Tt+2*i}", f"v_exp_f32 v{Tt+2*i+1}, v{Tt+2*i+1}"],
      lambda i: [f"v_lshlrev_b32 v{X+2*i}, 16, v{fx+i}", f"v_and_b32 v{X+2*i+1}, 0xffff0000, v{fx+i}"],
      lambda i: [f"v_pk_add_f32 {pr(Tt+2*i)}, {pr(Tt+2*i)}, v[20:21] op_sel:[0,1] op_sel_hi:[1,1]"],
      lambda i: [f"v_lshlrev_b32 v{Zz+2*i}, 16, v{fz+2*i}", f"v_lshlrev_b32 v{Zz+2*i+1}, 16, v{fz+2*i+1}"],
      lambda i: [f"v_rcp_f32 v{Tt+2*i}, v{Tt+2*i}", f"v_rcp_f32 v{Tt+2*i+1}, v{Tt+2*i+1}"],
      lambda i: [f"v_pk_fma_f32 {pr(XN+2*i)}, {pr(X+2*i)}, v[30:31], v[30:31] op_sel:[0,1,0] op_sel_hi:[1,1,0]"],
      lambda i: [f"v_pk_mul_f32 {pr(Tt+2*i)}, {pr(Tt+2*i)}, {pr(O+2*i)}"],
      lambda i: [f"v_pk_mul_f32 {pr(Zz+2*i)}, {pr(Zz+2*i)}, {pr(XN+2*i)}"],
      lambda i: [f"v_pk_fma_f32 {pr(Tt+2*i)}, {pr(Tt+2*i)}, {pr(Zz+2*i)}, {pr(X+2*i)}"],
    ]
    for st in steps:
        for i in range(8):
            for x in st(i): g(x)
    P = 112
    for i in range(8): g(f"v_cvt_pk_bf16_f32 v{P+i}, v{Tt+2*i}, v{Tt+2*i+1}")
    g("s_nop 1")
    for qq in (0, 2):
        g(f"v_permlane32_swap_b32 v{P+2*qq}, v{P+2*qq+2}\nv_permlane32_swap_b32 v{P+2*qq+1}, v{P+2*qq+3}")
    for qq in (0, 2):
        g(f"buffer_store_dwordx4 v[{P+2*qq}:{P+2*qq+3}], v29, s[{sOUT2}:{sOUT2+3}], s{s_zoff} offen offset:{16*qq} {os.environ.get('OUTF','')}")

def kflag_offsets():
    if SPK:
        return lines(f"""v_min_u32 v{v_poll}, 31, v{v_lane}
        v_lshlrev_b32 v{v_poll}, 6, v{v_poll}
        s_mov_b32 s{s_pb}, {WS_FK}""")
    return lines(f"""
    v_min_u32 v{v_poll}, 31, v{v_lane}
    v_lshrrev_b32 v{v_poll+1}, 1, v{v_poll}
    v_and_b32 v{v_poll}, 1, v{v_poll}
    v_lshlrev_b32 v{v_poll}, 7, v{v_poll}
    v_lshl_add_u32 v{v_poll}, v{v_poll+1}, 12, v{v_poll}
    s_lshr_b32 s{s_pb}, s2, 4
    s_lshl_b32 s{s_pb}, s{s_pb}, 8
    s_bfe_u32 s{s_t0}, s2, 0x10003
    s_lshl_b32 s{s_t0}, s{s_t0}, 6
    s_add_u32 s{s_pb}, s{s_pb}, s{s_t0}
    s_add_u32 s{s_pb}, s{s_pb}, {WS_FK}
    """)
s_fo = 32
def flag_off(base):
    return lines(f"""s_lshl_b32 s{s_fo}, s{s_mi}, 4
    s_add_u32 s{s_fo}, s{s_fo}, s{s_fi}
    s_lshl_b32 s{s_fo}, s{s_fo}, 2
    s_add_u32 s{s_fo}, s{s_fo}, s{s_w}
    s_lshl_b32 s{s_fo}, s{s_fo}, 6
    s_add_u32 s{s_fo}, s{s_fo}, {base}""")
def wave_flag_L(vt, so=s_fo):
    return [f"v_mov_b32 v{vt}, 0", f"v_mov_b32 v{vt+1}, s{s_tag}", "s_mov_b64 exec, 1",
            f"buffer_store_dword v{vt+1}, v{vt}, s[{sWS}:{sWS+3}], s{so} offen sc1", "s_mov_b64 exec, -1"]

sTC = 28
def touch_setup():
    a, b = 104, 105
    return lines(f"""
    s_mov_b32 s{sTC}, s{sWD2}
    s_mov_b32 s{sTC+1}, s{sWD2+1}
    s_mov_b32 s{sTC+2}, {D*F*2}
    s_mov_b32 s{sTC+3}, 0x20000
    s_lshr_b32 s96, s2, 3
    s_mul_i32 s96, s96, 57344
    s_sub_u32 s96, s96, {32*128}
    s_movk_i32 s97, {32*128}
    s_mul_i32 s{s_t0}, s{s_w}, 8
    v_add_u32 v{a}, s{s_t0}, v{v_lane}
    v_lshlrev_b32 v{a}, 7, v{a}
    v_mov_b32 v{b}, 0x7ffffff0
    v_cmp_gt_u32 vcc, 8, v{v_lane}
    s_nop 1
    v_cndmask_b32 v19, v{b}, v{a}, vcc
    """)
sTG = 84
def g1touch_setup(first_chunk=1):
    a, b = 104, 105
    return lines(f"""
    s_and_b32 s{s_t0}, s{s_mi}, 1
    s_cmp_eq_u32 s{s_t0}, 1
    s_cselect_b32 s{sTG}, s{sWU}, s{sWG}
    s_cselect_b32 s{sTG+1}, s{sWU+1}, s{sWG+1}
    s_mov_b32 s{sTG+2}, {D*F*2}
    s_mov_b32 s92, {first_chunk*64*3584}
    s_mov_b32 s93, {64*3584}
    s_cmp_ge_u32 s{s_w}, 2
    s_cselect_b32 s{sTG}, s{sX}, s{sTG}
    s_cselect_b32 s{sTG+1}, s{sX+1}, s{sTG+1}
    s_cselect_b32 s{sTG+2}, {S*D*2}, s{sTG+2}
    s_cselect_b32 s92, {128*first_chunk}, s92
    s_cselect_b32 s93, 128, s93
    s_mov_b32 s{sTG+3}, 0x20000
    s_bfe_u32 s{s_t0}, s{s_mi}, 0x10001
    s_lshl_b32 s{s_t0}, s{s_t0}, 5
    s_lshl_b32 s{s_t1}, s{s_mf}, 4
    s_add_u32 s{s_t0}, s{s_t0}, s{s_t1}
    v_lshrrev_b32 v{a}, 1, v{v_lane}
    v_add_u32 v{a}, s{s_t0}, v{a}
    v_mul_u32_u24 v{a}, 3584, v{a}
    v_and_b32 v{b}, 1, v{v_lane}
    v_lshl_add_u32 v{a}, v{b}, 7, v{a}
    s_lshl_b32 s{s_t0}, s{s_fi}, 8
    v_add_u32 v{a}, s{s_t0}, v{a}
    v_cmp_gt_u32 vcc, 32, v{v_lane}
    v_mov_b32 v{b}, 0x7ffffff0
    s_mul_i32 s{s_t0}, s{s_ct}, 19
    s_mul_i32 s{s_t2}, s{s_mf}, 10
    s_add_u32 s{s_t0}, s{s_t0}, s{s_t2}
    s_lshl_b32 s{s_t1}, s{s_mi}, 7
    v_cndmask_b32 v87, v{b}, v{a}, vcc
    v_add_u32 v{a}, s{s_t0}, v{v_lane}
    s_movk_i32 s{s_t2}, 128
    v_cmp_gt_u32 vcc, 10, v{v_lane}
    v_cmp_gt_u32 s[94:95], s{s_t2}, v{a}
    v_add_u32 v{a}, s{s_t1}, v{a}
    v_mul_u32_u24 v{a}, 896, v{a}
    s_and_b64 vcc, vcc, s[94:95]
    s_nop 1
    v_cndmask_b32 v{a}, v{b}, v{a}, vcc
    s_cmp_ge_u32 s{s_w}, 2
    s_cselect_b64 vcc, -1, 0
    s_nop 1
    v_cndmask_b32 v87, v87, v{a}, vcc
    """)
def g1pref_setup():
    return lines(f"""
    s_and_b32 s{s_t0}, s{s_mi}, 1
    s_cmp_eq_u32 s{s_t0}, 1
    s_cselect_b32 s{sTG}, s{sWU}, s{sWG}
    s_cselect_b32 s{sTG+1}, s{sWU+1}, s{sWG+1}
    s_mov_b32 s{sTG+2}, {D*F*2}
    s_mov_b32 s{sTG+3}, 0x20000
    s_lshl_b32 s{s_t0}, s{s_mi}, 7
    s_mul_i32 s{s_t1}, s{s_ct}, 19
    s_add_u32 s{s_t0}, s{s_t0}, s{s_t1}
    s_mul_i32 s{s_t0}, s{s_t0}, 896
    s_mul_i32 s{s_t1}, s{s_w}, 4352
    s_add_u32 s92, s{s_t0}, s{s_t1}
    s_bfe_u32 s{s_t0}, s{s_mi}, 0x10001
    s_lshl_b32 s{s_t0}, s{s_t0}, 5
    s_lshl_b32 s{s_t1}, s{s_w}, 3
    s_add_u32 s{s_t0}, s{s_t0}, s{s_t1}
    s_mul_i32 s93, s{s_t0}, 3584
    s_lshl_b32 s{s_t0}, s{s_fi}, 8
    s_add_u32 s93, s93, s{s_t0}
    v_lshrrev_b32 v104, 4, v{v_lane}
    v_mul_u32_u24 v104, 3584, v104
    v_and_b32 v105, 15, v{v_lane}
    v_lshl_add_u32 v87, v105, 4, v104
    """)
def g1pref_w(c, h):
    return ["\n".join([f"s_add_u32 s91, s93, {(64*c+4*h)*3584}", f"buffer_load_dwordx4 a[244:247], v87, s[{sTG}:{sTG+3}], s91 offen"])]
def g1pref_x(i):
    return ["\n".join([f"s_add_u32 s91, s92, {1024*i}", f"buffer_load_dwordx4 a[244:247], v{v_l16}, s[{sX}:{sX+3}], s91 offen"])]
def g1touch_L():
    return [f"buffer_load_dword a255, v87, s[{sTG}:{sTG+3}], s92 offen", "s_add_u32 s92, s92, s93"]
def wdpref(i):
    return ["\n".join([f"s_add_u32 s91, s96, {1024*i}", f"buffer_load_dwordx4 a[244:247], v{v_l16}, s[{sWD2}:{sWD2+3}], s91 offen"])]
def wdpref_setup():
    return [f"s_lshr_b32 s96, s2, 3", f"s_mul_i32 s96, s96, 57344", f"s_mul_i32 s97, s{s_w}, {14*1024}", "s_add_u32 s96, s96, s97"]
def touch_L():
    return ["s_add_u32 s96, s96, s97", f"buffer_load_dword a255, v19, s[{sTC}:{sTC+3}], s96 offen"]
TOUCH = os.environ.get("TOUCH", "none")
def gemm_path(g, stamps=False):
    RTS = os.environ.get("RTS") == "1"
    rmap = {0: 0, 2: 1, 5: 2, 6: 3, 9: 4, 11: 5, 14: 6}
    def S_(i):
        if RTS:
            if i in rmap:
                stamp(g, rmap[i], True)
                g(f"s_memrealtime s[{STAMP0+2*(7+rmap[i])}:{STAMP0+2*(7+rmap[i])+1}]")
        else: stamp(g, i, stamps)
    g.vreset()
    S_(0)
    g1_prologue(g)
    TG1 = os.environ.get("TG1", "none")
    NPF = int(os.environ.get("NPF", "4"))
    pf = []
    if TG1 == "c":
        for x in g1pref_setup(): g(x)
        pf = g1pref_w(0, 0) + g1pref_w(0, 1) + [g1pref_x(i)[0] for i in range(5)]
        for c in range(1, NPF): pf += g1pref_w(c, 0) + g1pref_w(c, 1)
    else:
        for grp in g1_groups(0): emit_mixed(g, grp, "c0")
    g(f"s_mov_b32 s{s_spin}, {WS_EPOCH}\ns_load_dword s{s_tag}, s[{sWS}:{sWS+1}], s{s_spin}\ns_lshl_b32 s98, s2, 2\ns_load_dword s99, s[96:97], s98")
    if KPA:
        for r, sz in ((sKK, S*D*2), (sVV, S*D*2), (sSH, D*8)): srd_fix(g, r, sz)
        emit_mixed(g, kp_shk_load(), "shk")
        kpa_dma(g)
        for x in g1_addr(): g(x)
        for grp in g1_groups(1): emit_mixed(g, grp, "c1")
        for r, sz in ((sWS, WS_END), (sWD2, D*F*2), (sSK2, D*S*2)): srd_fix(g, r, sz)
        kps_setup(g, AKT, AVT, AKO, 1)
        g.vwait("shk")
        for x in kp_build_B(): g(x)
        S_(1)
        g.vwait("kp")
        g("s_barrier")
        kpa_compute(g)
    else:
        for x in g1_addr(): g(x)
        for grp in g1_groups(1): emit_mixed(g, grp, "c1")
        late_setup = []
        for r, sz in ((sSH, D*8), (sKK, S*D*2), (sVV, S*D*2), (sWS, WS_END), (sWD2, D*F*2), (sSK2, D*S*2)):
            late_setup += [f"s_and_b32 s{r+1}, s{r+1}, 0xffff", f"s_mov_b32 s{r+2}, {sz}", f"s_mov_b32 s{r+3}, 0x20000"]
        PROSET = int(os.environ.get("PROSET", "0"))
        if PROSET >= 1:
            for x in late_setup: g(x)
            emit_mixed(g, kp_shk_load(), "shk")
            for x in kps_dma_setup(): g(x)
        if PROSET >= 2:
            kps_setup(g)
            for x in wd_setup_v(): g(x)
            for x in epi_hoff(): g(x)
            g.vwait("shk")
            for x in kp_build_B(): g(x)
        S_(1)
    g("s_waitcnt lgkmcnt(0)")
    make_tag(g)
    g(f"s_lshl_b32 s100, s99, 16\ns_and_b32 s101, s99, 0xffff0000")
    g.vwait("c0")
    g("s_barrier")
    S_(2)
    def pre(k):
        if SPK or KPE: return []
        if KPA: return ["kvst"] if k == 7 else []
        return ["kp"] if k == KPK else []
    class _C:
        def __init__(self): self.L = []
        def __call__(self, t): self.L += lines(t)
    _c = _C()
    if KPE: kps_setup(_c, LKT2, LVT2, 24576, 2)
    else: kps_setup(_c)
    ksu = _c.L
    bB = kp_build_B()
    wsv = wd_setup_v(); eh = epi_hoff()
    def p1check(): poll_check(g, "G_p1", "p1")
    def post(k):
        E, L, X = [], [], []
        hl = conv_h_loads()
        if k == 19: E += T(wd_setup_s())
        if k == 21: E += T(conv_addr())
        kdl = kps_dma_L()
        if SPK: pass
        elif not KPA:
            kds = kps_dma_setup()
            PS = int(os.environ.get("PROSET", "0"))
            if PS < 1:
                if k == 0: E += T(late_setup)
                if k == 1: E += T(kp_shk_load(), "shk") + T(kds[:16])
                if k == 2: E += T(kds[16:])
            if PS < 2:
                if k == 4: E += T(ksu[:24])
                if k == 5: E += T(ksu[24:48])
                if k == 6: E += T(ksu[48:]) + [("VWAIT", "shk")] + T(bB[:10])
                if k == 7: E += T(bB[10:])
        else:
            if k == 6: E += T(flag_off(WS_FK))
            if k == 7: X.append(T(wave_flag_L(86), "kflag"))
        if int(os.environ.get("PROSET", "0")) < 2:
            if k == 9: E += T(wsv[:20])
            if k == 10: E += T(wsv[20:])
            if k == 11: E += T(eh)
        if TOUCH == "roll":
            for _ in range(list(TCHK).count(k)): X.append(T(touch_L(), "t2"))
        if TOUCH == "wide":
            WK0 = int(os.environ.get("WK0", "19"))
            plan = {}
            kk = WK0; i = 0
            while i < 14:
                n = 1 if kk <= 18 else int(os.environ.get('WN', '3'))
                plan[kk] = list(range(i, min(14, i+n))); i += n; kk += 1
            for i in plan.get(k, []): X.append(T(wdpref(i), "t2"))
        if TG1 == "c":
            later = [(c, h) for c in range(NPF, 7) for h in range(2)]
            if k < len(later): X.append(T(g1pref_w(*later[k]), "tg2"))
        if KPE:
            kskip = True
            if k in (19, 20, 21, 22): X.append(T(kdl[k-19:k-18], "kp"))
            if k in (22, 23): X.append(T(kps_t0_L()[k-22:k-21], "kp"))
        elif KPA or SPK:
            kskip = True
        elif os.environ.get("XNOKP"):
            if k == 3: X.append(T(kdl[0:1], "kp"))
            if k == KPK + 6: X.append(T(kps_store_L()[:1], "kvst"))
            if k == KPK + 10: E += T(flag_off(WS_FK))
            if k == KPK + 11: X.append([("VWAIT", "kvst")] + T(wave_flag_L(86), "kflag"))
            kskip = True
        else: kskip = False
        if not kskip and k in (3, 4, 5, 6): X.append(T(kdl[k-3:k-2], "kp"))
        if not kskip and k in (8, 9): X.append(T(kps_t0_L()[k-8:k-7], "kp"))
        if not kskip and k == KPK + 1: L += T(kps_stage1(), "kp1r")
        if not kskip and k == KPK + 2: E += [("LWAIT", "kp1r")] + T(kps_stage2()) + T(kps_stage3())
        if not kskip and k == KPK + 3: E += T(kps_stage4())
        if not kskip and k == KPK + 5: E += kps_stage5()
        if not kskip:
            if k == KPK + 6: X.append([("LWAIT", "kprb")] + T(kps_store_L()[:1], "kvst"))
            if k == KPK + 7: X.append(T(kps_store_L()[1:], "kvst"))
            if k == KPK + 10: E += T(flag_off(WS_FK))
            if k == KPK + 11: X.append([("VWAIT", "kvst")] + T(wave_flag_L(86), "kflag"))
        if MVG1:
            if k == 16: X.append(T(hl[:4], "h"))
            if k == 17: X.append(T(hl[4:], "h"))
            cb0 = conv_build_L(0, 2, 88, 92, 8); cb1 = conv_build_L(1, 2, 88, 92, 8)
            if k == 24: L += [("VWAIT", "h")] + T(cb0[:10])
            if k == 25: E += T(cb0[10:])
            if k == 26: E += T(cb1)
            if k == 27: E += [("CALL", lambda: conv_pad_code(g))]
        else:
            if k == 22: L += T(hl[:4], "h")
            if k == 23: L += T(hl[4:], "h")
        if k == 20:
            L += T(f"""v_min_u32 v{v_poll}, 31, v{v_lane}
            v_lshlrev_b32 v{v_poll}, 6, v{v_poll}
            s_mov_b32 s{s_pb}, {WS_FA}""")
        if k == 20: E += T(wd_dma_e(0, 0), "wd0") + T(wd_dma_e(1, 1), "wd1")
        if k == 21: E += T(wd_dma_e(2, 2), "wd2") + T(wd_dma_e(3, 3), "wd3"); L += poll_issue("p1")
        if k == 22:
            E += T(f"""v_lshrrev_b32 v{v_tch}, 5, v{v_lane}
            v_mul_u32_u24 v{v_tch}, {7168-512}, v{v_tch}
            v_add_u32 v{v_tch}, v{v_tch}, v{v_l16}
            s_mov_b32 s{sOUT2}, s64
            s_and_b32 s{sOUT2+1}, s65, 0xffff
            s_mov_b32 s{sOUT2+2}, {S*D*2}
            s_mov_b32 s{sOUT2+3}, 0x20000""")
        if k == 24:
            E += [("CALL", p1check)] + [("\n".join(lines(f"""s_mov_b32 m0, {LST}
            s_lshl_b32 s{s_t1}, s{s_mi}, 10
            s_add_u32 s{s_t1}, s{s_t1}, {WS_STATS}
            buffer_load_dwordx4 v{v_l16}, s[{sWS}:{sWS+3}], s{s_t1} offen sc1 lds""")), "st"), ("\n".join(lines(f"""s_mov_b32 m0, {LST+1024}
            s_lshl_b32 s{s_t1}, s{s_fi}, 9
            s_add_u32 s{s_t1}, s{s_t1}, {WS_CS}
            buffer_load_dwordx4 v{v_tch}, s[{sWS}:{sWS+3}], s{s_t1} offen sc1 lds""")), "st")]
            if not MVG1: L += [("VWAIT", "wd1")] + T(wd_tr_e(0, 0), "tr0") + T(wd_tr_e(1, 1), "tr1")
        if k == 25:
            E += T(kflag_offsets()) + ([] if (SPK or KPE) else poll_issue("pk"))
            if not MVG1: L += [("VWAIT", "wd3")] + T(wd_tr_e(2, 2), "tr2") + T(wd_tr_e(3, 3), "tr3")
        if k == 23: E += T(conv_copy_setup())
        if k in (24, 25): X += [T(conv_copy_dma(2*(k-24)), "cc"), T(conv_copy_dma(2*(k-24)+1), "cc")]
        if MVG1:
            if k == 22: L += [("VWAIT", "wd1")] + T(wd_tr_e(0, 0), "tr0") + T(wd_tr_e(1, 1), "tr1")
            if k == 23: L += [("VWAIT", "wd3")] + T(wd_tr_e(2, 2), "tr2") + T(wd_tr_e(3, 3), "tr3")
            if k == 24: X += [[("LWAIT", "tr1")] + T(wd_dma_e(4, 0), "wd4")]
            if k == 25: X += [[("LWAIT", "tr3")] + T(wd_dma_e(5, 1), "wd5"), T(wd_dma_e(6, 2), "wd6")]
            if k == 26: X += [T(wd_dma_e(7, 3), "wd7")]
            if k == 27:
                L += [("VWAIT", "st")] + T(epi_pre_reads(), "cs") + [("VWAIT", "wd7")]
                for j in range(4, 8): L += T(wd_tr_e(j, j-4), f"tr{j}")
        else:
            if k == 26:
                E += [("LWAIT", "tr1")] + T(wd_dma_e(4, 0), "wd4") + T(wd_dma_e(5, 1), "wd5")
            if k == 27:
                E += [("LWAIT", "tr3")] + T(wd_dma_e(6, 2), "wd6") + T(wd_dma_e(7, 3), "wd7")
                L += [("VWAIT", "st")] + ([] if KPE else T(epi_pre_reads(), "cs"))
        return E, L, X
    g1_main(g, pre, post, stamps={0: 3, 5: 4} if stamps else None)
    S_(5)
    if KPE:
        g.vwait("kp")
    g("s_waitcnt lgkmcnt(0)\ns_barrier")
    if KPE:
        kpe_compute(g)
        for x in epi_pre_reads(): g(x)
        g("s_waitcnt lgkmcnt(0)\ns_barrier")
    def pkc(): poll_check(g, "G_pk", "pk")
    def padc(): conv_pad_code(g)
    def wdring(j): return T(wd_dma(j, j-8), f"wd{j}")
    aux0 = wdring(8) + wdring(9) + [("CALL", pkc)] + [("\n".join(conv_u_dma()), "u")] + wdring(10) + [("VWAIT", "h")] + T(conv_build_L(0))
    aux1 = wdring(11) + wdring(12) + T(conv_build_L(1)) + [("VWAIT", "wd7")]
    for j in range(4, 8): aux1 += T(wd_tr_e(j, j-4), f"tr{j}")
    aux2 = wdring(13) + wdring(14) + [("CALL", padc)] + wdring(15) + wdring(16)
    aux3 = [("LWAIT", "tr7")]
    for j in range(17, 21): aux3 += T(wd_dma_e(j, j-17), f"wd{j}")
    aux3 += T(conv_addr())
    if EST: stamp(g, 1)
    if os.environ.get("ELOOP", "1") == "1":
        def mk(L):
            def f():
                for x2, t2 in L:
                    if x2 == "CALL": t2()
                    else: g.emit(x2, t2)
            return f
        ku = [("CALL", pkc)] + [("\n".join(conv_u_dma()), "u")]
        late = SPK or KPE
        b0 = ([] if late else ku) + ([] if MVG1 else [("VWAIT", "h")] + T(conv_build_L(0)))
        b1 = []
        if KPE:
            b0 += [("VWAIT", "kvst")] + T(flag_off(WS_FK)) + T(wave_flag_L(2), "kflag")
        if not MVG1:
            b1 += T(conv_build_L(1)) + [("VWAIT", "wd7")]
            for j in range(4, 8): b1 += T(wd_tr_e(j, j-4), f"tr{j}")
        b2 = ([] if MVG1 else [("CALL", padc)]) + (poll_issue("pk") if late else [])
        b3 = list(ku) if late else []
        if os.environ.get("POSTB", "1") == "1":
            b3 += [("LWAIT", "tr7")]
            hf = [("VWAIT", "hst")] + T(flag_off(WS_FH)) + T(wave_flag_L(52), "hflag")
            b2 = hf + b2
        for j in range(17, 21): b3 += T(wd_dma_e(j, j-17), f"wd{j}")
        g1_epilogue_loop(g, [mk(b0), mk(b1), mk(b2), mk(b3)])
    else:
        g1_epilogue(g, [aux0, aux1, aux2, aux3])
    if EST: stamp(g, 10)
    S_(6)
    g.vwait("u")
    g("s_waitcnt lgkmcnt(0)\ns_barrier")
    g.ldops = []
    for x in conv_reads(0): g.ld(x, "cv0")
    S_(7)
    def hflag():
        g.vwait("hst")
        for x in flag_off(WS_FH) + wave_flag_L(52): g.emit(x, "hflag")
    S_(8)
    conv_main(g, hflag)
    if CST: stamp(g, 13)
    S_(9)
    conv_epilogue(g)
    S_(10)
    def zflag():
        g.vwait("zst")
        g(f"s_lshl_b32 s{s_fo}, s2, 2\ns_add_u32 s{s_fo}, s{s_fo}, s{s_w}\ns_lshl_b32 s{s_fo}, s{s_fo}, 6\ns_add_u32 s{s_fo}, s{s_fo}, {WS_FZ}")
        for x in wave_flag_L(52): g.emit(x, "zflag")
    ZFJ = int(os.environ.get('ZFJ', '8'))
    def zcheck(): poll_check(g, "G_p3", "pz")
    zl = []
    for q in range(4):
        for i in range(4):
            zl.append((f"s_add_u32 s{s_t2}, s{s_zp}, {(8*q+i)*4096}\nbuffer_load_ushort v{fz+4*q+i}, v28, s[{sWS}:{sWS+3}], s{s_t2} offen sc1", "z"))
    zl = zl
    def extra(j):
        L = []
        if j == 14: L += T(final_loads_x(), "x")
        if j == ZFJ: L += [("CALL", zflag)]
        if j == 17: L += T(final_z_setup())
        if j == 23: L += poll_issue("pz")
        if j == 20: L += T(final_pre())
        return L
    g2_main(g, extra)
    S_(11)
    zcheck()
    for x, tg in zl: g.emit(x, tg)
    g2_reduce2(g)
    S_(12)
    final(g)
    S_(13)
    if stamps: g("s_waitcnt vmcnt(0)")
    S_(14)

def epoch_update(g):
    g(f"""s_cmp_lg_u32 s2, 224
    s_cbranch_scc1 G_noep
    s_cmp_lg_u32 s{s_w}, 0
    s_cbranch_scc1 G_noep
    v_and_b32 v2, 63, v0
    s_mov_b32 s{s_spin}, 0x8000""")
    for part in range(4):
        g(f"""v_add_u32 v{4+part}, {part*64}, v2
        v_min_u32 v{4+part}, 223, v{4+part}
        v_lshlrev_b32 v{4+part}, 8, v{4+part}
        v_add_u32 v{4+part}, {WS_FZ}, v{4+part}""")
    g(f"""v_min_u32 v8, 31, v2
    v_lshlrev_b32 v8, 6, v8
    v_add_u32 v8, {WS_FA}, v8
    G_ep_loop:""")
    for part in range(5):
        g(f"buffer_load_dword v{10+part}, v{4+part}, s[{sWS}:{sWS+3}], 0 offen sc1")
    g("s_waitcnt vmcnt(0)")
    for part in range(5): g(f"v_xor_b32 v{10+part}, s{s_tag}, v{10+part}")
    g("v_or3_b32 v10, v10, v11, v12\nv_or3_b32 v10, v10, v13, v14\nv_cmp_ne_u32 vcc, 0, v10")
    g(f"""s_cbranch_vccz G_ep_done
    s_sleep 8
    s_sub_u32 s{s_spin}, s{s_spin}, 1
    s_cmp_lg_u32 s{s_spin}, 0
    s_cbranch_scc1 G_ep_loop
    G_ep_done:
    v_mov_b32 v2, {WS_EPOCH}
    v_mov_b32 v3, s{s_tag}
    s_mov_b64 exec, 1
    buffer_store_dword v3, v2, s[{sWS}:{sWS+3}], 0 offen sc1
    s_mov_b64 exec, -1
    s_waitcnt vmcnt(0)
    G_noep:""")

def gen_full(stamps=False):
    g = G()
    g(header([f"grid=(256,1,1) block=(256,1,1) lds={LDS_TOTAL}"]))
    g(kstart(KN))
    g("s_cmp_ge_u32 s2, 224\ns_cbranch_scc1 L_spare")
    if stamps: start_rt(g)
    gemm_path(g, stamps=stamps)
    if stamps: dump_stamps(g)
    g("s_endpgm")
    g("L_spare:")
    g("s_cmp_ge_u32 s2, 256\ns_cbranch_scc1 L_end")
    if stamps: start_rt(g)
    spare(g, flags=True, stamps=stamps)
    epoch_update(g)
    if stamps: dump_stamps(g)
    g("L_end:\ns_endpgm")
    g(kdesc(KN, vgpr=512, sgpr=102, accum=256))
    return g.a.text()
def gen_full_stamps(): return gen_full(stamps=True)
def gen_kst0():
    global KSTAMP, stamp
    KSTAMP = 0
    return gen_kstx()
def gen_kst14():
    global KSTAMP
    KSTAMP = 14
    return gen_kstx()
def gen_est():
    return gen_kstx()
def gen_gst():
    global GSTAMP
    GSTAMP = int(os.environ["GK"])
    return gen_kstx()
def gen_kstx():
    g = G()
    g(header([f"grid=(256,1,1) block=(256,1,1) lds={LDS_TOTAL}"]))
    g(kstart(KN))
    g("s_cmp_ge_u32 s2, 224\ns_cbranch_scc1 L_spare")
    stamp(g, 0)
    gemm_path(g, stamps=False)
    dump_stamps(g)
    g("s_endpgm")
    g("L_spare:")
    g("s_cmp_ge_u32 s2, 256\ns_cbranch_scc1 L_end")
    spare(g, flags=True, stamps=False)
    epoch_update(g)
    g("L_end:\ns_endpgm")
    g(kdesc(KN, vgpr=512, sgpr=102, accum=256))
    return g.a.text()

if __name__ == "__main__":
    import runner
    which = sys.argv[1]
    txt = globals()["gen_"+which]()
    open(f"dev/{which}.s", "w").write(txt)
    runner.build(f"dev/{which}.s", KN, 13)
    from runner import cl
    print("ok", len(txt), cl.address_register_problem(f"dev/{which}.co", KN))
```
